```python
import torch

def _softmax(x, axis=-1):
    return torch.softmax(x, dim=axis)
def _gelu(x):
    return torch.nn.functional.gelu(x, approximate="tanh")
def _silu(x):
    return torch.nn.functional.silu(x)
def _sigmoid(x):
    return torch.sigmoid(x)
def _layernorm(x, axis=-1, eps=1e-5):
    m = x.mean(dim=axis, keepdim=True)
    v = x.var(dim=axis, keepdim=True, unbiased=False)
    return (x - m) / torch.sqrt(v + eps)
def _scatter_add(tgt, idx, src, axis=0):
    return tgt.clone().index_add_(axis, idx, src)
def _segment_sum(src, seg, n):
    out = torch.zeros((n,) + src.shape[1:], dtype=src.dtype)
    return out.index_add_(0, seg, src)
def _pad(x, pw):
    flat = tuple(v for pair in reversed(pw) for v in pair)
    return torch.nn.functional.pad(x, flat)

kernel_name = 'concat_heads__gqa_block_cached__gqa_block_cached__near_ridge'

def setup_inputs():

    _w = (lambda a: (lambda t: t.to(torch.bfloat16) if t.is_floating_point() else t)(torch.as_tensor(a)))
    def _A_setup():
        B, Sq, D = 8, 96, 640
        Hq, Hkv, Sk, Dh = 32, 32, 96, 128
        assert Hq % Hkv == 0, (Hq, Hkv)
        return {
            "x": _w((lambda *s: torch.randn(*s, dtype=torch.bfloat16) * 0.8)(B, Sq, D)),
            "k_cache": _w((lambda *s: torch.randn(*s, dtype=torch.bfloat16) * 0.8)(B, Hkv, Sk, Dh)),
            "v_cache": _w((lambda *s: torch.randn(*s, dtype=torch.bfloat16) * 0.05)(B, Hkv, Sk, Dh)),
            "wq": _w((lambda *s: torch.randn(*s, dtype=torch.bfloat16) * 0.8)(D, Hq * Dh) * (D ** -0.5)),
            "wo": _w((lambda *s: torch.randn(*s, dtype=torch.bfloat16) * 0.05)(Hq * Dh, D) * ((Hq * Dh) ** -0.5)),
        }
    _A_in = _A_setup()

    def _B_setup():
        B, Sq, D = 8, 96, 640
        Hq, Hkv, Sk, Dh = 32, 32, 96, 128
        assert Hq % Hkv == 0, (Hq, Hkv)
        return {
            "x": _w((lambda *s: torch.randn(*s, dtype=torch.bfloat16) * 0.8)(B, Sq, D)),
            "k_cache": _w((lambda *s: torch.randn(*s, dtype=torch.bfloat16) * 0.8)(B, Hkv, Sk, Dh)),
            "v_cache": _w((lambda *s: torch.randn(*s, dtype=torch.bfloat16) * 0.05)(B, Hkv, Sk, Dh)),
            "wq": _w((lambda *s: torch.randn(*s, dtype=torch.bfloat16) * 0.8)(D, Hq * Dh) * (D ** -0.5)),
            "wo": _w((lambda *s: torch.randn(*s, dtype=torch.bfloat16) * 0.05)(Hq * Dh, D) * ((Hq * Dh) ** -0.5)),
        }
    _B_in = _B_setup()

    return {
        "A_x": _A_in["x"],
        "A_k_cache": _A_in["k_cache"],
        "A_v_cache": _A_in["v_cache"],
        "A_wq": _A_in["wq"],
        "A_wo": _A_in["wo"],
        "B_x": _B_in["x"],
        "B_k_cache": _B_in["k_cache"],
        "B_v_cache": _B_in["v_cache"],
        "B_wq": _B_in["wq"],
        "B_wo": _B_in["wo"],
    }

def reference(A_x, A_k_cache, A_v_cache, A_wq, A_wo, B_x, B_k_cache, B_v_cache, B_wq, B_wo):
    def _A_ref(x, k_cache, v_cache, wq, wo):
        B, Sq, D = x.shape
        Hq, Dh = 32, 128
        Hkv = k_cache.shape[1]
        rep = Hq // Hkv
        q = (lambda x, *d: x.permute(*d))((x @ wq).reshape(B, Sq, Hq, Dh), 0, 2, 1, 3)
        k = (lambda x, n, axis: torch.repeat_interleave(x, n, dim=axis))(k_cache, rep, axis=1)
        v = (lambda x, n, axis: torch.repeat_interleave(x, n, dim=axis))(v_cache, rep, axis=1)
        scores = torch.einsum("bhqd,bhkd->bhqk", q, k) * (Dh ** -0.5)
        p = _softmax(scores, axis=-1)
        o = torch.einsum("bhqk,bhkd->bhqd", p, v)
        return (lambda x, *d: x.permute(*d))(o, 0, 2, 1, 3).reshape(B, Sq, Hq * Dh) @ wo

    def _B_ref(x, k_cache, v_cache, wq, wo):
        B, Sq, D = x.shape
        Hq, Dh = 32, 128
        Hkv = k_cache.shape[1]
        rep = Hq // Hkv
        q = (lambda x, *d: x.permute(*d))((x @ wq).reshape(B, Sq, Hq, Dh), 0, 2, 1, 3)
        k = (lambda x, n, axis: torch.repeat_interleave(x, n, dim=axis))(k_cache, rep, axis=1)
        v = (lambda x, n, axis: torch.repeat_interleave(x, n, dim=axis))(v_cache, rep, axis=1)
        scores = torch.einsum("bhqd,bhkd->bhqk", q, k) * (Dh ** -0.5)
        p = _softmax(scores, axis=-1)
        o = torch.einsum("bhqk,bhkd->bhqd", p, v)
        return (lambda x, *d: x.permute(*d))(o, 0, 2, 1, 3).reshape(B, Sq, Hq * Dh) @ wo

    a = _A_ref(A_x, A_k_cache, A_v_cache, A_wq, A_wo)
    b = _B_ref(B_x, B_k_cache, B_v_cache, B_wq, B_wo)
    return torch.concatenate([a, b], axis=-1)
```

```python
import re

TRANS = ('v_exp_f32', 'v_log_f32', 'v_rcp_f32', 'v_rsq_f32', 'v_sqrt_f32', 'v_sin_f32', 'v_cos_f32')

def _regs(tok):
    tok = tok.strip()
    tok = tok.lstrip('-')
    m = re.fullmatch(r'abs\((.*)\)', tok)
    if m: tok = m.group(1)
    m = re.fullmatch(r'\|(.*)\|', tok)
    if m: tok = m.group(1)
    m = re.fullmatch(r'([vsa])\[(\d+):(\d+)\]', tok)
    if m:
        return [(m.group(1), i) for i in range(int(m.group(2)), int(m.group(3)) + 1)]
    m = re.fullmatch(r'([vsa])(\d+)', tok)
    if m:
        return [(m.group(1), int(m.group(2)))]
    if tok in ('vcc', 'vcc_lo', 'vcc_hi'): return [('x', 'vcc')]
    if tok in ('exec', 'exec_lo', 'exec_hi'): return [('x', 'exec')]
    if tok == 'm0': return [('x', 'm0')]
    return []

class Ins:
    __slots__ = ('text', 'op', 'ops', 'kind', 'wr', 'rd', 'passes', 'srcc', 'srcab', 'states', 'is_lds_dma', 'store_data')
    def __init__(self, text):
        self.text = text
        t = text.split(';')[0].strip()
        self.kind = 'other'
        self.wr = []; self.rd = []; self.passes = 0; self.srcc = []; self.srcab = []
        self.states = 1; self.is_lds_dma = False; self.store_data = []
        if not t or t.endswith(':') or t.startswith('.'):
            self.kind = 'label'; self.op = ''; self.ops = []; self.states = 0
            return
        parts = t.split(None, 1)
        op = parts[0]; self.op = op
        rest = parts[1] if len(parts) > 1 else ''
        ops = [x.strip() for x in re.split(r',(?![^\[]*\])', rest)] if rest else []
        mods = ''
        if ops:
            sp = ops[-1].split(None, 1)
            if len(sp) > 1:
                ops[-1] = sp[0]; mods = sp[1]
        self.ops = ops
        R = lambda i: _regs(ops[i]) if i < len(ops) else []
        base = re.sub(r'_(e32|e64|dpp|sdwa)$', '', op)
        if op == 's_nop':
            self.kind = 'nop'; self.states = int(ops[0], 0) + 1
        elif op.startswith('v_mfma'):
            self.kind = 'mfma'
            self.passes = 8 if '32x32' in op else 4
            self.wr = R(0); self.srcab = R(1) + R(2); self.srcc = R(3); self.rd = self.srcab + self.srcc
        elif op.startswith('v_'):
            self.kind = 'valu'
            if base in TRANS: self.kind = 'trans'
            if base.startswith('v_cmp'):
                self.wr = R(0); self.rd = R(1) + R(2)
                if base.startswith('v_cmpx'): self.wr += [('x', 'exec')]
            elif base.startswith('v_permlane') and 'swap' in base:
                self.kind = 'permlane'; self.wr = R(0) + R(1); self.rd = R(0) + R(1)
            elif base in ('v_readfirstlane_b32', 'v_readlane_b32'):
                self.kind = 'readlane'; self.wr = R(0); self.rd = R(1) + R(2)
            elif base in ('v_add_co_u32', 'v_sub_co_u32', 'v_addc_co_u32', 'v_subb_co_u32', 'v_mad_u64_u32'):
                self.wr = R(0) + R(1); self.rd = sum((R(i) for i in range(2, len(ops))), [])
            else:
                self.wr = R(0); self.rd = sum((R(i) for i in range(1, len(ops))), [])
                if base in ('v_fmac_f32', 'v_pk_fmac_f16', 'v_writelane_b32'): self.rd += R(0)
                if base == 'v_cndmask_b32' and len(ops) == 3: self.rd += [('x', 'vcc')]
            if 'dpp' in op or 'row_' in mods or 'quad_perm' in mods: self.kind = 'dpp' if self.kind == 'valu' else self.kind
        elif op.startswith('ds_'):
            self.kind = 'ds'
            if op.startswith('ds_read') or op.startswith('ds_bpermute') or op.startswith('ds_permute') or op.startswith('ds_swizzle'):
                self.wr = R(0); self.rd = sum((R(i) for i in range(1, len(ops))), [])
            else:
                self.rd = sum((R(i) for i in range(len(ops))), [])
        elif op.startswith('buffer_') or op.startswith('global_'):
            self.kind = 'vmem'
            allr = sum((R(i) for i in range(len(ops))), [])
            if op in ('buffer_wbl2', 'buffer_inv'):
                pass
            elif re.search(r'\blds\b', mods) or '_lds_' in op:
                self.is_lds_dma = True; self.rd = allr + [('x', 'm0')]
            elif '_load' in op:
                self.wr = R(0); self.rd = sum((R(i) for i in range(1, len(ops))), [])
            elif '_store' in op:
                self.rd = allr
                d = R(0) if op.startswith('buffer_') else R(1)
                if 'x4' in op or 'x3' in op: self.store_data = d
            else:
                self.rd = allr
                if 'sc0' in mods:
                    self.wr = R(0)
        elif op.startswith('s_'):
            self.kind = 'salu'
            if op.startswith('s_cmp') or op.startswith('s_cbranch') or op in ('s_branch', 's_barrier', 's_waitcnt', 's_endpgm', 's_setprio', 's_sleep', 's_bitcmp1_b32', 's_bitcmp0_b32'):
                self.rd = sum((R(i) for i in range(len(ops))), [])
            else:
                self.wr = R(0); self.rd = sum((R(i) for i in range(1, len(ops))), [])
                if 'saveexec' in op: self.wr += [('x', 'exec')]

def _isvalu(i): return i.kind in ('valu', 'trans', 'permlane', 'readlane', 'dpp')

def need(p, c):
    n = 0
    pw = set(p.wr); cr = set(c.rd); cw = set(c.wr)
    if _isvalu(p):
        vw = {r for r in pw if r[0] in 'va'}
        sw = {r for r in pw if r[0] in 's' or r == ('x', 'vcc')}
        if c.kind == 'mfma' and vw & cr: n = max(n, 2)
        if c.kind == 'permlane' and vw & cr: n = max(n, 2)
        if c.kind == 'dpp' and vw & cr: n = max(n, 2)
        if c.kind == 'readlane' and vw & cr: n = max(n, 1)
        if p.kind == 'trans' and _isvalu(c) and c.kind != 'trans' and vw & cr: n = max(n, 1)
        if p.kind == 'trans' and c.kind == 'trans' and vw & cr: n = max(n, 1)
        if sw & cr:
            if _isvalu(c): n = max(n, 4 if c.kind == 'readlane' else 2)
            if c.kind == 'vmem': n = max(n, 5)
            if c.kind == 'salu': n = max(n, 1)
        if ('x', 'exec') in pw:
            if c.kind == 'mfma': n = max(n, 4)
            if c.kind in ('permlane', 'readlane'): n = max(n, 4)
            if c.kind == 'dpp': n = max(n, 5)
    if p.kind == 'mfma':
        big = 12 if p.passes == 8 else 8
        ovl = 10 if p.passes == 8 else 6
        war = 7 if p.passes == 8 else 3
        if c.kind == 'mfma':
            if pw & set(c.srcab): n = max(n, big)
            if pw & set(c.srcc):
                if not (p.wr == c.srcc and p.passes == c.passes): n = max(n, ovl)
            if pw & cw and not (p.wr == c.wr and p.wr == c.srcc):
                n = max(n, ovl)
        elif c.kind != 'salu' and c.kind != 'nop' and c.kind != 'label':
            if pw & (cr | cw): n = max(n, big)
            if _isvalu(c) and set(p.srcc) & cw: n = max(n, war)
    if p.kind == 'salu':
        if ('x', 'm0') in pw and c.is_lds_dma: n = max(n, 1)
    if p.store_data and set(p.store_data) & cw:
        n = max(n, 2 if _isvalu(c) else 1)
    return n

class Prog:
    def __init__(self):
        self.lines = []
    def e(self, text):
        for t in text.split('\n'):
            self.lines.append(t)
    def __call__(self, text): self.e(text)
    def finalize(self, verbose=False):
        out = []
        hist = []
        nnops = 0
        for t in self.lines:
            ins = Ins(t)
            if ins.kind == 'label':
                out.append(ins); continue
            req = 0; dist = 0
            for p in reversed(hist[-24:]):
                n = need(p, ins)
                if n > dist: req = max(req, n - dist)
                dist += p.states
                if dist >= 20: break
            while req > 0:
                k = min(req, 16)
                nop = Ins(f's_nop {k-1}'); out.append(nop); hist.append(nop); req -= k; nnops += 1
            out.append(ins); hist.append(ins)
            if ins.op in ('s_endpgm', 's_branch'):
                hist = []
        labels = {}
        for i, ins in enumerate(out):
            t = ins.text.split(';')[0].strip()
            if ins.kind == 'label' and t.endswith(':'): labels[t[:-1]] = i
        for i, ins in enumerate(out):
            if ins.op.startswith('s_cbranch') or ins.op == 's_branch':
                tgt = labels.get(ins.ops[0])
                if tgt is None: continue
                pre = [x for x in out[max(0, i - 24):i + 1] if x.kind != 'label']
                post = [x for x in out[tgt:tgt + 24] if x.kind != 'label']
                d0 = 0
                for c in post:
                    dist = d0
                    for p in reversed(pre):
                        n = need(p, c)
                        if n > dist:
                            raise RuntimeError(f'hazard across branch {ins.text}: {p.text} -> {c.text} needs {n}, has {dist}')
                        dist += p.states
                        if dist >= 20: break
                    d0 += c.states
                    if d0 >= 20: break
        if verbose: print(f'; inserted {nnops} nops')
        return '\n'.join(('    ' + x.text.strip() if x.kind != 'label' else x.text) for x in out)

def interleave(main, fill, start=0, per=None):
    out = []
    nm = len(main); nf = len(fill); fi = 0
    for i, m in enumerate(main):
        out.append(m)
        if i < start: continue
        if per is None:
            tgt = (i - start + 1) * nf // max(1, (nm - start))
        else:
            tgt = min(nf, fi + per)
        while fi < tgt:
            out.append(fill[fi]); fi += 1
    out += fill[fi:]
    return out
```

```python
import sys
from asmlib import Prog, interleave
NAME = 'concat_heads__gqa_block_cached__gqa_block_cached__near_ridge'
STAMPS = '--stamps' in sys.argv
HDR = open('cdna_kernels/%s.s.ref' % NAME).read().split('; Override launch')[0]

LOG2E_SCALE = 1.4426950408889634 * (128 ** -0.5)
import struct
def f32bits(x): return struct.unpack('<I', struct.pack('<f', x))[0]

def vr(b, n=4): return f'v[{b}:{b+n-1}]'

def kd(name, vgpr, sgpr=96):
    return f'''.amdhsa_kernel {name}
  .amdhsa_next_free_vgpr {vgpr}
  .amdhsa_next_free_sgpr {sgpr}
  .amdhsa_accum_offset {(vgpr+3)//4*4}
  .amdhsa_group_segment_fixed_size 0
  .amdhsa_kernarg_size 104
  .amdhsa_user_sgpr_count 2
  .amdhsa_user_sgpr_kernarg_segment_ptr 1
  .amdhsa_system_sgpr_workgroup_id_x 1
.end_amdhsa_kernel
'''

def srd(p, d, lo, hi, size):
    p(f's_mov_b32 s{d}, s{lo}')
    p(f's_and_b32 s{d+1}, s{hi}, 0xffff')
    if isinstance(size, int): p(f's_mov_b32 s{d+2}, {size}')
    else: p(f's_mov_b32 s{d+2}, {size}')
    p(f's_mov_b32 s{d+3}, 0x20000')

def stamp(p, idx, nst, srdws, base_s):
    if not STAMPS: return
    p('s_memrealtime s[90:91]')
    p('s_waitcnt lgkmcnt(0)')
    p('v_mov_b32 v254, s90'); p('v_mov_b32 v255, s91'); p('v_mov_b32 v253, 0')
    p('s_mov_b64 exec, 1')
    p(f'buffer_store_dwordx2 v[254:255], v253, s[{srdws}:{srdws+3}], s{base_s} offen offset:{idx*8}')
    p('s_mov_b64 exec, -1')

O_BYTES = 2 * 128 * 48 * 1024
NST = 8
def gen_k1():
    p = Prog()
    K1 = NAME + '_kernel'
    p(f'.globl {K1}\n.p2align 8\n.type {K1},@function\n{K1}:')
    p('s_cmp_ge_u32 s2, 256')
    p('s_cbranch_scc1 L1_end')
    p('s_load_dwordx8 s[16:23], s[0:1], 0')
    p('s_load_dwordx8 s[24:31], s[0:1], 40')
    p('s_load_dwordx2 s[32:33], s[0:1], 96')
    p('v_lshrrev_b32 v1, 6, v0')
    p('v_and_b32 v2, 63, v0')
    p('v_readfirstlane_b32 s3, v1')
    p('s_and_b32 s4, s2, 7')
    p('s_lshr_b32 s5, s2, 3')
    p('s_lshr_b32 s6, s4, 2')
    p('s_and_b32 s7, s4, 3')
    p('s_lshl_b32 s7, s7, 3')
    p('s_and_b32 s8, s5, 7')
    p('s_add_u32 s7, s7, s8')
    p('s_lshr_b32 s8, s5, 3')
    p('s_waitcnt lgkmcnt(0)')
    p('s_cmp_eq_u32 s6, 0')
    for i in range(4):
        p(f's_cselect_b64 s[{16+2*i}:{17+2*i}], s[{16+2*i}:{17+2*i}], s[{24+2*i}:{25+2*i}]')
    p('s_mul_i32 s9, s8, 245760')
    p('s_add_u32 s16, s16, s9'); p('s_addc_u32 s17, s17, 0')
    srd(p, 36, 16, 17, 245760)
    p('s_lshl_b32 s9, s7, 8')
    p('s_add_u32 s22, s22, s9'); p('s_addc_u32 s23, s23, 0')
    p('s_sub_u32 s10, 5242880, s9')
    srd(p, 40, 22, 23, 's10')
    p('s_lshl_b32 s9, s8, 6')
    p('s_add_u32 s9, s9, s7')
    p('s_mul_i32 s9, s9, 24576')
    p('s_add_u32 s18, s18, s9'); p('s_addc_u32 s19, s19, 0')
    srd(p, 44, 18, 19, 786432 + 24576)
    p('s_add_u32 s20, s20, s9'); p('s_addc_u32 s21, s21, 0')
    srd(p, 48, 20, 21, 786432 + 24576)
    srd(p, 52, 32, 33, O_BYTES)
    if STAMPS:
        srd(p, 56, 32, 33, 0x10000000)
        p(f's_mul_i32 s60, s2, {NST*8}')
        p('s_add_u32 s60, s60, 0xF000000')
    XS, WS_, SP = 0, 73728, 122880
    KB0, KB1, VB0, VB1 = SP, XS + 24576, XS + 49152, WS_ + 16384
    p('s_and_b32 s11, s3, 3')
    p('v_lshrrev_b32 v3, 4, v2')
    p('v_and_b32 v4, 15, v2')
    p('s_lshl_b32 s12, s11, 2')
    p('v_add_u32 v5, s12, v3')
    p('v_xor_b32 v6, v4, v5')
    p('v_lshlrev_b32 v6, 4, v6')
    p('v_lshl_add_u32 v10, v5, 8, v6')
    p('s_cmp_ge_u32 s3, 4')
    p('s_cbranch_scc1 L1_loader')
    if STAMPS:
        p('s_cmp_lg_u32 s3, 0'); p('s_cbranch_scc1 L1_ns0')
        stamp(p, 0, NST, 56, 60)
        p('L1_ns0:')
    p(f's_lshl_b32 s13, s11, 10')
    for m in range(6):
        p(f's_add_u32 m0, s13, {KB0 + m*4096}')
        p(f's_mov_b32 s14, {m*4096}')
        p(f'buffer_load_dwordx4 v10, s[44:47], s14 offen lds')
    ACC = 16; AF = 112; BF = 176; QB = 200
    AA = 2
    AADR = 240; BADR = 248
    p('v_bfe_u32 v5, v2, 2, 2')
    p('v_and_b32 v6, 3, v2')
    p('v_and_b32 v7, 1, v3')
    p('v_lshl_add_u32 v7, v7, 2, v5')
    p('v_lshlrev_b32 v7, 1, v7')
    p('v_lshrrev_b32 v8, 1, v6')
    p('v_xor_b32 v7, v7, v8')
    p('v_lshlrev_b32 v7, 4, v7')
    p('v_and_b32 v8, 1, v6')
    p('v_lshl_add_u32 v7, v8, 3, v7')
    p('v_lshl_add_u32 v8, v3, 3, v5')
    p('v_lshl_add_u32 v8, v8, 8, v7')
    p(f'v_add_u32 v8, {WS_}, v8')
    for t in range(8):
        p(f'v_xor_b32 v{AADR+t}, {t<<5}, v8')
    p('v_lshrrev_b32 v8, 1, v4')
    p('v_xor_b32 v8, v8, v3')
    p('v_lshlrev_b32 v8, 4, v8')
    p('v_lshl_add_u32 v8, v4, 7, v8')
    p('s_mul_i32 s13, s3, 6144')
    p(f'v_add_u32 v{BADR}, s13, v8')
    p(f'v_xor_b32 v{BADR+1}, 64, v{BADR}')
    for i in range(96):
        p(f'v_mov_b32 v{ACC+i}, 0')
    def reads(st, ks):
        L = []
        for qt in range(3):
            L.append(f'ds_read_b128 {vr(BF+st*12+qt*4)}, v{BADR+ks} offset:{qt*2048}')
        for t in range(8):
            L.append(f'ds_read_b64_tr_b16 {vr(AF+st*32+t*4,2)}, v{AADR+t} offset:{ks*8192}')
            L.append(f'ds_read_b64_tr_b16 {vr(AF+st*32+t*4+2,2)}, v{AADR+t} offset:{ks*8192+1024}')
        return L
    def mfmas(st):
        L = []
        for t in range(8):
            for qt in range(3):
                a = ACC + (t*3+qt)*4
                L.append(f'v_mfma_f32_16x16x32_bf16 {vr(a)}, {vr(AF+st*32+t*4)}, {vr(BF+st*12+qt*4)}, {vr(a)}')
        return L
    p('s_mov_b32 s14, 0')
    p('s_mov_b32 s15, 0')
    p('s_barrier')
    for x in reads(0, 0): p(x)
    p('L1_loop:')
    p('s_waitcnt lgkmcnt(0)')
    for x in interleave(mfmas(0), reads(1, 1), per=2): p(x)
    p('s_add_u32 s14, s14, 1')
    p('s_cmp_eq_u32 s14, 3')
    p('s_cselect_b32 s61, -2, 1')
    p('s_mul_i32 s62, s61, 16384')
    p('s_mul_i32 s63, s61, 24576')
    p('s_cselect_b32 s14, 0, s14')
    p('s_cmp_eq_u32 s15, 9')
    p('s_cbranch_scc0 L1_nowait')
    p('s_waitcnt vmcnt(0)')
    p('L1_nowait:')
    p('s_waitcnt lgkmcnt(0)')
    p('s_barrier')
    upd = [f'v_add_u32 v{BADR+i}, s63, v{BADR+i}' for i in range(2)] + [f'v_add_u32 v{AADR+t}, s62, v{AADR+t}' for t in range(8)]
    for x in interleave(mfmas(1), upd + reads(0, 0), per=2): p(x)
    p('s_add_u32 s15, s15, 1')
    p('s_cmp_lt_u32 s15, 10')
    p('s_cbranch_scc1 L1_loop')
    p('s_waitcnt lgkmcnt(0)')
    if STAMPS:
        p('s_cmp_lg_u32 s3, 0'); p('s_cbranch_scc1 L1_ns1')
        stamp(p, 1, NST, 56, 60)
        p('L1_ns1:')
    KADR = 176
    p('v_lshrrev_b32 v8, 1, v3')
    p('v_xor_b32 v8, v8, v4')
    p('v_lshlrev_b32 v8, 4, v8')
    p('v_lshl_add_u32 v8, v4, 8, v8')
    p('v_and_b32 v9, 1, v3')
    p('v_lshl_add_u32 v8, v9, 3, v8')
    p('s_cmp_lt_u32 s3, 2')
    p(f's_mov_b32 s13, {KB1}')
    p(f's_mov_b32 s14, {VB1}')
    p(f's_cselect_b32 s13, {KB0}, s13')
    p(f's_cselect_b32 s14, {VB0}, s14')
    p('v_add_u32 v8, s13, v8')
    for m in range(8):
        p(f'v_xor_b32 v{KADR+m}, {m<<5}, v8')
    for u in range(4):
        for qt in range(3):
            d = QB + (u*3+qt)*4
            a0 = ACC + ((2*u)*3+qt)*4; a1 = ACC + ((2*u+1)*3+qt)*4
            p(f'v_cvt_pk_bf16_f32 v{d}, v{a0}, v{a0+1}')
            p(f'v_cvt_pk_bf16_f32 v{d+1}, v{a0+2}, v{a0+3}')
            p(f'v_cvt_pk_bf16_f32 v{d+2}, v{a1}, v{a1+1}')
            p(f'v_cvt_pk_bf16_f32 v{d+3}, v{a1+2}, v{a1+3}')
    KF = 16; SA = 112
    def sacc(kt, qt):
        i = kt*3+qt
        return 112 + i*4 if i < 16 else 184 + (i-16)*4
    for kt in range(6):
        for u in range(4):
            d = KF + (kt*4+u)*4
            p(f'ds_read_b64 {vr(d,2)}, v{KADR+2*u} offset:{kt*4096}')
            p(f'ds_read_b64 {vr(d+2,2)}, v{KADR+2*u+1} offset:{kt*4096}')
        if kt % 2 == 1 or True:
            pass
    p('s_waitcnt lgkmcnt(0)')
    for kt in range(6):
        for u in range(4):
            for qt in range(3):
                s = sacc(kt, qt)
                c = '0' if u == 0 else vr(s)
                p(f'v_mfma_f32_16x16x32_bf16 {vr(s)}, {vr(KF+(kt*4+u)*4)}, {vr(QB+(u*3+qt)*4)}, {c}')
    p('s_barrier')
    p('v_bfe_u32 v5, v2, 2, 2')
    p('v_lshl_add_u32 v8, v3, 2, v5')
    p('v_lshl_add_u32 v8, v8, 8, v7')
    p('v_add_u32 v8, s14, v8')
    for t in range(8):
        p(f'v_xor_b32 v{KADR+t}, {t<<5}, v8')
    VF = 16
    for t in range(8):
        for u in range(3):
            d = VF + (t*3+u)*4
            p(f'ds_read_b64_tr_b16 {vr(d,2)}, v{KADR+t} offset:{u*8192}')
            p(f'ds_read_b64_tr_b16 {vr(d+2,2)}, v{KADR+t} offset:{u*8192+4096}')
    p(f's_mov_b32 s13, {f32bits(LOG2E_SCALE):#x}')
    PB = 200
    for qt in range(3):
        regs = [sacc(kt, qt) + r for kt in range(6) for r in range(4)]
        M = 240; T = 241
        p(f'v_max3_f32 v{M}, v{regs[0]}, v{regs[1]}, v{regs[2]}')
        for i in range(3, 23, 2):
            p(f'v_max3_f32 v{M}, v{M}, v{regs[i]}, v{regs[i+1]}')
        p(f'v_max_f32 v{M}, v{M}, v{regs[23]}')
        p(f'v_mov_b32 v{T}, v{M}')
        p(f'v_permlane16_swap_b32 v{M}, v{T}')
        p(f'v_max_f32 v{M}, v{M}, v{T}')
        p(f'v_mov_b32 v{T}, v{M}')
        p(f'v_permlane32_swap_b32 v{M}, v{T}')
        p(f'v_max_f32 v{M}, v{M}, v{T}')
        p(f'v_mul_f32 v{M}, s13, v{M}')
        for r in regs:
            p(f'v_fma_f32 v{r}, v{r}, s13, -v{M}')
        for r in regs:
            p(f'v_exp_f32 v{r}, v{r}')
        Sx = 242
        p(f'v_add_f32 v{Sx}, v{regs[0]}, v{regs[1]}')
        for r in regs[2:]:
            p(f'v_add_f32 v{Sx}, v{Sx}, v{r}')
        p(f'v_mov_b32 v{T}, v{Sx}')
        p(f'v_permlane16_swap_b32 v{Sx}, v{T}')
        p(f'v_add_f32 v{Sx}, v{Sx}, v{T}')
        p(f'v_mov_b32 v{T}, v{Sx}')
        p(f'v_permlane32_swap_b32 v{Sx}, v{T}')
        p(f'v_add_f32 v{Sx}, v{Sx}, v{T}')
        p(f'v_rcp_f32 v{Sx}, v{Sx}')
        for r in regs:
            p(f'v_mul_f32 v{r}, v{r}, v{Sx}')
        for u in range(3):
            d = PB + (u*3+qt)*4
            a0 = sacc(2*u, qt); a1 = sacc(2*u+1, qt)
            p(f'v_cvt_pk_bf16_f32 v{d}, v{a0}, v{a0+1}')
            p(f'v_cvt_pk_bf16_f32 v{d+1}, v{a0+2}, v{a0+3}')
            p(f'v_cvt_pk_bf16_f32 v{d+2}, v{a1}, v{a1+1}')
            p(f'v_cvt_pk_bf16_f32 v{d+3}, v{a1+2}, v{a1+3}')
    p('s_waitcnt lgkmcnt(0)')
    p('s_lshl_b32 s13, s6, 7')
    p('s_lshl_b32 s14, s7, 2')
    p('s_add_u32 s13, s13, s14')
    p('s_mul_i32 s13, s13, 48')
    p('s_mul_i32 s14, s8, 12')
    p('s_add_u32 s13, s13, s14')
    p('s_mul_i32 s14, s3, 3')
    p('s_add_u32 s13, s13, s14')
    p('s_lshl_b32 s13, s13, 10')
    p('v_lshlrev_b32 v9, 4, v2')
    for half in range(2):
        OA = 112
        for tt in range(4):
            t = half*4 + tt
            for u in range(3):
                for qt in range(3):
                    o = OA + (tt*3+qt)*4
                    c = '0' if u == 0 else vr(o)
                    p(f'v_mfma_f32_16x16x32_bf16 {vr(o)}, {vr(VF+(t*3+u)*4)}, {vr(PB+(u*3+qt)*4)}, {c}')
        for vv in range(2):
            v = half*2 + vv
            for qt in range(3):
                d = 160 + (vv*3+qt)*4
                a0 = OA + ((2*vv)*3+qt)*4; a1 = OA + ((2*vv+1)*3+qt)*4
                p(f'v_cvt_pk_bf16_f32 v{d}, v{a0}, v{a0+1}')
                p(f'v_cvt_pk_bf16_f32 v{d+1}, v{a0+2}, v{a0+3}')
                p(f'v_cvt_pk_bf16_f32 v{d+2}, v{a1}, v{a1+1}')
                p(f'v_cvt_pk_bf16_f32 v{d+3}, v{a1+2}, v{a1+3}')
            p(f's_add_u32 s14, s13, {v*48*1024}')
            for qt in range(3):
                d = 160 + (vv*3+qt)*4
                p(f'buffer_store_dwordx4 {vr(d)}, v9, s[52:55], s14 offen offset:{qt*1024}')
        if half == 0:
            p('s_waitcnt vmcnt(0)')
    if STAMPS:
        p('s_waitcnt vmcnt(0)')
        p('s_cmp_lg_u32 s3, 0'); p('s_cbranch_scc1 L1_end')
        stamp(p, 2, NST, 56, 60)
    p('s_endpgm')
    p('L1_loader:')
    p('v_lshrrev_b32 v5, 3, v2')
    p('s_lshl_b32 s12, s11, 3')
    p('v_add_u32 v5, s12, v5')
    p('s_movk_i32 s13, 1280')
    p('v_mul_lo_u32 v5, v5, s13')
    p('s_and_b32 s12, s11, 1')
    p('s_lshl_b32 s12, s12, 2')
    p('v_add_u32 v6, s12, v3')
    p('v_and_b32 v7, 7, v2')
    p('v_xor_b32 v7, v7, v6')
    p('v_lshl_add_u32 v11, v7, 4, v5')
    p('v_lshlrev_b32 v6, 1, v6')
    p('v_xor_b32 v6, v6, v4')
    p('s_lshl_b32 s12, s11, 2')
    p('v_add_u32 v5, s12, v3')
    p('v_lshlrev_b32 v7, 8, v5')
    p('v_lshl_add_u32 v13, v6, 4, v7')
    p('s_lshr_b32 s12, s11, 1')
    p('s_lshl_b32 s12, s12, 2')
    p('v_add_u32 v6, s12, v3')
    p('v_lshlrev_b32 v6, 1, v6')
    p('v_xor_b32 v6, v6, v4')
    p('v_lshlrev_b32 v7, 13, v5')
    p('v_lshl_add_u32 v12, v6, 4, v7')
    p('s_lshl_b32 s13, s11, 10')
    def issue_stage():
        for m in range(6):
            p(f's_add_u32 m0, s66, {m*4096}')
            p(f's_add_u32 s14, s64, {m*40960}')
            p('buffer_load_dwordx4 v11, s[36:39], s14 offen lds')
        for m in range(4):
            p(f's_add_u32 m0, s67, {m*4096}')
            p(f's_add_u32 s14, s65, {m*131072}')
            p('buffer_load_dwordx4 v12, s[40:43], s14 offen lds')
        p('s_add_u32 s64, s64, 128')
        p('s_add_u32 s65, s65, 524288')
        p('s_add_u32 s68, s68, 1')
        p('s_cmp_eq_u32 s68, 3')
        p('s_cselect_b32 s61, -2, 1')
        p('s_mul_i32 s62, s61, 16384')
        p('s_mul_i32 s63, s61, 24576')
        p('s_cselect_b32 s68, 0, s68')
        p('s_add_u32 s66, s66, s63')
        p('s_add_u32 s67, s67, s62')
    p('s_mov_b32 s64, 0'); p('s_mov_b32 s65, 0'); p('s_mov_b32 s68, 0')
    p(f's_add_u32 s66, s13, {XS}')
    p(f's_add_u32 s67, s13, {WS_}')
    p('s_mov_b32 s15, 0')
    p('L1_lpro:')
    issue_stage()
    p('s_add_u32 s15, s15, 1')
    p('s_cmp_lt_u32 s15, 3')
    p('s_cbranch_scc1 L1_lpro')
    p('s_waitcnt vmcnt(20)')
    p('s_barrier')
    p('L1_lloop:')
    p('s_waitcnt vmcnt(10)')
    p('s_barrier')
    issue_stage()
    p('s_add_u32 s15, s15, 1')
    p('s_cmp_lt_u32 s15, 10')
    p('s_cbranch_scc1 L1_lloop')
    p('s_waitcnt vmcnt(10)')
    p('s_barrier')
    def kv(vreg, srdb, ldsb, b, ms):
        for m in ms:
            p(f's_add_u32 m0, s13, {ldsb + m*4096}')
            p(f's_mov_b32 s14, {b*786432 + m*4096}')
            p(f'buffer_load_dwordx4 v{vreg}, s[{srdb}:{srdb+3}], s14 offen lds')
    kv(10, 44, KB1, 1, range(6))
    kv(13, 48, VB1, 1, range(4))
    p('s_waitcnt vmcnt(10)')
    p('s_barrier')
    kv(13, 48, VB0, 0, range(6))
    kv(13, 48, VB1, 1, range(4, 6))
    p('s_waitcnt vmcnt(12)')
    p('s_barrier')
    p('s_waitcnt vmcnt(0)')
    p('s_barrier')
    p('L1_end:')
    p('s_endpgm')
    return p.finalize()

def gen_k2():
    p = Prog()
    K2 = 'oproj_kernel'
    p(f'.globl {K2}\n.p2align 8\n.type {K2},@function\n{K2}:')
    p('s_cmp_ge_u32 s2, 240')
    p('s_cbranch_scc1 L2_end')
    p('s_load_dwordx2 s[16:17], s[0:1], 32')
    p('s_load_dwordx2 s[18:19], s[0:1], 72')
    p('s_load_dwordx2 s[20:21], s[0:1], 80')
    p('s_load_dwordx2 s[32:33], s[0:1], 96')
    p('v_lshrrev_b32 v1, 6, v0')
    p('v_and_b32 v2, 63, v0')
    p('v_readfirstlane_b32 s3, v1')
    p('s_and_b32 s4, s2, 7')
    p('s_lshr_b32 s5, s2, 3')
    p('s_lshr_b32 s6, s4, 2')
    p('s_mul_i32 s7, s5, 52')
    p('s_lshr_b32 s7, s7, 8')
    p('s_mul_i32 s8, s7, 5')
    p('s_sub_u32 s8, s5, s8')
    p('s_bfe_u32 s9, s4, 0x10001')
    p('s_mul_i32 s9, s9, 6')
    p('s_add_u32 s7, s7, s9')
    p('s_and_b32 s9, s4, 1')
    p('s_mul_i32 s9, s9, 5')
    p('s_add_u32 s8, s8, s9')
    p('s_waitcnt lgkmcnt(0)')
    p('s_cmp_eq_u32 s6, 0')
    p('s_cselect_b64 s[16:17], s[16:17], s[18:19]')
    p('s_lshl_b32 s9, s8, 7')
    p('s_add_u32 s16, s16, s9'); p('s_addc_u32 s17, s17, 0')
    p('s_sub_u32 s10, 5242880, s9')
    srd(p, 36, 16, 17, 's10')
    srd(p, 40, 32, 33, O_BYTES)
    srd(p, 44, 20, 21, 8*96*1280*2)
    if STAMPS:
        srd(p, 56, 32, 33, 0x10000000)
        p(f's_mul_i32 s60, s2, {NST*8}')
        p('s_add_u32 s60, s60, 0xF000000')
        p('s_cmp_lg_u32 s3, 0'); p('s_cbranch_scc1 L2_ns0')
        stamp(p, 3, NST, 56, 60)
        p('L2_ns0:')
    p('s_lshl_b32 s11, s6, 7')
    p('s_lshl_b32 s12, s3, 5')
    p('s_add_u32 s11, s11, s12')
    p('s_mul_i32 s11, s11, 48')
    p('s_lshl_b32 s12, s7, 2')
    p('s_add_u32 s11, s11, s12')
    p('s_lshl_b32 s64, s11, 10')
    p('s_mul_i32 s65, s3, 1310720')
    p('s_lshl_b32 s66, s3, 14')
    p('v_lshlrev_b32 v10, 4, v2')
    p('v_lshrrev_b32 v5, 3, v2')
    p('v_and_b32 v6, 6, v5')
    p('v_and_b32 v7, 7, v2')
    p('v_xor_b32 v6, v6, v7')
    p('s_movk_i32 s13, 1280')
    p('v_mul_lo_u32 v5, v5, s13')
    p('v_lshl_add_u32 v11, v6, 4, v5')
    p('v_lshrrev_b32 v3, 4, v2')
    p('v_and_b32 v4, 15, v2')
    p('v_bfe_u32 v5, v2, 2, 2')
    p('v_lshl_add_u32 v5, v3, 2, v5')
    p('v_and_b32 v6, 6, v5')
    p('v_bfe_u32 v7, v2, 1, 1')
    p('v_xor_b32 v6, v6, v7')
    p('v_lshlrev_b32 v6, 4, v6')
    p('v_lshl_add_u32 v6, v5, 7, v6')
    p('v_and_b32 v7, 1, v2')
    p('v_lshl_add_u32 v6, v7, 3, v6')
    p('v_add_u32 v6, s66, v6')
    for t in range(4):
        p(f'v_xor_b32 v{12+t}, {t<<5}, v6')
    ACC = 16; BF = 80; AF = 144
    for i in range(64): p(f'v_mov_b32 v{ACC+i}, 0')
    def issue(slot):
        for qt in range(4):
            p(f'buffer_load_dwordx4 {vr(BF+slot*16+qt*4)}, v10, s[40:43], s64 offen offset:{qt*1024}')
        for i in range(4):
            p(f's_add_u32 m0, s66, {slot*4096 + i*1024}')
            p(f's_add_u32 s14, s65, {i*10240}')
            p('buffer_load_dwordx4 v11, s[36:39], s14 offen lds')
        p('s_add_u32 s64, s64, 49152')
        p('s_add_u32 s65, s65, 40960')
    def step(slot, do_issue, vm):
        p(f's_waitcnt vmcnt({vm})')
        for t in range(4):
            p(f'ds_read_b64_tr_b16 {vr(AF+t*4,2)}, v{12+t} offset:{slot*4096}')
            p(f'ds_read_b64_tr_b16 {vr(AF+t*4+2,2)}, v{12+t} offset:{slot*4096+2048}')
        if do_issue: issue((slot+3) % 4)
        p('s_waitcnt lgkmcnt(0)')
        for t in range(4):
            for qt in range(4):
                a = ACC + (qt*4+t)*4
                p(f'v_mfma_f32_16x16x32_bf16 {vr(a)}, {vr(AF+t*4)}, {vr(BF+slot*16+qt*4)}, {vr(a)}')
    for s in range(3): issue(s)
    p('s_mov_b32 s15, 0')
    p('L2_loop:')
    for s in range(4): step(s, True, 16)
    p('s_add_u32 s15, s15, 1')
    p('s_cmp_lt_u32 s15, 7')
    p('s_cbranch_scc1 L2_loop')
    step(0, True, 16)
    step(1, False, 16)
    step(2, False, 8)
    step(3, False, 0)
    RED = 65536
    p('s_lshl_b32 s11, s3, 12')
    p(f'v_add_u32 v5, s11, v10')
    p(f'v_add_u32 v5, {RED}, v5')
    for qt in range(4):
        for t in range(4):
            a = ACC + (qt*4+t)*4
            p(f'ds_write_b128 v5, {vr(a)} offset:{qt*16384 + t*1024}')
    p('s_waitcnt lgkmcnt(0)')
    p('s_barrier')
    p('s_lshl_b32 s11, s3, 14')
    p(f'v_add_u32 v5, s11, v10')
    p(f'v_add_u32 v5, {RED}, v5')
    for src in range(4):
        for t in range(4):
            p(f'ds_read_b128 {vr(BF+(src*4+t)*4)}, v5 offset:{src*4096 + t*1024}')
    p('s_waitcnt lgkmcnt(0)')
    for t in range(4):
        for r in range(4):
            b = BF + t*4 + r
            p(f'v_add_f32 v{b}, v{b}, v{b+16}')
            p(f'v_add_f32 v{b+32}, v{b+32}, v{b+48}')
            p(f'v_add_f32 v{b}, v{b}, v{b+32}')
    p('s_lshl_b32 s11, s7, 6')
    p('s_lshl_b32 s12, s3, 4')
    p('s_add_u32 s11, s11, s12')
    p('s_mul_i32 s11, s11, 2560')
    p('s_mul_i32 s12, s6, 1280')
    p('s_add_u32 s11, s11, s12')
    p('s_lshl_b32 s12, s8, 7')
    p('s_add_u32 s11, s11, s12')
    p('s_movk_i32 s13, 2560')
    p('v_mul_lo_u32 v5, v4, s13')
    p('v_lshl_add_u32 v5, v3, 3, v5')
    for t in range(4):
        b = BF + t*4
        p(f'v_cvt_pk_bf16_f32 v{ACC+2*t}, v{b}, v{b+1}')
        p(f'v_cvt_pk_bf16_f32 v{ACC+2*t+1}, v{b+2}, v{b+3}')
        p(f'buffer_store_dwordx2 {vr(ACC+2*t,2)}, v5, s[44:47], s11 offen offset:{t*32}')
    if STAMPS:
        p('s_waitcnt vmcnt(0)')
        p('s_cmp_lg_u32 s3, 0'); p('s_cbranch_scc1 L2_end')
        stamp(p, 4, NST, 56, 60)
    p('L2_end:')
    p('s_endpgm')
    return p.finalize()

out = HDR
out += f'; @launch kernel={NAME}_kernel grid=(256,1,1) block=(512,1,1) lds=163840\n'
out += f'; @launch kernel=oproj_kernel grid=(240,1,1) block=(256,1,1) lds=131072\n'
out += '.amdgcn_target "amdgcn-amd-amdhsa--gfx950"\n.text\n'
out += gen_k1() + '\n' + gen_k2() + '\n'
out += '.section .rodata,"a"\n.p2align 6\n' + kd(NAME + '_kernel', 256) + '.p2align 6\n' + kd('oproj_kernel', 256)
print(out)
```

```python
import re

TRANS = ('v_exp_f32', 'v_log_f32', 'v_rcp_f32', 'v_rsq_f32', 'v_sqrt_f32', 'v_sin_f32', 'v_cos_f32')

def _regs(tok):
    tok = tok.strip()
    tok = tok.lstrip('-')
    m = re.fullmatch(r'abs\((.*)\)', tok)
    if m: tok = m.group(1)
    m = re.fullmatch(r'\|(.*)\|', tok)
    if m: tok = m.group(1)
    m = re.fullmatch(r'([vsa])\[(\d+):(\d+)\]', tok)
    if m:
        return [(m.group(1), i) for i in range(int(m.group(2)), int(m.group(3)) + 1)]
    m = re.fullmatch(r'([vsa])(\d+)', tok)
    if m:
        return [(m.group(1), int(m.group(2)))]
    if tok in ('vcc', 'vcc_lo', 'vcc_hi'): return [('x', 'vcc')]
    if tok in ('exec', 'exec_lo', 'exec_hi'): return [('x', 'exec')]
    if tok == 'm0': return [('x', 'm0')]
    return []

class Ins:
    __slots__ = ('text', 'op', 'ops', 'kind', 'wr', 'rd', 'passes', 'srcc', 'srcab', 'states', 'is_lds_dma', 'store_data')
    def __init__(self, text):
        self.text = text
        t = text.split(';')[0].strip()
        self.kind = 'other'
        self.wr = []; self.rd = []; self.passes = 0; self.srcc = []; self.srcab = []
        self.states = 1; self.is_lds_dma = False; self.store_data = []
        if not t or t.endswith(':') or t.startswith('.'):
            self.kind = 'label'; self.op = ''; self.ops = []; self.states = 0
            return
        parts = t.split(None, 1)
        op = parts[0]; self.op = op
        rest = parts[1] if len(parts) > 1 else ''
        ops = [x.strip() for x in re.split(r',(?![^\[]*\])', rest)] if rest else []
        mods = ''
        if ops:
            sp = ops[-1].split(None, 1)
            if len(sp) > 1:
                ops[-1] = sp[0]; mods = sp[1]
        self.ops = ops
        R = lambda i: _regs(ops[i]) if i < len(ops) else []
        base = re.sub(r'_(e32|e64|dpp|sdwa)$', '', op)
        if op == 's_nop':
            self.kind = 'nop'; self.states = int(ops[0], 0) + 1
        elif op.startswith('v_mfma'):
            self.kind = 'mfma'
            self.passes = 8 if '32x32' in op else 4
            self.wr = R(0); self.srcab = R(1) + R(2); self.srcc = R(3); self.rd = self.srcab + self.srcc
        elif op.startswith('v_'):
            self.kind = 'valu'
            if base in TRANS: self.kind = 'trans'
            if base.startswith('v_cmp'):
                self.wr = R(0); self.rd = R(1) + R(2)
                if base.startswith('v_cmpx'): self.wr += [('x', 'exec')]
            elif base.startswith('v_permlane') and 'swap' in base:
                self.kind = 'permlane'; self.wr = R(0) + R(1); self.rd = R(0) + R(1)
            elif base in ('v_readfirstlane_b32', 'v_readlane_b32'):
                self.kind = 'readlane'; self.wr = R(0); self.rd = R(1) + R(2)
            elif base in ('v_add_co_u32', 'v_sub_co_u32', 'v_addc_co_u32', 'v_subb_co_u32', 'v_mad_u64_u32'):
                self.wr = R(0) + R(1); self.rd = sum((R(i) for i in range(2, len(ops))), [])
            else:
                self.wr = R(0); self.rd = sum((R(i) for i in range(1, len(ops))), [])
                if base in ('v_fmac_f32', 'v_pk_fmac_f16', 'v_writelane_b32'): self.rd += R(0)
                if base == 'v_cndmask_b32' and len(ops) == 3: self.rd += [('x', 'vcc')]
            if 'dpp' in op or 'row_' in mods or 'quad_perm' in mods: self.kind = 'dpp' if self.kind == 'valu' else self.kind
        elif op.startswith('ds_'):
            self.kind = 'ds'
            if op.startswith('ds_read') or op.startswith('ds_bpermute') or op.startswith('ds_permute') or op.startswith('ds_swizzle'):
                self.wr = R(0); self.rd = sum((R(i) for i in range(1, len(ops))), [])
            else:
                self.rd = sum((R(i) for i in range(len(ops))), [])
        elif op.startswith('buffer_') or op.startswith('global_'):
            self.kind = 'vmem'
            allr = sum((R(i) for i in range(len(ops))), [])
            if op in ('buffer_wbl2', 'buffer_inv'):
                pass
            elif re.search(r'\blds\b', mods) or '_lds_' in op:
                self.is_lds_dma = True; self.rd = allr + [('x', 'm0')]
            elif '_load' in op:
                self.wr = R(0); self.rd = sum((R(i) for i in range(1, len(ops))), [])
            elif '_store' in op:
                self.rd = allr
                d = R(0) if op.startswith('buffer_') else R(1)
                if 'x4' in op or 'x3' in op: self.store_data = d
            else:
                self.rd = allr
                if 'sc0' in mods:
                    self.wr = R(0)
        elif op.startswith('s_'):
            self.kind = 'salu'
            if op.startswith('s_cmp') or op.startswith('s_cbranch') or op in ('s_branch', 's_barrier', 's_waitcnt', 's_endpgm', 's_setprio', 's_sleep', 's_bitcmp1_b32', 's_bitcmp0_b32'):
                self.rd = sum((R(i) for i in range(len(ops))), [])
            else:
                self.wr = R(0); self.rd = sum((R(i) for i in range(1, len(ops))), [])
                if 'saveexec' in op: self.wr += [('x', 'exec')]

def _isvalu(i): return i.kind in ('valu', 'trans', 'permlane', 'readlane', 'dpp')

def need(p, c):
    n = 0
    pw = set(p.wr); cr = set(c.rd); cw = set(c.wr)
    if _isvalu(p):
        vw = {r for r in pw if r[0] in 'va'}
        sw = {r for r in pw if r[0] in 's' or r == ('x', 'vcc')}
        if c.kind == 'mfma' and vw & cr: n = max(n, 2)
        if c.kind == 'permlane' and vw & cr: n = max(n, 2)
        if c.kind == 'dpp' and vw & cr: n = max(n, 2)
        if c.kind == 'readlane' and vw & cr: n = max(n, 1)
        if p.kind == 'trans' and _isvalu(c) and c.kind != 'trans' and vw & cr: n = max(n, 1)
        if p.kind == 'trans' and c.kind == 'trans' and vw & cr: n = max(n, 1)
        if sw & cr:
            if _isvalu(c): n = max(n, 4 if c.kind == 'readlane' else 2)
            if c.kind == 'vmem': n = max(n, 5)
            if c.kind == 'salu': n = max(n, 1)
        if ('x', 'exec') in pw:
            if c.kind == 'mfma': n = max(n, 4)
            if c.kind in ('permlane', 'readlane'): n = max(n, 4)
            if c.kind == 'dpp': n = max(n, 5)
    if p.kind == 'mfma':
        big = 12 if p.passes == 8 else 8
        ovl = 10 if p.passes == 8 else 6
        war = 7 if p.passes == 8 else 3
        if c.kind == 'mfma':
            if pw & set(c.srcab): n = max(n, big)
            if pw & set(c.srcc):
                if not (p.wr == c.srcc and p.passes == c.passes): n = max(n, ovl)
            if pw & cw and not (p.wr == c.wr and p.wr == c.srcc):
                n = max(n, ovl)
        elif c.kind != 'salu' and c.kind != 'nop' and c.kind != 'label':
            if pw & (cr | cw): n = max(n, big)
            if _isvalu(c) and set(p.srcc) & cw: n = max(n, war)
    if p.kind == 'salu':
        if ('x', 'm0') in pw and c.is_lds_dma: n = max(n, 1)
    if p.store_data and set(p.store_data) & cw:
        n = max(n, 2 if _isvalu(c) else 1)
    return n

class Prog:
    def __init__(self):
        self.lines = []
    def e(self, text):
        for t in text.split('\n'):
            self.lines.append(t)
    def __call__(self, text): self.e(text)
    def finalize(self, verbose=False):
        out = []
        hist = []
        nnops = 0
        for t in self.lines:
            ins = Ins(t)
            if ins.kind == 'label':
                out.append(ins); continue
            req = 0; dist = 0
            for p in reversed(hist[-24:]):
                n = need(p, ins)
                if n > dist: req = max(req, n - dist)
                dist += p.states
                if dist >= 20: break
            while req > 0:
                k = min(req, 16)
                nop = Ins(f's_nop {k-1}'); out.append(nop); hist.append(nop); req -= k; nnops += 1
            out.append(ins); hist.append(ins)
            if ins.op in ('s_endpgm', 's_branch'):
                hist = []
        labels = {}
        for i, ins in enumerate(out):
            t = ins.text.split(';')[0].strip()
            if ins.kind == 'label' and t.endswith(':'): labels[t[:-1]] = i
        for i, ins in enumerate(out):
            if ins.op.startswith('s_cbranch') or ins.op == 's_branch':
                tgt = labels.get(ins.ops[0])
                if tgt is None: continue
                pre = [x for x in out[max(0, i - 24):i + 1] if x.kind != 'label']
                post = [x for x in out[tgt:tgt + 24] if x.kind != 'label']
                d0 = 0
                for c in post:
                    dist = d0
                    for p in reversed(pre):
                        n = need(p, c)
                        if n > dist:
                            raise RuntimeError(f'hazard across branch {ins.text}: {p.text} -> {c.text} needs {n}, has {dist}')
                        dist += p.states
                        if dist >= 20: break
                    d0 += c.states
                    if d0 >= 20: break
        if verbose: print(f'; inserted {nnops} nops')
        return '\n'.join(('    ' + x.text.strip() if x.kind != 'label' else x.text) for x in out)

def interleave(main, fill, start=0, per=None):
    out = []
    nm = len(main); nf = len(fill); fi = 0
    for i, m in enumerate(main):
        out.append(m)
        if i < start: continue
        if per is None:
            tgt = (i - start + 1) * nf // max(1, (nm - start))
        else:
            tgt = min(nf, fi + per)
        while fi < tgt:
            out.append(fill[fi]); fi += 1
    out += fill[fi:]
    return out

def auto_lgkm(lines, pending=None, cap=8):
    pending = list(pending or [])
    out = []
    for t in lines:
        ins = Ins(t)
        if ins.op == 's_waitcnt':
            m = re.search(r'lgkmcnt\((\d+)\)', t)
            if m:
                n = int(m.group(1))
                if len(pending) > n: pending = pending[len(pending)-n:] if n else []
            out.append(t); continue
        touched = set(ins.rd) | set(ins.wr)
        hit = -1
        for i, regs in enumerate(pending):
            if regs & touched: hit = i
        if hit >= 0:
            n = min(len(pending) - 1 - hit, cap)
            out.append(f's_waitcnt lgkmcnt({n})')
            pending = pending[len(pending)-n:] if n else []
        out.append(t)
        if ins.kind == 'ds':
            pending.append(set(ins.wr))
    return out, pending
```

```python
import sys, struct
from asmlib import Prog, interleave
NAME = 'concat_heads__gqa_block_cached__gqa_block_cached__near_ridge'
HDR = open('cdna_kernels/%s.s.ref' % NAME).read().split('; Override launch')[0]
def opt(name, default):
    for a in sys.argv:
        if a.startswith('--%s=' % name):
            v = a.split('=', 1)[1]
            return type(default)(v) if not isinstance(default, str) else v
    return default
STAMPS = '--stamps' in sys.argv
CLK = opt('clk', 0)
LOG2E_SCALE = 1.4426950408889634 * (128 ** -0.5)
def f32bits(x): return struct.unpack('<I', struct.pack('<f', x))[0]
def vr(b, n=4): return f'v[{b}:{b+n-1}]'
def kd(name, vgpr, sgpr=96):
    return f'''.p2align 6
.amdhsa_kernel {name}
  .amdhsa_next_free_vgpr {vgpr}
  .amdhsa_next_free_sgpr {sgpr}
  .amdhsa_accum_offset {(vgpr+3)//4*4}
  .amdhsa_group_segment_fixed_size 0
  .amdhsa_kernarg_size 104
  .amdhsa_user_sgpr_count 2
  .amdhsa_user_sgpr_kernarg_segment_ptr 1
  .amdhsa_system_sgpr_workgroup_id_x 1
.end_amdhsa_kernel
'''
def srd(p, d, lo, hi, size):
    p(f's_mov_b32 s{d}, s{lo}')
    p(f's_and_b32 s{d+1}, s{hi}, 0xffff')
    p(f's_mov_b32 s{d+2}, {size}')
    p(f's_mov_b32 s{d+3}, 0x20000')
NST = 32
_sid = [0]
def stamp(p, idx, wave=0, wave_s=3, srdws=56, base_s=60, vt=253):
    if not STAMPS: return
    _sid[0] += 1
    L = f'L_st{_sid[0]}'
    p(f's_cmp_lg_u32 s{wave_s}, {wave}'); p(f's_cbranch_scc1 {L}')
    p('s_memtime s[90:91]' if CLK else 's_memrealtime s[90:91]')
    p('s_waitcnt lgkmcnt(0)')
    p(f'v_mov_b32 v{vt+1}, s90'); p(f'v_mov_b32 v{vt+2}, s91'); p(f'v_mov_b32 v{vt}, 0')
    p('s_mov_b64 exec, 1')
    p(f'buffer_store_dwordx2 v[{vt+1}:{vt+2}], v{vt}, s[{srdws}:{srdws+3}], s{base_s} offen offset:{idx*8}')
    p('s_mov_b64 exec, -1')
    p(f'{L}:')
def stamp_setup(p, lo, hi, srdws=56, base_s=60):
    if not STAMPS: return
    srd(p, srdws, lo, hi, 0x10000000)
    p(f's_mul_i32 s{base_s}, s2, {NST*8}')
    p(f's_add_u32 s{base_s}, s{base_s}, 0xF000000')
def merge(main, fill, slots=2):
    out = []; fi = 0
    for m in main:
        out.append(m)
        c = 0
        while fi < len(fill):
            w = 2 if fill[fi].startswith(('v_exp', 'v_rcp')) else 1
            if c + w > slots and c > 0: break
            out.append(fill[fi]); fi += 1; c += w
            if c >= slots: break
    return out, fill[fi:]
```

```python
from common import *
from asmlib import auto_lgkm as _al
CAP = opt('cap', 8)
def auto_lgkm(l, pnd=None): return _al(l, pnd, CAP)
XFL = opt('xfl', 'none').replace('none', '')
WFL2 = opt('wfl2', 'none').replace('none', '')
OFL = opt('ofl', 'sc1').replace('none', '').replace('_', ' ')
ORFL = opt('orfl', 'sc1').replace('none', '').replace('_', ' ')
LAG = opt('lag', 7)
PATA = opt('pata', 's0 s1 s2 s3 K1 s4 s5 Kb s6 s7 s8 s9 Ka V0 V1').replace('_', ' ')
PATB = opt('patb', 's0 s1 s2 s3 s4 K1 s5 s6 Kb s7 s8 s9 Ka V0 V1').replace('_', ' ')
PATSEL = opt('patsel', 6)
NA = opt('na', 5)
PF32 = opt('pf32', 0)
LPRIO = opt('lprio', 0)
PSLEEP = opt('psleep', 2)
XS, WS_, SP = 0, 73728, 122880
KB0 = SP - 8192; KB1 = KB0 + 24576
VB0 = XS + 2*24576; VB1 = XS
WO_L, O_L = 73728, 0
INBOX = 16 << 20; FB1 = 32 << 20; FB2 = FB1 + 65536; WS_SIZE = 48 << 20
MF = 'v_mfma_f32_16x16x32_bf16'
SPIN_MAX = 1 << 16

def dstamp(p, k):
    if STAMPS: p(f'{"s_memtime" if CLK else "s_memrealtime"} s[{72+2*k}:{73+2*k}]')
def flush_stamps(p, n, base_idx, wave, lbl):
    if not STAMPS: return
    p(f's_cmp_lg_u32 s3, {wave}'); p(f's_cbranch_scc1 {lbl}')
    p('s_waitcnt lgkmcnt(0) vmcnt(0)')
    p('v_mov_b32 v1, 0')
    p('s_mov_b64 exec, 1')
    for k in range(n):
        p(f'v_mov_b32 v{4+2*k}, s{72+2*k}'); p(f'v_mov_b32 v{5+2*k}, s{73+2*k}')
        p(f'buffer_store_dwordx2 v[{4+2*k}:{5+2*k}], v1, s[56:59], s60 offen offset:{(base_idx+k)*8}')
    p('s_waitcnt vmcnt(0)')
    p(f'{lbl}:')
def get_nonce(p, lbl):
    p(f's_mov_b32 s9, {SPIN_MAX}')
    p('s_load_dword s68, s[34:35], 0x0')
    p('s_waitcnt lgkmcnt(0)')
    p('s_cmp_lg_u32 s68, 0')
    p(f's_cbranch_scc1 {lbl}_ok')
    p(f'{lbl}:')
    p('s_load_dword s68, s[34:35], 0x0 glc')
    p('s_waitcnt lgkmcnt(0)')
    p('s_cmp_lg_u32 s68, 0')
    p(f's_cbranch_scc1 {lbl}_ok')
    p('s_sleep 64')
    p('s_sub_u32 s9, s9, 1')
    p('s_cmp_lg_u32 s9, 0')
    p(f's_cbranch_scc1 {lbl}')
    p(f'{lbl}_ok:')
def poll_flags(p, lbl, vaddr, vtmp, soff, maskreg):
    p(f's_mov_b32 s9, {SPIN_MAX}')
    p(f's_mov_b64 exec, {maskreg}')
    p(f'{lbl}:')
    p(f'buffer_load_dword v{vtmp}, v{vaddr}, s[52:55], {soff} offen sc1')
    p('s_waitcnt vmcnt(0)')
    p(f'v_cmp_ne_u32 vcc, s68, v{vtmp}')
    p(f's_cbranch_vccz {lbl}_ok')
    p(f's_sleep {PSLEEP}')
    p('s_sub_u32 s9, s9, 1')
    p('s_cmp_lg_u32 s9, 0')
    p(f's_cbranch_scc1 {lbl}')
    p(f'{lbl}_ok:')
    p('s_mov_b64 exec, -1')

def cvt4(d, a0, a1):
    return [f'v_cvt_pk_bf16_f32 v{d}, v{a0}, v{a0+1}', f'v_cvt_pk_bf16_f32 v{d+1}, v{a0+2}, v{a0+3}',
            f'v_cvt_pk_bf16_f32 v{d+2}, v{a1}, v{a1+1}', f'v_cvt_pk_bf16_f32 v{d+3}, v{a1+2}, v{a1+3}']
def spread(main, fill, extra=(), per=1):
    out = []; fi = 0; ei = 0
    for m in main:
        out.append(m)
        for _ in range(per):
            if fi < len(fill): out.append(fill[fi]); fi += 1
        if ei < len(extra): out.append(extra[ei]); ei += 1
    return out + list(fill[fi:]) + list(extra[ei:])

def p2_ids(p):
    p('s_mul_i32 s66, s5, 52'); p('s_lshr_b32 s66, s66, 8')
    p('s_mul_i32 s67, s66, 5'); p('s_sub_u32 s67, s5, s67')
    p('s_and_b32 s10, s4, 3')

def gen():
    p = Prog()
    K1 = NAME + '_kernel'
    p(f'.globl {K1}\n.p2align 8\n.type {K1},@function\n{K1}:')
    p('s_cmp_ge_u32 s2, 256')
    p('s_cbranch_scc1 L_end')
    p('s_load_dwordx8 s[16:23], s[0:1], 0')
    p('s_load_dwordx8 s[24:31], s[0:1], 40')
    p('s_load_dwordx4 s[32:35], s[0:1], 88')
    dstamp(p, 0)
    p('v_lshrrev_b32 v1, 6, v0')
    p('v_and_b32 v2, 63, v0')
    p('v_readfirstlane_b32 s3, v1')
    p('s_and_b32 s4, s2, 7')
    p('s_lshr_b32 s5, s2, 3')
    p('s_lshr_b32 s6, s4, 2')
    p('s_and_b32 s7, s4, 3')
    p('s_lshl_b32 s7, s7, 3')
    p('s_and_b32 s66, s5, 7')
    p('s_add_u32 s7, s7, s66')
    p('s_lshr_b32 s8, s5, 3')
    p('v_lshrrev_b32 v3, 4, v2')
    p('v_and_b32 v4, 15, v2')
    p('s_cmp_lt_u32 s3, 4')
    p('s_cbranch_scc1 L_compute')
    if LPRIO: p(f's_setprio {LPRIO}')
    p('s_and_b32 s11, s3, 3')
    p('v_lshrrev_b32 v5, 3, v2')
    p('s_lshl_b32 s12, s11, 3')
    p('v_add_u32 v5, s12, v5')
    p('v_mul_u32_u24 v5, 1280, v5')
    p('s_and_b32 s12, s11, 1')
    p('s_lshl_b32 s12, s12, 2')
    p('v_add_u32 v6, s12, v3')
    p('v_and_b32 v7, 7, v2')
    p('v_xor_b32 v7, v7, v6')
    p('v_lshl_add_u32 v11, v7, 4, v5')
    p('v_lshlrev_b32 v6, 1, v6')
    p('v_xor_b32 v8, v6, v4')
    p('s_lshl_b32 s12, s11, 2')
    p('v_add_u32 v5, s12, v3')
    p('v_lshlrev_b32 v7, 8, v5')
    p('v_lshl_add_u32 v13, v8, 4, v7')
    p('v_xor_b32 v6, v4, v5')
    p('v_lshl_add_u32 v10, v6, 4, v7')
    p('s_lshr_b32 s12, s11, 1')
    p('s_lshl_b32 s12, s12, 2')
    p('v_add_u32 v6, s12, v3')
    p('v_lshlrev_b32 v6, 1, v6')
    p('v_xor_b32 v6, v6, v4')
    p('v_lshlrev_b32 v7, 13, v5')
    p('v_lshl_add_u32 v12, v6, 4, v7')
    p('s_lshl_b32 s13, s11, 10')
    p('s_mul_i32 s69, s8, 5'); p('s_add_u32 s69, s69, 1'); p('s_lshr_b32 s69, s69, 1')
    p('s_and_b32 s70, s66, 3')
    p('s_mul_i32 s70, s70, 5'); p('s_add_u32 s70, s70, 1'); p('s_lshr_b32 s70, s70, 1')
    p('s_add_u32 s69, s69, s70')
    p('s_bfe_u32 s70, s66, 0x10002')
    p('s_add_u32 s69, s69, s70')
    p('s_cmp_ge_u32 s69, 10'); p('s_cselect_b32 s71, 10, 0'); p('s_sub_u32 s69, s69, s71')
    p('s_mul_i32 s9, s8, 245760')
    p('s_lshl_b32 s10, s7, 8')
    p('s_lshl_b32 s12, s8, 6')
    p('s_add_u32 s12, s12, s7')
    p('s_mul_i32 s12, s12, 24576')
    p('s_waitcnt lgkmcnt(0)')
    p('s_cmp_eq_u32 s6, 0')
    for i in range(4):
        p(f's_cselect_b64 s[{16+2*i}:{17+2*i}], s[{16+2*i}:{17+2*i}], s[{24+2*i}:{25+2*i}]')
    p('s_add_u32 s36, s16, s9'); p('s_addc_u32 s37, s17, 0')
    p('s_mov_b32 s38, 245760'); p('s_mov_b32 s39, 0x20000')
    p('s_add_u32 s40, s22, s10'); p('s_addc_u32 s41, s23, 0')
    p('s_sub_u32 s42, 5242880, s10'); p('s_mov_b32 s43, 0x20000')
    p('s_add_u32 s44, s18, s12'); p('s_addc_u32 s45, s19, 0')
    p(f's_mov_b32 s46, {786432+24576}'); p('s_mov_b32 s47, 0x20000')
    p('s_add_u32 s48, s20, s12'); p('s_addc_u32 s49, s21, 0')
    p(f's_mov_b32 s50, {786432+24576}'); p('s_mov_b32 s51, 0x20000')
    p('s_load_dwordx2 s[16:17], s[0:1], 32')
    p('s_load_dwordx2 s[18:19], s[0:1], 72')
    srd(p, 52, 34, 35, WS_SIZE)
    stamp_setup(p, 34, 35)
    p('s_mov_b64 s[34:35], s[32:33]')
    p(f's_bitcmp1_b32 s2, {PATSEL}')
    p('s_cbranch_scc1 L_patB')

    def loader(pat, tag):
        stream = []
        for w in pat.split():
            if w[0] == 's': stream += [('x' + w[1:], m) for m in range(6)] + [('w' + w[1:], m) for m in range(4)]
            elif w[0] in 'xw': stream += [(w, m) for m in range(6 if w[0] == 'x' else 4)]
            elif w == 'Ka': stream += [('K0', m) for m in range(2)]
            elif w == 'Kb': stream += [('K0', m) for m in range(2, 6)]
            else: stream += [(w, m) for m in range(6)]
        n = len(stream)
        end = {}
        for i, (it, m) in enumerate(stream):
            if it[0] in 'xw': end[int(it[1:])] = i + 1
        def need(it, m):
            if it[0] in 'xw': return int(it[1:]) - 3
            if it == 'K0': return 7 if m < 2 else -9
            if it == 'K1': return -9
            return 7 if it == 'V0' else 8
        bpos = {}; prev = 0
        for s in range(-1, 9):
            pos = min(end[s+1] + LAG, n)
            first_needing = min([i for i, (it, m) in enumerate(stream) if need(it, m) >= s and need(it, m) >= 0] + [n])
            pos = min(pos, first_needing)
            assert pos >= end[s+1], (s, pos, end[s+1])
            pos = max(pos, prev); bpos[s] = pos; prev = pos
        passed = [-2]
        def barrier(s, issued):
            p(f's_waitcnt vmcnt({issued - end[s+1]})')
            p(f's_barrier      ; B_{s}')
            passed[0] = s
            if s in (-1, 2, 5, 8): dstamp(p, 1 + (s+1)//3)
        last_item = None
        for i, (it, m) in enumerate(stream):
            for s in range(-1, 9):
                if bpos[s] == i and passed[0] < s: barrier(s, i)
            assert need(it, m) <= passed[0] or need(it, m) < 0
            if it[0] in 'xw':
                t = int(it[1:]); slot = (t + 1) % 3
                if it != last_item:
                    p(f's_add_u32 s70, s69, {t}')
                    p('s_cmp_ge_u32 s70, 10'); p('s_cselect_b32 s71, 10, 0'); p('s_sub_u32 s70, s70, s71')
                    p(f's_lshl_b32 s64, s70, {7 if it[0]=="x" else 19}')
                if it[0] == 'x':
                    p(f's_add_u32 m0, s13, {XS + slot*24576 + m*4096}')
                    p(f's_add_u32 s14, s64, {m*40960}')
                    p(f'buffer_load_dwordx4 v11, s[36:39], s14 offen {XFL} lds')
                else:
                    p(f's_add_u32 m0, s13, {WS_ + slot*16384 + m*4096}')
                    p(f's_add_u32 s14, s64, {m*131072}')
                    p(f'buffer_load_dwordx4 v12, s[40:43], s14 offen {"nt" if t < 3 else WFL2} lds')
            else:
                b = int(it[1])
                addr = {'K0': KB0, 'K1': KB1, 'V0': VB0, 'V1': VB1}[it] + m*4096
                vo, sr = (10, 44) if it[0] == 'K' else (13, 48)
                p(f's_add_u32 m0, s13, {addr}')
                p(f's_mov_b32 s14, {b*786432 + m*4096}')
                p(f'buffer_load_dwordx4 v{vo}, s[{sr}:{sr+3}], s14 offen nt lds')
            last_item = it
        for s in range(-1, 9):
            if passed[0] < s: barrier(s, n)
        lastK = max(i for i, (it, m) in enumerate(stream) if it[0] == 'K') + 1
        p(f's_waitcnt vmcnt({n - lastK})')
        p('s_barrier      ; B_9')
    loader(PATA, 'A')
    p('s_branch L_ld2')
    p('L_patB:')
    loader(PATB, 'B')
    p('L_ld2:')
    p('s_cmp_ge_u32 s5, 30')
    p('s_cbranch_scc1 L_ld_idle')
    p2_ids(p)
    p('s_waitcnt lgkmcnt(0)')
    p('s_cmp_eq_u32 s6, 0')
    p('s_cselect_b64 s[16:17], s[16:17], s[18:19]')
    p('s_mul_i32 s9, s10, 1310720')
    p('s_lshl_b32 s12, s67, 8')
    p('s_add_u32 s9, s9, s12')
    p('s_add_u32 s36, s16, s9'); p('s_addc_u32 s37, s17, 0')
    p('s_sub_u32 s38, 1310720, s12'); p('s_mov_b32 s39, 0x20000')
    p('v_mul_u32_u24 v7, 1280, v5')
    p('v_lshl_add_u32 v12, v8, 4, v7')
    p('v_lshl_add_u32 v11, v2, 4, s13')
    p('s_mul_i32 s69, s66, 43'); p('s_lshr_b32 s69, s69, 4'); p('s_and_b32 s69, s69, 14')
    p('s_mov_b32 s70, s69')
    p('s_mov_b32 s71, s69')
    p(f's_add_u32 s62, s13, {WO_L}')
    p(f's_add_u32 s63, s13, {O_L}')
    p('s_lshl_b32 s65, s6, 2'); p('s_add_u32 s65, s65, s10'); p('s_mul_i32 s65, s65, 1536')
    p('s_lshl_b32 s12, s66, 3'); p('s_add_u32 s65, s65, s12'); p('s_lshl_b32 s65, s65, 10')
    def wo_issue(fl):
        p('s_mul_i32 s64, s70, 81920')
        for m in range(4):
            p(f's_add_u32 m0, s62, {m*4096}')
            p(f's_add_u32 s14, s64, {m*20480}')
            p(f'buffer_load_dwordx4 v12, s[36:39], s14 offen {fl} lds')
        p('s_add_u32 s70, s70, 1'); p('s_and_b32 s70, s70, 15')
        p('s_add_u32 s62, s62, 16384')
        p(f's_cmp_ge_u32 s62, {WO_L + 5*16384}')
        p(f's_cselect_b32 s12, {5*16384}, 0'); p('s_sub_u32 s62, s62, s12')
    def o_issue():
        p('s_mul_i32 s64, s71, 98304')
        p('s_add_u32 s64, s64, s65')
        for m in range(4):
            p(f's_add_u32 m0, s63, {m*4096}')
            p(f's_add_u32 s14, s64, {(0, 4096, 49152, 53248)[m]}')
            p(f'buffer_load_dwordx4 v11, s[52:55], s14 offen {ORFL} lds')
        p('s_add_u32 s71, s71, 1'); p('s_and_b32 s71, s71, 15')
        p('s_add_u32 s63, s63, 16384'); p('s_and_b32 s63, s63, 0xffff')
    wo_issue('nt'); wo_issue('nt')
    p('s_waitcnt vmcnt(8)')
    dstamp(p, 5)
    p('s_barrier      ; B_10')
    wo_issue('nt'); wo_issue('nt'); wo_issue(WFL2)
    get_nonce(p, 'L_nl')
    p('s_mul_i32 s12, s66, 171'); p('s_lshr_b32 s12, s12, 6'); p('s_lshl_b32 s12, s12, 5')
    p('s_lshl_b32 s14, s4, 9'); p('s_add_u32 s12, s12, s14'); p(f's_add_u32 s15, s12, {FB1}')
    p('s_cmp_eq_u32 s66, 1'); p('s_cselect_b32 s20, -1, 0xffffff')
    p('s_cmp_eq_u32 s66, 4'); p('s_cselect_b32 s20, -1, s20'); p('s_mov_b32 s21, 0')
    p('v_lshlrev_b32 v14, 2, v2')
    p('s_barrier      ; B_11')
    p('s_cmp_lg_u32 s3, 4')
    p('s_cbranch_scc1 L_nopoll')
    poll_flags(p, 'L_pf1', 14, 15, 's15', 's[20:21]')
    p('L_nopoll:')
    p('s_barrier      ; B_12')
    dstamp(p, 6)
    o_issue(); o_issue(); o_issue()
    p('s_waitcnt vmcnt(8)')
    p('s_barrier      ; C_-1')
    dstamp(p, 7)
    o_issue()
    p('s_waitcnt vmcnt(8)'); p('s_barrier      ; C_0'); wo_issue(WFL2); o_issue()
    p('s_waitcnt vmcnt(12)'); p('s_barrier      ; C_1'); wo_issue(WFL2); o_issue()
    p('s_mov_b32 s15, 2')
    p('L_ld2loop:')
    p('s_waitcnt vmcnt(16)'); p('s_barrier      ; C_s'); wo_issue(WFL2); o_issue()
    p('s_add_u32 s15, s15, 1'); p('s_cmp_lt_u32 s15, 11'); p('s_cbranch_scc1 L_ld2loop')
    p('s_waitcnt vmcnt(16)'); p('s_barrier      ; C_11'); o_issue()
    p('s_waitcnt vmcnt(12)'); p('s_barrier      ; C_12')
    p('s_waitcnt vmcnt(4)'); p('s_barrier      ; C_13')
    p('s_waitcnt vmcnt(0)'); p('s_barrier      ; C_14')
    dstamp(p, 8)
    flush_stamps(p, 9, 16, 4, 'L_fsL')
    p('s_endpgm')
    p('L_ld_idle:')
    p('s_waitcnt vmcnt(0)')
    p('s_barrier      ; B_10')
    p('s_endpgm')

    p('L_compute:')
    G = lambda g: 16 + 4*g
    ACC = lambda t, qt: G(t*3+qt)
    AF = lambda st, t: G(24 + st*8 + t)
    BF = lambda st, qt: G(40 + st*3 + qt)
    AADR = 240; BADR = 248
    p('v_bfe_u32 v5, v2, 2, 2')
    p('v_and_b32 v6, 3, v2')
    p('v_and_b32 v7, 1, v3')
    p('v_lshl_add_u32 v7, v7, 2, v5')
    p('v_lshlrev_b32 v7, 1, v7')
    p('v_lshrrev_b32 v8, 1, v6')
    p('v_xor_b32 v7, v7, v8')
    p('v_lshlrev_b32 v7, 4, v7')
    p('v_and_b32 v8, 1, v6')
    p('v_lshl_add_u32 v7, v8, 3, v7')
    p('v_lshl_add_u32 v8, v3, 3, v5')
    p('v_lshl_add_u32 v8, v8, 8, v7')
    p(f'v_add_u32 v8, {WS_ + 16384}, v8')
    for t in range(8):
        p(f'v_xor_b32 v{AADR+t}, {t<<5}, v8')
    p('v_lshrrev_b32 v8, 1, v4')
    p('v_xor_b32 v8, v8, v3')
    p('v_lshlrev_b32 v8, 4, v8')
    p('v_lshl_add_u32 v8, v4, 7, v8')
    p('s_mul_i32 s13, s3, 6144')
    p(f's_add_u32 s13, s13, {XS + 24576}')
    p(f'v_add_u32 v{BADR}, s13, v8')
    p(f'v_xor_b32 v{BADR+1}, 64, v{BADR}')
    p('s_cmp_lt_u32 s3, 2')
    p(f's_mov_b32 s13, {KB1}'); p(f's_mov_b32 s14, {VB1}')
    p(f's_cselect_b32 s13, {KB0}, s13'); p(f's_cselect_b32 s14, {VB0}, s14')
    p('v_lshrrev_b32 v8, 1, v3')
    p('v_xor_b32 v8, v8, v4')
    p('v_lshlrev_b32 v8, 4, v8')
    p('v_lshl_add_u32 v8, v4, 8, v8')
    p('v_and_b32 v9, 1, v3')
    p('v_lshl_add_u32 v8, v9, 3, v8')
    p('v_add_u32 v10, s13, v8')
    p('v_lshl_add_u32 v8, v3, 2, v5')
    p('v_lshl_add_u32 v6, v8, 8, v7')
    p('v_add_u32 v11, s14, v6')
    p('v_lshlrev_b32 v9, 4, v2')
    for i in range(4): p(f'v_mov_b32 v{12+i}, 0x3f803f80')
    for i in range(96): p(f'v_mov_b32 v{16+i}, 0')
    p('s_lshl_b32 s62, s6, 7'); p('s_lshl_b32 s14, s7, 2'); p('s_add_u32 s62, s62, s14')
    p('s_mul_i32 s62, s62, 48'); p('s_mul_i32 s14, s8, 12'); p('s_add_u32 s62, s62, s14')
    p('s_mul_i32 s14, s3, 3'); p('s_add_u32 s62, s62, s14'); p('s_lshl_b32 s62, s62, 10')
    p(f's_mov_b32 s63, {f32bits(LOG2E_SCALE):#x}')
    p('s_lshl_b32 s69, s4, 4'); p('s_lshl_b32 s14, s8, 2'); p('s_add_u32 s69, s69, s14'); p('s_add_u32 s69, s69, s3')
    p('s_lshl_b32 s69, s69, 3'); p('s_add_u32 s69, s69, s66'); p('s_lshl_b32 s69, s69, 2'); p(f's_add_u32 s69, s69, {FB1}')
    p('s_waitcnt lgkmcnt(0)')
    srd(p, 52, 34, 35, WS_SIZE)
    stamp_setup(p, 34, 35)
    p('s_mov_b64 s[34:35], s[32:33]')
    p('s_load_dwordx2 s[20:21], s[0:1], 80')
    p('s_or_b32 s9, s2, s3')
    p('s_cmp_lg_u32 s9, 0')
    p('s_cbranch_scc1 L_nonce_rd')
    p('s_memrealtime s[70:71]')
    srd(p, 44, 34, 35, 256)
    p('s_waitcnt lgkmcnt(0)')
    p('s_or_b32 s70, s70, 1')
    p('v_mov_b32 v250, s70')
    p('v_mov_b32 v251, 0')
    p('s_mov_b64 exec, 1')
    p('buffer_store_dword v250, v251, s[44:47], 0 offen sc0 sc1')
    p('s_mov_b64 exec, -1')
    p('L_nonce_rd:')
    p('s_waitcnt lgkmcnt(0)')
    srd(p, 44, 20, 21, 8*96*1280*2)
    def reads(st, ks):
        L = [f'ds_read_b128 {vr(BF(st,qt))}, v{BADR+ks} offset:{qt*2048}' for qt in range(3)]
        for t in range(8):
            L.append(f'ds_read_b64_tr_b16 {vr(AF(st,t),2)}, v{AADR+t} offset:{ks*8192}')
            L.append(f'ds_read_b64_tr_b16 {vr(AF(st,t)+2,2)}, v{AADR+t} offset:{ks*8192+1024}')
        return L
    def mfmas(st):
        return [f'{MF} {vr(ACC(t,qt))}, {vr(AF(st,t))}, {vr(BF(st,qt))}, {vr(ACC(t,qt))}' for t in range(8) for qt in range(3)]
    p('s_mov_b32 s14, 1')
    p('s_mov_b32 s15, 0')
    p('s_barrier')
    dstamp(p, 1)
    pro = reads(0, 0)
    for x in pro: p(x)
    _, pend0 = auto_lgkm(pro)
    scal = ['s_add_u32 s14, s14, 1', 's_cmp_eq_u32 s14, 3', 's_cselect_b32 s61, -2, 1', 's_cselect_b32 s14, 0, s14',
            's_mul_i32 s64, s61, 16384', 's_mul_i32 s65, s61, 24576', 's_add_u32 s15, s15, 1', 's_cmp_eq_u32 s15, 10']
    m0_ = mfmas(0); m1 = mfmas(1)
    H1 = spread(m0_[:19], reads(1, 1)) + spread(m0_[19:], scal, per=2)
    upd = [f'v_add_u32 v{BADR+i}, s65, v{BADR+i}' for i in range(2)] + [f'v_add_u32 v{AADR+t}, s64, v{AADR+t}' for t in range(8)]
    H2a = interleave(m1[:NA], upd, per=2) + ['s_waitcnt lgkmcnt(0)', 's_barrier']
    H2b = spread(m1[NA:], reads(0, 0))
    h1, pend = auto_lgkm(H1, pend0)
    h2a, pend_a = auto_lgkm(H2a, pend)
    h2b, _ = auto_lgkm(H2b, pend_a)
    p('L_loop:')
    for x in h1: p(x)
    p('s_cbranch_scc1 L_tail')
    for x in h2a + h2b: p(x)
    p('s_branch L_loop')
    p('L_tail:')
    KFg = list(range(24, 32)) + [40, 41, 42] + list(range(46, 56)) + [32, 33, 34]
    KF = lambda kt, u: G(KFg[kt*4+u])
    QB = lambda u, qt: ACC(2*u, qt)
    Smap = {}
    free_early = [35, 36, 37, 38, 39, 43, 44, 45]
    for kt in range(6): Smap[(kt, 0)] = free_early[kt]
    oddq = lambda qt: [(2*u+1)*3+qt for u in range(4)]
    l1 = oddq(0) + oddq(1)[:2]
    l2 = oddq(1)[2:] + oddq(2)
    for kt in range(6): Smap[(kt, 1)] = l1[kt]; Smap[(kt, 2)] = l2[kt]
    S = lambda kt, qt: G(Smap[(kt, qt)])
    kaddr = [f'v_xor_b32 v{AADR+m}, {m<<5}, v10' for m in range(8)]
    def kread(kt, u):
        return [f'ds_read_b64 {vr(KF(kt,u),2)}, v{AADR+2*u} offset:{kt*4096}', f'ds_read_b64 {vr(KF(kt,u)+2,2)}, v{AADR+2*u+1} offset:{kt*4096}']
    kr = [x for kt in range(6) for u in range(4) for x in kread(kt, u)]
    qcvt = lambda qt: [x for u in range(4) for x in cvt4(QB(u, qt), ACC(2*u, qt), ACC(2*u+1, qt))]
    T = interleave(m1[:NA], kaddr, per=2) + ['s_waitcnt lgkmcnt(0)', 's_barrier']
    if STAMPS: T.append(f'{"s_memtime" if CLK else "s_memrealtime"} s[76:77]')
    o, rest = merge(m1[NA:], kr[:42])
    T += o + rest + kr[42:]
    def smf(qt):
        return [f'{MF} {vr(S(kt,qt))}, {vr(KF(kt,u))}, {vr(QB(u,qt))}, {"0" if u == 0 else vr(S(kt,qt))}' for u in range(4) for kt in range(6)]
    def softmax(qt):
        regs = [S(kt, qt) + r for kt in range(6) for r in range(4)]
        M = 250; Tm = 251; M2 = 249
        L = [f'v_max3_f32 v{M}, v{regs[0]}, v{regs[1]}, v{regs[2]}', f'v_max3_f32 v{M2}, v{regs[3]}, v{regs[4]}, v{regs[5]}']
        for i in range(6, 22, 4):
            L.append(f'v_max3_f32 v{M}, v{M}, v{regs[i]}, v{regs[i+1]}')
            L.append(f'v_max3_f32 v{M2}, v{M2}, v{regs[i+2]}, v{regs[i+3]}')
        L.append(f'v_max3_f32 v{M}, v{M}, v{regs[22]}, v{regs[23]}')
        L.append(f'v_max_f32 v{M}, v{M}, v{M2}')
        L += [f'v_mov_b32 v{Tm}, v{M}', f'v_permlane16_swap_b32 v{M}, v{Tm}', f'v_max_f32 v{M}, v{M}, v{Tm}',
              f'v_mov_b32 v{Tm}, v{M}', f'v_permlane32_swap_b32 v{M}, v{Tm}', f'v_max_f32 v{M}, v{M}, v{Tm}',
              f'v_mul_f32 v{M}, s63, v{M}']
        for u in range(3):
            rr = regs[8*u:8*u+8]
            L += [f'v_fma_f32 v{r}, v{r}, s63, -v{M}' for r in rr]
            L += [f'v_exp_f32 v{r}, v{r}' for r in rr]
            L += cvt4(S(2*u, qt), S(2*u, qt), S(2*u+1, qt))
        return L
    PB = lambda u, qt: S(2*u, qt)
    VF = lambda t, u: G(KFg[t*3+u])
    T += qcvt(0)
    o, rest = merge(smf(0), qcvt(1) + qcvt(2))
    T += o + rest
    sm0 = softmax(0)
    m12 = smf(1) + smf(2)
    o, rest0 = merge(m12[4:], sm0)
    T += m12[:4] + o + rest0
    T += [f'v_xor_b32 v{AADR+t}, {t<<5}, v11' for t in range(8)]
    t2, _ = auto_lgkm(T, pend)
    for x in t2: p(x)
    dstamp(p, 3)
    get_nonce(p, 'L_nc')
    p('s_barrier')
    dstamp(p, 4)
    U = []
    for t in range(8):
        for u in range(3):
            U.append(f'ds_read_b64_tr_b16 {vr(VF(t,u),2)}, v{AADR+t} offset:{u*8192}')
            U.append(f'ds_read_b64_tr_b16 {vr(VF(t,u)+2,2)}, v{AADR+t} offset:{u*8192+4096}')
    qbg = [(2*u)*3+qt for u in range(4) for qt in range(3)]
    Og = {0: qbg[:9], 1: qbg[9:] + [44, 45] + [Smap[(1,0)], Smap[(3,0)], Smap[(5,0)]] + [Smap[(1,1)]]}
    Og[2] = [Smap[(0,0)], Smap[(2,0)], Smap[(4,0)], Smap[(3,1)], Smap[(5,1)], Smap[(1,2)], Smap[(3,2)], Smap[(5,2)], Smap[(0,1)]]
    OA = lambda t, qt: G(Og[qt][t])
    def pv(qt):
        L = []
        for u in range(3):
            L.append(f'{MF} {vr(OA(8,qt))}, v[12:15], {vr(PB(u,qt))}, {"0" if u == 0 else vr(OA(8,qt))}')
        for t2_ in range(0, 8, 2):
            for u in range(3):
                for t in (t2_, t2_+1):
                    L.append(f'{MF} {vr(OA(t,qt))}, {vr(VF(t,u))}, {vr(PB(u,qt))}, {"0" if u == 0 else vr(OA(t,qt))}')
        return L
    def onorm(qt):
        l = OA(8, qt)
        L = [f'v_rcp_f32 v{l}, v{l}']
        for v in range(4):
            a0 = OA(2*v, qt); a1 = OA(2*v+1, qt)
            L += [f'v_mul_f32 v{a+r}, v{a+r}, v{l}' for a in (a0, a1) for r in range(4)]
            L += cvt4(a0, a0, a1)
            L.append(f's_add_u32 s14, s62, {v*48*1024}')
            L.append(f'buffer_store_dwordx4 {vr(a0)}, v9, s[52:55], s14 offen offset:{qt*1024} {OFL}')
        return L
    sm1 = softmax(1); sm2 = softmax(2)
    o, rest = merge(pv(0), sm1)
    U += o + rest
    o, rest = merge(pv(1), sm2)
    U += o + rest
    o, rest = merge(pv(2), onorm(0) + onorm(1))
    U += o + rest
    U += onorm(2)
    u2, _ = auto_lgkm(U, [])
    for x in u2: p(x)
    dstamp(p, 5)
    p2_ids(p)
    A2 = lambda i, t: 16 + (i*4+t)*4
    FA = lambda st, t: 80 + st*32 + t*4
    FBq = lambda st, i: 96 + st*32 + i*4
    p('s_lshr_b32 s12, s3, 1'); p('s_lshl_b32 s12, s12, 7')
    p(f'v_add_u32 v8, {WO_L}, v6')
    p('v_xor_b32 v8, s12, v8')
    for t in range(4): p(f'v_xor_b32 v{AADR+t}, {t<<5}, v8')
    p('s_and_b32 s12, s3, 1'); p('s_lshl_b32 s12, s12, 2'); p('s_add_u32 s12, s12, s10'); p('s_lshl_b32 s13, s12, 10')
    p(f'v_add_u32 v8, s13, v9')
    for i in range(4): p(f'v_xor_b32 v{AADR+4+i}, {i<<10}, v8')
    p('v_mov_b32 v250, s68')
    p('v_mov_b32 v251, 0')
    p('s_waitcnt vmcnt(0)')
    p('s_mov_b64 exec, 1')
    p(f'buffer_store_dword v250, v251, s[52:55], s69 offen sc1')
    p('s_mov_b64 exec, -1')
    dstamp(p, 6)
    p('s_cmp_ge_u32 s5, 30')
    p('s_cbranch_scc1 L_cdone')
    p('s_barrier')
    p('s_barrier')
    for i in range(64): p(f'v_mov_b32 v{16+i}, 0')
    def reads2(st, kk):
        L = [f'ds_read_b128 {vr(FBq(st,0))}, v{AADR+4} offset:{kk*8192}']
        for t in range(4):
            L.append(f'ds_read_b64_tr_b16 {vr(FA(st,t),2)}, v{AADR+t} offset:{kk*8192}')
            L.append(f'ds_read_b64_tr_b16 {vr(FA(st,t)+2,2)}, v{AADR+t} offset:{kk*8192+4096}')
        L += [f'ds_read_b128 {vr(FBq(st,i))}, v{AADR+4+i} offset:{kk*8192}' for i in range(1, 4)]
        return L
    def mf2(st):
        return [f'{MF} {vr(A2(i,t))}, {vr(FA(st,t))}, {vr(FBq(st,i))}, {vr(A2(i,t))}' for i in range(4) for t in range(4)]
    p('s_mov_b32 s14, 0')
    p('s_mov_b32 s15, 0')
    p('s_barrier')
    dstamp(p, 7)
    pro = reads2(0, 0)
    for x in pro: p(x)
    _, pend0 = auto_lgkm(pro)
    scal = ['s_add_u32 s14, s14, 1', 's_cmp_eq_u32 s14, 5', 's_cselect_b32 s61, -4, 1', 's_cselect_b32 s14, 0, s14', 's_lshl_b32 s64, s61, 14',
            's_add_u32 s15, s15, 1', 's_and_b32 s61, s15, 3', 's_cselect_b32 s61, 1, -3', 's_lshl_b32 s65, s61, 14', 's_cmp_eq_u32 s15, 16']
    n0 = mf2(0); n1 = mf2(1)
    H1 = spread(n0[:12], reads2(1, 1)) + spread(n0[12:], scal, per=3)
    upd = [f'v_add_u32 v{AADR+4+i}, s65, v{AADR+4+i}' for i in range(4)] + [f'v_add_u32 v{AADR+t}, s64, v{AADR+t}' for t in range(4)]
    H2a = interleave(n1[:4], upd, per=2) + ['s_waitcnt lgkmcnt(0)', 's_barrier']
    H2b = spread(n1[4:], reads2(0, 0))
    h1, pend = auto_lgkm(H1, pend0)
    h2a, pend_a = auto_lgkm(H2a, pend)
    h2b, _ = auto_lgkm(H2b, pend_a)
    p('L_loop2:')
    for x in h1: p(x)
    p('s_cbranch_scc1 L_tail2')
    for x in h2a + h2b: p(x)
    p('s_branch L_loop2')
    p('L_tail2:')
    last = [n1[i*4+t] for i in (1, 2, 3, 0) for t in range(4)]
    SZ = 4096 if PF32 else 2048
    pre = ['s_mul_i32 s61, s6, 30', 's_add_u32 s61, s61, s5', 's_lshl_b32 s61, s61, 2']
    for i in (1, 2, 3):
        pre += [f's_xor_b32 s{63+i}, s10, {i}', f's_add_u32 s{63+i}, s{63+i}, s61', f's_lshl_b32 s{63+i}, s{63+i}, 2', f's_add_u32 s{63+i}, s{63+i}, s3',
                f's_mul_i32 s{63+i}, s{63+i}, {3*SZ}', f's_add_u32 s{63+i}, s{63+i}, {INBOX + (i-1)*SZ}']
    outp = ['s_lshl_b32 s62, s66, 3', 's_add_u32 s62, s62, s12', 's_mul_i32 s62, s62, 40960',
            's_mul_i32 s13, s6, 1280', 's_add_u32 s62, s62, s13', 's_lshl_b32 s13, s67, 8', 's_add_u32 s62, s62, s13',
            's_lshr_b32 s13, s3, 1', 's_lshl_b32 s13, s13, 7', 's_add_u32 s62, s62, s13']
    tl, _ = auto_lgkm(spread(last, outp + pre, per=2), pend)
    for x in tl: p(x)
    dstamp(p, 8)
    for i in (1, 2, 3):
        if PF32:
            for t in range(4):
                p(f'buffer_store_dwordx4 {vr(A2(i,t))}, v9, s[52:55], s{63+i} offen offset:{t*1024} sc1')
        else:
            for hf in range(2):
                for x in cvt4(A2(i, 2*hf), A2(i, 2*hf), A2(i, 2*hf+1)): p(x)
                p(f'buffer_store_dwordx4 {vr(A2(i,2*hf))}, v9, s[52:55], s{63+i} offen offset:{hf*1024} sc1')
    p('s_add_u32 s13, s61, s3'); p('s_lshl_b32 s13, s13, 7'); p(f's_add_u32 s13, s13, {FB2}')
    p('s_add_u32 s67, s61, s10'); p('s_lshl_b32 s67, s67, 2'); p('s_add_u32 s67, s67, s3'); p(f's_mul_i32 s67, s67, {3*SZ}'); p(f's_add_u32 s67, s67, {INBOX}')
    p('s_lshl_b32 s14, s10, 2')
    p('v_mov_b32 v251, s14')
    p('v_lshlrev_b32 v252, 2, v2')
    p('v_mul_u32_u24 v8, 2560, v4')
    p('v_lshl_add_u32 v8, v3, 3, v8')
    p('s_waitcnt vmcnt(0)')
    p('s_mov_b64 exec, 1')
    p('buffer_store_dword v250, v251, s[52:55], s13 offen sc1')
    dstamp(p, 9)
    poll_flags(p, 'L_pf2', 252, 253, 's13', '15')
    dstamp(p, 10)
    R = 80
    nld = 3 * SZ // 1024
    for k in range(nld):
        if k % 4 == 0 and k: p(f's_add_u32 s67, s67, 4096')
        p(f'buffer_load_dwordx4 {vr(R+4*k)}, v9, s[52:55], s67 offen offset:{(k%4)*1024} sc1')
    for i in range(3):
        if PF32:
            p(f's_waitcnt vmcnt({nld - 4*(i+1)})')
            for t in range(4):
                for r in range(4):
                    p(f'v_add_f32 v{A2(0,t)+r}, v{A2(0,t)+r}, v{R+16*i+4*t+r}')
        else:
            p(f's_waitcnt vmcnt({nld - 2*(i+1)})')
            for t in range(4):
                for r2 in range(2):
                    src = R + 8*i + 2*t + r2
                    p(f'v_lshlrev_b32 v253, 16, v{src}')
                    p(f'v_and_b32 v254, 0xffff0000, v{src}')
                    p(f'v_add_f32 v{A2(0,t)+2*r2}, v{A2(0,t)+2*r2}, v253')
                    p(f'v_add_f32 v{A2(0,t)+2*r2+1}, v{A2(0,t)+2*r2+1}, v254')
    for t in range(4):
        a = A2(0, t)
        p(f'v_cvt_pk_bf16_f32 v{a}, v{a}, v{a+1}')
        p(f'v_cvt_pk_bf16_f32 v{a+1}, v{a+2}, v{a+3}')
        p(f'buffer_store_dwordx2 {vr(a,2)}, v8, s[44:47], s62 offen offset:{t*32}')
    if STAMPS:
        p('s_waitcnt vmcnt(0)')
        dstamp(p, 11)
    p('L_cdone:')
    flush_stamps(p, 12, 0, 0, 'L_fsC')
    p('L_end:')
    p('s_endpgm')
    return p.finalize()

if __name__ == '__main__':
    out = HDR
    out += '; @launch grid=(256,1,1) block=(512,1,1) lds=163840\n'
    out += '.amdgcn_target "amdgcn-amd-amdhsa--gfx950"\n.text\n'
    out += gen() + '\n'
    out += '.section .rodata,"a"\n' + kd(NAME + '_kernel', 256)
    print(out)
```

```python
from common import *
from asmlib import auto_lgkm as _al
CAP = opt('cap', 8)
def auto_lgkm(l, pnd=None): return _al(l, pnd, CAP)
XFL = opt('xfl', 'none').replace('none', '')
WFL2 = opt('wfl2', 'none').replace('none', '')
OFL = opt('ofl', 'sc1').replace('none', '').replace('_', ' ')
ORFL = opt('orfl', 'sc1').replace('none', '').replace('_', ' ')
LAG = opt('lag', 7)
PATA = opt('pata', 's0 s1 s2 s3 K1 s4 s5 Kb s6 s7 s8 s9 Ka V0 V1').replace('_', ' ')
PATB = opt('patb', 's0 s1 s2 s3 s4 K1 s5 s6 Kb s7 s8 s9 Ka V0 V1').replace('_', ' ')
PATSEL = opt('patsel', 6)
NA = opt('na', 5)
PF32 = opt('pf32', 0)
LPRIO = opt('lprio', 0)
CFL = opt('cfl', 'nt').replace('none', '')
PSLEEP = opt('psleep', 2)
XS, WS_, SP = 0, 73728, 122880
KB0 = SP - 8192; KB1 = KB0 + 24576
VB0 = XS + 2*24576; VB1 = XS
WO_L, O_L = 73728, 0
INBOX = 16 << 20; FB1 = 32 << 20; FB2 = FB1 + 65536; WS_SIZE = 48 << 20
MF = 'v_mfma_f32_16x16x32_bf16'
SPIN_MAX = 1 << 16

def dstamp(p, k):
    if STAMPS: p(f'{"s_memtime" if CLK else "s_memrealtime"} s[{72+2*k}:{73+2*k}]')
def flush_stamps(p, n, base_idx, wave, lbl):
    if not STAMPS: return
    p(f's_cmp_lg_u32 s3, {wave}'); p(f's_cbranch_scc1 {lbl}')
    p('s_waitcnt lgkmcnt(0) vmcnt(0)')
    p('v_mov_b32 v1, 0')
    p('s_mov_b64 exec, 1')
    for k in range(n):
        p(f'v_mov_b32 v{4+2*k}, s{72+2*k}'); p(f'v_mov_b32 v{5+2*k}, s{73+2*k}')
        p(f'buffer_store_dwordx2 v[{4+2*k}:{5+2*k}], v1, s[56:59], s60 offen offset:{(base_idx+k)*8}')
    p('s_waitcnt vmcnt(0)')
    p(f'{lbl}:')
def get_nonce(p, lbl):
    p(f's_mov_b32 s9, {SPIN_MAX}')
    p('s_load_dword s68, s[34:35], 0x0')
    p('s_waitcnt lgkmcnt(0)')
    p('s_cmp_lg_u32 s68, 0')
    p(f's_cbranch_scc1 {lbl}_ok')
    p(f'{lbl}:')
    p('s_load_dword s68, s[34:35], 0x0 glc')
    p('s_waitcnt lgkmcnt(0)')
    p('s_cmp_lg_u32 s68, 0')
    p(f's_cbranch_scc1 {lbl}_ok')
    p('s_sleep 64')
    p('s_sub_u32 s9, s9, 1')
    p('s_cmp_lg_u32 s9, 0')
    p(f's_cbranch_scc1 {lbl}')
    p(f'{lbl}_ok:')
def poll_flags(p, lbl, vaddr, vtmp, soff, maskreg):
    p(f's_mov_b32 s9, {SPIN_MAX}')
    p(f's_mov_b64 exec, {maskreg}')
    p(f'{lbl}:')
    p(f'buffer_load_dword v{vtmp}, v{vaddr}, s[52:55], {soff} offen sc1')
    p('s_waitcnt vmcnt(0)')
    p(f'v_cmp_ne_u32 vcc, s68, v{vtmp}')
    p(f's_cbranch_vccz {lbl}_ok')
    p(f's_sleep {PSLEEP}')
    p('s_sub_u32 s9, s9, 1')
    p('s_cmp_lg_u32 s9, 0')
    p(f's_cbranch_scc1 {lbl}')
    p(f'{lbl}_ok:')
    p('s_mov_b64 exec, -1')

def cvt4(d, a0, a1):
    return [f'v_cvt_pk_bf16_f32 v{d}, v{a0}, v{a0+1}', f'v_cvt_pk_bf16_f32 v{d+1}, v{a0+2}, v{a0+3}',
            f'v_cvt_pk_bf16_f32 v{d+2}, v{a1}, v{a1+1}', f'v_cvt_pk_bf16_f32 v{d+3}, v{a1+2}, v{a1+3}']
def spread(main, fill, extra=(), per=1):
    out = []; fi = 0; ei = 0
    for m in main:
        out.append(m)
        for _ in range(per):
            if fi < len(fill): out.append(fill[fi]); fi += 1
        if ei < len(extra): out.append(extra[ei]); ei += 1
    return out + list(fill[fi:]) + list(extra[ei:])

def p2_ids(p):
    p('s_mul_i32 s66, s5, 52'); p('s_lshr_b32 s66, s66, 8')
    p('s_mul_i32 s67, s66, 5'); p('s_sub_u32 s67, s5, s67')
    p('s_and_b32 s10, s4, 3')

def gen():
    p = Prog()
    K1 = NAME + '_kernel'
    p(f'.globl {K1}\n.p2align 8\n.type {K1},@function\n{K1}:')
    p('s_cmp_ge_u32 s2, 256')
    p('s_cbranch_scc1 L_end')
    p('s_load_dwordx8 s[16:23], s[0:1], 0')
    p('s_load_dwordx8 s[24:31], s[0:1], 40')
    p('s_load_dwordx4 s[32:35], s[0:1], 88')
    dstamp(p, 0)
    p('v_lshrrev_b32 v1, 6, v0')
    p('v_and_b32 v2, 63, v0')
    p('v_readfirstlane_b32 s3, v1')
    p('s_and_b32 s4, s2, 7')
    p('s_lshr_b32 s5, s2, 3')
    p('s_lshr_b32 s6, s4, 2')
    p('s_and_b32 s7, s4, 3')
    p('s_lshl_b32 s7, s7, 3')
    p('s_and_b32 s66, s5, 7')
    p('s_add_u32 s7, s7, s66')
    p('s_lshr_b32 s8, s5, 3')
    p('v_lshrrev_b32 v3, 4, v2')
    p('v_and_b32 v4, 15, v2')
    p('s_cmp_lt_u32 s3, 4')
    p('s_cbranch_scc1 L_compute')
    if LPRIO: p(f's_setprio {LPRIO}')
    p('s_and_b32 s11, s3, 3')
    p('v_lshrrev_b32 v5, 3, v2')
    p('s_lshl_b32 s12, s11, 3')
    p('v_add_u32 v5, s12, v5')
    p('v_mul_u32_u24 v5, 1280, v5')
    p('s_and_b32 s12, s11, 1')
    p('s_lshl_b32 s12, s12, 2')
    p('v_add_u32 v6, s12, v3')
    p('v_and_b32 v7, 7, v2')
    p('v_xor_b32 v7, v7, v6')
    p('v_lshl_add_u32 v11, v7, 4, v5')
    p('v_lshlrev_b32 v6, 1, v6')
    p('v_xor_b32 v8, v6, v4')
    p('s_lshl_b32 s12, s11, 2')
    p('v_add_u32 v5, s12, v3')
    p('v_lshlrev_b32 v7, 8, v5')
    p('v_lshl_add_u32 v13, v8, 4, v7')
    p('v_xor_b32 v6, v4, v5')
    p('v_lshl_add_u32 v10, v6, 4, v7')
    p('s_lshr_b32 s12, s11, 1')
    p('s_lshl_b32 s12, s12, 2')
    p('v_add_u32 v6, s12, v3')
    p('v_lshlrev_b32 v6, 1, v6')
    p('v_xor_b32 v6, v6, v4')
    p('v_lshlrev_b32 v7, 13, v5')
    p('v_lshl_add_u32 v12, v6, 4, v7')
    p('s_lshl_b32 s13, s11, 10')
    p('s_mul_i32 s69, s8, 5'); p('s_add_u32 s69, s69, 1'); p('s_lshr_b32 s69, s69, 1')
    p('s_and_b32 s70, s66, 3')
    p('s_mul_i32 s70, s70, 5'); p('s_add_u32 s70, s70, 1'); p('s_lshr_b32 s70, s70, 1')
    p('s_add_u32 s69, s69, s70')
    p('s_bfe_u32 s70, s66, 0x10002')
    p('s_add_u32 s69, s69, s70')
    p('s_cmp_ge_u32 s69, 10'); p('s_cselect_b32 s71, 10, 0'); p('s_sub_u32 s69, s69, s71')
    p('s_mul_i32 s9, s8, 245760')
    p('s_lshl_b32 s10, s7, 8')
    p('s_lshl_b32 s12, s8, 6')
    p('s_add_u32 s12, s12, s7')
    p('s_mul_i32 s12, s12, 24576')
    p('s_waitcnt lgkmcnt(0)')
    p('s_cmp_eq_u32 s6, 0')
    for i in range(4):
        p(f's_cselect_b64 s[{16+2*i}:{17+2*i}], s[{16+2*i}:{17+2*i}], s[{24+2*i}:{25+2*i}]')
    p('s_add_u32 s36, s16, s9'); p('s_addc_u32 s37, s17, 0')
    p('s_mov_b32 s38, 245760'); p('s_mov_b32 s39, 0x20000')
    p('s_add_u32 s40, s22, s10'); p('s_addc_u32 s41, s23, 0')
    p('s_sub_u32 s42, 5242880, s10'); p('s_mov_b32 s43, 0x20000')
    p('s_add_u32 s44, s18, s12'); p('s_addc_u32 s45, s19, 0')
    p(f's_mov_b32 s46, {786432+24576}'); p('s_mov_b32 s47, 0x20000')
    p('s_add_u32 s48, s20, s12'); p('s_addc_u32 s49, s21, 0')
    p(f's_mov_b32 s50, {786432+24576}'); p('s_mov_b32 s51, 0x20000')
    p('s_load_dwordx2 s[16:17], s[0:1], 32')
    p('s_load_dwordx2 s[18:19], s[0:1], 72')
    srd(p, 52, 34, 35, WS_SIZE)
    stamp_setup(p, 34, 35)
    p('s_mov_b64 s[34:35], s[32:33]')
    p(f's_bitcmp1_b32 s2, {PATSEL}')
    p('s_cbranch_scc1 L_patB')

    def loader(pat, tag):
        stream = []
        for w in pat.split():
            if w[0] == 's': stream += [('x' + w[1:], m) for m in range(6)] + [('w' + w[1:], m) for m in range(4)]
            elif w[0] in 'xw': stream += [(w, m) for m in range(6 if w[0] == 'x' else 4)]
            elif w == 'Ka': stream += [('K0', m) for m in range(2)]
            elif w == 'Kb': stream += [('K0', m) for m in range(2, 6)]
            else: stream += [(w, m) for m in range(6)]
        n = len(stream)
        end = {}
        for i, (it, m) in enumerate(stream):
            if it[0] in 'xw': end[int(it[1:])] = i + 1
        def need(it, m):
            if it[0] in 'xw': return int(it[1:]) - 3
            if it == 'K0': return 7 if m < 2 else -9
            if it == 'K1': return -9
            return 7 if it == 'V0' else 8
        bpos = {}; prev = 0
        for s in range(-1, 9):
            pos = min(end[s+1] + LAG, n)
            first_needing = min([i for i, (it, m) in enumerate(stream) if need(it, m) >= s and need(it, m) >= 0] + [n])
            pos = min(pos, first_needing)
            assert pos >= end[s+1], (s, pos, end[s+1])
            pos = max(pos, prev); bpos[s] = pos; prev = pos
        passed = [-2]
        def barrier(s, issued):
            p(f's_waitcnt vmcnt({issued - end[s+1]})')
            p(f's_barrier      ; B_{s}')
            passed[0] = s
            if s in (-1, 2, 5, 8): dstamp(p, 1 + (s+1)//3)
        last_item = None
        for i, (it, m) in enumerate(stream):
            for s in range(-1, 9):
                if bpos[s] == i and passed[0] < s: barrier(s, i)
            assert need(it, m) <= passed[0] or need(it, m) < 0
            if it[0] in 'xw':
                t = int(it[1:]); slot = (t + 1) % 3
                if it != last_item:
                    p(f's_add_u32 s70, s69, {t}')
                    p('s_cmp_ge_u32 s70, 10'); p('s_cselect_b32 s71, 10, 0'); p('s_sub_u32 s70, s70, s71')
                    p(f's_lshl_b32 s64, s70, {7 if it[0]=="x" else 19}')
                if it[0] == 'x':
                    p(f's_add_u32 m0, s13, {XS + slot*24576 + m*4096}')
                    p(f's_add_u32 s14, s64, {m*40960}')
                    p(f'buffer_load_dwordx4 v11, s[36:39], s14 offen {XFL} lds')
                else:
                    p(f's_add_u32 m0, s13, {WS_ + slot*16384 + m*4096}')
                    p(f's_add_u32 s14, s64, {m*131072}')
                    p(f'buffer_load_dwordx4 v12, s[40:43], s14 offen {CFL if t < 3 else WFL2} lds')
            else:
                b = int(it[1])
                addr = {'K0': KB0, 'K1': KB1, 'V0': VB0, 'V1': VB1}[it] + m*4096
                vo, sr = (10, 44) if it[0] == 'K' else (13, 48)
                p(f's_add_u32 m0, s13, {addr}')
                p(f's_mov_b32 s14, {b*786432 + m*4096}')
                p(f'buffer_load_dwordx4 v{vo}, s[{sr}:{sr+3}], s14 offen {CFL} lds')
            last_item = it
        for s in range(-1, 9):
            if passed[0] < s: barrier(s, n)
        lastK = max(i for i, (it, m) in enumerate(stream) if it[0] == 'K') + 1
        p(f's_waitcnt vmcnt({n - lastK})')
        p('s_barrier      ; B_9')
    loader(PATA, 'A')
    p('s_branch L_ld2')
    p('L_patB:')
    loader(PATB, 'B')
    p('L_ld2:')
    p('s_cmp_ge_u32 s5, 30')
    p('s_cbranch_scc1 L_ld_idle')
    p2_ids(p)
    p('s_waitcnt lgkmcnt(0)')
    p('s_cmp_eq_u32 s6, 0')
    p('s_cselect_b64 s[16:17], s[16:17], s[18:19]')
    p('s_mul_i32 s9, s10, 1310720')
    p('s_lshl_b32 s12, s67, 8')
    p('s_add_u32 s9, s9, s12')
    p('s_add_u32 s36, s16, s9'); p('s_addc_u32 s37, s17, 0')
    p('s_sub_u32 s38, 1310720, s12'); p('s_mov_b32 s39, 0x20000')
    p('v_mul_u32_u24 v7, 1280, v5')
    p('v_lshl_add_u32 v12, v8, 4, v7')
    p('v_lshl_add_u32 v11, v2, 4, s13')
    p('s_mul_i32 s69, s66, 43'); p('s_lshr_b32 s69, s69, 4'); p('s_and_b32 s69, s69, 14')
    p('s_mov_b32 s70, s69')
    p('s_mov_b32 s71, s69')
    p(f's_add_u32 s62, s13, {WO_L}')
    p(f's_add_u32 s63, s13, {O_L}')
    p('s_lshl_b32 s65, s6, 2'); p('s_add_u32 s65, s65, s10'); p('s_mul_i32 s65, s65, 1536')
    p('s_lshl_b32 s12, s66, 3'); p('s_add_u32 s65, s65, s12'); p('s_lshl_b32 s65, s65, 10')
    def wo_issue(fl):
        p('s_mul_i32 s64, s70, 81920')
        for m in range(4):
            p(f's_add_u32 m0, s62, {m*4096}')
            p(f's_add_u32 s14, s64, {m*20480}')
            p(f'buffer_load_dwordx4 v12, s[36:39], s14 offen {fl} lds')
        p('s_add_u32 s70, s70, 1'); p('s_and_b32 s70, s70, 15')
        p('s_add_u32 s62, s62, 16384')
        p(f's_cmp_ge_u32 s62, {WO_L + 5*16384}')
        p(f's_cselect_b32 s12, {5*16384}, 0'); p('s_sub_u32 s62, s62, s12')
    def o_issue():
        p('s_mul_i32 s64, s71, 98304')
        p('s_add_u32 s64, s64, s65')
        for m in range(4):
            p(f's_add_u32 m0, s63, {m*4096}')
            p(f's_add_u32 s14, s64, {(0, 4096, 49152, 53248)[m]}')
            p(f'buffer_load_dwordx4 v11, s[52:55], s14 offen {ORFL} lds')
        p('s_add_u32 s71, s71, 1'); p('s_and_b32 s71, s71, 15')
        p('s_add_u32 s63, s63, 16384'); p('s_and_b32 s63, s63, 0xffff')
    wo_issue(CFL); wo_issue(CFL)
    p('s_waitcnt vmcnt(8)')
    dstamp(p, 5)
    p('s_barrier      ; B_10')
    wo_issue(CFL); wo_issue(CFL); wo_issue(WFL2)
    get_nonce(p, 'L_nl')
    p('s_mul_i32 s12, s66, 171'); p('s_lshr_b32 s12, s12, 6'); p('s_lshl_b32 s12, s12, 5')
    p('s_lshl_b32 s14, s4, 9'); p('s_add_u32 s12, s12, s14'); p(f's_add_u32 s15, s12, {FB1}')
    p('s_cmp_eq_u32 s66, 1'); p('s_cselect_b32 s20, -1, 0xffffff')
    p('s_cmp_eq_u32 s66, 4'); p('s_cselect_b32 s20, -1, s20'); p('s_mov_b32 s21, 0')
    p('v_lshlrev_b32 v14, 2, v2')
    p('s_barrier      ; B_11')
    p('s_cmp_lg_u32 s3, 4')
    p('s_cbranch_scc1 L_nopoll')
    poll_flags(p, 'L_pf1', 14, 15, 's15', 's[20:21]')
    p('L_nopoll:')
    p('s_barrier      ; B_12')
    dstamp(p, 6)
    o_issue(); o_issue(); o_issue()
    p('s_waitcnt vmcnt(8)')
    p('s_barrier      ; C_-1')
    dstamp(p, 7)
    o_issue()
    p('s_waitcnt vmcnt(8)'); p('s_barrier      ; C_0'); wo_issue(WFL2); o_issue()
    p('s_waitcnt vmcnt(12)'); p('s_barrier      ; C_1'); wo_issue(WFL2); o_issue()
    p('s_mov_b32 s15, 2')
    p('L_ld2loop:')
    p('s_waitcnt vmcnt(16)'); p('s_barrier      ; C_s'); wo_issue(WFL2); o_issue()
    p('s_add_u32 s15, s15, 1'); p('s_cmp_lt_u32 s15, 11'); p('s_cbranch_scc1 L_ld2loop')
    p('s_waitcnt vmcnt(16)'); p('s_barrier      ; C_11'); o_issue()
    p('s_waitcnt vmcnt(12)'); p('s_barrier      ; C_12')
    p('s_waitcnt vmcnt(4)'); p('s_barrier      ; C_13')
    p('s_waitcnt vmcnt(0)'); p('s_barrier      ; C_14')
    dstamp(p, 8)
    flush_stamps(p, 9, 16, 4, 'L_fsL')
    p('s_endpgm')
    p('L_ld_idle:')
    p('s_waitcnt vmcnt(0)')
    p('s_barrier      ; B_10')
    p('s_endpgm')

    p('L_compute:')
    G = lambda g: 16 + 4*g
    ACC = lambda t, qt: G(t*3+qt)
    AF = lambda st, t: G(24 + st*8 + t)
    BF = lambda st, qt: G(40 + st*3 + qt)
    AADR = 240; BADR = 248
    p('v_bfe_u32 v5, v2, 2, 2')
    p('v_and_b32 v6, 3, v2')
    p('v_and_b32 v7, 1, v3')
    p('v_lshl_add_u32 v7, v7, 2, v5')
    p('v_lshlrev_b32 v7, 1, v7')
    p('v_lshrrev_b32 v8, 1, v6')
    p('v_xor_b32 v7, v7, v8')
    p('v_lshlrev_b32 v7, 4, v7')
    p('v_and_b32 v8, 1, v6')
    p('v_lshl_add_u32 v7, v8, 3, v7')
    p('v_lshl_add_u32 v8, v3, 3, v5')
    p('v_lshl_add_u32 v8, v8, 8, v7')
    p(f'v_add_u32 v8, {WS_ + 16384}, v8')
    for t in range(8):
        p(f'v_xor_b32 v{AADR+t}, {t<<5}, v8')
    p('v_lshrrev_b32 v8, 1, v4')
    p('v_xor_b32 v8, v8, v3')
    p('v_lshlrev_b32 v8, 4, v8')
    p('v_lshl_add_u32 v8, v4, 7, v8')
    p('s_mul_i32 s13, s3, 6144')
    p(f's_add_u32 s13, s13, {XS + 24576}')
    p(f'v_add_u32 v{BADR}, s13, v8')
    p(f'v_xor_b32 v{BADR+1}, 64, v{BADR}')
    p('s_cmp_lt_u32 s3, 2')
    p(f's_mov_b32 s13, {KB1}'); p(f's_mov_b32 s14, {VB1}')
    p(f's_cselect_b32 s13, {KB0}, s13'); p(f's_cselect_b32 s14, {VB0}, s14')
    p('v_lshrrev_b32 v8, 1, v3')
    p('v_xor_b32 v8, v8, v4')
    p('v_lshlrev_b32 v8, 4, v8')
    p('v_lshl_add_u32 v8, v4, 8, v8')
    p('v_and_b32 v9, 1, v3')
    p('v_lshl_add_u32 v8, v9, 3, v8')
    p('v_add_u32 v10, s13, v8')
    p('v_lshl_add_u32 v8, v3, 2, v5')
    p('v_lshl_add_u32 v6, v8, 8, v7')
    p('v_add_u32 v11, s14, v6')
    p('v_lshlrev_b32 v9, 4, v2')
    for i in range(4): p(f'v_mov_b32 v{12+i}, 0x3f803f80')
    for i in range(96): p(f'v_mov_b32 v{16+i}, 0')
    p('s_lshl_b32 s62, s6, 7'); p('s_lshl_b32 s14, s7, 2'); p('s_add_u32 s62, s62, s14')
    p('s_mul_i32 s62, s62, 48'); p('s_mul_i32 s14, s8, 12'); p('s_add_u32 s62, s62, s14')
    p('s_mul_i32 s14, s3, 3'); p('s_add_u32 s62, s62, s14'); p('s_lshl_b32 s62, s62, 10')
    p(f's_mov_b32 s63, {f32bits(LOG2E_SCALE):#x}')
    p('s_lshl_b32 s69, s4, 4'); p('s_lshl_b32 s14, s8, 2'); p('s_add_u32 s69, s69, s14'); p('s_add_u32 s69, s69, s3')
    p('s_lshl_b32 s69, s69, 3'); p('s_add_u32 s69, s69, s66'); p('s_lshl_b32 s69, s69, 2'); p(f's_add_u32 s69, s69, {FB1}')
    p('s_waitcnt lgkmcnt(0)')
    srd(p, 52, 34, 35, WS_SIZE)
    stamp_setup(p, 34, 35)
    p('s_mov_b64 s[34:35], s[32:33]')
    p('s_load_dwordx2 s[20:21], s[0:1], 80')
    p('s_or_b32 s9, s2, s3')
    p('s_cmp_lg_u32 s9, 0')
    p('s_cbranch_scc1 L_nonce_rd')
    p('s_memrealtime s[70:71]')
    srd(p, 44, 34, 35, 256)
    p('s_waitcnt lgkmcnt(0)')
    p('s_or_b32 s70, s70, 1')
    p('v_mov_b32 v250, s70')
    p('v_mov_b32 v251, 0')
    p('s_mov_b64 exec, 1')
    p('buffer_store_dword v250, v251, s[44:47], 0 offen sc0 sc1')
    p('s_mov_b64 exec, -1')
    p('L_nonce_rd:')
    p('s_waitcnt lgkmcnt(0)')
    srd(p, 44, 20, 21, 8*96*1280*2)
    def reads(st, ks):
        L = [f'ds_read_b128 {vr(BF(st,qt))}, v{BADR+ks} offset:{qt*2048}' for qt in range(3)]
        for t in range(8):
            L.append(f'ds_read_b64_tr_b16 {vr(AF(st,t),2)}, v{AADR+t} offset:{ks*8192}')
            L.append(f'ds_read_b64_tr_b16 {vr(AF(st,t)+2,2)}, v{AADR+t} offset:{ks*8192+1024}')
        return L
    def mfmas(st):
        return [f'{MF} {vr(ACC(t,qt))}, {vr(AF(st,t))}, {vr(BF(st,qt))}, {vr(ACC(t,qt))}' for t in range(8) for qt in range(3)]
    p('s_mov_b32 s14, 1')
    p('s_mov_b32 s15, 0')
    p('s_barrier')
    dstamp(p, 1)
    pro = reads(0, 0)
    for x in pro: p(x)
    _, pend0 = auto_lgkm(pro)
    scal = ['s_add_u32 s14, s14, 1', 's_cmp_eq_u32 s14, 3', 's_cselect_b32 s61, -2, 1', 's_cselect_b32 s14, 0, s14',
            's_mul_i32 s64, s61, 16384', 's_mul_i32 s65, s61, 24576', 's_add_u32 s15, s15, 1', 's_cmp_eq_u32 s15, 10']
    m0_ = mfmas(0); m1 = mfmas(1)
    H1 = spread(m0_[:19], reads(1, 1)) + spread(m0_[19:], scal, per=2)
    upd = [f'v_add_u32 v{BADR+i}, s65, v{BADR+i}' for i in range(2)] + [f'v_add_u32 v{AADR+t}, s64, v{AADR+t}' for t in range(8)]
    H2a = interleave(m1[:NA], upd, per=2) + ['s_waitcnt lgkmcnt(0)', 's_barrier']
    H2b = spread(m1[NA:], reads(0, 0))
    h1, pend = auto_lgkm(H1, pend0)
    h2a, pend_a = auto_lgkm(H2a, pend)
    h2b, _ = auto_lgkm(H2b, pend_a)
    p('L_loop:')
    for x in h1: p(x)
    p('s_cbranch_scc1 L_tail')
    for x in h2a + h2b: p(x)
    p('s_branch L_loop')
    p('L_tail:')
    KFg = list(range(24, 32)) + [40, 41, 42] + list(range(46, 56)) + [32, 33, 34]
    KF = lambda kt, u: G(KFg[kt*4+u])
    QB = lambda u, qt: ACC(2*u, qt)
    Smap = {}
    free_early = [35, 36, 37, 38, 39, 43, 44, 45]
    for kt in range(6): Smap[(kt, 0)] = free_early[kt]
    oddq = lambda qt: [(2*u+1)*3+qt for u in range(4)]
    l1 = oddq(0) + oddq(1)[:2]
    l2 = oddq(1)[2:] + oddq(2)
    for kt in range(6): Smap[(kt, 1)] = l1[kt]; Smap[(kt, 2)] = l2[kt]
    S = lambda kt, qt: G(Smap[(kt, qt)])
    kaddr = [f'v_xor_b32 v{AADR+m}, {m<<5}, v10' for m in range(8)]
    def kread(kt, u):
        return [f'ds_read_b64 {vr(KF(kt,u),2)}, v{AADR+2*u} offset:{kt*4096}', f'ds_read_b64 {vr(KF(kt,u)+2,2)}, v{AADR+2*u+1} offset:{kt*4096}']
    kr = [x for kt in range(6) for u in range(4) for x in kread(kt, u)]
    qcvt = lambda qt: [x for u in range(4) for x in cvt4(QB(u, qt), ACC(2*u, qt), ACC(2*u+1, qt))]
    T = interleave(m1[:NA], kaddr, per=2) + ['s_waitcnt lgkmcnt(0)', 's_barrier']
    if STAMPS: T.append(f'{"s_memtime" if CLK else "s_memrealtime"} s[76:77]')
    o, rest = merge(m1[NA:], kr[:42])
    T += o + rest + kr[42:]
    def smf(qt):
        return [f'{MF} {vr(S(kt,qt))}, {vr(KF(kt,u))}, {vr(QB(u,qt))}, {"0" if u == 0 else vr(S(kt,qt))}' for u in range(4) for kt in range(6)]
    def softmax(qt):
        regs = [S(kt, qt) + r for kt in range(6) for r in range(4)]
        M = 250; Tm = 251; M2 = 249
        L = [f'v_max3_f32 v{M}, v{regs[0]}, v{regs[1]}, v{regs[2]}', f'v_max3_f32 v{M2}, v{regs[3]}, v{regs[4]}, v{regs[5]}']
        for i in range(6, 22, 4):
            L.append(f'v_max3_f32 v{M}, v{M}, v{regs[i]}, v{regs[i+1]}')
            L.append(f'v_max3_f32 v{M2}, v{M2}, v{regs[i+2]}, v{regs[i+3]}')
        L.append(f'v_max3_f32 v{M}, v{M}, v{regs[22]}, v{regs[23]}')
        L.append(f'v_max_f32 v{M}, v{M}, v{M2}')
        L += [f'v_mov_b32 v{Tm}, v{M}', f'v_permlane16_swap_b32 v{M}, v{Tm}', f'v_max_f32 v{M}, v{M}, v{Tm}',
              f'v_mov_b32 v{Tm}, v{M}', f'v_permlane32_swap_b32 v{M}, v{Tm}', f'v_max_f32 v{M}, v{M}, v{Tm}',
              f'v_mul_f32 v{M}, s63, v{M}']
        for u in range(3):
            rr = regs[8*u:8*u+8]
            L += [f'v_fma_f32 v{r}, v{r}, s63, -v{M}' for r in rr]
            L += [f'v_exp_f32 v{r}, v{r}' for r in rr]
            L += cvt4(S(2*u, qt), S(2*u, qt), S(2*u+1, qt))
        return L
    PB = lambda u, qt: S(2*u, qt)
    VF = lambda t, u: G(KFg[t*3+u])
    T += qcvt(0)
    o, rest = merge(smf(0), qcvt(1) + qcvt(2))
    T += o + rest
    sm0 = softmax(0)
    m12 = smf(1) + smf(2)
    o, rest0 = merge(m12[4:], sm0)
    T += m12[:4] + o + rest0
    T += [f'v_xor_b32 v{AADR+t}, {t<<5}, v11' for t in range(8)]
    t2, _ = auto_lgkm(T, pend)
    for x in t2: p(x)
    dstamp(p, 3)
    get_nonce(p, 'L_nc')
    p('s_barrier')
    dstamp(p, 4)
    U = []
    for t in range(8):
        for u in range(3):
            U.append(f'ds_read_b64_tr_b16 {vr(VF(t,u),2)}, v{AADR+t} offset:{u*8192}')
            U.append(f'ds_read_b64_tr_b16 {vr(VF(t,u)+2,2)}, v{AADR+t} offset:{u*8192+4096}')
    qbg = [(2*u)*3+qt for u in range(4) for qt in range(3)]
    Og = {0: qbg[:9], 1: qbg[9:] + [44, 45] + [Smap[(1,0)], Smap[(3,0)], Smap[(5,0)]] + [Smap[(1,1)]]}
    Og[2] = [Smap[(0,0)], Smap[(2,0)], Smap[(4,0)], Smap[(3,1)], Smap[(5,1)], Smap[(1,2)], Smap[(3,2)], Smap[(5,2)], Smap[(0,1)]]
    OA = lambda t, qt: G(Og[qt][t])
    def pv(qt):
        L = []
        for u in range(3):
            L.append(f'{MF} {vr(OA(8,qt))}, v[12:15], {vr(PB(u,qt))}, {"0" if u == 0 else vr(OA(8,qt))}')
        for t2_ in range(0, 8, 2):
            for u in range(3):
                for t in (t2_, t2_+1):
                    L.append(f'{MF} {vr(OA(t,qt))}, {vr(VF(t,u))}, {vr(PB(u,qt))}, {"0" if u == 0 else vr(OA(t,qt))}')
        return L
    def onorm(qt):
        l = OA(8, qt)
        L = [f'v_rcp_f32 v{l}, v{l}']
        for v in range(4):
            a0 = OA(2*v, qt); a1 = OA(2*v+1, qt)
            L += [f'v_mul_f32 v{a+r}, v{a+r}, v{l}' for a in (a0, a1) for r in range(4)]
            L += cvt4(a0, a0, a1)
            L.append(f's_add_u32 s14, s62, {v*48*1024}')
            L.append(f'buffer_store_dwordx4 {vr(a0)}, v9, s[52:55], s14 offen offset:{qt*1024} {OFL}')
        return L
    sm1 = softmax(1); sm2 = softmax(2)
    o, rest = merge(pv(0), sm1)
    U += o + rest
    o, rest = merge(pv(1), sm2)
    U += o + rest
    o, rest = merge(pv(2), onorm(0) + onorm(1))
    U += o + rest
    U += onorm(2)
    u2, _ = auto_lgkm(U, [])
    for x in u2: p(x)
    dstamp(p, 5)
    p2_ids(p)
    A2 = lambda i, t: 16 + (i*4+t)*4
    FA = lambda st, t: 80 + st*32 + t*4
    FBq = lambda st, i: 96 + st*32 + i*4
    p('s_lshr_b32 s12, s3, 1'); p('s_lshl_b32 s12, s12, 7')
    p(f'v_add_u32 v8, {WO_L}, v6')
    p('v_xor_b32 v8, s12, v8')
    for t in range(4): p(f'v_xor_b32 v{AADR+t}, {t<<5}, v8')
    p('s_and_b32 s12, s3, 1'); p('s_lshl_b32 s12, s12, 2'); p('s_add_u32 s12, s12, s10'); p('s_lshl_b32 s13, s12, 10')
    p(f'v_add_u32 v8, s13, v9')
    for i in range(4): p(f'v_xor_b32 v{AADR+4+i}, {i<<10}, v8')
    p('v_mov_b32 v250, s68')
    p('v_mov_b32 v251, 0')
    p('s_waitcnt vmcnt(0)')
    p('s_mov_b64 exec, 1')
    p(f'buffer_store_dword v250, v251, s[52:55], s69 offen sc1')
    p('s_mov_b64 exec, -1')
    dstamp(p, 6)
    p('s_cmp_ge_u32 s5, 30')
    p('s_cbranch_scc1 L_cdone')
    p('s_barrier')
    p('s_barrier')
    for i in range(64): p(f'v_mov_b32 v{16+i}, 0')
    def reads2(st, kk):
        L = [f'ds_read_b128 {vr(FBq(st,0))}, v{AADR+4} offset:{kk*8192}']
        for t in range(4):
            L.append(f'ds_read_b64_tr_b16 {vr(FA(st,t),2)}, v{AADR+t} offset:{kk*8192}')
            L.append(f'ds_read_b64_tr_b16 {vr(FA(st,t)+2,2)}, v{AADR+t} offset:{kk*8192+4096}')
        L += [f'ds_read_b128 {vr(FBq(st,i))}, v{AADR+4+i} offset:{kk*8192}' for i in range(1, 4)]
        return L
    def mf2(st):
        return [f'{MF} {vr(A2(i,t))}, {vr(FA(st,t))}, {vr(FBq(st,i))}, {vr(A2(i,t))}' for i in range(4) for t in range(4)]
    p('s_mov_b32 s14, 0')
    p('s_mov_b32 s15, 0')
    p('s_barrier')
    dstamp(p, 7)
    pro = reads2(0, 0)
    for x in pro: p(x)
    _, pend0 = auto_lgkm(pro)
    scal = ['s_add_u32 s14, s14, 1', 's_cmp_eq_u32 s14, 5', 's_cselect_b32 s61, -4, 1', 's_cselect_b32 s14, 0, s14', 's_lshl_b32 s64, s61, 14',
            's_add_u32 s15, s15, 1', 's_and_b32 s61, s15, 3', 's_cselect_b32 s61, 1, -3', 's_lshl_b32 s65, s61, 14', 's_cmp_eq_u32 s15, 16']
    n0 = mf2(0); n1 = mf2(1)
    H1 = spread(n0[:12], reads2(1, 1)) + spread(n0[12:], scal, per=3)
    upd = [f'v_add_u32 v{AADR+4+i}, s65, v{AADR+4+i}' for i in range(4)] + [f'v_add_u32 v{AADR+t}, s64, v{AADR+t}' for t in range(4)]
    H2a = interleave(n1[:4], upd, per=2) + ['s_waitcnt lgkmcnt(0)', 's_barrier']
    H2b = spread(n1[4:], reads2(0, 0))
    h1, pend = auto_lgkm(H1, pend0)
    h2a, pend_a = auto_lgkm(H2a, pend)
    h2b, _ = auto_lgkm(H2b, pend_a)
    p('L_loop2:')
    for x in h1: p(x)
    p('s_cbranch_scc1 L_tail2')
    for x in h2a + h2b: p(x)
    p('s_branch L_loop2')
    p('L_tail2:')
    last = [n1[i*4+t] for i in (1, 2, 3, 0) for t in range(4)]
    SZ = 4096 if PF32 else 2048
    pre = ['s_mul_i32 s61, s6, 30', 's_add_u32 s61, s61, s5', 's_lshl_b32 s61, s61, 2']
    for i in (1, 2, 3):
        pre += [f's_xor_b32 s{63+i}, s10, {i}', f's_add_u32 s{63+i}, s{63+i}, s61', f's_lshl_b32 s{63+i}, s{63+i}, 2', f's_add_u32 s{63+i}, s{63+i}, s3',
                f's_mul_i32 s{63+i}, s{63+i}, {3*SZ}', f's_add_u32 s{63+i}, s{63+i}, {INBOX + (i-1)*SZ}']
    outp = ['s_lshl_b32 s62, s66, 3', 's_add_u32 s62, s62, s12', 's_mul_i32 s62, s62, 40960',
            's_mul_i32 s13, s6, 1280', 's_add_u32 s62, s62, s13', 's_lshl_b32 s13, s67, 8', 's_add_u32 s62, s62, s13',
            's_lshr_b32 s13, s3, 1', 's_lshl_b32 s13, s13, 7', 's_add_u32 s62, s62, s13']
    tl, _ = auto_lgkm(spread(last, outp + pre, per=2), pend)
    for x in tl: p(x)
    dstamp(p, 8)
    for i in (1, 2, 3):
        if PF32:
            for t in range(4):
                p(f'buffer_store_dwordx4 {vr(A2(i,t))}, v9, s[52:55], s{63+i} offen offset:{t*1024} sc1')
        else:
            for hf in range(2):
                for x in cvt4(A2(i, 2*hf), A2(i, 2*hf), A2(i, 2*hf+1)): p(x)
                p(f'buffer_store_dwordx4 {vr(A2(i,2*hf))}, v9, s[52:55], s{63+i} offen offset:{hf*1024} sc1')
    p('s_add_u32 s13, s61, s3'); p('s_lshl_b32 s13, s13, 7'); p(f's_add_u32 s13, s13, {FB2}')
    p('s_add_u32 s67, s61, s10'); p('s_lshl_b32 s67, s67, 2'); p('s_add_u32 s67, s67, s3'); p(f's_mul_i32 s67, s67, {3*SZ}'); p(f's_add_u32 s67, s67, {INBOX}')
    p('s_lshl_b32 s14, s10, 2')
    p('v_mov_b32 v251, s14')
    p('v_lshlrev_b32 v252, 2, v2')
    p('v_mul_u32_u24 v8, 2560, v4')
    p('v_lshl_add_u32 v8, v3, 3, v8')
    p('s_waitcnt vmcnt(0)')
    p('s_mov_b64 exec, 1')
    p('buffer_store_dword v250, v251, s[52:55], s13 offen sc1')
    dstamp(p, 9)
    poll_flags(p, 'L_pf2', 252, 253, 's13', '15')
    dstamp(p, 10)
    R = 80
    nld = 3 * SZ // 1024
    for k in range(nld):
        if k % 4 == 0 and k: p(f's_add_u32 s67, s67, 4096')
        p(f'buffer_load_dwordx4 {vr(R+4*k)}, v9, s[52:55], s67 offen offset:{(k%4)*1024} sc1')
    for i in range(3):
        if PF32:
            p(f's_waitcnt vmcnt({nld - 4*(i+1)})')
            for t in range(4):
                for r in range(4):
                    p(f'v_add_f32 v{A2(0,t)+r}, v{A2(0,t)+r}, v{R+16*i+4*t+r}')
        else:
            p(f's_waitcnt vmcnt({nld - 2*(i+1)})')
            for t in range(4):
                for r2 in range(2):
                    src = R + 8*i + 2*t + r2
                    p(f'v_lshlrev_b32 v253, 16, v{src}')
                    p(f'v_and_b32 v254, 0xffff0000, v{src}')
                    p(f'v_add_f32 v{A2(0,t)+2*r2}, v{A2(0,t)+2*r2}, v253')
                    p(f'v_add_f32 v{A2(0,t)+2*r2+1}, v{A2(0,t)+2*r2+1}, v254')
    for t in range(4):
        a = A2(0, t)
        p(f'v_cvt_pk_bf16_f32 v{a}, v{a}, v{a+1}')
        p(f'v_cvt_pk_bf16_f32 v{a+1}, v{a+2}, v{a+3}')
        p(f'buffer_store_dwordx2 {vr(a,2)}, v8, s[44:47], s62 offen offset:{t*32}')
    if STAMPS:
        p('s_waitcnt vmcnt(0)')
        dstamp(p, 11)
    p('L_cdone:')
    flush_stamps(p, 12, 0, 0, 'L_fsC')
    p('L_end:')
    p('s_endpgm')
    return p.finalize()

if __name__ == '__main__':
    out = HDR
    out += '; @launch grid=(256,1,1) block=(512,1,1) lds=163840\n'
    out += '.amdgcn_target "amdgcn-amd-amdhsa--gfx950"\n.text\n'
    out += gen() + '\n'
    out += '.section .rodata,"a"\n' + kd(NAME + '_kernel', 256)
    print(out)
```

```python
from common import *
from asmlib import auto_lgkm as _al
CAP = opt('cap', 8)
def auto_lgkm(l, pnd=None): return _al(l, pnd, CAP)
XFL = opt('xfl', 'none').replace('none', '')
WFL2 = opt('wfl2', 'none').replace('none', '')
OFL = opt('ofl', 'sc1').replace('none', '').replace('_', ' ')
ORFL = opt('orfl', 'sc1').replace('none', '').replace('_', ' ')
LAG = opt('lag', 7)
PATA = opt('pata', 's0 s1 s2 s3 K1 s4 s5 Kb s6 s7 s8 s9 Ka V0 V1').replace('_', ' ')
PATB = opt('patb', 's0 s1 s2 s3 s4 K1 s5 s6 Kb s7 s8 s9 Ka V0 V1').replace('_', ' ')
PATSEL = opt('patsel', 6)
NA = opt('na', 5)
PF32 = opt('pf32', 0)
LPRIO = opt('lprio', 0)
PFS = opt('pfs', 0)
PF0 = opt('pf0', 0)
PFN = opt('pfn', 10)
FAKEWO = opt('fakewo', 0)
NOPOLL = opt('nopoll', 0)
FASTP = opt('fastp', 0)
WOFL = opt('wofl', 'none').replace('none', '')
WOFL2 = opt('wofl2', 'none').replace('none', '')
PFL = opt('pfl', 'sc1').replace('_', ' ')
CPF2 = opt('cpf2', 5)
WOA = opt('woa', 0)
WOB = opt('wob', 0)
ROT2 = opt('rot2', 0)
CPF = opt('cpf', 1)
ROT = opt('rot', 1)
RB = opt('rb', '0358')
RH = opt('rh', '03581469')
OEARLY = opt('oearly', 1)
KVFL = opt('kvfl', 'nt').replace('none', '')
TICKET = opt('ticket', 0)
CFL = opt('cfl', 'none').replace('none', '')
PSLEEP = opt('psleep', 2)
XS, WS_, SP = 0, 73728, 122880
KB0 = SP - 8192; KB1 = KB0 + 24576
VB0 = XS + 2*24576; VB1 = XS
NWS = opt('nws', 7); NOS = 10 - NWS
O_L = 0; WO_L = NOS * 16384
N1 = opt('n1', 2); N2 = opt('n2', 3); LAG2 = opt('lag2', 12)
GST = 1572864 + 16384
O_OFF = 4096; F1_OFF = O_OFF + 1572864; GT_OFF = F1_OFF + 8192
INBOX = 16 << 20
SZ = 4096 if PF32 else 2048
RST = 48 * SZ + 4096
I_OFF = 1024; F2_OFF = I_OFF + 48 * SZ; RT_OFF = F2_OFF + 2048
WS_SIZE = 48 << 20
TOUCH = opt('touch', 1)
MF = 'v_mfma_f32_16x16x32_bf16'
SPIN_MAX = 1 << 16

def dstamp(p, k):
    if STAMPS: p(f'{"s_memtime" if CLK else "s_memrealtime"} s[{72+2*k}:{73+2*k}]')
def flush_stamps(p, n, base_idx, wave, lbl):
    if not STAMPS: return
    p(f's_cmp_lg_u32 s3, {wave}'); p(f's_cbranch_scc1 {lbl}')
    p('s_waitcnt lgkmcnt(0) vmcnt(0)')
    p('v_mov_b32 v1, 0')
    p('s_mov_b64 exec, 1')
    for k in range(n):
        p(f'v_mov_b32 v{4+2*k}, s{72+2*k}'); p(f'v_mov_b32 v{5+2*k}, s{73+2*k}')
        p(f'buffer_store_dwordx2 v[{4+2*k}:{5+2*k}], v1, s[56:59], s60 offen offset:{(base_idx+k)*8}')
    p('s_waitcnt vmcnt(0)')
    p(f'{lbl}:')
def poll_flags(p, lbl, vaddr, vtmp, soff, maskreg):
    p(f's_mov_b32 s9, {SPIN_MAX}')
    p(f's_mov_b64 exec, {maskreg}')
    p(f'{lbl}:')
    p(f'buffer_load_dwordx2 v[{vtmp}:{vtmp+1}], v{vaddr}, s[52:55], {soff} offen sc1')
    p('s_waitcnt vmcnt(0)')
    p(f'v_cmp_gt_u64 vcc, s[96:97], v[{vtmp}:{vtmp+1}]')
    p(f'v_cmp_lt_u64 s[100:101], s[98:99], v[{vtmp}:{vtmp+1}]')
    p('s_or_b64 vcc, vcc, s[100:101]')
    p(f's_cbranch_scc0 {lbl}_ok')
    p(f's_sleep {PSLEEP}')
    p('s_sub_u32 s9, s9, 1')
    p('s_cmp_lg_u32 s9, 0')
    p(f's_cbranch_scc1 {lbl}')
    p(f'{lbl}_ok:')
    p('s_mov_b64 exec, -1')

def cvt4(d, a0, a1):
    return [f'v_cvt_pk_bf16_f32 v{d}, v{a0}, v{a0+1}', f'v_cvt_pk_bf16_f32 v{d+1}, v{a0+2}, v{a0+3}',
            f'v_cvt_pk_bf16_f32 v{d+2}, v{a1}, v{a1+1}', f'v_cvt_pk_bf16_f32 v{d+3}, v{a1+2}, v{a1+3}']
def spread(main, fill, extra=(), per=1):
    out = []; fi = 0; ei = 0
    for m in main:
        out.append(m)
        for _ in range(per):
            if fi < len(fill): out.append(fill[fi]); fi += 1
        if ei < len(extra): out.append(extra[ei]); ei += 1
    return out + list(fill[fi:]) + list(extra[ei:])

def p2_ids(p):
    p('s_mul_i32 s66, s5, 52'); p('s_lshr_b32 s66, s66, 8')
    p('s_mul_i32 s67, s66, 5'); p('s_sub_u32 s67, s5, s67')
    p('s_and_b32 s10, s4, 3')

def gen():
    p = Prog()
    K1 = NAME + '_kernel'
    p(f'.globl {K1}\n.p2align 8\n.type {K1},@function\n{K1}:')
    p('s_cmp_ge_u32 s2, 256')
    p('s_cbranch_scc1 L_end')
    p('s_load_dwordx8 s[16:23], s[0:1], 0')
    p('s_memrealtime s[96:97]')
    p('s_load_dwordx8 s[24:31], s[0:1], 40')
    p('s_load_dwordx4 s[32:35], s[0:1], 88')
    dstamp(p, 0)
    p('v_lshrrev_b32 v1, 6, v0')
    p('v_and_b32 v2, 63, v0')
    p('v_readfirstlane_b32 s3, v1')
    if TICKET:
        p('v_mov_b32 v5, 0')
        p('s_cmp_lg_u32 s3, 0')
        p('s_cbranch_scc1 L_tk_wait')
        p('s_getreg_b32 s4, hwreg(HW_REG_XCC_ID)')
        p('s_and_b32 s4, s4, 7')
        p('s_waitcnt lgkmcnt(0)')
        p('L_tk_try:')
        p('s_lshl_b32 s5, s4, 5')
        p('s_add_u32 s5, s5, 16')
        p('s_mov_b32 s6, 1')
        p('s_atomic_add s6, s[32:33], s5 glc')
        p('s_waitcnt lgkmcnt(0)')
        p('s_cmp_lt_u32 s6, 32')
        p('s_cbranch_scc1 L_tk_ok')
        p('s_add_u32 s4, s4, 1')
        p('s_and_b32 s4, s4, 7')
        p('s_branch L_tk_try')
        p('L_tk_ok:')
        p('s_lshl_b32 s6, s6, 3')
        p('s_add_u32 s6, s6, s4')
        p('v_mov_b32 v6, s6')
        p('ds_write_b32 v5, v6')
        p('s_waitcnt lgkmcnt(0)')
        p('L_tk_wait:')
        p('s_barrier')
        p('ds_read_b32 v6, v5')
        p('s_waitcnt lgkmcnt(0)')
        p('v_readfirstlane_b32 s2, v6')
        p('s_barrier')
        p('s_and_b32 s2, s2, 255')
    p('s_and_b32 s4, s2, 7')
    p('s_lshr_b32 s5, s2, 3')
    p('s_lshr_b32 s6, s4, 2')
    p('s_and_b32 s7, s4, 3')
    p('s_lshl_b32 s7, s7, 3')
    p('s_and_b32 s66, s5, 7')
    p('s_add_u32 s7, s7, s66')
    p('s_lshr_b32 s8, s5, 3')
    p('v_lshrrev_b32 v3, 4, v2')
    p('v_and_b32 v4, 15, v2')
    p('s_cmp_lt_u32 s3, 4')
    p('s_cbranch_scc1 L_compute')
    if LPRIO: p(f's_setprio {LPRIO}')
    p('s_and_b32 s11, s3, 3')
    p('v_lshrrev_b32 v5, 3, v2')
    p('s_lshl_b32 s12, s11, 3')
    p('v_add_u32 v5, s12, v5')
    p('v_mul_u32_u24 v5, 1280, v5')
    p('s_and_b32 s12, s11, 1')
    p('s_lshl_b32 s12, s12, 2')
    p('v_add_u32 v6, s12, v3')
    p('v_and_b32 v7, 7, v2')
    p('v_xor_b32 v7, v7, v6')
    p('v_lshl_add_u32 v11, v7, 4, v5')
    p('v_lshlrev_b32 v6, 1, v6')
    p('v_xor_b32 v8, v6, v4')
    p('s_lshl_b32 s12, s11, 2')
    p('v_add_u32 v5, s12, v3')
    p('v_lshlrev_b32 v7, 8, v5')
    p('v_lshl_add_u32 v13, v8, 4, v7')
    p('v_xor_b32 v6, v4, v5')
    p('v_lshl_add_u32 v10, v6, 4, v7')
    p('s_lshr_b32 s12, s11, 1')
    p('s_lshl_b32 s12, s12, 2')
    p('v_add_u32 v6, s12, v3')
    p('v_lshlrev_b32 v6, 1, v6')
    p('v_xor_b32 v6, v6, v4')
    p('v_lshlrev_b32 v7, 13, v5')
    p('v_lshl_add_u32 v12, v6, 4, v7')
    p('s_lshl_b32 s13, s11, 10')
    tb = sum(int(c) << (4*i) for i, c in enumerate(RB)); th = sum(int(c) << (4*i) for i, c in enumerate(RH))
    p('s_lshl_b32 s69, s8, 2'); p(f's_lshr_b32 s69, {tb:#x}, s69'); p('s_and_b32 s69, s69, 15')
    p('s_lshl_b32 s70, s66, 2'); p(f's_lshr_b32 s70, {th:#x}, s70'); p('s_and_b32 s70, s70, 15')
    p('s_add_u32 s69, s69, s70')
    p('s_cmp_ge_u32 s69, 10'); p('s_cselect_b32 s71, 10, 0'); p('s_sub_u32 s69, s69, s71')
    p('s_mul_i32 s9, s8, 245760')
    p('s_lshl_b32 s10, s7, 8')
    p('s_lshl_b32 s12, s8, 6')
    p('s_add_u32 s12, s12, s7')
    p('s_mul_i32 s12, s12, 24576')
    p('s_waitcnt lgkmcnt(0)')
    p('s_cmp_eq_u32 s6, 0')
    for i in range(4):
        p(f's_cselect_b64 s[{16+2*i}:{17+2*i}], s[{16+2*i}:{17+2*i}], s[{24+2*i}:{25+2*i}]')
    p('s_add_u32 s36, s16, s9'); p('s_addc_u32 s37, s17, 0')
    p('s_mov_b32 s38, 245760'); p('s_mov_b32 s39, 0x20000')
    p('s_add_u32 s40, s22, s10'); p('s_addc_u32 s41, s23, 0')
    p('s_sub_u32 s42, 5242880, s10'); p('s_mov_b32 s43, 0x20000')
    p('s_add_u32 s44, s18, s12'); p('s_addc_u32 s45, s19, 0')
    p(f's_mov_b32 s46, {786432+24576}'); p('s_mov_b32 s47, 0x20000')
    p('s_add_u32 s48, s20, s12'); p('s_addc_u32 s49, s21, 0')
    p(f's_mov_b32 s50, {786432+24576}'); p('s_mov_b32 s51, 0x20000')
    p(f's_load_dwordx2 s[16:17], s[0:1], {0 if FAKEWO else 32}')
    p(f's_load_dwordx2 s[18:19], s[0:1], {40 if FAKEWO else 72}')
    srd(p, 52, 34, 35, WS_SIZE)
    p('s_add_u32 s98, s96, 0x4000000'); p('s_addc_u32 s99, s97, 0')
    stamp_setup(p, 34, 35)
    p('s_mov_b64 s[34:35], s[32:33]')
    if CPF2 >= 0:
        p('s_getpc_b64 s[22:23]')
        p('L_pc2:')
        p('s_lshl_b32 s9, s5, 2'); p('s_add_u32 s9, s9, s11'); p('s_mul_i32 s9, s9, 192')
        p(f's_min_u32 s9, s9, L_end-L_ld2-128')
        p(f's_add_u32 s9, s9, L_ld2-L_pc2')
        p('s_add_u32 s22, s22, s9'); p('s_addc_u32 s23, s23, 0')
    p(f's_bitcmp1_b32 s2, {PATSEL}')
    p('s_cbranch_scc1 L_patB')

    def loader(pat, tag):
        stream = []
        for w in pat.split():
            if w[0] == 's': stream += [('x' + w[1:], m) for m in range(6)] + [('w' + w[1:], m) for m in range(4)]
            elif w[0] in 'xw': stream += [(w, m) for m in range(6 if w[0] == 'x' else 4)]
            elif w == 'Ka': stream += [('K0', m) for m in range(2)]
            elif w == 'Kb': stream += [('K0', m) for m in range(2, 6)]
            else: stream += [(w, m) for m in range(6)]
        n = len(stream)
        end = {}
        for i, (it, m) in enumerate(stream):
            if it[0] in 'xw': end[int(it[1:])] = i + 1
        def need(it, m):
            if it[0] in 'xw': return int(it[1:]) - 3
            if it == 'K0': return 7 if m < 2 else -9
            if it == 'K1': return -9
            return 7 if it == 'V0' else 8
        bpos = {}; prev = 0
        for s in range(-1, 9):
            pos = min(end[s+1] + LAG, n)
            first_needing = min([i for i, (it, m) in enumerate(stream) if need(it, m) >= s and need(it, m) >= 0] + [n])
            pos = min(pos, first_needing)
            assert pos >= end[s+1], (s, pos, end[s+1])
            pos = max(pos, prev); bpos[s] = pos; prev = pos
        passed = [-2]
        def pf(s):
            if not PFS or s < PF0 or s >= PF0 + PFN: return
            tot = 10240 // PFS
            k = s - PF0
            for i in range(k * tot // PFN, (k + 1) * tot // PFN):
                p(f's_load_dword s28, s[26:27], {i*PFS}')
        def barrier(s, issued):
            if PFS and s == -1:
                p('s_waitcnt lgkmcnt(0)')
                p('s_cmp_eq_u32 s6, 0')
                p('s_cselect_b64 s[26:27], s[16:17], s[18:19]')
                p('s_and_b32 s9, s4, 3'); p('s_lshl_b32 s9, s9, 5'); p('s_add_u32 s9, s9, s5'); p('s_lshl_b32 s9, s9, 2'); p('s_add_u32 s9, s9, s11')
                p('s_mul_i32 s9, s9, 10240')
                p('s_add_u32 s26, s26, s9'); p('s_addc_u32 s27, s27, 0')
            pf(s)
            p(f's_waitcnt vmcnt({issued - end[s+1]})')
            p(f's_barrier      ; B_{s}')
            passed[0] = s
            if s == CPF2:
                p('s_load_dword s24, s[22:23], 0x0'); p('s_load_dword s25, s[22:23], 0x40'); p('s_load_dword s24, s[22:23], 0x80')
            if s in (-1, 2, 5, 8): dstamp(p, 1 + (s+1)//3)
        last_item = None
        for i, (it, m) in enumerate(stream):
            for s in range(-1, 9):
                if bpos[s] == i and passed[0] < s: barrier(s, i)
            assert need(it, m) <= passed[0] or need(it, m) < 0
            if it[0] in 'xw':
                t = int(it[1:]); slot = (t + 1) % 3
                if it != last_item:
                    p(f's_add_u32 s70, s69, {t}')
                    p('s_cmp_ge_u32 s70, 10'); p('s_cselect_b32 s71, 10, 0'); p('s_sub_u32 s70, s70, s71')
                    p(f's_lshl_b32 s64, s70, {7 if it[0]=="x" else 19}')
                if it[0] == 'x':
                    p(f's_add_u32 m0, s13, {XS + slot*24576 + m*4096}')
                    p(f's_add_u32 s14, s64, {m*40960}')
                    p(f'buffer_load_dwordx4 v11, s[36:39], s14 offen {XFL} lds')
                else:
                    p(f's_add_u32 m0, s13, {WS_ + slot*16384 + m*4096}')
                    p(f's_add_u32 s14, s64, {m*131072}')
                    p(f'buffer_load_dwordx4 v12, s[40:43], s14 offen {CFL if t < 3 else WFL2} lds')
            else:
                b = int(it[1])
                addr = {'K0': KB0, 'K1': KB1, 'V0': VB0, 'V1': VB1}[it] + m*4096
                vo, sr = (10, 44) if it[0] == 'K' else (13, 48)
                p(f's_add_u32 m0, s13, {addr}')
                p(f's_mov_b32 s14, {b*786432 + m*4096}')
                p(f'buffer_load_dwordx4 v{vo}, s[{sr}:{sr+3}], s14 offen {KVFL} lds')
            last_item = it
        for s in range(-1, 9):
            if passed[0] < s: barrier(s, n)
        lastK = max(i for i, (it, m) in enumerate(stream) if it[0] == 'K') + 1
        pf(9)
        p(f's_waitcnt vmcnt({n - lastK})')
        p('s_barrier      ; B_9')
    loader(PATA, 'A')
    p('s_branch L_ld2')
    p('L_patB:')
    loader(PATB, 'B')
    p('L_ld2:')
    p('s_cmp_ge_u32 s5, 30')
    p('s_cbranch_scc1 L_ld_idle')
    p2_ids(p)
    p('s_waitcnt lgkmcnt(0)')
    p('s_cmp_eq_u32 s6, 0')
    p('s_cselect_b64 s[16:17], s[16:17], s[18:19]')
    p(f's_mul_i32 s9, s10, {0 if FAKEWO else 1310720}')
    p('s_lshl_b32 s12, s67, 8')
    p('s_add_u32 s9, s9, s12')
    p('s_add_u32 s36, s16, s9'); p('s_addc_u32 s37, s17, 0')
    p(f's_sub_u32 s38, {983040 if FAKEWO else 1310720}, s12'); p('s_mov_b32 s39, 0x20000')
    p('v_mul_u32_u24 v7, 1280, v5')
    p('v_lshl_add_u32 v12, v8, 4, v7')
    p('v_lshl_add_u32 v11, v2, 4, s13')
    p('s_mul_i32 s69, s66, 43'); p('s_lshr_b32 s69, s69, 4')
    p(f's_mul_i32 s70, s67, {ROT2}'); p('s_add_u32 s69, s69, s70'); p('s_and_b32 s69, s69, 15')
    p(f's_mul_i32 s65, s4, {GST}')
    p('s_lshl_b32 s12, s66, 13'); p('s_add_u32 s65, s65, s12'); p(f's_add_u32 s65, s65, {O_OFF}')
    p('s_mul_i32 s70, s69, 81920')
    p('s_mul_i32 s71, s69, 98304')
    p('s_add_u32 s71, s71, s65')
    p(f's_add_u32 s63, s65, {16*98304}')
    cnt = [0]
    endo = {}; endw = {}
    def wo_issue(k):
        fl = WOFL if k < 3 else WOFL2
        for m in range(4):
            p(f's_add_u32 m0, s13, {WO_L + (k % NWS)*16384 + m*4096}')
            p(f's_add_u32 s14, s70, {m*20480}')
            p(f'buffer_load_dwordx4 v12, s[36:39], s14 offen {fl} lds')
        p('s_add_u32 s70, s70, 81920')
        p(f's_cmp_eq_u32 s70, {16*81920}')
        p('s_cselect_b32 s70, 0, s70')
        cnt[0] += 4; endw[k] = cnt[0]
    def o_issue(k):
        for m in range(4):
            p(f's_add_u32 m0, s13, {O_L + (k % NOS)*16384 + m*4096}')
            p(f's_add_u32 s14, s71, {(0, 4096, 49152, 53248)[m]}')
            p(f'buffer_load_dwordx4 v11, s[52:55], s14 offen {ORFL} lds')
        p('s_add_u32 s71, s71, 98304')
        p('s_cmp_eq_u32 s71, s63')
        p('s_cselect_b32 s71, s65, s71')
        cnt[0] += 4; endo[k] = cnt[0]
    p('s_waitcnt vmcnt(0)')
    dstamp(p, 5)
    p('s_barrier      ; B_10')
    p('s_mul_i32 s12, s66, 171'); p('s_lshr_b32 s12, s12, 6'); p('s_lshl_b32 s12, s12, 6')
    p(f's_mul_i32 s14, s4, {GST}'); p('s_add_u32 s12, s12, s14'); p(f's_add_u32 s15, s12, {F1_OFF}')
    p('s_cmp_eq_u32 s66, 1'); p('s_cselect_b32 s20, -1, 0xffffff')
    p('s_cmp_eq_u32 s66, 4'); p('s_cselect_b32 s20, -1, s20'); p('s_mov_b32 s21, 0')
    p('v_lshlrev_b32 v14, 3, v2')
    p('s_barrier')
    nw = 0
    for _ in range(N1): wo_issue(nw); nw += 1
    p('s_barrier')
    for _ in range(N2): wo_issue(nw); nw += 1
    p('s_cmp_lg_u32 s3, 4')
    p('s_cbranch_scc1 L_nopoll')
    poll_flags(p, 'L_pf1', 14, 16, 's15', 's[20:21]')
    p('L_nopoll:')
    p('s_barrier      ; B_12')
    dstamp(p, 6)
    no = 0
    for c in range(-1, 15):
        def allowed():
            cand = []
            if no < 16 and (no < NOS or no - NOS <= c - 1): cand.append(('o', no))
            if nw < 16 and (nw < NWS or nw - NWS <= c - 1): cand.append(('w', nw))
            cand.sort(key=lambda x: (x[1], x[0] == 'o'))
            return cand
        while True:
            done = (c + 1) in endo and (c + 1) in endw
            if done and cnt[0] - max(endo[c+1], endw[c+1]) >= LAG2: break
            cand = allowed()
            if not cand:
                assert done; break
            if cand[0][0] == 'o': o_issue(no); no += 1
            else: wo_issue(nw); nw += 1
        p(f's_waitcnt vmcnt({cnt[0] - max(endo[c+1], endw[c+1])})')
        p(f's_barrier      ; C_{c}')
        if c == -1: dstamp(p, 7)
    assert no == 16 and nw == 16
    dstamp(p, 8)
    flush_stamps(p, 9, 16, 4, 'L_fsL')
    p('s_endpgm')
    p('L_ld_idle:')
    p('s_waitcnt vmcnt(0)')
    p('s_barrier      ; B_10')
    p('s_barrier      ; B_11a')
    p('s_endpgm')

    p('L_compute:')
    G = lambda g: 16 + 4*g
    ACC = lambda t, qt: G(t*3+qt)
    AF = lambda st, t: G(24 + st*8 + t)
    BF = lambda st, qt: G(40 + st*3 + qt)
    AADR = 240; BADR = 248
    p('v_bfe_u32 v5, v2, 2, 2')
    p('v_and_b32 v6, 3, v2')
    p('v_and_b32 v7, 1, v3')
    p('v_lshl_add_u32 v7, v7, 2, v5')
    p('v_lshlrev_b32 v7, 1, v7')
    p('v_lshrrev_b32 v8, 1, v6')
    p('v_xor_b32 v7, v7, v8')
    p('v_lshlrev_b32 v7, 4, v7')
    p('v_and_b32 v8, 1, v6')
    p('v_lshl_add_u32 v7, v8, 3, v7')
    p('v_lshl_add_u32 v8, v3, 3, v5')
    p('v_lshl_add_u32 v8, v8, 8, v7')
    p(f'v_add_u32 v8, {WS_ + 16384}, v8')
    for t in range(8):
        p(f'v_xor_b32 v{AADR+t}, {t<<5}, v8')
    p('v_lshrrev_b32 v8, 1, v4')
    p('v_xor_b32 v8, v8, v3')
    p('v_lshlrev_b32 v8, 4, v8')
    p('v_lshl_add_u32 v8, v4, 7, v8')
    p('s_mul_i32 s13, s3, 6144')
    p(f's_add_u32 s13, s13, {XS + 24576}')
    p(f'v_add_u32 v{BADR}, s13, v8')
    p(f'v_xor_b32 v{BADR+1}, 64, v{BADR}')
    p('s_cmp_lt_u32 s3, 2')
    p(f's_mov_b32 s13, {KB1}'); p(f's_mov_b32 s14, {VB1}')
    p(f's_cselect_b32 s13, {KB0}, s13'); p(f's_cselect_b32 s14, {VB0}, s14')
    p('v_lshrrev_b32 v8, 1, v3')
    p('v_xor_b32 v8, v8, v4')
    p('v_lshlrev_b32 v8, 4, v8')
    p('v_lshl_add_u32 v8, v4, 8, v8')
    p('v_and_b32 v9, 1, v3')
    p('v_lshl_add_u32 v8, v9, 3, v8')
    p('v_add_u32 v10, s13, v8')
    p('v_lshl_add_u32 v8, v3, 2, v5')
    p('v_lshl_add_u32 v6, v8, 8, v7')
    p('v_add_u32 v11, s14, v6')
    p('v_lshlrev_b32 v9, 4, v2')
    for i in range(4): p(f'v_mov_b32 v{12+i}, 0x3f803f80')
    for i in range(96): p(f'v_mov_b32 v{16+i}, 0')
    p('s_mul_i32 s62, s66, 192'); p('s_mul_i32 s14, s8, 12'); p('s_add_u32 s62, s62, s14')
    p('s_mul_i32 s14, s3, 3'); p('s_add_u32 s62, s62, s14'); p('s_lshl_b32 s62, s62, 10')
    p(f's_mul_i32 s68, s4, {GST}'); p('s_add_u32 s62, s62, s68'); p(f's_add_u32 s62, s62, {O_OFF}')
    p(f's_mov_b32 s63, {f32bits(LOG2E_SCALE):#x}')
    p('s_lshl_b32 s69, s8, 2'); p('s_add_u32 s69, s69, s3')
    p('s_lshl_b32 s69, s69, 3'); p('s_add_u32 s69, s69, s66'); p('s_lshl_b32 s69, s69, 3'); p('s_add_u32 s69, s69, s68'); p(f's_add_u32 s69, s69, {F1_OFF}')
    p('s_waitcnt lgkmcnt(0)')
    srd(p, 52, 34, 35, WS_SIZE)
    p('s_add_u32 s98, s96, 0x4000000'); p('s_addc_u32 s99, s97, 0')
    stamp_setup(p, 34, 35)
    p('s_mov_b64 s[34:35], s[32:33]')
    p('s_load_dwordx2 s[20:21], s[0:1], 80')
    if CPF:
        p('s_cmp_lg_u32 s3, 1')
        p('s_cbranch_scc1 L_nocpf')
        p('s_getpc_b64 s[70:71]')
        p('L_pc:')
        p(f's_sub_u32 s70, s70, L_pc-{K1}')
        p('s_subb_u32 s71, s71, 0')
        p('s_mul_i32 s9, s5, 768')
        p(f's_min_u32 s9, s9, L_end-{K1}-640')
        p('s_add_u32 s70, s70, s9')
        p('s_addc_u32 s71, s71, 0')
        for i in range(6): p(f's_load_dword s{24+i}, s[70:71], {i*128}')
        p('L_nocpf:')
    p('s_waitcnt lgkmcnt(0)')
    srd(p, 44, 20, 21, 8*96*1280*2)
    if TOUCH:
        p('s_cmp_lg_u32 s3, 2')
        p('s_cbranch_scc1 L_notouch')
        p('v_and_b32 v250, 1, v2')
        p(f'v_mul_u32_u24 v251, {GT_OFF}, v250')
        p(f'v_mul_u32_u24 v252, {RT_OFF}, v250')
        p(f'v_mul_u32_u24 v253, {8*96*1280*2 - 128}, v250')
        p('s_mul_i32 s9, s6, 30'); p('s_add_u32 s9, s9, s5'); p(f's_mul_i32 s9, s9, {RST}'); p(f's_add_u32 s9, s9, {INBOX}')
        p('s_mov_b64 exec, 3')
        p('buffer_load_dword v254, v251, s[52:55], s68 offen nt')
        p('buffer_load_dword v254, v252, s[52:55], s9 offen nt')
        p('buffer_load_dword v254, v253, s[44:47], 0 offen nt')
        p('s_mov_b64 exec, -1')
        p('L_notouch:')
    def reads(st, ks):
        L = [f'ds_read_b128 {vr(BF(st,qt))}, v{BADR+ks} offset:{qt*2048}' for qt in range(3)]
        for t in range(8):
            L.append(f'ds_read_b64_tr_b16 {vr(AF(st,t),2)}, v{AADR+t} offset:{ks*8192}')
            L.append(f'ds_read_b64_tr_b16 {vr(AF(st,t)+2,2)}, v{AADR+t} offset:{ks*8192+1024}')
        return L
    def mfmas(st):
        return [f'{MF} {vr(ACC(t,qt))}, {vr(AF(st,t))}, {vr(BF(st,qt))}, {vr(ACC(t,qt))}' for t in range(8) for qt in range(3)]
    p('s_mov_b32 s14, 1')
    p('s_mov_b32 s15, 0')
    p('s_barrier')
    dstamp(p, 1)
    pro = reads(0, 0)
    for x in pro: p(x)
    _, pend0 = auto_lgkm(pro)
    scal = ['s_add_u32 s14, s14, 1', 's_cmp_eq_u32 s14, 3', 's_cselect_b32 s61, -2, 1', 's_cselect_b32 s14, 0, s14',
            's_mul_i32 s64, s61, 16384', 's_mul_i32 s65, s61, 24576', 's_add_u32 s15, s15, 1', 's_cmp_eq_u32 s15, 10']
    m0_ = mfmas(0); m1 = mfmas(1)
    H1 = spread(m0_[:19], reads(1, 1)) + spread(m0_[19:], scal, per=2)
    upd = [f'v_add_u32 v{BADR+i}, s65, v{BADR+i}' for i in range(2)] + [f'v_add_u32 v{AADR+t}, s64, v{AADR+t}' for t in range(8)]
    H2a = interleave(m1[:NA], upd, per=2) + ['s_waitcnt lgkmcnt(0)', 's_barrier']
    H2b = spread(m1[NA:], reads(0, 0))
    h1, pend = auto_lgkm(H1, pend0)
    h2a, pend_a = auto_lgkm(H2a, pend)
    h2b, _ = auto_lgkm(H2b, pend_a)
    p('L_loop:')
    for x in h1: p(x)
    p('s_cbranch_scc1 L_tail')
    for x in h2a + h2b: p(x)
    p('s_branch L_loop')
    p('L_tail:')
    KFg = list(range(24, 32)) + [40, 41, 42] + list(range(46, 56)) + [32, 33, 34]
    KF = lambda kt, u: G(KFg[kt*4+u])
    QB = lambda u, qt: ACC(2*u, qt)
    Smap = {}
    free_early = [35, 36, 37, 38, 39, 43, 44, 45]
    for kt in range(6): Smap[(kt, 0)] = free_early[kt]
    oddq = lambda qt: [(2*u+1)*3+qt for u in range(4)]
    l1 = oddq(0) + oddq(1)[:2]
    l2 = oddq(1)[2:] + oddq(2)
    for kt in range(6): Smap[(kt, 1)] = l1[kt]; Smap[(kt, 2)] = l2[kt]
    S = lambda kt, qt: G(Smap[(kt, qt)])
    kaddr = [f'v_xor_b32 v{AADR+m}, {m<<5}, v10' for m in range(8)]
    def kread(kt, u):
        return [f'ds_read_b64 {vr(KF(kt,u),2)}, v{AADR+2*u} offset:{kt*4096}', f'ds_read_b64 {vr(KF(kt,u)+2,2)}, v{AADR+2*u+1} offset:{kt*4096}']
    kr = [x for kt in range(6) for u in range(4) for x in kread(kt, u)]
    qcvt = lambda qt: [x for u in range(4) for x in cvt4(QB(u, qt), ACC(2*u, qt), ACC(2*u+1, qt))]
    T = interleave(m1[:NA], kaddr, per=2) + ['s_waitcnt lgkmcnt(0)', 's_barrier']
    if STAMPS: T.append(f'{"s_memtime" if CLK else "s_memrealtime"} s[76:77]')
    o, rest = merge(m1[NA:], kr[:42])
    T += o + rest + kr[42:]
    def smf(qt):
        return [f'{MF} {vr(S(kt,qt))}, {vr(KF(kt,u))}, {vr(QB(u,qt))}, {"0" if u == 0 else vr(S(kt,qt))}' for u in range(4) for kt in range(6)]
    def softmax(qt):
        regs = [S(kt, qt) + r for kt in range(6) for r in range(4)]
        M = 250; Tm = 251; M2 = 249
        L = [f'v_max3_f32 v{M}, v{regs[0]}, v{regs[1]}, v{regs[2]}', f'v_max3_f32 v{M2}, v{regs[3]}, v{regs[4]}, v{regs[5]}']
        for i in range(6, 22, 4):
            L.append(f'v_max3_f32 v{M}, v{M}, v{regs[i]}, v{regs[i+1]}')
            L.append(f'v_max3_f32 v{M2}, v{M2}, v{regs[i+2]}, v{regs[i+3]}')
        L.append(f'v_max3_f32 v{M}, v{M}, v{regs[22]}, v{regs[23]}')
        L.append(f'v_max_f32 v{M}, v{M}, v{M2}')
        L += [f'v_mov_b32 v{Tm}, v{M}', f'v_permlane16_swap_b32 v{M}, v{Tm}', f'v_max_f32 v{M}, v{M}, v{Tm}',
              f'v_mov_b32 v{Tm}, v{M}', f'v_permlane32_swap_b32 v{M}, v{Tm}', f'v_max_f32 v{M}, v{M}, v{Tm}',
              f'v_mul_f32 v{M}, s63, v{M}']
        for u in range(3):
            rr = regs[8*u:8*u+8]
            L += [f'v_fma_f32 v{r}, v{r}, s63, -v{M}' for r in rr]
            L += [f'v_exp_f32 v{r}, v{r}' for r in rr]
            L += cvt4(S(2*u, qt), S(2*u, qt), S(2*u+1, qt))
        return L
    PB = lambda u, qt: S(2*u, qt)
    VF = lambda t, u: G(KFg[t*3+u])
    T += qcvt(0)
    o, rest = merge(smf(0), qcvt(1) + qcvt(2))
    T += o + rest
    sm0 = softmax(0)
    m12 = smf(1) + smf(2)
    o, rest0 = merge(m12[4:], sm0)
    T += m12[:4] + o + rest0
    T += [f'v_xor_b32 v{AADR+t}, {t<<5}, v11' for t in range(8)]
    t2, _ = auto_lgkm(T, pend)
    for x in t2: p(x)
    dstamp(p, 3)
    p('s_barrier')
    dstamp(p, 4)
    U = []
    for t in range(8):
        for u in range(3):
            U.append(f'ds_read_b64_tr_b16 {vr(VF(t,u),2)}, v{AADR+t} offset:{u*8192}')
            U.append(f'ds_read_b64_tr_b16 {vr(VF(t,u)+2,2)}, v{AADR+t} offset:{u*8192+4096}')
    qbg = [(2*u)*3+qt for u in range(4) for qt in range(3)]
    Og = {0: qbg[:9], 1: qbg[9:] + [44, 45] + [Smap[(1,0)], Smap[(3,0)], Smap[(5,0)]] + [Smap[(1,1)]]}
    Og[2] = [Smap[(0,0)], Smap[(2,0)], Smap[(4,0)], Smap[(3,1)], Smap[(5,1)], Smap[(1,2)], Smap[(3,2)], Smap[(5,2)], Smap[(0,1)]]
    OA = lambda t, qt: G(Og[qt][t])
    def pv(qt):
        L = []
        for u in range(3):
            L.append(f'{MF} {vr(OA(8,qt))}, v[12:15], {vr(PB(u,qt))}, {"0" if u == 0 else vr(OA(8,qt))}')
        for t2_ in range(0, 8, 2):
            for u in range(3):
                for t in (t2_, t2_+1):
                    L.append(f'{MF} {vr(OA(t,qt))}, {vr(VF(t,u))}, {vr(PB(u,qt))}, {"0" if u == 0 else vr(OA(t,qt))}')
        return L
    def onorm(qt):
        l = OA(8, qt)
        L = [f'v_rcp_f32 v{l}, v{l}']
        for v in range(4):
            a0 = OA(2*v, qt); a1 = OA(2*v+1, qt)
            L += [f'v_mul_f32 v{a+r}, v{a+r}, v{l}' for a in (a0, a1) for r in range(4)]
            L += cvt4(a0, a0, a1)
            L.append(f's_add_u32 s14, s62, {v*48*1024}')
            L.append(f'buffer_store_dwordx4 {vr(a0)}, v9, s[52:55], s14 offen offset:{qt*1024} {OFL}')
        return L
    sm1 = softmax(1); sm2 = softmax(2)
    o, rest = merge(pv(0), sm1)
    U += o + rest
    if OEARLY:
        o, rest = merge(pv(1), onorm(0) + sm2)
        U += o + rest
        o, rest = merge(pv(2), onorm(1))
        U += o + rest
    else:
        o, rest = merge(pv(1), sm2)
        U += o + rest
        o, rest = merge(pv(2), onorm(0) + onorm(1))
        U += o + rest
    U += onorm(2)
    u2, _ = auto_lgkm(U, [])
    for x in u2: p(x)
    dstamp(p, 5)
    p('s_barrier')
    p('s_memrealtime s[70:71]')
    p2_ids(p)
    A2 = lambda i, t: 16 + (i*4+t)*4
    FA = lambda st, t: 80 + st*32 + t*4
    FBq = lambda st, i: 96 + st*32 + i*4
    p('s_lshr_b32 s12, s3, 1'); p('s_lshl_b32 s12, s12, 7')
    p(f'v_add_u32 v8, {WO_L}, v6')
    p('v_xor_b32 v8, s12, v8')
    for t in range(4): p(f'v_xor_b32 v{AADR+t}, {t<<5}, v8')
    p('s_and_b32 s12, s3, 1'); p('s_lshl_b32 s12, s12, 2'); p('s_add_u32 s12, s12, s10'); p('s_lshl_b32 s13, s12, 10')
    p(f'v_add_u32 v8, s13, v9')
    for i in range(4): p(f'v_xor_b32 v{AADR+4+i}, {i<<10}, v8')
    p('s_waitcnt lgkmcnt(0)')
    p('v_mov_b32 v250, s70')
    p('v_mov_b32 v251, s71')
    p('v_mov_b32 v249, 0')
    p('s_waitcnt vmcnt(0)')
    p('s_mov_b64 exec, 1')
    p(f'buffer_store_dwordx2 v[250:251], v249, s[52:55], s69 offen sc1')
    p('s_mov_b64 exec, -1')
    dstamp(p, 6)
    p('s_cmp_ge_u32 s5, 30')
    p('s_cbranch_scc1 L_cdone')
    p('s_barrier')
    p('s_barrier')
    for i in range(64): p(f'v_mov_b32 v{16+i}, 0')
    def reads2(st, kk):
        L = [f'ds_read_b128 {vr(FBq(st,0))}, v{AADR+4} offset:{kk*8192}']
        for t in range(4):
            L.append(f'ds_read_b64_tr_b16 {vr(FA(st,t),2)}, v{AADR+t} offset:{kk*8192}')
            L.append(f'ds_read_b64_tr_b16 {vr(FA(st,t)+2,2)}, v{AADR+t} offset:{kk*8192+4096}')
        L += [f'ds_read_b128 {vr(FBq(st,i))}, v{AADR+4+i} offset:{kk*8192}' for i in range(1, 4)]
        return L
    def mf2(st):
        return [f'{MF} {vr(A2(i,t))}, {vr(FA(st,t))}, {vr(FBq(st,i))}, {vr(A2(i,t))}' for i in range(4) for t in range(4)]
    p('s_mov_b32 s14, 0')
    p('s_mov_b32 s15, 0')
    p('s_barrier')
    dstamp(p, 7)
    pro = reads2(0, 0)
    for x in pro: p(x)
    _, pend0 = auto_lgkm(pro)
    p('s_mov_b32 s13, 0')
    scal = ['s_add_u32 s14, s14, 1', f's_cmp_eq_u32 s14, {NWS}', f's_cselect_b32 s61, {1-NWS}, 1', 's_cselect_b32 s14, 0, s14', 's_lshl_b32 s64, s61, 14',
            's_add_u32 s13, s13, 1', f's_cmp_eq_u32 s13, {NOS}', f's_cselect_b32 s61, {1-NOS}, 1', 's_cselect_b32 s13, 0, s13', 's_lshl_b32 s65, s61, 14',
            's_add_u32 s15, s15, 1', 's_cmp_eq_u32 s15, 16']
    n0 = mf2(0); n1 = mf2(1)
    H1 = spread(n0[:12], reads2(1, 1)) + spread(n0[12:], scal, per=3)
    upd = [f'v_add_u32 v{AADR+4+i}, s65, v{AADR+4+i}' for i in range(4)] + [f'v_add_u32 v{AADR+t}, s64, v{AADR+t}' for t in range(4)]
    H2a = interleave(n1[:4], upd, per=2) + ['s_waitcnt lgkmcnt(0)', 's_barrier']
    H2b = spread(n1[4:], reads2(0, 0))
    h1, pend = auto_lgkm(H1, pend0)
    h2a, pend_a = auto_lgkm(H2a, pend)
    h2b, _ = auto_lgkm(H2b, pend_a)
    p('L_loop2:')
    for x in h1: p(x)
    p('s_cbranch_scc1 L_tail2')
    for x in h2a + h2b: p(x)
    p('s_branch L_loop2')
    p('L_tail2:')
    last = [n1[i*4+t] for i in (1, 2, 3, 0) for t in range(4)]
    pre = ['s_mul_i32 s61, s6, 30', 's_add_u32 s61, s61, s5', f's_mul_i32 s61, s61, {RST}', f's_add_u32 s61, s61, {INBOX}']
    for i in (1, 2, 3):
        pre += [f's_xor_b32 s{63+i}, s10, {i}', f's_lshl_b32 s{63+i}, s{63+i}, 2', f's_add_u32 s{63+i}, s{63+i}, s3',
                f's_mul_i32 s{63+i}, s{63+i}, {3*SZ}', f's_add_u32 s{63+i}, s{63+i}, s61', f's_add_u32 s{63+i}, s{63+i}, {I_OFF + (i-1)*SZ}']
    outp = ['s_lshl_b32 s62, s66, 3', 's_add_u32 s62, s62, s12', 's_mul_i32 s62, s62, 40960',
            's_mul_i32 s13, s6, 1280', 's_add_u32 s62, s62, s13', 's_lshl_b32 s13, s67, 8', 's_add_u32 s62, s62, s13',
            's_lshr_b32 s13, s3, 1', 's_lshl_b32 s13, s13, 7', 's_add_u32 s62, s62, s13']
    tl, _ = auto_lgkm(spread(last, outp + pre, per=2), pend)
    for x in tl: p(x)
    dstamp(p, 8)
    for i in (1, 2, 3):
        if PF32:
            for t in range(4):
                p(f'buffer_store_dwordx4 {vr(A2(i,t))}, v9, s[52:55], s{63+i} offen offset:{t*1024} sc1')
        else:
            for hf in range(2):
                for x in cvt4(A2(i, 2*hf), A2(i, 2*hf), A2(i, 2*hf+1)): p(x)
                p(f'buffer_store_dwordx4 {vr(A2(i,2*hf))}, v9, s[52:55], s{63+i} offen offset:{hf*1024} {PFL}')
    p('s_lshl_b32 s13, s3, 7'); p('s_add_u32 s13, s13, s61'); p(f's_add_u32 s13, s13, {F2_OFF}')
    p('s_lshl_b32 s67, s10, 2'); p('s_add_u32 s67, s67, s3'); p(f's_mul_i32 s67, s67, {3*SZ}'); p('s_add_u32 s67, s67, s61'); p(f's_add_u32 s67, s67, {I_OFF}')
    p('s_lshl_b32 s14, s10, 3')
    p('v_mov_b32 v249, s14')
    p('v_lshlrev_b32 v248, 3, v2')
    p('v_mul_u32_u24 v8, 2560, v4')
    p('v_lshl_add_u32 v8, v3, 3, v8')
    p('s_waitcnt vmcnt(0)')
    p('s_mov_b64 exec, 1')
    p('buffer_store_dwordx2 v[250:251], v249, s[52:55], s13 offen sc1')
    dstamp(p, 9)
    poll_flags(p, 'L_pf2', 248, 252, 's13', '15')
    dstamp(p, 10)
    R = 80
    nld = 3 * SZ // 1024
    for k in range(nld):
        if k % 4 == 0 and k: p(f's_add_u32 s67, s67, 4096')
        p(f'buffer_load_dwordx4 {vr(R+4*k)}, v9, s[52:55], s67 offen offset:{(k%4)*1024} sc1')
    for i in range(3):
        if PF32:
            p(f's_waitcnt vmcnt({nld - 4*(i+1)})')
            for t in range(4):
                for r in range(4):
                    p(f'v_add_f32 v{A2(0,t)+r}, v{A2(0,t)+r}, v{R+16*i+4*t+r}')
        else:
            p(f's_waitcnt vmcnt({nld - 2*(i+1)})')
            for t in range(4):
                for r2 in range(2):
                    src = R + 8*i + 2*t + r2
                    p(f'v_lshlrev_b32 v253, 16, v{src}')
                    p(f'v_and_b32 v254, 0xffff0000, v{src}')
                    p(f'v_add_f32 v{A2(0,t)+2*r2}, v{A2(0,t)+2*r2}, v253')
                    p(f'v_add_f32 v{A2(0,t)+2*r2+1}, v{A2(0,t)+2*r2+1}, v254')
    for t in range(4):
        a = A2(0, t)
        p(f'v_cvt_pk_bf16_f32 v{a}, v{a}, v{a+1}')
        p(f'v_cvt_pk_bf16_f32 v{a+1}, v{a+2}, v{a+3}')
        p(f'buffer_store_dwordx2 {vr(a,2)}, v8, s[44:47], s62 offen offset:{t*32}')
    if STAMPS:
        p('s_waitcnt vmcnt(0)')
        dstamp(p, 11)
    p('L_cdone:')
    flush_stamps(p, 12, 0, 0, 'L_fsC')
    p('L_end:')
    p('s_endpgm')
    return p.finalize()

if __name__ == '__main__':
    out = HDR
    out += '; @launch grid=(256,1,1) block=(512,1,1) lds=163840\n'
    out += '.amdgcn_target "amdgcn-amd-amdhsa--gfx950"\n.text\n'
    out += gen() + '\n'
    out += '.section .rodata,"a"\n' + kd(NAME + '_kernel', 256, 102)
    print(out)
```

```python
from common import *
from asmlib import auto_lgkm as _al
CAP = opt('cap', 8)
def auto_lgkm(l, pnd=None): return _al(l, pnd, CAP)
XFL = opt('xfl', 'none').replace('none', '')
WFL2 = opt('wfl2', 'none').replace('none', '')
OFL = opt('ofl', 'sc1').replace('none', '').replace('_', ' ')
ORFL = opt('orfl', 'sc1').replace('none', '').replace('_', ' ')
LAG = opt('lag', 7)
PATA = opt('pata', 's0 s1 s2 s3 K1 s4 s5 Kb s6 s7 s8 s9 Ka V0 V1').replace('_', ' ')
PATB = opt('patb', 's0 s1 s2 s3 s4 K1 s5 s6 Kb s7 s8 s9 Ka V0 V1').replace('_', ' ')
PATSEL = opt('patsel', 6)
if opt('sent', 0) == 3 and 'Z' not in PATA: PATA += ' Z'; PATB += ' Z'
NA = opt('na', 5)
PF32 = opt('pf32', 0)
LPRIO = opt('lprio', 0)
LOWD = opt('lowd', 1)
SNAKE = opt('snake', 1)
NAT = opt('nat', 5)
BURST = opt('burst', 0)
PER1 = opt('per1', 1)
XNOP = opt('xnop', 0)
HALF = opt('half', 1)
FAPOS = opt('fapos', 1)
SENT = opt('sent', 0)
SSLEEP = opt('ssleep', 1)
PFS = opt('pfs', 0)
PF0 = opt('pf0', 0)
PFN = opt('pfn', 10)
FAKEWO = opt('fakewo', 0)
NOPOLL = opt('nopoll', 0)
FASTP = opt('fastp', 0)
WOFL = opt('wofl', 'none').replace('none', '')
WOFL2 = opt('wofl2', 'none').replace('none', '')
PFL = opt('pfl', 'sc1').replace('_', ' ')
CPF2 = opt('cpf2', 5)
WOA = opt('woa', 0)
WOB = opt('wob', 0)
ROT2 = opt('rot2', 0)
CPF = opt('cpf', 1)
ROT = opt('rot', 1)
RB = opt('rb', '0358')
RH = opt('rh', '03581469')
OEARLY = opt('oearly', 1)
KVFL = opt('kvfl', 'nt').replace('none', '')
TICKET = opt('ticket', 0)
CFL = opt('cfl', 'none').replace('none', '')
PSLEEP = opt('psleep', 2)
XS, WS_, SP = 0, 73728, 122880
KB0 = SP - 8192; KB1 = KB0 + 24576
VB0 = XS + 2*24576; VB1 = XS
NWS = opt('nws', 7); NOS = 10 - NWS
O_L = 0; WO_L = NOS * 16384
N1 = opt('n1', 2); N2 = opt('n2', 0); LAG2 = opt('lag2', 12)
GST = 1572864 + 16384
O_OFF = 4096; F1_OFF = O_OFF + 1572864; GT_OFF = F1_OFF + 8192
INBOX = 16 << 20
SZ = 4096 if PF32 else 2048
RST = 48 * SZ + 4096
I_OFF = 1024; F2_OFF = I_OFF + 48 * SZ; RT_OFF = F2_OFF + 2048
WS_SIZE = 48 << 20
TOUCH = opt('touch', 1)
MF = 'v_mfma_f32_16x16x32_bf16'
SPIN_MAX = 1 << 16

def dstamp(p, k):
    if STAMPS: p(f'{"s_memtime" if CLK else "s_memrealtime"} s[{72+2*k}:{73+2*k}]')
def flush_stamps(p, n, base_idx, wave, lbl):
    if not STAMPS: return
    p(f's_cmp_lg_u32 s3, {wave}'); p(f's_cbranch_scc1 {lbl}')
    p('s_waitcnt lgkmcnt(0) vmcnt(0)')
    p('v_mov_b32 v1, 0')
    p('s_mov_b64 exec, 1')
    for k in range(n):
        p(f'v_mov_b32 v{4+2*k}, s{72+2*k}'); p(f'v_mov_b32 v{5+2*k}, s{73+2*k}')
        p(f'buffer_store_dwordx2 v[{4+2*k}:{5+2*k}], v1, s[56:59], s60 offen offset:{(base_idx+k)*8}')
    p('s_waitcnt vmcnt(0)')
    p(f'{lbl}:')
def poll_flags(p, lbl, vaddr, vtmp, soff, maskreg):
    p(f's_mov_b32 s9, {SPIN_MAX}')
    p(f's_mov_b64 exec, {maskreg}')
    p(f'{lbl}:')
    p(f'buffer_load_dwordx2 v[{vtmp}:{vtmp+1}], v{vaddr}, s[52:55], {soff} offen sc1')
    p('s_waitcnt vmcnt(0)')
    p(f'v_cmp_gt_u64 vcc, s[96:97], v[{vtmp}:{vtmp+1}]')
    p(f'v_cmp_lt_u64 s[100:101], s[98:99], v[{vtmp}:{vtmp+1}]')
    p('s_or_b64 vcc, vcc, s[100:101]')
    p(f's_cbranch_scc0 {lbl}_ok')
    p(f's_sleep {PSLEEP}')
    p('s_sub_u32 s9, s9, 1')
    p('s_cmp_lg_u32 s9, 0')
    p(f's_cbranch_scc1 {lbl}')
    p(f'{lbl}_ok:')
    p('s_mov_b64 exec, -1')

def cvt4(d, a0, a1):
    return [f'v_cvt_pk_bf16_f32 v{d}, v{a0}, v{a0+1}', f'v_cvt_pk_bf16_f32 v{d+1}, v{a0+2}, v{a0+3}',
            f'v_cvt_pk_bf16_f32 v{d+2}, v{a1}, v{a1+1}', f'v_cvt_pk_bf16_f32 v{d+3}, v{a1+2}, v{a1+3}']
def spread(main, fill, extra=(), per=1):
    out = []; fi = 0; ei = 0
    for m in main:
        out.append(m)
        for _ in range(per):
            if fi < len(fill): out.append(fill[fi]); fi += 1
        if ei < len(extra): out.append(extra[ei]); ei += 1
    return out + list(fill[fi:]) + list(extra[ei:])

def p2_ids(p):
    p('s_mul_i32 s66, s5, 52'); p('s_lshr_b32 s66, s66, 8')
    p('s_mul_i32 s67, s66, 5'); p('s_sub_u32 s67, s5, s67')
    p('s_and_b32 s10, s4, 3')

def gen():
    p = Prog()
    K1 = NAME + '_kernel'
    p(f'.globl {K1}\n.p2align 8\n.type {K1},@function\n{K1}:')
    p('s_cmp_ge_u32 s2, 256')
    p('s_cbranch_scc1 L_end')
    p('s_load_dwordx8 s[16:23], s[0:1], 0')
    p('s_memrealtime s[96:97]')
    p('s_load_dwordx8 s[24:31], s[0:1], 40')
    p('s_load_dwordx4 s[32:35], s[0:1], 88')
    dstamp(p, 0)
    p('v_lshrrev_b32 v1, 6, v0')
    p('v_and_b32 v2, 63, v0')
    p('v_readfirstlane_b32 s3, v1')
    if TICKET:
        p('v_mov_b32 v5, 0')
        p('s_cmp_lg_u32 s3, 0')
        p('s_cbranch_scc1 L_tk_wait')
        p('s_getreg_b32 s4, hwreg(HW_REG_XCC_ID)')
        p('s_and_b32 s4, s4, 7')
        p('s_waitcnt lgkmcnt(0)')
        p('L_tk_try:')
        p('s_lshl_b32 s5, s4, 5')
        p('s_add_u32 s5, s5, 16')
        p('s_mov_b32 s6, 1')
        p('s_atomic_add s6, s[32:33], s5 glc')
        p('s_waitcnt lgkmcnt(0)')
        p('s_cmp_lt_u32 s6, 32')
        p('s_cbranch_scc1 L_tk_ok')
        p('s_add_u32 s4, s4, 1')
        p('s_and_b32 s4, s4, 7')
        p('s_branch L_tk_try')
        p('L_tk_ok:')
        p('s_lshl_b32 s6, s6, 3')
        p('s_add_u32 s6, s6, s4')
        p('v_mov_b32 v6, s6')
        p('ds_write_b32 v5, v6')
        p('s_waitcnt lgkmcnt(0)')
        p('L_tk_wait:')
        p('s_barrier')
        p('ds_read_b32 v6, v5')
        p('s_waitcnt lgkmcnt(0)')
        p('v_readfirstlane_b32 s2, v6')
        p('s_barrier')
        p('s_and_b32 s2, s2, 255')
    p('s_and_b32 s4, s2, 7')
    p('s_lshr_b32 s5, s2, 3')
    p('s_lshr_b32 s6, s4, 2')
    p('s_and_b32 s7, s4, 3')
    p('s_lshl_b32 s7, s7, 3')
    p('s_and_b32 s66, s5, 7')
    p('s_add_u32 s7, s7, s66')
    p('s_lshr_b32 s8, s5, 3')
    p('v_lshrrev_b32 v3, 4, v2')
    p('v_and_b32 v4, 15, v2')
    p('s_cmp_lt_u32 s3, 4')
    p('s_cbranch_scc1 L_compute')
    if LPRIO: p(f's_setprio {LPRIO}')
    p('s_and_b32 s11, s3, 3')
    p('v_lshrrev_b32 v5, 3, v2')
    p('s_lshl_b32 s12, s11, 3')
    p('v_add_u32 v5, s12, v5')
    p('v_mul_u32_u24 v5, 1280, v5')
    p('s_and_b32 s12, s11, 1')
    p('s_lshl_b32 s12, s12, 2')
    p('v_add_u32 v6, s12, v3')
    p('v_and_b32 v7, 7, v2')
    p('v_xor_b32 v7, v7, v6')
    p('v_lshl_add_u32 v11, v7, 4, v5')
    p('v_lshlrev_b32 v6, 1, v6')
    p('v_xor_b32 v8, v6, v4')
    p('s_lshl_b32 s12, s11, 2')
    p('v_add_u32 v5, s12, v3')
    p('v_lshlrev_b32 v7, 8, v5')
    p('v_lshl_add_u32 v13, v8, 4, v7')
    p('v_xor_b32 v6, v4, v5')
    p('v_lshl_add_u32 v10, v6, 4, v7')
    p('s_lshr_b32 s12, s11, 1')
    p('s_lshl_b32 s12, s12, 2')
    p('v_add_u32 v6, s12, v3')
    p('v_lshlrev_b32 v6, 1, v6')
    p('v_xor_b32 v6, v6, v4')
    p('v_lshlrev_b32 v7, 13, v5')
    p('v_lshl_add_u32 v12, v6, 4, v7')
    p('s_lshl_b32 s13, s11, 10')
    tb = sum(int(c) << (4*i) for i, c in enumerate(RB)); th = sum(int(c) << (4*i) for i, c in enumerate(RH))
    p('s_lshl_b32 s69, s8, 2'); p(f's_lshr_b32 s69, {tb:#x}, s69'); p('s_and_b32 s69, s69, 15')
    p('s_lshl_b32 s70, s66, 2'); p(f's_lshr_b32 s70, {th:#x}, s70'); p('s_and_b32 s70, s70, 15')
    p('s_add_u32 s69, s69, s70')
    p('s_cmp_ge_u32 s69, 10'); p('s_cselect_b32 s71, 10, 0'); p('s_sub_u32 s69, s69, s71')
    p('s_mul_i32 s9, s8, 245760')
    p('s_lshl_b32 s10, s7, 8')
    p('s_lshl_b32 s12, s8, 6')
    p('s_add_u32 s12, s12, s7')
    p('s_mul_i32 s12, s12, 24576')
    p('s_waitcnt lgkmcnt(0)')
    p('s_cmp_eq_u32 s6, 0')
    for i in range(4):
        p(f's_cselect_b64 s[{16+2*i}:{17+2*i}], s[{16+2*i}:{17+2*i}], s[{24+2*i}:{25+2*i}]')
    p('s_add_u32 s36, s16, s9'); p('s_addc_u32 s37, s17, 0')
    p('s_mov_b32 s38, 245760'); p('s_mov_b32 s39, 0x20000')
    p('s_add_u32 s40, s22, s10'); p('s_addc_u32 s41, s23, 0')
    p('s_sub_u32 s42, 5242880, s10'); p('s_mov_b32 s43, 0x20000')
    p('s_add_u32 s44, s18, s12'); p('s_addc_u32 s45, s19, 0')
    p(f's_mov_b32 s46, {786432+24576}'); p('s_mov_b32 s47, 0x20000')
    p('s_add_u32 s48, s20, s12'); p('s_addc_u32 s49, s21, 0')
    p(f's_mov_b32 s50, {786432+24576}'); p('s_mov_b32 s51, 0x20000')
    p(f's_load_dwordx2 s[16:17], s[0:1], {0 if FAKEWO else 32}')
    p(f's_load_dwordx2 s[18:19], s[0:1], {40 if FAKEWO else 72}')
    srd(p, 52, 34, 35, WS_SIZE)
    p('s_add_u32 s98, s96, 0x4000000'); p('s_addc_u32 s99, s97, 0')
    stamp_setup(p, 34, 35)
    p('s_mov_b64 s[34:35], s[32:33]')
    if CPF2 >= 0:
        p('s_getpc_b64 s[22:23]')
        p('L_pc2:')
        p('s_lshl_b32 s9, s5, 2'); p('s_add_u32 s9, s9, s11'); p('s_mul_i32 s9, s9, 192')
        p(f's_min_u32 s9, s9, L_end-L_ld2-128')
        p(f's_add_u32 s9, s9, L_ld2-L_pc2')
        p('s_add_u32 s22, s22, s9'); p('s_addc_u32 s23, s23, 0')
    p(f's_bitcmp1_b32 s2, {PATSEL}')
    p('s_cbranch_scc1 L_patB')

    afterV = []
    def loader(pat, tag):
        stream = []
        for w in pat.split():
            if w[0] == 's': stream += [('x' + w[1:], m) for m in range(6)] + [('w' + w[1:], m) for m in range(4)]
            elif w[0] in 'xw': stream += [(w, m) for m in range(6 if w[0] == 'x' else 4)]
            elif w == 'Z': stream += [('Z0', m) for m in range(3 * SZ // 1024)]
            elif w == 'Wa': stream += [('W0', m) for m in range(5)]
            elif w == 'Wb': stream += [('W0', m) for m in range(5, 10)]
            elif w == 'Ka': stream += [('K0', m) for m in range(2)]
            elif w == 'Kb': stream += [('K0', m) for m in range(2, 6)]
            else: stream += [(w, m) for m in range(6)]
        n = len(stream)
        end = {}
        for i, (it, m) in enumerate(stream):
            if it[0] in 'xw': end[int(it[1:])] = i + 1
        end[10] = max(max(i for i, (it, m) in enumerate(stream) if it[0] == 'K') + 1, end[9])
        end[11] = max(max(i for i, (it, m) in enumerate(stream) if it[0] == 'V') + 1, end[10])
        lastV = end[11]
        def need(it, m):
            if it[0] in 'xw': return int(it[1:]) - 3
            if it == 'K0': return 7 if m < 2 else -9
            if it in ('K1', 'W0', 'Z0'): return -9
            return 7 if it == 'V0' else 8
        bpos = {}; prev = 0
        for s in range(-1, 11):
            pos = min(end[s+1] + LAG, n)
            if s == 9: pos = max(pos, min(lastV, n))
            first_needing = min([i for i, (it, m) in enumerate(stream) if need(it, m) >= s and need(it, m) >= 0] + [n])
            pos = min(pos, first_needing)
            assert pos >= end[s+1], (s, pos, end[s+1])
            pos = max(pos, prev); bpos[s] = pos; prev = pos
        passed = [-2]
        def pf(s):
            if not PFS or s < PF0 or s >= PF0 + PFN: return
            tot = 10240 // PFS
            k = s - PF0
            for i in range(k * tot // PFN, (k + 1) * tot // PFN):
                p(f's_load_dword s28, s[26:27], {i*PFS}')
        def barrier(s, issued):
            if PFS and s == -1:
                p('s_waitcnt lgkmcnt(0)')
                p('s_cmp_eq_u32 s6, 0')
                p('s_cselect_b64 s[26:27], s[16:17], s[18:19]')
                p('s_and_b32 s9, s4, 3'); p('s_lshl_b32 s9, s9, 5'); p('s_add_u32 s9, s9, s5'); p('s_lshl_b32 s9, s9, 2'); p('s_add_u32 s9, s9, s11')
                p('s_mul_i32 s9, s9, 10240')
                p('s_add_u32 s26, s26, s9'); p('s_addc_u32 s27, s27, 0')
            pf(s)
            p(f's_waitcnt vmcnt({issued - end[s+1]})')
            if s == 10: dstamp(p, 5)
            p(f's_barrier      ; B_{s}')
            passed[0] = s
            if s == CPF2:
                p('s_load_dword s24, s[22:23], 0x0'); p('s_load_dword s25, s[22:23], 0x40'); p('s_load_dword s24, s[22:23], 0x80')
            if s in (-1, 2, 5, 8): dstamp(p, 1 + (s+1)//3)
        last_item = None
        for i, (it, m) in enumerate(stream):
            for s in range(-1, 11):
                if bpos[s] == i and passed[0] < s: barrier(s, i)
            assert need(it, m) <= passed[0] or need(it, m) < 0
            if it[0] in 'xw':
                t = int(it[1:]); slot = (t + 1) % 3
                if it != last_item:
                    p(f's_add_u32 s70, s69, {t}')
                    p('s_cmp_ge_u32 s70, 10'); p('s_cselect_b32 s71, 10, 0'); p('s_sub_u32 s70, s70, s71')
                    p(f's_lshl_b32 s64, s70, {7 if it[0]=="x" else 19}')
                if it[0] == 'x':
                    p(f's_add_u32 m0, s13, {XS + slot*24576 + m*4096}')
                    p(f's_add_u32 s14, s64, {m*40960}')
                    p(f'buffer_load_dwordx4 v11, s[36:39], s14 offen {XFL} lds')
                else:
                    p(f's_add_u32 m0, s13, {WS_ + slot*16384 + m*4096}')
                    p(f's_add_u32 s14, s64, {m*131072}')
                    p(f'buffer_load_dwordx4 v12, s[40:43], s14 offen {CFL if t < 3 else WFL2} lds')
            elif it == 'Z0':
                if m == 0:
                    p('s_and_b32 s10, s4, 3')
                    p('s_lshl_b32 s61, s6, 5'); p('s_add_u32 s61, s61, s5'); p(f's_mul_i32 s61, s61, {RST}'); p(f's_add_u32 s61, s61, {INBOX}')
                    p('s_lshl_b32 s9, s10, 2'); p('s_add_u32 s9, s9, s11'); p(f's_mul_i32 s9, s9, {3*SZ}'); p('s_add_u32 s9, s9, s61')
                    p('v_lshlrev_b32 v15, 4, v2')
                    for i_ in range(4): p(f'v_mov_b32 v{24+i_}, -1')
                p(f's_add_u32 s14, s9, {I_OFF + m*1024}')
                p('buffer_store_dwordx4 v[24:27], v15, s[52:55], s14 offen sc1')
            elif it == 'W0':
                if m in (0, 5):
                    p('s_waitcnt lgkmcnt(0)')
                    p('s_cmp_eq_u32 s6, 0')
                    p('s_cselect_b64 s[28:29], s[16:17], s[18:19]')
                    p('s_mov_b32 s30, 5242880'); p('s_mov_b32 s31, 0x20000')
                    p('s_and_b32 s9, s4, 3'); p('s_lshl_b32 s9, s9, 5'); p('s_add_u32 s9, s9, s5'); p('s_mul_i32 s9, s9, 40960')
                    p('v_lshl_add_u32 v15, v2, 4, s13')
                p(f's_add_u32 s14, s9, {m*4096}')
                p('buffer_load_dwordx4 v[20:23], v15, s[28:31], s14 offen')
            else:
                b = int(it[1])
                addr = {'K0': KB0, 'K1': KB1, 'V0': VB0, 'V1': VB1}[it] + m*4096
                vo, sr = (10, 44) if it[0] == 'K' else (13, 48)
                p(f's_add_u32 m0, s13, {addr}')
                p(f's_mov_b32 s14, {b*786432 + m*4096}')
                p(f'buffer_load_dwordx4 v{vo}, s[{sr}:{sr+3}], s14 offen {KVFL} lds')
            last_item = it
        for s in range(-1, 11):
            if passed[0] < s: barrier(s, n)
    loader(PATA, 'A')
    p('s_branch L_ld2')
    p('L_patB:')
    loader(PATB, 'B')
    p('L_ld2:')
    p('s_cmp_ge_u32 s5, 30')
    p('s_cbranch_scc1 L_ld_idle')
    p2_ids(p)
    p('s_waitcnt lgkmcnt(0)')
    p('s_cmp_eq_u32 s6, 0')
    p('s_cselect_b64 s[16:17], s[16:17], s[18:19]')
    p(f's_mul_i32 s9, s10, {0 if FAKEWO else 1310720}')
    p('s_lshl_b32 s12, s67, 8')
    p('s_add_u32 s9, s9, s12')
    p('s_add_u32 s36, s16, s9'); p('s_addc_u32 s37, s17, 0')
    p(f's_sub_u32 s38, {983040 if FAKEWO else 1310720}, s12'); p('s_mov_b32 s39, 0x20000')
    p('v_mul_u32_u24 v7, 1280, v5')
    p('v_lshl_add_u32 v12, v8, 4, v7')
    p('v_lshl_add_u32 v11, v2, 4, s13')
    p('s_mul_i32 s69, s66, 43'); p('s_lshr_b32 s69, s69, 4')
    p(f's_mul_i32 s70, s67, {ROT2}'); p('s_add_u32 s69, s69, s70'); p(f's_and_b32 s69, s69, {14 if HALF else 15}')
    p(f's_mul_i32 s65, s4, {GST}')
    p('s_lshl_b32 s12, s66, 13'); p('s_add_u32 s65, s65, s12'); p(f's_add_u32 s65, s65, {O_OFF}')
    p('s_mul_i32 s70, s69, 81920')
    p('s_mul_i32 s71, s69, 98304')
    p('s_add_u32 s71, s71, s65')
    p(f's_add_u32 s63, s65, {16*98304}')
    cnt = [0]
    endo = {}; endw = {}
    def wo_issue(k):
        fl = WOFL if k < 3 else WOFL2
        for m in range(4):
            p(f's_add_u32 m0, s13, {WO_L + (k % NWS)*16384 + m*4096}')
            p(f's_add_u32 s14, s70, {m*20480}')
            p(f'buffer_load_dwordx4 v12, s[36:39], s14 offen {fl} lds')
        if HALF:
            p(f's_add_u32 s70, s70, {2*81920}')
            p(f's_cmp_ge_u32 s70, {16*81920}')
            p(f's_cselect_b32 s12, {16*81920}, 0'); p('s_sub_u32 s70, s70, s12')
            if k == 7: p('s_add_u32 s70, s70, 81920')
        else:
            p('s_add_u32 s70, s70, 81920')
            p(f's_cmp_eq_u32 s70, {16*81920}')
            p('s_cselect_b32 s70, 0, s70')
        cnt[0] += 4; endw[k] = cnt[0]
    def o_issue(k):
        if HALF and k == 8:
            p(f's_waitcnt vmcnt({cnt[0] - endo["f"]})')
            p('s_mov_b64 exec, s[20:21]')
            p('v_cmp_gt_u64 vcc, s[96:97], v[16:17]')
            p('v_cmp_lt_u64 s[100:101], s[98:99], v[16:17]')
            p('s_mov_b64 exec, -1')
            p('s_or_b64 vcc, vcc, s[100:101]')
            p('s_cbranch_scc0 L_fb_ok')
            p('s_add_u32 s15, s15, 1024')
            poll_flags(p, 'L_pf1b', 14, 16, 's15', 's[20:21]')
            p('L_fb_ok:')
        for m in range(4):
            p(f's_add_u32 m0, s13, {O_L + (k % NOS)*16384 + m*4096}')
            p(f's_add_u32 s14, s71, {(0, 4096, 49152, 53248)[m]}')
            p(f'buffer_load_dwordx4 v11, s[52:55], s14 offen {ORFL} lds')
        if HALF:
            p(f's_add_u32 s71, s71, {2*98304}')
            p('s_cmp_ge_u32 s71, s63')
            p(f's_cselect_b32 s12, {16*98304}, 0'); p('s_sub_u32 s71, s71, s12')
            if k == 7: p('s_add_u32 s71, s71, 98304')
        else:
            p('s_add_u32 s71, s71, 98304')
            p('s_cmp_eq_u32 s71, s63')
            p('s_cselect_b32 s71, s65, s71')
        cnt[0] += 4; endo[k] = cnt[0]
        if HALF and k == 5:
            p('s_mov_b64 exec, s[20:21]')
            p('buffer_load_dwordx2 v[16:17], v14, s[52:55], s15 offen offset:1024 sc1')
            p('s_mov_b64 exec, -1')
            cnt[0] += 1; endo['f'] = cnt[0]
    p('s_mul_i32 s12, s66, 171'); p('s_lshr_b32 s12, s12, 6'); p('s_lshl_b32 s12, s12, 6')
    p(f's_mul_i32 s14, s4, {GST}'); p('s_add_u32 s12, s12, s14'); p(f's_add_u32 s15, s12, {F1_OFF}')
    p('s_cmp_eq_u32 s66, 1'); p('s_cselect_b32 s20, -1, 0xffffff')
    p('s_cmp_eq_u32 s66, 4'); p('s_cselect_b32 s20, -1, s20'); p('s_mov_b32 s21, 0')
    p('v_lshlrev_b32 v14, 3, v2')
    if SENT == 3:
        p('s_memrealtime s[24:25]')
        p('s_lshl_b32 s9, s11, 7'); p('s_add_u32 s9, s9, s61'); p('s_lshl_b32 s14, s10, 3'); p('s_add_u32 s9, s9, s14'); p(f's_add_u32 s9, s9, {F2_OFF}')
        p('v_mov_b32 v30, 0')
        p('s_waitcnt vmcnt(0) lgkmcnt(0)')
        p('v_mov_b32 v28, s24'); p('v_mov_b32 v29, s25')
        p('s_mov_b64 exec, 1')
        p('buffer_store_dwordx2 v[28:29], v30, s[52:55], s9 offen sc1')
        p('s_mov_b64 exec, -1')
    p('s_barrier')
    nw = 0
    for _ in range(N1): wo_issue(nw); nw += 1
    if not HALF: p('s_barrier')
    for _ in range(N2): wo_issue(nw); nw += 1
    p('s_cmp_lg_u32 s3, 4')
    p('s_cbranch_scc1 L_nopoll')
    poll_flags(p, 'L_pf1', 14, 16, 's15', 's[20:21]')
    p('L_nopoll:')
    p('s_barrier      ; B_12')
    dstamp(p, 6)
    no = 0
    for c in range(-1, 15):
        def allowed():
            cand = []
            if no < 16 and (no < NOS or no - NOS <= c - 1): cand.append(('o', no))
            if nw < 16 and (nw < NWS or nw - NWS <= c - 1): cand.append(('w', nw))
            cand.sort(key=lambda x: (x[1], x[0] == 'o'))
            return cand
        while True:
            done = (c + 1) in endo and (c + 1) in endw
            if done and cnt[0] - max(endo[c+1], endw[c+1]) >= LAG2: break
            cand = allowed()
            if not cand:
                assert done; break
            if cand[0][0] == 'o': o_issue(no); no += 1
            else: wo_issue(nw); nw += 1
        p(f's_waitcnt vmcnt({cnt[0] - max(endo[c+1], endw[c+1])})')
        p(f's_barrier      ; C_{c}')
        if c == -1: dstamp(p, 7)
    assert no == 16 and nw == 16
    dstamp(p, 8)
    flush_stamps(p, 9, 16, 4, 'L_fsL')
    p('s_endpgm')
    p('L_ld_idle:')
    p('s_barrier      ; B_11a')
    p('s_endpgm')

    p('L_compute:')
    G = lambda g: 16 + 4*g
    ACC = lambda t, qt: G(t*3+qt)
    AF = lambda st, t: G(24 + st*8 + t)
    BF = lambda st, qt: G(40 + st*3 + qt)
    AADR = 240; BADR = 248
    p('v_bfe_u32 v5, v2, 2, 2')
    p('v_and_b32 v6, 3, v2')
    p('v_and_b32 v7, 1, v3')
    p('v_lshl_add_u32 v7, v7, 2, v5')
    p('v_lshlrev_b32 v7, 1, v7')
    p('v_lshrrev_b32 v8, 1, v6')
    p('v_xor_b32 v7, v7, v8')
    p('v_lshlrev_b32 v7, 4, v7')
    p('v_and_b32 v8, 1, v6')
    p('v_lshl_add_u32 v7, v8, 3, v7')
    p('v_lshl_add_u32 v8, v3, 3, v5')
    p('v_lshl_add_u32 v8, v8, 8, v7')
    p(f'v_add_u32 v8, {WS_ + 16384}, v8')
    for t in range(8):
        p(f'v_xor_b32 v{AADR+t}, {t<<5}, v8')
    p('v_lshrrev_b32 v8, 1, v4')
    p('v_xor_b32 v8, v8, v3')
    p('v_lshlrev_b32 v8, 4, v8')
    p('v_lshl_add_u32 v8, v4, 7, v8')
    p('s_mul_i32 s13, s3, 6144')
    p(f's_add_u32 s13, s13, {XS + 24576}')
    p(f'v_add_u32 v{BADR}, s13, v8')
    p(f'v_xor_b32 v{BADR+1}, 64, v{BADR}')
    p('s_cmp_lt_u32 s3, 2')
    p(f's_mov_b32 s13, {KB1}'); p(f's_mov_b32 s14, {VB1}')
    p(f's_cselect_b32 s13, {KB0}, s13'); p(f's_cselect_b32 s14, {VB0}, s14')
    p('v_lshrrev_b32 v8, 1, v3')
    p('v_xor_b32 v8, v8, v4')
    p('v_lshlrev_b32 v8, 4, v8')
    p('v_lshl_add_u32 v8, v4, 8, v8')
    p('v_and_b32 v9, 1, v3')
    p('v_lshl_add_u32 v8, v9, 3, v8')
    p('v_add_u32 v10, s13, v8')
    p('v_lshl_add_u32 v8, v3, 2, v5')
    p('v_lshl_add_u32 v6, v8, 8, v7')
    p('v_add_u32 v11, s14, v6')
    p('v_lshlrev_b32 v9, 4, v2')
    for i in range(4): p(f'v_mov_b32 v{12+i}, 0x3f803f80')
    for i in range(96): p(f'v_mov_b32 v{16+i}, 0')
    p('s_mul_i32 s62, s66, 192'); p('s_mul_i32 s14, s8, 12'); p('s_add_u32 s62, s62, s14')
    p('s_mul_i32 s14, s3, 3'); p('s_add_u32 s62, s62, s14'); p('s_lshl_b32 s62, s62, 10')
    p(f's_mul_i32 s68, s4, {GST}'); p('s_add_u32 s62, s62, s68'); p(f's_add_u32 s62, s62, {O_OFF}')
    p(f's_mov_b32 s63, {f32bits(LOG2E_SCALE):#x}')
    p('s_lshl_b32 s69, s8, 2'); p('s_add_u32 s69, s69, s3')
    p('s_lshl_b32 s69, s69, 3'); p('s_add_u32 s69, s69, s66'); p('s_lshl_b32 s69, s69, 3'); p('s_add_u32 s69, s69, s68'); p(f's_add_u32 s69, s69, {F1_OFF}')
    p('s_waitcnt lgkmcnt(0)')
    srd(p, 52, 34, 35, WS_SIZE)
    p('s_add_u32 s98, s96, 0x4000000'); p('s_addc_u32 s99, s97, 0')
    stamp_setup(p, 34, 35)
    p('s_mov_b64 s[34:35], s[32:33]')
    p('s_load_dwordx2 s[20:21], s[0:1], 80')
    if CPF:
        p('s_cmp_lg_u32 s3, 1')
        p('s_cbranch_scc1 L_nocpf')
        p('s_getpc_b64 s[70:71]')
        p('L_pc:')
        p(f's_sub_u32 s70, s70, L_pc-{K1}')
        p('s_subb_u32 s71, s71, 0')
        p('s_mul_i32 s9, s5, 768')
        p(f's_min_u32 s9, s9, L_end-{K1}-640')
        p('s_add_u32 s70, s70, s9')
        p('s_addc_u32 s71, s71, 0')
        for i in range(6): p(f's_load_dword s{24+i}, s[70:71], {i*128}')
        p('L_nocpf:')
    p('s_waitcnt lgkmcnt(0)')
    srd(p, 44, 20, 21, 8*96*1280*2)
    if TOUCH:
        p('s_cmp_lg_u32 s3, 2')
        p('s_cbranch_scc1 L_notouch')
        p('v_and_b32 v250, 1, v2')
        p(f'v_mul_u32_u24 v251, {GT_OFF}, v250')
        p(f'v_mul_u32_u24 v252, {RT_OFF}, v250')
        p(f'v_mul_u32_u24 v253, {8*96*1280*2 - 128}, v250')
        p('s_mul_i32 s9, s6, 32'); p('s_add_u32 s9, s9, s5'); p(f's_mul_i32 s9, s9, {RST}'); p(f's_add_u32 s9, s9, {INBOX}')
        p('s_mov_b64 exec, 3')
        p('buffer_load_dword v254, v251, s[52:55], s68 offen nt')
        p('buffer_load_dword v254, v252, s[52:55], s9 offen nt')
        p('buffer_load_dword v254, v253, s[44:47], 0 offen nt')
        p('s_mov_b64 exec, -1')
        p('L_notouch:')
    p2_ids(p)
    p('s_and_b32 s12, s3, 1'); p('s_lshl_b32 s12, s12, 2'); p('s_add_u32 s12, s12, s10')
    p('s_mul_i32 s61, s6, 32'); p('s_add_u32 s61, s61, s5'); p(f's_mul_i32 s61, s61, {RST}'); p(f's_add_u32 s61, s61, {INBOX}')
    for i in (1, 2, 3, 0):
        d = 35 + i if i else 39
        p(f's_xor_b32 s{d}, s10, {i}'); p(f's_lshl_b32 s{d}, s{d}, 2'); p(f's_add_u32 s{d}, s{d}, s3'); p(f's_mul_i32 s{d}, s{d}, {3*SZ}')
        p(f's_add_u32 s{d}, s{d}, s61'); p(f's_add_u32 s{d}, s{d}, {I_OFF + (i-1 if i else 0)*SZ}')
    p('s_lshl_b32 s40, s3, 7'); p('s_add_u32 s40, s40, s61'); p(f's_add_u32 s40, s40, {F2_OFF}')
    p('s_lshl_b32 s41, s66, 3'); p('s_add_u32 s41, s41, s12'); p('s_mul_i32 s41, s41, 40960')
    p('s_mul_i32 s13, s6, 1280'); p('s_add_u32 s41, s41, s13'); p('s_lshl_b32 s13, s67, 8'); p('s_add_u32 s41, s41, s13')
    p('s_lshr_b32 s13, s3, 1'); p('s_lshl_b32 s13, s13, 7'); p('s_add_u32 s41, s41, s13')
    p('s_lshl_b32 s42, s10, 3'); p('s_add_u32 s42, s42, s40')
    p('s_add_u32 s43, s39, 4096')
    p('s_add_u32 s48, s39, 8192')
    if SENT == 1:
        p('s_cmp_ge_u32 s5, 30')
        p('s_cbranch_scc1 L_noclr')
        for i in range(4): p(f'v_mov_b32 v{200+i}, -1')
        for k in range(3 * SZ // 1024):
            p(f'buffer_store_dwordx4 v[200:203], v9, s[52:55], s{(39, 43, 48)[k//4]} offen offset:{(k%4)*1024} sc1')
        p('L_noclr:')
    def reads(st, ks):
        L = [f'ds_read_b128 {vr(BF(st,qt))}, v{BADR+ks} offset:{qt*2048}' for qt in range(3)]
        for t in range(8):
            L.append(f'ds_read_b64_tr_b16 {vr(AF(st,t),2)}, v{AADR+t} offset:{ks*8192}')
            L.append(f'ds_read_b64_tr_b16 {vr(AF(st,t)+2,2)}, v{AADR+t} offset:{ks*8192+1024}')
        return L
    def mfmas(st):
        return [f'{MF} {vr(ACC(t,qt))}, {vr(AF(st,t))}, {vr(BF(st,qt))}, {vr(ACC(t,qt))}' for t in range(8) for qt in (range(3) if not (SNAKE and t & 1) else (2, 1, 0))]
    p('s_mov_b32 s14, 1')
    p('s_mov_b32 s15, 0')
    p('s_barrier')
    dstamp(p, 1)
    pro = reads(0, 0)
    for x in pro: p(x)
    _, pend0 = auto_lgkm(pro)
    scal = ['s_add_u32 s14, s14, 1', 's_cmp_eq_u32 s14, 3', 's_cselect_b32 s61, -2, 1', 's_cselect_b32 s14, 0, s14',
            's_mul_i32 s64, s61, 16384', 's_mul_i32 s65, s61, 24576', 's_add_u32 s15, s15, 1', 's_cmp_eq_u32 s15, 10']
    m0_ = mfmas(0); m1 = mfmas(1)
    H1 = spread(m0_[:19], reads(1, 1), per=PER1) + spread(m0_[19:], scal, per=2)
    upd = [f'v_add_u32 v{BADR+i}, s65, v{BADR+i}' for i in range(2)] + [f'v_add_u32 v{AADR+t}, s64, v{AADR+t}' for t in range(8)]
    H2a = interleave(m1[:NA], upd, per=2) + ['s_waitcnt lgkmcnt(0)', 's_barrier']
    H2b = spread(m1[NA:], reads(0, 0), per=PER1)
    if LOWD:
        H1 = reads(1, 1) + (scal + m0_ if LOWD == 2 else spread(m0_, scal))
        H2a = (m1 + upd if LOWD == 2 else interleave(m1, upd, per=1)) + ['s_barrier']
        H2b = reads(0, 0)
    if BURST:
        r1 = reads(1, 1); r0 = reads(0, 0)
        H1 = r1[:BURST] + spread(m0_[:19], r1[BURST:]) + spread(m0_[19:], scal, per=2)
        H2b = r0[:BURST] + spread(m1[NA:], r0[BURST:])
    if XNOP:
        def addn(L):
            o_ = []; c = 0
            for x in L:
                o_.append(x)
                if x.startswith('v_mfma'):
                    c += 1
                    if c % XNOP == 0: o_.append('s_nop 3')
            return o_
        H1 = addn(H1); H2b = addn(H2b)
    h1, pend = auto_lgkm(H1, pend0)
    h2a, pend_a = auto_lgkm(H2a, pend)
    h2b, _ = auto_lgkm(H2b, pend_a)
    p('L_loop:')
    for x in h1: p(x)
    p('s_cbranch_scc1 L_tail')
    for x in h2a + h2b: p(x)
    p('s_branch L_loop')
    p('L_tail:')
    KFg = list(range(24, 32)) + [40, 41, 42] + list(range(46, 56)) + [32, 33, 34]
    KF = lambda kt, u: G(KFg[kt*4+u])
    QB = lambda u, qt: ACC(2*u, qt)
    Smap = {}
    free_early = [35, 36, 37, 38, 39, 43, 44, 45]
    for kt in range(6): Smap[(kt, 0)] = free_early[kt]
    oddq = lambda qt: [(2*u+1)*3+qt for u in range(4)]
    l1 = oddq(0) + oddq(1)[:2]
    l2 = oddq(1)[2:] + oddq(2)
    for kt in range(6): Smap[(kt, 1)] = l1[kt]; Smap[(kt, 2)] = l2[kt]
    S = lambda kt, qt: G(Smap[(kt, qt)])
    kaddr = [f'v_xor_b32 v{AADR+m}, {m<<5}, v10' for m in range(8)]
    def kread(kt, u):
        return [f'ds_read_b64 {vr(KF(kt,u),2)}, v{AADR+2*u} offset:{kt*4096}', f'ds_read_b64 {vr(KF(kt,u)+2,2)}, v{AADR+2*u+1} offset:{kt*4096}']
    kr = [x for kt in range(6) for u in range(4) for x in kread(kt, u)]
    qcvt = lambda qt: [x for u in range(4) for x in cvt4(QB(u, qt), ACC(2*u, qt), ACC(2*u+1, qt))]
    T = ['s_memrealtime s[70:71]'] + interleave(m1[:NAT], kaddr, per=2) + ['s_waitcnt lgkmcnt(0)', 's_barrier']
    T += ['v_mov_b32 v254, s70', 'v_mov_b32 v255, s71', 'v_mov_b32 v253, 0']
    if SENT == 1:
        T += ['s_waitcnt vmcnt(0)', 's_mov_b64 exec, 1', 'buffer_store_dwordx2 v[254:255], v253, s[52:55], s42 offen sc1', 's_mov_b64 exec, -1']
    if STAMPS: T.append(f'{"s_memtime" if CLK else "s_memrealtime"} s[76:77]')
    o, rest = merge(m1[NAT:], kr[:42])
    T += o + rest + kr[42:]
    def smf(qt):
        return [f'{MF} {vr(S(kt,qt))}, {vr(KF(kt,u))}, {vr(QB(u,qt))}, {"0" if u == 0 else vr(S(kt,qt))}' for u in range(4) for kt in range(6)]
    def softmax(qt):
        regs = [S(kt, qt) + r for kt in range(6) for r in range(4)]
        M = 250; Tm = 251; M2 = 249
        L = [f'v_max3_f32 v{M}, v{regs[0]}, v{regs[1]}, v{regs[2]}', f'v_max3_f32 v{M2}, v{regs[3]}, v{regs[4]}, v{regs[5]}']
        for i in range(6, 22, 4):
            L.append(f'v_max3_f32 v{M}, v{M}, v{regs[i]}, v{regs[i+1]}')
            L.append(f'v_max3_f32 v{M2}, v{M2}, v{regs[i+2]}, v{regs[i+3]}')
        L.append(f'v_max3_f32 v{M}, v{M}, v{regs[22]}, v{regs[23]}')
        L.append(f'v_max_f32 v{M}, v{M}, v{M2}')
        L += [f'v_mov_b32 v{Tm}, v{M}', f'v_permlane16_swap_b32 v{M}, v{Tm}', f'v_max_f32 v{M}, v{M}, v{Tm}',
              f'v_mov_b32 v{Tm}, v{M}', f'v_permlane32_swap_b32 v{M}, v{Tm}', f'v_max_f32 v{M}, v{M}, v{Tm}',
              f'v_mul_f32 v{M}, s63, v{M}']
        for u in range(3):
            rr = regs[8*u:8*u+8]
            L += [f'v_fma_f32 v{r}, v{r}, s63, -v{M}' for r in rr]
            L += [f'v_exp_f32 v{r}, v{r}' for r in rr]
            L += cvt4(S(2*u, qt), S(2*u, qt), S(2*u+1, qt))
        return L
    PB = lambda u, qt: S(2*u, qt)
    VF = lambda t, u: G(KFg[t*3+u])
    T += qcvt(0)
    o, rest = merge(smf(0), qcvt(1) + qcvt(2))
    T += o + rest
    sm0 = softmax(0)
    m12 = smf(1) + smf(2)
    o, rest0 = merge(m12[4:], sm0)
    T += m12[:4] + o + rest0
    T += [f'v_xor_b32 v{AADR+t}, {t<<5}, v11' for t in range(8)]
    t2, _ = auto_lgkm(T, pend)
    for x in t2: p(x)
    dstamp(p, 3)
    p('s_barrier')
    dstamp(p, 4)
    U = []
    for t in range(8):
        for u in range(3):
            U.append(f'ds_read_b64_tr_b16 {vr(VF(t,u),2)}, v{AADR+t} offset:{u*8192}')
            U.append(f'ds_read_b64_tr_b16 {vr(VF(t,u)+2,2)}, v{AADR+t} offset:{u*8192+4096}')
    qbg = [(2*u)*3+qt for u in range(4) for qt in range(3)]
    Og = {0: qbg[:9], 1: qbg[9:] + [44, 45] + [Smap[(1,0)], Smap[(3,0)], Smap[(5,0)]] + [Smap[(1,1)]]}
    Og[2] = [Smap[(0,0)], Smap[(2,0)], Smap[(4,0)], Smap[(3,1)], Smap[(5,1)], Smap[(1,2)], Smap[(3,2)], Smap[(5,2)], Smap[(0,1)]]
    OA = lambda t, qt: G(Og[qt][t])
    def pv(qt):
        L = []
        for u in range(3):
            L.append(f'{MF} {vr(OA(8,qt))}, v[12:15], {vr(PB(u,qt))}, {"0" if u == 0 else vr(OA(8,qt))}')
        for t2_ in range(0, 8, 2):
            for u in range(3):
                for t in (t2_, t2_+1):
                    L.append(f'{MF} {vr(OA(t,qt))}, {vr(VF(t,u))}, {vr(PB(u,qt))}, {"0" if u == 0 else vr(OA(t,qt))}')
        return L
    def onorm(qt):
        l = OA(8, qt)
        L = [f'v_rcp_f32 v{l}, v{l}']
        for v in range(4):
            a0 = OA(2*v, qt); a1 = OA(2*v+1, qt)
            L += [f'v_mul_f32 v{a+r}, v{a+r}, v{l}' for a in (a0, a1) for r in range(4)]
            L += cvt4(a0, a0, a1)
            L.append(f's_add_u32 s14, s62, {v*48*1024}')
            L.append(f'buffer_store_dwordx4 {vr(a0)}, v9, s[52:55], s14 offen offset:{qt*1024} {OFL}')
        return L
    sm1 = softmax(1); sm2 = softmax(2)
    if HALF:
        Lg = [44, 45, Smap[(1,0)]]
        Bg = [Smap[(3,0)], Smap[(5,0)], Smap[(1,1)], Smap[(3,1)], Smap[(5,1)], Smap[(1,2)], Smap[(3,2)], Smap[(5,2)]] + KFg[:4]
        OH = lambda t, qt: G(qbg[qt*4+t]) if t < 4 else G(Bg[qt*4+t-4])
        def pvh(h, qt):
            L = []
            if h == 0:
                l = G(Lg[qt])
                L += [f'{MF} {vr(l)}, v[12:15], {vr(PB(u,qt))}, {"0" if u == 0 else vr(l)}' for u in range(3)]
            for t2_ in (4*h, 4*h+2):
                for u in range(3):
                    for t in (t2_, t2_+1):
                        L.append(f'{MF} {vr(OH(t,qt))}, {vr(VF(t,u))}, {vr(PB(u,qt))}, {"0" if u == 0 else vr(OH(t,qt))}')
            return L
        def nrm(h, qt):
            l = G(Lg[qt])
            L = [f'v_rcp_f32 v{l}, v{l}'] if h == 0 else []
            for v in (2*h, 2*h+1):
                a0 = OH(2*v, qt); a1 = OH(2*v+1, qt)
                L += [f'v_mul_f32 v{a+r}, v{a+r}, v{l}' for a in (a0, a1) for r in range(4)]
                L += cvt4(a0, a0, a1)
                L.append(f's_add_u32 s14, s62, {v*48*1024}')
                L.append(f'buffer_store_dwordx4 {vr(a0)}, v9, s[52:55], s14 offen offset:{qt*1024} {OFL}')
            return L
        flagA = lambda k: [f's_waitcnt vmcnt({k})', 's_mov_b64 exec, 1', 'buffer_store_dwordx2 v[254:255], v253, s[52:55], s69 offen sc1', 's_mov_b64 exec, -1']
        vrdB = U[24:]; U = U[:24]
        o, rest = merge(pvh(0, 0), sm1); U += o + rest
        o, rest = merge(pvh(0, 1), sm2); U += o + rest
        o, rest = merge(pvh(0, 2), nrm(0, 0) + nrm(0, 1)); U += o + vrdB + rest
        o, rest = merge(pvh(1, 0), nrm(0, 2)); U += o + rest
        o, rest = merge(pvh(1, 1), nrm(1, 0)); U += o + rest
        if FAPOS == 1: U += flagA(2)
        o, rest = merge(pvh(1, 2), nrm(1, 1)); U += o + rest
        if FAPOS == 2: U += flagA(4)
        U += nrm(1, 2)
        if FAPOS == 3: U += flagA(6)
    if not HALF:
        o, rest = merge(pv(0), sm1)
        U += o + rest
    if HALF: pass
    elif OEARLY:
        o, rest = merge(pv(1), onorm(0) + sm2)
        U += o + rest
        o, rest = merge(pv(2), onorm(1))
        U += o + rest
    else:
        o, rest = merge(pv(1), sm2)
        U += o + rest
        o, rest = merge(pv(2), onorm(0) + onorm(1))
        U += o + rest
    if not HALF: U += onorm(2)
    u2, _ = auto_lgkm(U, [])
    for x in u2: p(x)
    dstamp(p, 5)
    p('s_barrier')
    A2 = lambda i, t: 16 + (i*4+t)*4
    FA = lambda st, t: 80 + st*32 + t*4
    FBq = lambda st, i: 96 + st*32 + i*4
    p('s_lshr_b32 s13, s3, 1'); p('s_lshl_b32 s13, s13, 7')
    p(f'v_add_u32 v8, {WO_L}, v6')
    p('v_xor_b32 v8, s13, v8')
    for t in range(4): p(f'v_xor_b32 v{AADR+t}, {t<<5}, v8')
    p('s_lshl_b32 s13, s12, 10')
    p(f'v_add_u32 v8, s13, v9')
    for i in range(4): p(f'v_xor_b32 v{AADR+4+i}, {i<<10}, v8')
    p('v_lshlrev_b32 v248, 3, v2')
    p('v_mul_u32_u24 v7, 2560, v4')
    p('v_lshl_add_u32 v7, v3, 3, v7')
    def lastflag():
        p('s_waitcnt vmcnt(0)')
        p('s_mov_b64 exec, 1')
        p(f'buffer_store_dwordx2 v[254:255], v253, s[52:55], s69 offen offset:{1024 if HALF else 0} sc1')
        p('s_mov_b64 exec, -1')
        dstamp(p, 6)
    if not HALF:
        lastflag()
        p('s_cmp_ge_u32 s5, 30')
        p('s_cbranch_scc1 L_cdone')
        p('s_barrier')
    else:
        p('s_cmp_lt_u32 s5, 30')
        p('s_cbranch_scc1 L_act')
        lastflag()
        p('s_branch L_cdone')
        p('L_act:')
    if SENT == 2:
        for i in range(4): p(f'v_mov_b32 v{200+i}, -1')
        for k in range(3 * SZ // 1024):
            p(f'buffer_store_dwordx4 v[200:203], v9, s[52:55], s{(39, 43, 48)[k//4]} offen offset:{(k%4)*1024} sc1')
    p('s_barrier')
    if HALF: lastflag()
    if SENT in (1, 3):
        p('s_mov_b64 exec, 15')
        p('buffer_load_dwordx2 v[250:251], v248, s[52:55], s40 offen sc1')
        p('s_mov_b64 exec, -1')
    for i in range(64): p(f'v_mov_b32 v{16+i}, 0')
    def reads2(st, kk):
        L = [f'ds_read_b128 {vr(FBq(st,0))}, v{AADR+4} offset:{kk*8192}']
        for t in range(4):
            L.append(f'ds_read_b64_tr_b16 {vr(FA(st,t),2)}, v{AADR+t} offset:{kk*8192}')
            L.append(f'ds_read_b64_tr_b16 {vr(FA(st,t)+2,2)}, v{AADR+t} offset:{kk*8192+4096}')
        L += [f'ds_read_b128 {vr(FBq(st,i))}, v{AADR+4+i} offset:{kk*8192}' for i in range(1, 4)]
        return L
    def mf2(st):
        return [f'{MF} {vr(A2(i,t))}, {vr(FA(st,t))}, {vr(FBq(st,i))}, {vr(A2(i,t))}' for i in range(4) for t in (range(4) if not (SNAKE and i & 1) else (3, 2, 1, 0))]
    p('s_mov_b32 s14, 0')
    p('s_mov_b32 s15, 0')
    p('s_barrier')
    dstamp(p, 7)
    pro = reads2(0, 0)
    for x in pro: p(x)
    _, pend0 = auto_lgkm(pro)
    p('s_mov_b32 s13, 0')
    scal = ['s_add_u32 s14, s14, 1', f's_cmp_eq_u32 s14, {NWS}', f's_cselect_b32 s61, {1-NWS}, 1', 's_cselect_b32 s14, 0, s14', 's_lshl_b32 s64, s61, 14',
            's_add_u32 s13, s13, 1', f's_cmp_eq_u32 s13, {NOS}', f's_cselect_b32 s61, {1-NOS}, 1', 's_cselect_b32 s13, 0, s13', 's_lshl_b32 s65, s61, 14',
            's_add_u32 s15, s15, 1', 's_cmp_eq_u32 s15, 16']
    n0 = mf2(0); n1 = mf2(1)
    H1 = spread(n0[:12], reads2(1, 1)) + spread(n0[12:], scal, per=3)
    upd = [f'v_add_u32 v{AADR+4+i}, s65, v{AADR+4+i}' for i in range(4)] + [f'v_add_u32 v{AADR+t}, s64, v{AADR+t}' for t in range(4)]
    H2a = interleave(n1[:4], upd, per=2) + ['s_waitcnt lgkmcnt(0)', 's_barrier']
    H2b = spread(n1[4:], reads2(0, 0))
    h1, pend = auto_lgkm(H1, pend0)
    h2a, pend_a = auto_lgkm(H2a, pend)
    h2b, _ = auto_lgkm(H2b, pend_a)
    p('L_loop2:')
    for x in h1: p(x)
    p('s_cbranch_scc1 L_tail2')
    for x in h2a + h2b: p(x)
    if SENT == 2:
        p('s_and_b32 s61, s15, 7')
        p('s_cmp_lg_u32 s61, 3')
        p('s_cbranch_scc1 L_loop2')
        p('s_cmp_eq_u32 s15, 3')
        p('s_cbranch_scc0 L_ev11')
        p('s_waitcnt vmcnt(0)')
        p('s_mov_b64 exec, 1')
        p('buffer_store_dwordx2 v[254:255], v253, s[52:55], s42 offen sc1')
        p('s_mov_b64 exec, -1')
        p('s_branch L_loop2')
        p('L_ev11:')
        p('s_mov_b64 exec, 15')
        p('buffer_load_dwordx2 v[250:251], v248, s[52:55], s40 offen sc1')
        p('s_mov_b64 exec, -1')
    p('s_branch L_loop2')
    p('L_tail2:')
    last = [n1[i*4+t] for i in (1, 2, 3, 0) for t in range(4)]
    chk = []
    if SENT:
        chk = ['s_waitcnt vmcnt(0)', 's_mov_b64 exec, 15', 'v_cmp_gt_u64 vcc, s[96:97], v[250:251]', 'v_cmp_lt_u64 s[100:101], s[98:99], v[250:251]',
               's_mov_b64 exec, -1', 's_or_b64 vcc, vcc, s[100:101]']
        for x in chk: p(x)
        p('s_cbranch_scc0 L_rdy')
        poll_flags(p, 'L_pf2', 248, 250, 's40', '15')
        p('L_rdy:')
    def send(i):
        L = []
        if PF32:
            L += [f'buffer_store_dwordx4 {vr(A2(i,t))}, v9, s[52:55], s{35+i} offen offset:{t*1024} {PFL}' for t in range(4)]
        else:
            for hf in range(2):
                L += cvt4(A2(i, 2*hf), A2(i, 2*hf), A2(i, 2*hf+1))
                L.append(f'buffer_store_dwordx4 {vr(A2(i,2*hf))}, v9, s[52:55], s{35+i} offen offset:{hf*1024} {PFL}')
        return L
    seq = last[:8] + spread(last[8:12], send(1), per=3) + spread(last[12:], send(2), per=3) + send(3)
    tl, _ = auto_lgkm(seq, pend)
    for x in tl: p(x)
    dstamp(p, 8)
    R = 80
    nld = 3 * SZ // 1024
    def loads():
        for k in range(nld):
            p(f'buffer_load_dwordx4 {vr(R+4*k)}, v9, s[52:55], s{(39, 43, 48)[k//4]} offen offset:{(k%4)*1024} sc1')
    if SENT:
        p(f's_mov_b32 s9, {SPIN_MAX}')
        p('L_rx:')
        loads()
        n = nld * 4
        for k in range(nld):
            p(f's_waitcnt vmcnt({nld-1-k})')
            b_ = R + 4*k
            if k == 0:
                p(f'v_max3_u32 v252, v{b_}, v{b_+1}, v{b_+2}'); p(f'v_max_u32 v252, v252, v{b_+3}')
            else:
                p(f'v_max3_u32 v252, v252, v{b_}, v{b_+1}'); p(f'v_max3_u32 v252, v252, v{b_+2}, v{b_+3}')
        p('v_cmp_eq_u32 vcc, -1, v252')
        p('s_cbranch_vccz L_rx_ok')
        if SSLEEP: p(f's_sleep {SSLEEP}')
        p('s_sub_u32 s9, s9, 1')
        p('s_cmp_lg_u32 s9, 0')
        p('s_cbranch_scc1 L_rx')
        p('L_rx_ok:')
        dstamp(p, 9); dstamp(p, 10)
    else:
        p('s_waitcnt vmcnt(0)')
        p('s_mov_b64 exec, 1')
        p('buffer_store_dwordx2 v[254:255], v253, s[52:55], s42 offen sc1')
        dstamp(p, 9)
        p('s_lshl_b32 s14, 1, s10'); p('s_xor_b32 s14, s14, 15'); p('s_mov_b32 s15, 0')
        poll_flags(p, 'L_pf2', 248, 250, 's40', 's[14:15]')
        dstamp(p, 10)
        loads()
    for i in range(3):
        if PF32:
            if not SENT: p(f's_waitcnt vmcnt({nld - 4*(i+1)})')
            for t in range(4):
                for r in range(4):
                    p(f'v_add_f32 v{A2(0,t)+r}, v{A2(0,t)+r}, v{R+16*i+4*t+r}')
        else:
            if not SENT: p(f's_waitcnt vmcnt({nld - 2*(i+1)})')
            for t in range(4):
                for r2 in range(2):
                    src = R + 8*i + 2*t + r2
                    p(f'v_lshlrev_b32 v250, 16, v{src}')
                    p(f'v_and_b32 v251, 0xffff0000, v{src}')
                    p(f'v_add_f32 v{A2(0,t)+2*r2}, v{A2(0,t)+2*r2}, v250')
                    p(f'v_add_f32 v{A2(0,t)+2*r2+1}, v{A2(0,t)+2*r2+1}, v251')
    for t in range(4):
        a = A2(0, t)
        p(f'v_cvt_pk_bf16_f32 v{a}, v{a}, v{a+1}')
        p(f'v_cvt_pk_bf16_f32 v{a+1}, v{a+2}, v{a+3}')
        p(f'buffer_store_dwordx2 {vr(a,2)}, v7, s[44:47], s41 offen offset:{t*32}')
    if STAMPS:
        p('s_waitcnt vmcnt(0)')
        dstamp(p, 11)
    p('L_cdone:')
    flush_stamps(p, 12, 0, 0, 'L_fsC')
    p('L_end:')
    p('s_endpgm')
    return p.finalize()

if __name__ == '__main__':
    out = HDR
    out += '; @launch grid=(256,1,1) block=(512,1,1) lds=163840\n'
    out += '.amdgcn_target "amdgcn-amd-amdhsa--gfx950"\n.text\n'
    out += gen() + '\n'
    out += '.section .rodata,"a"\n' + kd(NAME + '_kernel', 256, 102)
    print(out)
```

```python
from common import *
from asmlib import auto_lgkm as _al
CAP = opt('cap', 8)
def auto_lgkm(l, pnd=None): return _al(l, pnd, CAP)
XFL = opt('xfl', 'none').replace('none', '')
WFL2 = opt('wfl2', 'none').replace('none', '')
OFL = opt('ofl', 'sc1').replace('none', '').replace('_', ' ')
ORFL = opt('orfl', 'sc1').replace('none', '').replace('_', ' ')
LAG = opt('lag', 10)
PATA = opt('pata', 's0 s1 s2 s3 K1 s4 s5 Kb ka s6 s7 v0 s8 s9 v1 Wa Wb').replace('_', ' ')
PATB = opt('patb', 's0 s1 s2 s3 s4 K1 s5 s6 Kb ka s7 s8 v0 s9 v1 Wa Wb').replace('_', ' ')
PATSEL = opt('patsel', 6)
if opt('sent', 0) == 3 and 'Z' not in PATA: PATA += ' Z'; PATB += ' Z'
NA = opt('na', 5)
PF32 = opt('pf32', 0)
LPRIO = opt('lprio', 0)
WLAG = opt('wlag', 10)
ORC = opt('orc', 0)
PK = opt('pk', 0)
LOWD = opt('lowd', 1)
SNAKE = opt('snake', 1)
NAT = opt('nat', 5)
BURST = opt('burst', 0)
PER1 = opt('per1', 1)
XNOP = opt('xnop', 0)
HALF = opt('half', 1)
FAPOS = opt('fapos', 1)
SENT = opt('sent', 0)
SSLEEP = opt('ssleep', 1)
PFS = opt('pfs', 0)
PF0 = opt('pf0', 0)
PFN = opt('pfn', 10)
FAKEWO = opt('fakewo', 0)
NOPOLL = opt('nopoll', 0)
FASTP = opt('fastp', 0)
WOFL = opt('wofl', 'none').replace('none', '')
WOFL2 = opt('wofl2', 'none').replace('none', '')
PFL = opt('pfl', 'sc1').replace('_', ' ')
CPF2 = opt('cpf2', 5)
WOA = opt('woa', 0)
WOB = opt('wob', 0)
ROT2 = opt('rot2', 0)
CPF = opt('cpf', 1)
ROT = opt('rot', 1)
RB = opt('rb', '0358')
RH = opt('rh', '03581469')
OEARLY = opt('oearly', 1)
KVFL = opt('kvfl', 'nt').replace('none', '')
TICKET = opt('ticket', 0)
CFL = opt('cfl', 'none').replace('none', '')
PSLEEP = opt('psleep', 2)
XS, WS_, SP = 0, 73728, 122880
KB0 = SP - 8192; KB1 = KB0 + 24576
VB0 = XS + 2*24576; VB1 = XS
NWS = opt('nws', 6); NOS = opt('nos', 4)
CPF3 = opt('cpf3', 8)
UNR = opt('unr', 1)
DIAG = opt('diag', 1)
NB2 = opt('nb2', 4)
O_L = 0; WO_L = NOS * 16384
N1 = opt('n1', 6); N2 = opt('n2', 0); LAG2 = opt('lag2', 16)
GST = 1572864 + 16384
O_OFF = 4096; F1_OFF = O_OFF + 1572864; GT_OFF = F1_OFF + 8192
INBOX = 16 << 20
TAGS = opt('tags', 0)
SZ = 4096 if PF32 else (3072 if TAGS else 2048)
assert not (TAGS and (PF32 or opt('sent', 0)))
RST = 48 * SZ + 4096
I_OFF = 1024; F2_OFF = I_OFF + 48 * SZ; RT_OFF = F2_OFF + 2048
WS_SIZE = 48 << 20
TOUCH = opt('touch', 1)
MF = 'v_mfma_f32_16x16x32_bf16'
SPIN_MAX = 1 << 16

def dstamp(p, k):
    if STAMPS: p(f'{"s_memtime" if CLK else "s_memrealtime"} s[{72+2*k}:{73+2*k}]')
def flush_stamps(p, n, base_idx, wave, lbl):
    if not STAMPS: return
    p(f's_cmp_lg_u32 s3, {wave}'); p(f's_cbranch_scc1 {lbl}')
    p('s_waitcnt lgkmcnt(0) vmcnt(0)')
    p('v_mov_b32 v1, 0')
    p('s_mov_b64 exec, 1')
    for k in range(n):
        p(f'v_mov_b32 v{4+2*k}, s{72+2*k}'); p(f'v_mov_b32 v{5+2*k}, s{73+2*k}')
        p(f'buffer_store_dwordx2 v[{4+2*k}:{5+2*k}], v1, s[56:59], s60 offen offset:{(base_idx+k)*8}')
    p('s_waitcnt vmcnt(0)')
    p(f'{lbl}:')
def poll_flags(p, lbl, vaddr, vtmp, soff, maskreg):
    p(f's_mov_b32 s9, {SPIN_MAX}')
    p(f's_mov_b64 exec, {maskreg}')
    p(f'{lbl}:')
    p(f'buffer_load_dwordx2 v[{vtmp}:{vtmp+1}], v{vaddr}, s[52:55], {soff} offen sc1')
    p('s_waitcnt vmcnt(0)')
    p(f'v_cmp_gt_u64 vcc, s[96:97], v[{vtmp}:{vtmp+1}]')
    p(f'v_cmp_lt_u64 s[100:101], s[98:99], v[{vtmp}:{vtmp+1}]')
    p('s_or_b64 vcc, vcc, s[100:101]')
    p(f's_cbranch_scc0 {lbl}_ok')
    p(f's_sleep {PSLEEP}')
    p('s_sub_u32 s9, s9, 1')
    p('s_cmp_lg_u32 s9, 0')
    p(f's_cbranch_scc1 {lbl}')
    p(f'{lbl}_ok:')
    p('s_mov_b64 exec, -1')

def cvt4(d, a0, a1):
    return [f'v_cvt_pk_bf16_f32 v{d}, v{a0}, v{a0+1}', f'v_cvt_pk_bf16_f32 v{d+1}, v{a0+2}, v{a0+3}',
            f'v_cvt_pk_bf16_f32 v{d+2}, v{a1}, v{a1+1}', f'v_cvt_pk_bf16_f32 v{d+3}, v{a1+2}, v{a1+3}']
def spread(main, fill, extra=(), per=1):
    out = []; fi = 0; ei = 0
    for m in main:
        out.append(m)
        for _ in range(per):
            if fi < len(fill): out.append(fill[fi]); fi += 1
        if ei < len(extra): out.append(extra[ei]); ei += 1
    return out + list(fill[fi:]) + list(extra[ei:])

def p2_ids(p):
    p('s_mul_i32 s66, s5, 52'); p('s_lshr_b32 s66, s66, 8')
    p('s_mul_i32 s67, s66, 5'); p('s_sub_u32 s67, s5, s67')
    p('s_and_b32 s10, s4, 3')

def gen():
    p = Prog()
    K1 = NAME + '_kernel'
    p(f'.globl {K1}\n.p2align 8\n.type {K1},@function\n{K1}:')
    p('s_cmp_ge_u32 s2, 256')
    p('s_cbranch_scc1 L_end')
    p('s_load_dwordx8 s[16:23], s[0:1], 0')
    p('s_memrealtime s[96:97]')
    p('s_load_dwordx8 s[24:31], s[0:1], 40')
    p('s_load_dwordx4 s[32:35], s[0:1], 88')
    dstamp(p, 0)
    p('v_lshrrev_b32 v1, 6, v0')
    p('v_and_b32 v2, 63, v0')
    p('v_readfirstlane_b32 s3, v1')
    if TICKET:
        p('v_mov_b32 v5, 0')
        p('s_cmp_lg_u32 s3, 0')
        p('s_cbranch_scc1 L_tk_wait')
        p('s_getreg_b32 s4, hwreg(HW_REG_XCC_ID)')
        p('s_and_b32 s4, s4, 7')
        p('s_waitcnt lgkmcnt(0)')
        p('L_tk_try:')
        p('s_lshl_b32 s5, s4, 5')
        p('s_add_u32 s5, s5, 16')
        p('s_mov_b32 s6, 1')
        p('s_atomic_add s6, s[32:33], s5 glc')
        p('s_waitcnt lgkmcnt(0)')
        p('s_cmp_lt_u32 s6, 32')
        p('s_cbranch_scc1 L_tk_ok')
        p('s_add_u32 s4, s4, 1')
        p('s_and_b32 s4, s4, 7')
        p('s_branch L_tk_try')
        p('L_tk_ok:')
        p('s_lshl_b32 s6, s6, 3')
        p('s_add_u32 s6, s6, s4')
        p('v_mov_b32 v6, s6')
        p('ds_write_b32 v5, v6')
        p('s_waitcnt lgkmcnt(0)')
        p('L_tk_wait:')
        p('s_barrier')
        p('ds_read_b32 v6, v5')
        p('s_waitcnt lgkmcnt(0)')
        p('v_readfirstlane_b32 s2, v6')
        p('s_barrier')
        p('s_and_b32 s2, s2, 255')
    p('s_and_b32 s4, s2, 7')
    p('s_lshr_b32 s5, s2, 3')
    p('s_lshr_b32 s6, s4, 2')
    p('s_and_b32 s7, s4, 3')
    p('s_lshl_b32 s7, s7, 3')
    p('s_and_b32 s66, s5, 7')
    p('s_add_u32 s7, s7, s66')
    p('s_lshr_b32 s8, s5, 3')
    p('v_lshrrev_b32 v3, 4, v2')
    p('v_and_b32 v4, 15, v2')
    p('s_cmp_lt_u32 s3, 4')
    p('s_cbranch_scc1 L_compute')
    if LPRIO: p(f's_setprio {LPRIO}')
    p('s_and_b32 s11, s3, 3')
    p('v_lshrrev_b32 v5, 3, v2')
    p('s_lshl_b32 s12, s11, 3')
    p('v_add_u32 v5, s12, v5')
    p('v_mul_u32_u24 v5, 1280, v5')
    p('s_and_b32 s12, s11, 1')
    p('s_lshl_b32 s12, s12, 2')
    p('v_add_u32 v6, s12, v3')
    p('v_and_b32 v7, 7, v2')
    p('v_xor_b32 v7, v7, v6')
    p('v_lshl_add_u32 v11, v7, 4, v5')
    p('v_lshlrev_b32 v6, 1, v6')
    p('v_xor_b32 v8, v6, v4')
    p('s_lshl_b32 s12, s11, 2')
    p('v_add_u32 v5, s12, v3')
    p('v_lshlrev_b32 v7, 8, v5')
    p('v_lshl_add_u32 v13, v8, 4, v7')
    p('v_xor_b32 v6, v4, v5')
    p('v_lshl_add_u32 v10, v6, 4, v7')
    p('s_lshr_b32 s12, s11, 1')
    p('s_lshl_b32 s12, s12, 2')
    p('v_add_u32 v6, s12, v3')
    p('v_lshlrev_b32 v6, 1, v6')
    p('v_xor_b32 v6, v6, v4')
    p('v_lshlrev_b32 v7, 13, v5')
    p('v_lshl_add_u32 v12, v6, 4, v7')
    p('s_lshl_b32 s13, s11, 10')
    tb = sum(int(c) << (4*i) for i, c in enumerate(RB)); th = sum(int(c) << (4*i) for i, c in enumerate(RH))
    p('s_lshl_b32 s69, s8, 2'); p(f's_lshr_b32 s69, {tb:#x}, s69'); p('s_and_b32 s69, s69, 15')
    p('s_lshl_b32 s70, s66, 2'); p(f's_lshr_b32 s70, {th:#x}, s70'); p('s_and_b32 s70, s70, 15')
    p('s_add_u32 s69, s69, s70')
    p('s_cmp_ge_u32 s69, 10'); p('s_cselect_b32 s71, 10, 0'); p('s_sub_u32 s69, s69, s71')
    p('s_mul_i32 s9, s8, 245760')
    p('s_lshl_b32 s10, s7, 8')
    p('s_lshl_b32 s12, s8, 6')
    p('s_add_u32 s12, s12, s7')
    p('s_mul_i32 s12, s12, 24576')
    p('s_waitcnt lgkmcnt(0)')
    p('s_cmp_eq_u32 s6, 0')
    for i in range(4):
        p(f's_cselect_b64 s[{16+2*i}:{17+2*i}], s[{16+2*i}:{17+2*i}], s[{24+2*i}:{25+2*i}]')
    p('s_add_u32 s36, s16, s9'); p('s_addc_u32 s37, s17, 0')
    p('s_mov_b32 s38, 245760'); p('s_mov_b32 s39, 0x20000')
    p('s_add_u32 s40, s22, s10'); p('s_addc_u32 s41, s23, 0')
    p('s_sub_u32 s42, 5242880, s10'); p('s_mov_b32 s43, 0x20000')
    p('s_add_u32 s44, s18, s12'); p('s_addc_u32 s45, s19, 0')
    p(f's_mov_b32 s46, {786432+24576}'); p('s_mov_b32 s47, 0x20000')
    p('s_add_u32 s48, s20, s12'); p('s_addc_u32 s49, s21, 0')
    p(f's_mov_b32 s50, {786432+24576}'); p('s_mov_b32 s51, 0x20000')
    p(f's_load_dwordx2 s[16:17], s[0:1], {0 if FAKEWO else 32}')
    p(f's_load_dwordx2 s[18:19], s[0:1], {40 if FAKEWO else 72}')
    srd(p, 52, 34, 35, WS_SIZE)
    p('s_add_u32 s98, s96, 0x4000000'); p('s_addc_u32 s99, s97, 0')
    stamp_setup(p, 34, 35)
    p('s_mov_b64 s[34:35], s[32:33]')
    if CPF2 >= 0:
        p('s_getpc_b64 s[22:23]')
        p('L_pc2:')
        p('s_lshl_b32 s9, s5, 2'); p('s_add_u32 s9, s9, s11'); p('s_mul_i32 s9, s9, 192')
        p(f's_min_u32 s9, s9, L_end-L_ld2-128')
        p(f's_add_u32 s9, s9, L_ld2-L_pc2')
        p('s_add_u32 s22, s22, s9'); p('s_addc_u32 s23, s23, 0')
    p(f's_bitcmp1_b32 s2, {PATSEL}')
    p('s_cbranch_scc1 L_patB')

    afterV = []
    def loader(pat, tag):
        stream = []
        for w in pat.split():
            if w[0] == 's': stream += [('x' + w[1:], m) for m in range(6)] + [('w' + w[1:], m) for m in range(4)]
            elif w[0] in 'xw': stream += [(w, m) for m in range(6 if w[0] == 'x' else 4)]
            elif w == 'ka': stream += [('k0', m) for m in range(2)]
            elif w == 'Z': stream += [('Z0', m) for m in range(3 * SZ // 1024)]
            elif w == 'Wa': stream += [('W0', m) for m in range(5)]
            elif w == 'Wb': stream += [('W0', m) for m in range(5, 10)]
            elif w == 'Ka': stream += [('K0', m) for m in range(2)]
            elif w == 'Kb': stream += [('K0', m) for m in range(2, 6)]
            else: stream += [(w, m) for m in range(6)]
        n = len(stream)
        end = {}
        for i, (it, m) in enumerate(stream):
            if it[0] in 'xw': end[int(it[1:])] = i + 1
        staged = [(i, it, m) for i, (it, m) in enumerate(stream) if it[0] in 'kv']
        end[10] = max(max(i for i, (it, m) in enumerate(stream) if it[0] in 'Kk') + 1, end[9])
        endst = max([x[0] + 1 for x in staged] + [end[9]])
        end[11] = max(max(i for i, (it, m) in enumerate(stream) if it[0] in 'Vv') + 1, end[10])
        lastV = end[11]
        def need(it, m):
            if it[0] in 'xw': return int(it[1:]) - 3
            if it == 'K0': return 7 if m < 2 else -9
            if it in ('K1', 'W0', 'Z0', 'k0', 'v0', 'v1'): return -9
            return 7 if it == 'V0' else 8
        bpos = {}; prev = 0
        for s in range(-1, 11):
            pos = min(end[s+1] + LAG, n)
            if s == 9: pos = max(pos, min(lastV, n))
            if staged and s in (8, 9):
                fd = min([i for i, (it, m) in enumerate(stream) if i >= endst and it[0] in 'xwKV'] + [n])
                pos = min(min(end[9] + LAG, n), fd) if s == 8 else min(endst + WLAG, n, fd)
            if staged and s == 10 and all(it[0] not in 'V' for it, m in stream): pos = n
            first_needing = min([i for i, (it, m) in enumerate(stream) if need(it, m) >= s and need(it, m) >= 0] + [n])
            pos = min(pos, first_needing)
            assert pos >= end[s+1], (s, pos, end[s+1])
            pos = max(pos, prev); bpos[s] = pos; prev = pos
        passed = [-2]
        def pf(s):
            if not PFS or s < PF0 or s >= PF0 + PFN: return
            tot = 10240 // PFS
            k = s - PF0
            for i in range(k * tot // PFN, (k + 1) * tot // PFN):
                p(f's_load_dword s28, s[26:27], {i*PFS}')
        def barrier(s, issued):
            if PFS and s == -1:
                p('s_waitcnt lgkmcnt(0)')
                p('s_cmp_eq_u32 s6, 0')
                p('s_cselect_b64 s[26:27], s[16:17], s[18:19]')
                p('s_and_b32 s9, s4, 3'); p('s_lshl_b32 s9, s9, 5'); p('s_add_u32 s9, s9, s5'); p('s_lshl_b32 s9, s9, 2'); p('s_add_u32 s9, s9, s11')
                p('s_mul_i32 s9, s9, 10240')
                p('s_add_u32 s26, s26, s9'); p('s_addc_u32 s27, s27, 0')
            pf(s)
            p(f's_waitcnt vmcnt({issued - end[s+1]})')
            def wr_(kinds):
                for k_, (i_, it_, m_) in enumerate(staged):
                    if it_[0] not in kinds: continue
                    ad = {'k0': KB0, 'v0': VB0, 'v1': VB1}[it_] + m_*4096
                    p(f'ds_write_b128 v{15 + (ad >> 16)}, {vr(32+4*k_)} offset:{ad & 0xffff}')
            if s == 9 and staged:
                p('v_lshl_add_u32 v15, v2, 4, s13')
                p('v_add_u32 v16, 0x10000, v15')
                wr_('k')
                p('s_waitcnt lgkmcnt(0)')
            if s == 10 and staged: p('s_waitcnt lgkmcnt(0)')
            if s == 10: dstamp(p, 5)
            p(f's_barrier      ; B_{s}')
            passed[0] = s
            if s == 9 and staged:
                assert issued >= endst
                p(f's_waitcnt vmcnt({issued - endst})')
                wr_('v')
            if s == CPF2:
                p('s_load_dword s24, s[22:23], 0x0'); p('s_load_dword s25, s[22:23], 0x40'); p('s_load_dword s24, s[22:23], 0x80')
            if s in (-1, 2, 5, 8): dstamp(p, 1 + (s+1)//3)
        last_item = None
        for i, (it, m) in enumerate(stream):
            for s in range(-1, 11):
                if bpos[s] == i and passed[0] < s: barrier(s, i)
            assert need(it, m) <= passed[0] or need(it, m) < 0
            if it[0] in 'xw':
                t = int(it[1:]); slot = (t + 1) % 3
                if it != last_item:
                    p(f's_add_u32 s70, s69, {t}')
                    p('s_cmp_ge_u32 s70, 10'); p('s_cselect_b32 s71, 10, 0'); p('s_sub_u32 s70, s70, s71')
                    p(f's_lshl_b32 s64, s70, {7 if it[0]=="x" else 19}')
                if it[0] == 'x':
                    p(f's_add_u32 m0, s13, {XS + slot*24576 + m*4096}')
                    p(f's_add_u32 s14, s64, {m*40960}')
                    p(f'buffer_load_dwordx4 v11, s[36:39], s14 offen {XFL} lds')
                else:
                    p(f's_add_u32 m0, s13, {WS_ + slot*16384 + m*4096}')
                    p(f's_add_u32 s14, s64, {m*131072}')
                    p(f'buffer_load_dwordx4 v12, s[40:43], s14 offen {CFL if t < 3 else WFL2} lds')
            elif it[0] in 'kv':
                b = int(it[1]); k_ = [x[0] for x in staged].index(i)
                vo, sr = (10, 44) if it[0] == 'k' else (13, 48)
                p(f's_mov_b32 s14, {b*786432 + m*4096}')
                p(f'buffer_load_dwordx4 {vr(32+4*k_)}, v{vo}, s[{sr}:{sr+3}], s14 offen {KVFL}')
            elif it == 'Z0':
                if m == 0:
                    p('s_and_b32 s10, s4, 3')
                    p('s_lshl_b32 s61, s6, 5'); p('s_add_u32 s61, s61, s5'); p(f's_mul_i32 s61, s61, {RST}'); p(f's_add_u32 s61, s61, {INBOX}')
                    p('s_lshl_b32 s9, s10, 2'); p('s_add_u32 s9, s9, s11'); p(f's_mul_i32 s9, s9, {3*SZ}'); p('s_add_u32 s9, s9, s61')
                    p('v_lshlrev_b32 v15, 4, v2')
                    for i_ in range(4): p(f'v_mov_b32 v{24+i_}, -1')
                p(f's_add_u32 s14, s9, {I_OFF + m*1024}')
                p('buffer_store_dwordx4 v[24:27], v15, s[52:55], s14 offen sc1')
            elif it == 'W0':
                if m in (0, 5):
                    p('s_waitcnt lgkmcnt(0)')
                    p('s_cmp_eq_u32 s6, 0')
                    p('s_cselect_b64 s[28:29], s[16:17], s[18:19]')
                    p('s_mov_b32 s30, 5242880'); p('s_mov_b32 s31, 0x20000')
                    p('s_and_b32 s9, s4, 3'); p('s_lshl_b32 s9, s9, 5'); p('s_add_u32 s9, s9, s5'); p('s_mul_i32 s9, s9, 40960')
                    p('v_lshl_add_u32 v15, v2, 4, s13')
                p(f's_add_u32 s14, s9, {m*4096}')
                p('buffer_load_dwordx4 v[20:23], v15, s[28:31], s14 offen')
            else:
                b = int(it[1])
                addr = {'K0': KB0, 'K1': KB1, 'V0': VB0, 'V1': VB1}[it] + m*4096
                vo, sr = (10, 44) if it[0] == 'K' else (13, 48)
                p(f's_add_u32 m0, s13, {addr}')
                p(f's_mov_b32 s14, {b*786432 + m*4096}')
                p(f'buffer_load_dwordx4 v{vo}, s[{sr}:{sr+3}], s14 offen {KVFL} lds')
            last_item = it
        for s in range(-1, 11):
            if passed[0] < s: barrier(s, n)
    loader(PATA, 'A')
    p('s_branch L_ld2')
    p('L_patB:')
    loader(PATB, 'B')
    p('L_ld2:')
    p('s_cmp_ge_u32 s5, 30')
    p('s_cbranch_scc1 L_ld_idle')
    p2_ids(p)
    p('s_waitcnt lgkmcnt(0)')
    p('s_cmp_eq_u32 s6, 0')
    p('s_cselect_b64 s[16:17], s[16:17], s[18:19]')
    p(f's_mul_i32 s9, s10, {0 if FAKEWO else 1310720}')
    p('s_lshl_b32 s12, s67, 8')
    p('s_add_u32 s9, s9, s12')
    p('s_add_u32 s36, s16, s9'); p('s_addc_u32 s37, s17, 0')
    p(f's_sub_u32 s38, {983040 if FAKEWO else 1310720}, s12'); p('s_mov_b32 s39, 0x20000')
    p('v_mul_u32_u24 v7, 1280, v5')
    p('v_lshl_add_u32 v12, v8, 4, v7')
    p('v_lshl_add_u32 v11, v2, 4, s13')
    p('s_mul_i32 s69, s66, 43'); p('s_lshr_b32 s69, s69, 4')
    p(f's_mul_i32 s70, s67, {ROT2}'); p('s_add_u32 s69, s69, s70'); p(f's_and_b32 s69, s69, {14 if HALF else 15}')
    p(f's_mul_i32 s65, s4, {GST}')
    p('s_lshl_b32 s12, s66, 13'); p('s_add_u32 s65, s65, s12'); p(f's_add_u32 s65, s65, {O_OFF}')
    p('s_mul_i32 s70, s69, 81920')
    p('s_mul_i32 s71, s69, 98304')
    p('s_add_u32 s71, s71, s65')
    p(f's_add_u32 s63, s65, {16*98304}')
    cnt = [0]
    endo = {}; endw = {}
    def wo_issue(k):
        fl = WOFL if k < 3 else WOFL2
        for m in range(4):
            p(f's_add_u32 m0, s13, {WO_L + (k % NWS)*16384 + m*4096}')
            p(f's_add_u32 s14, s70, {m*20480}')
            p(f'buffer_load_dwordx4 v12, s[36:39], s14 offen {fl} lds')
        if HALF:
            p(f's_add_u32 s70, s70, {2*81920}')
            p(f's_cmp_ge_u32 s70, {16*81920}')
            p(f's_cselect_b32 s12, {16*81920}, 0'); p('s_sub_u32 s70, s70, s12')
            if k == 7: p('s_add_u32 s70, s70, 81920')
        else:
            p('s_add_u32 s70, s70, 81920')
            p(f's_cmp_eq_u32 s70, {16*81920}')
            p('s_cselect_b32 s70, 0, s70')
        cnt[0] += 4; endw[k] = cnt[0]
    def o_issue(k):
        if HALF and k == 8:
            p(f's_waitcnt vmcnt({cnt[0] - endo["f"]})')
            p('s_mov_b64 exec, s[20:21]')
            p('v_cmp_gt_u64 vcc, s[96:97], v[16:17]')
            p('v_cmp_lt_u64 s[100:101], s[98:99], v[16:17]')
            p('s_mov_b64 exec, -1')
            p('s_or_b64 vcc, vcc, s[100:101]')
            p('s_cbranch_scc0 L_fb_ok')
            p('s_add_u32 s15, s15, 1024')
            poll_flags(p, 'L_pf1b', 14, 16, 's15', 's[20:21]')
            p('L_fb_ok:')
        for m in range(4):
            p(f's_add_u32 m0, s13, {O_L + (k % NOS)*16384 + m*4096}')
            p(f's_add_u32 s14, s71, {(0, 4096, 49152, 53248)[m]}')
            p(f'buffer_load_dwordx4 v11, s[52:55], s14 offen {ORFL} lds')
        if HALF:
            p(f's_add_u32 s71, s71, {2*98304}')
            p('s_cmp_ge_u32 s71, s63')
            p(f's_cselect_b32 s12, {16*98304}, 0'); p('s_sub_u32 s71, s71, s12')
            if k == 7: p('s_add_u32 s71, s71, 98304')
        else:
            p('s_add_u32 s71, s71, 98304')
            p('s_cmp_eq_u32 s71, s63')
            p('s_cselect_b32 s71, s65, s71')
        cnt[0] += 4; endo[k] = cnt[0]
        if HALF and k == 5:
            p('s_mov_b64 exec, s[20:21]')
            p('buffer_load_dwordx2 v[16:17], v14, s[52:55], s15 offen offset:1024 sc1')
            p('s_mov_b64 exec, -1')
            cnt[0] += 1; endo['f'] = cnt[0]
    p('s_mul_i32 s12, s66, 171'); p('s_lshr_b32 s12, s12, 6'); p('s_lshl_b32 s12, s12, 6')
    p(f's_mul_i32 s14, s4, {GST}'); p('s_add_u32 s12, s12, s14'); p(f's_add_u32 s15, s12, {F1_OFF}')
    p('s_cmp_eq_u32 s66, 1'); p('s_cselect_b32 s20, -1, 0xffffff')
    p('s_cmp_eq_u32 s66, 4'); p('s_cselect_b32 s20, -1, s20'); p('s_mov_b32 s21, 0')
    p('v_lshlrev_b32 v14, 3, v2')
    if SENT == 3:
        p('s_memrealtime s[24:25]')
        p('s_lshl_b32 s9, s11, 7'); p('s_add_u32 s9, s9, s61'); p('s_lshl_b32 s14, s10, 3'); p('s_add_u32 s9, s9, s14'); p(f's_add_u32 s9, s9, {F2_OFF}')
        p('v_mov_b32 v30, 0')
        p('s_waitcnt vmcnt(0) lgkmcnt(0)')
        p('v_mov_b32 v28, s24'); p('v_mov_b32 v29, s25')
        p('s_mov_b64 exec, 1')
        p('buffer_store_dwordx2 v[28:29], v30, s[52:55], s9 offen sc1')
        p('s_mov_b64 exec, -1')
    p('s_barrier')
    nw = 0
    for _ in range(N1): wo_issue(nw); nw += 1
    if not HALF: p('s_barrier')
    for _ in range(N2): wo_issue(nw); nw += 1
    p('s_cmp_lg_u32 s3, 4')
    p('s_cbranch_scc1 L_nopoll')
    poll_flags(p, 'L_pf1', 14, 16, 's15', 's[20:21]')
    p('L_nopoll:')
    p('s_barrier      ; B_12')
    dstamp(p, 6)
    no = 0
    for c in range(-1, 15):
        def allowed():
            cand = []
            if no < 16 and (no < NOS or no - NOS <= c - 1): cand.append(('o', no))
            if nw < 16 and (nw < NWS or nw - NWS <= c - 1): cand.append(('w', nw))
            cand.sort(key=lambda x: (x[1], x[0] == 'o'))
            return cand
        while True:
            done = (c + 1) in endo and (c + 1) in endw
            if done and cnt[0] - max(endo[c+1], endw[c+1]) >= LAG2: break
            cand = allowed()
            if not cand:
                assert done; break
            if cand[0][0] == 'o': o_issue(no); no += 1
            else: wo_issue(nw); nw += 1
        p(f's_waitcnt vmcnt({cnt[0] - max(endo[c+1], endw[c+1])})')
        p(f's_barrier      ; C_{c}')
        if c == -1: dstamp(p, 7)
        if c == CPF3:
            p('s_getpc_b64 s[22:23]')
            p('L_pc3:')
            p('s_lshl_b32 s9, s5, 2'); p('s_add_u32 s9, s9, s11'); p('s_and_b32 s9, s9, 31'); p('s_lshl_b32 s9, s9, 6')
            p('s_min_u32 s9, s9, L_end-L_tail2')
            p('s_add_u32 s9, s9, L_tail2-L_pc3')
            p('s_add_u32 s22, s22, s9'); p('s_addc_u32 s23, s23, 0')
            p('s_load_dword s24, s[22:23], 0x0')
    assert no == 16 and nw == 16
    dstamp(p, 8)
    flush_stamps(p, 9, 16, 4, 'L_fsL')
    p('s_endpgm')
    p('L_ld_idle:')
    p('s_barrier      ; B_11a')
    p('s_endpgm')

    p('L_compute:')
    G = lambda g: 16 + 4*g
    ACC = lambda t, qt: G(t*3+qt)
    AF = lambda st, t: G(24 + st*8 + t)
    BF = lambda st, qt: G(40 + st*3 + qt)
    AADR = 240; BADR = 248
    p('v_bfe_u32 v5, v2, 2, 2')
    p('v_and_b32 v6, 3, v2')
    p('v_and_b32 v7, 1, v3')
    p('v_lshl_add_u32 v7, v7, 2, v5')
    p('v_lshlrev_b32 v7, 1, v7')
    p('v_lshrrev_b32 v8, 1, v6')
    p('v_xor_b32 v7, v7, v8')
    p('v_lshlrev_b32 v7, 4, v7')
    p('v_and_b32 v8, 1, v6')
    p('v_lshl_add_u32 v7, v8, 3, v7')
    p('v_lshl_add_u32 v8, v3, 3, v5')
    p('v_lshl_add_u32 v8, v8, 8, v7')
    p(f'v_add_u32 v8, {WS_ + 16384}, v8')
    for t in range(8):
        p(f'v_xor_b32 v{AADR+t}, {t<<5}, v8')
    p('v_lshrrev_b32 v8, 1, v4')
    p('v_xor_b32 v8, v8, v3')
    p('v_lshlrev_b32 v8, 4, v8')
    p('v_lshl_add_u32 v8, v4, 7, v8')
    p('s_mul_i32 s13, s3, 6144')
    p(f's_add_u32 s13, s13, {XS + 24576}')
    p(f'v_add_u32 v{BADR}, s13, v8')
    p(f'v_xor_b32 v{BADR+1}, 64, v{BADR}')
    p('s_cmp_lt_u32 s3, 2')
    p(f's_mov_b32 s13, {KB1}'); p(f's_mov_b32 s14, {VB1}')
    p(f's_cselect_b32 s13, {KB0}, s13'); p(f's_cselect_b32 s14, {VB0}, s14')
    p('v_lshrrev_b32 v8, 1, v3')
    p('v_xor_b32 v8, v8, v4')
    p('v_lshlrev_b32 v8, 4, v8')
    p('v_lshl_add_u32 v8, v4, 8, v8')
    p('v_and_b32 v9, 1, v3')
    p('v_lshl_add_u32 v8, v9, 3, v8')
    p('v_add_u32 v10, s13, v8')
    p('v_lshl_add_u32 v8, v3, 2, v5')
    p('v_lshl_add_u32 v6, v8, 8, v7')
    p('v_add_u32 v11, s14, v6')
    p('v_lshlrev_b32 v9, 4, v2')
    for i in range(4): p(f'v_mov_b32 v{12+i}, 0x3f803f80')
    for i in range(96): p(f'v_mov_b32 v{16+i}, 0')
    p('s_mul_i32 s62, s66, 192'); p('s_mul_i32 s14, s8, 12'); p('s_add_u32 s62, s62, s14')
    p('s_mul_i32 s14, s3, 3'); p('s_add_u32 s62, s62, s14'); p('s_lshl_b32 s62, s62, 10')
    p(f's_mul_i32 s68, s4, {GST}'); p('s_add_u32 s62, s62, s68'); p(f's_add_u32 s62, s62, {O_OFF}')
    p(f's_mov_b32 s63, {f32bits(LOG2E_SCALE):#x}')
    p('s_mov_b32 s50, s63'); p('s_mov_b32 s51, s63')
    p('s_lshl_b32 s69, s8, 2'); p('s_add_u32 s69, s69, s3')
    p('s_lshl_b32 s69, s69, 3'); p('s_add_u32 s69, s69, s66'); p('s_lshl_b32 s69, s69, 3'); p('s_add_u32 s69, s69, s68'); p(f's_add_u32 s69, s69, {F1_OFF}')
    p('s_waitcnt lgkmcnt(0)')
    srd(p, 52, 34, 35, WS_SIZE)
    p('s_add_u32 s98, s96, 0x4000000'); p('s_addc_u32 s99, s97, 0')
    stamp_setup(p, 34, 35)
    p('s_mov_b64 s[34:35], s[32:33]')
    p('s_load_dwordx2 s[20:21], s[0:1], 80')
    if CPF:
        p('s_cmp_lg_u32 s3, 1')
        p('s_cbranch_scc1 L_nocpf')
        p('s_getpc_b64 s[70:71]')
        p('L_pc:')
        p(f's_sub_u32 s70, s70, L_pc-{K1}')
        p('s_subb_u32 s71, s71, 0')
        p('s_mul_i32 s9, s5, 768')
        p(f's_min_u32 s9, s9, L_end-{K1}-640')
        p('s_add_u32 s70, s70, s9')
        p('s_addc_u32 s71, s71, 0')
        for i in range(6): p(f's_load_dword s{24+i}, s[70:71], {i*128}')
        p('L_nocpf:')
    p('s_waitcnt lgkmcnt(0)')
    srd(p, 44, 20, 21, 8*96*1280*2)
    if TOUCH:
        p('s_cmp_lg_u32 s3, 2')
        p('s_cbranch_scc1 L_notouch')
        p('v_and_b32 v250, 1, v2')
        p(f'v_mul_u32_u24 v251, {GT_OFF}, v250')
        p(f'v_mul_u32_u24 v252, {RT_OFF}, v250')
        p(f'v_mul_u32_u24 v253, {8*96*1280*2 - 128}, v250')
        p('s_mul_i32 s9, s6, 32'); p('s_add_u32 s9, s9, s5'); p(f's_mul_i32 s9, s9, {RST}'); p(f's_add_u32 s9, s9, {INBOX}')
        p('s_mov_b64 exec, 3')
        p('buffer_load_dword v254, v251, s[52:55], s68 offen nt')
        p('buffer_load_dword v254, v252, s[52:55], s9 offen nt')
        p('buffer_load_dword v254, v253, s[44:47], 0 offen nt')
        p('s_mov_b64 exec, -1')
        p('L_notouch:')
    p2_ids(p)
    p('s_and_b32 s12, s3, 1'); p('s_lshl_b32 s12, s12, 2'); p('s_add_u32 s12, s12, s10')
    p('s_mul_i32 s61, s6, 32'); p('s_add_u32 s61, s61, s5'); p(f's_mul_i32 s61, s61, {RST}'); p(f's_add_u32 s61, s61, {INBOX}')
    for i in (1, 2, 3, 0):
        d = 35 + i if i else 39
        p(f's_xor_b32 s{d}, s10, {i}'); p(f's_lshl_b32 s{d}, s{d}, 2'); p(f's_add_u32 s{d}, s{d}, s3'); p(f's_mul_i32 s{d}, s{d}, {3*SZ}')
        p(f's_add_u32 s{d}, s{d}, s61'); p(f's_add_u32 s{d}, s{d}, {I_OFF + (i-1 if i else 0)*SZ}')
    p('s_lshl_b32 s40, s3, 7'); p('s_add_u32 s40, s40, s61'); p(f's_add_u32 s40, s40, {F2_OFF}')
    p('s_lshl_b32 s41, s66, 3'); p('s_add_u32 s41, s41, s12'); p('s_mul_i32 s41, s41, 40960')
    p('s_mul_i32 s13, s6, 1280'); p('s_add_u32 s41, s41, s13'); p('s_lshl_b32 s13, s67, 8'); p('s_add_u32 s41, s41, s13')
    p('s_lshr_b32 s13, s3, 1'); p('s_lshl_b32 s13, s13, 7'); p('s_add_u32 s41, s41, s13')
    p('s_lshl_b32 s42, s10, 3'); p('s_add_u32 s42, s42, s40')
    p('s_add_u32 s43, s39, 4096')
    p('s_add_u32 s48, s39, 8192')
    if SENT == 1:
        p('s_cmp_ge_u32 s5, 30')
        p('s_cbranch_scc1 L_noclr')
        for i in range(4): p(f'v_mov_b32 v{200+i}, -1')
        for k in range(3 * SZ // 1024):
            p(f'buffer_store_dwordx4 v[200:203], v9, s[52:55], s{(39, 43, 48)[k//4]} offen offset:{(k%4)*1024} sc1')
        p('L_noclr:')
    def reads(st, ks):
        L = [f'ds_read_b128 {vr(BF(st,qt))}, v{BADR+ks} offset:{qt*2048}' for qt in range(3)]
        for t in range(8):
            L.append(f'ds_read_b64_tr_b16 {vr(AF(st,t),2)}, v{AADR+t} offset:{ks*8192}')
            L.append(f'ds_read_b64_tr_b16 {vr(AF(st,t)+2,2)}, v{AADR+t} offset:{ks*8192+1024}')
        return L
    def mfmas(st):
        return [f'{MF} {vr(ACC(t,qt))}, {vr(AF(st,t))}, {vr(BF(st,qt))}, {vr(ACC(t,qt))}' for t in range(8) for qt in (range(3) if not (SNAKE and t & 1) else (2, 1, 0))]
    p('s_mov_b32 s14, 1')
    p('s_mov_b32 s15, 0')
    p('s_barrier')
    dstamp(p, 1)
    pro = reads(0, 0)
    for x in pro: p(x)
    _, pend0 = auto_lgkm(pro)
    scal = ['s_add_u32 s14, s14, 1', 's_cmp_eq_u32 s14, 3', 's_cselect_b32 s61, -2, 1', 's_cselect_b32 s14, 0, s14',
            's_mul_i32 s64, s61, 16384', 's_mul_i32 s65, s61, 24576', 's_add_u32 s15, s15, 1', 's_cmp_eq_u32 s15, 10']
    m0_ = mfmas(0); m1 = mfmas(1)
    H1 = spread(m0_[:19], reads(1, 1), per=PER1) + spread(m0_[19:], scal, per=2)
    upd = [f'v_add_u32 v{BADR+i}, s65, v{BADR+i}' for i in range(2)] + [f'v_add_u32 v{AADR+t}, s64, v{AADR+t}' for t in range(8)]
    H2a = interleave(m1[:NA], upd, per=2) + ['s_waitcnt lgkmcnt(0)', 's_barrier']
    H2b = spread(m1[NA:], reads(0, 0), per=PER1)
    if LOWD:
        H1 = reads(1, 1) + (scal + m0_ if LOWD == 2 else spread(m0_, scal))
        H2a = (m1 + upd if LOWD == 2 else interleave(m1, upd, per=1)) + ['s_barrier']
        H2b = reads(0, 0)
    if BURST:
        r1 = reads(1, 1); r0 = reads(0, 0)
        H1 = r1[:BURST] + spread(m0_[:19], r1[BURST:]) + spread(m0_[19:], scal, per=2)
        H2b = r0[:BURST] + spread(m1[NA:], r0[BURST:])
    if XNOP:
        def addn(L):
            o_ = []; c = 0
            for x in L:
                o_.append(x)
                if x.startswith('v_mfma'):
                    c += 1
                    if c % XNOP == 0: o_.append('s_nop 3')
            return o_
        H1 = addn(H1); H2b = addn(H2b)
    h1, pend = auto_lgkm(H1, pend0)
    h2a, pend_a = auto_lgkm(H2a, pend)
    h2b, _ = auto_lgkm(H2b, pend_a)
    p('L_loop:')
    for x in h1: p(x)
    p('s_cbranch_scc1 L_tail')
    for x in h2a + h2b: p(x)
    p('s_branch L_loop')
    p('L_tail:')
    KFg = list(range(24, 32)) + [40, 41, 42] + list(range(46, 56)) + [32, 33, 34]
    KF = lambda kt, u: G(KFg[kt*4+u])
    QB = lambda u, qt: ACC(2*u, qt)
    Smap = {}
    free_early = [35, 36, 37, 38, 39, 43, 44, 45]
    for kt in range(6): Smap[(kt, 0)] = free_early[kt]
    oddq = lambda qt: [(2*u+1)*3+qt for u in range(4)]
    l1 = oddq(0) + oddq(1)[:2]
    l2 = oddq(1)[2:] + oddq(2)
    for kt in range(6): Smap[(kt, 1)] = l1[kt]; Smap[(kt, 2)] = l2[kt]
    S = lambda kt, qt: G(Smap[(kt, qt)])
    kaddr = [f'v_xor_b32 v{AADR+m}, {m<<5}, v10' for m in range(8)]
    def kread(kt, u):
        return [f'ds_read_b64 {vr(KF(kt,u),2)}, v{AADR+2*u} offset:{kt*4096}', f'ds_read_b64 {vr(KF(kt,u)+2,2)}, v{AADR+2*u+1} offset:{kt*4096}']
    kr = [x for kt in range(6) for u in range(4) for x in kread(kt, u)]
    qcvt = lambda qt: [x for u in range(4) for x in cvt4(QB(u, qt), ACC(2*u, qt), ACC(2*u+1, qt))]
    T = ['s_memrealtime s[70:71]'] + interleave(m1[:NAT], kaddr, per=2) + ['s_waitcnt lgkmcnt(0)', 's_barrier']
    T += ['v_mov_b32 v254, s70', 'v_mov_b32 v255, s71', 'v_mov_b32 v253, 0']
    if SENT == 1:
        T += ['s_waitcnt vmcnt(0)', 's_mov_b64 exec, 1', 'buffer_store_dwordx2 v[254:255], v253, s[52:55], s42 offen sc1', 's_mov_b64 exec, -1']
    if STAMPS: T.append(f'{"s_memtime" if CLK else "s_memrealtime"} s[76:77]')
    o, rest = merge(m1[NAT:], kr[:42])
    T += o + rest + kr[42:]
    def smf(qt):
        return [f'{MF} {vr(S(kt,qt))}, {vr(KF(kt,u))}, {vr(QB(u,qt))}, {"0" if u == 0 else vr(S(kt,qt))}' for u in range(4) for kt in range(6)]
    def softmax(qt):
        regs = [S(kt, qt) + r for kt in range(6) for r in range(4)]
        M = 250; Tm = 251; M2 = 249
        L = [f'v_max3_f32 v{M}, v{regs[0]}, v{regs[1]}, v{regs[2]}', f'v_max3_f32 v{M2}, v{regs[3]}, v{regs[4]}, v{regs[5]}']
        for i in range(6, 22, 4):
            L.append(f'v_max3_f32 v{M}, v{M}, v{regs[i]}, v{regs[i+1]}')
            L.append(f'v_max3_f32 v{M2}, v{M2}, v{regs[i+2]}, v{regs[i+3]}')
        L.append(f'v_max3_f32 v{M}, v{M}, v{regs[22]}, v{regs[23]}')
        L.append(f'v_max_f32 v{M}, v{M}, v{M2}')
        L += [f'v_mov_b32 v{Tm}, v{M}', f'v_permlane16_swap_b32 v{M}, v{Tm}', f'v_max_f32 v{M}, v{M}, v{Tm}',
              f'v_mov_b32 v{Tm}, v{M}', f'v_permlane32_swap_b32 v{M}, v{Tm}', f'v_max_f32 v{M}, v{M}, v{Tm}',
              f'v_mul_f32 v{M}, s63, v{M}']
        for u in range(3):
            rr = regs[8*u:8*u+8]
            if PK & 1: L += [f'v_pk_fma_f32 v[{r}:{r+1}], v[{r}:{r+1}], s[50:51], v[{M}:{M+1}] op_sel_hi:[1,0,0] neg_lo:[0,0,1] neg_hi:[0,0,1]' for r in rr[::2]]
            else: L += [f'v_fma_f32 v{r}, v{r}, s63, -v{M}' for r in rr]
            L += [f'v_exp_f32 v{r}, v{r}' for r in rr]
            L += cvt4(S(2*u, qt), S(2*u, qt), S(2*u+1, qt))
        return L
    PB = lambda u, qt: S(2*u, qt)
    VF = lambda t, u: G(KFg[t*3+u])
    T += qcvt(0)
    o, rest = merge(smf(0), qcvt(1) + qcvt(2))
    T += o + rest
    sm0 = softmax(0)
    m12 = smf(1) + smf(2)
    o, rest0 = merge(m12[4:], sm0)
    T += m12[:4] + o + rest0
    T += [f'v_xor_b32 v{AADR+t}, {t<<5}, v11' for t in range(8)]
    t2, _ = auto_lgkm(T, pend)
    for x in t2: p(x)
    dstamp(p, 3)
    p('s_barrier')
    dstamp(p, 4)
    U = []
    for t in range(8):
        for u in range(3):
            U.append(f'ds_read_b64_tr_b16 {vr(VF(t,u),2)}, v{AADR+t} offset:{u*8192}')
            U.append(f'ds_read_b64_tr_b16 {vr(VF(t,u)+2,2)}, v{AADR+t} offset:{u*8192+4096}')
    qbg = [(2*u)*3+qt for u in range(4) for qt in range(3)]
    Og = {0: qbg[:9], 1: qbg[9:] + [44, 45] + [Smap[(1,0)], Smap[(3,0)], Smap[(5,0)]] + [Smap[(1,1)]]}
    Og[2] = [Smap[(0,0)], Smap[(2,0)], Smap[(4,0)], Smap[(3,1)], Smap[(5,1)], Smap[(1,2)], Smap[(3,2)], Smap[(5,2)], Smap[(0,1)]]
    OA = lambda t, qt: G(Og[qt][t])
    def pv(qt):
        L = []
        for u in range(3):
            L.append(f'{MF} {vr(OA(8,qt))}, v[12:15], {vr(PB(u,qt))}, {"0" if u == 0 else vr(OA(8,qt))}')
        for t2_ in range(0, 8, 2):
            for u in range(3):
                for t in (t2_, t2_+1):
                    L.append(f'{MF} {vr(OA(t,qt))}, {vr(VF(t,u))}, {vr(PB(u,qt))}, {"0" if u == 0 else vr(OA(t,qt))}')
        return L
    def onorm(qt):
        l = OA(8, qt)
        L = [f'v_rcp_f32 v{l}, v{l}']
        for v in range(4):
            a0 = OA(2*v, qt); a1 = OA(2*v+1, qt)
            L += [f'v_mul_f32 v{a+r}, v{a+r}, v{l}' for a in (a0, a1) for r in range(4)]
            L += cvt4(a0, a0, a1)
            L.append(f's_add_u32 s14, s62, {v*48*1024}')
            L.append(f'buffer_store_dwordx4 {vr(a0)}, v9, s[52:55], s14 offen offset:{qt*1024} {OFL}')
        return L
    sm1 = softmax(1); sm2 = softmax(2)
    if HALF:
        Lg = [44, 45, Smap[(1,0)]]
        Bg = [Smap[(3,0)], Smap[(5,0)], Smap[(1,1)], Smap[(3,1)], Smap[(5,1)], Smap[(1,2)], Smap[(3,2)], Smap[(5,2)]] + KFg[:4]
        OH = lambda t, qt: G(qbg[qt*4+t]) if t < 4 else G(Bg[qt*4+t-4])
        def pvh(h, qt):
            L = []
            if h == 0:
                l = G(Lg[qt])
                L += [f'{MF} {vr(l)}, v[12:15], {vr(PB(u,qt))}, {"0" if u == 0 else vr(l)}' for u in range(3)]
            for t2_ in (4*h, 4*h+2):
                for u in range(3):
                    for t in (t2_, t2_+1):
                        L.append(f'{MF} {vr(OH(t,qt))}, {vr(VF(t,u))}, {vr(PB(u,qt))}, {"0" if u == 0 else vr(OH(t,qt))}')
            return L
        def nrm(h, qt):
            l = G(Lg[qt])
            L = [f'v_rcp_f32 v{l}, v{l}'] if h == 0 else []
            for v in (2*h, 2*h+1):
                a0 = OH(2*v, qt); a1 = OH(2*v+1, qt)
                if PK & 2: L += [f'v_pk_mul_f32 v[{a+r}:{a+r+1}], v[{a+r}:{a+r+1}], v[{l}:{l+1}] op_sel_hi:[1,0]' for a in (a0, a1) for r in (0, 2)]
                else: L += [f'v_mul_f32 v{a+r}, v{a+r}, v{l}' for a in (a0, a1) for r in range(4)]
                L += cvt4(a0, a0, a1)
                L.append(f's_add_u32 s14, s62, {v*48*1024}')
                L.append(f'buffer_store_dwordx4 {vr(a0)}, v9, s[52:55], s14 offen offset:{qt*1024} {OFL}')
            return L
        flagA = lambda k: [f's_waitcnt vmcnt({k})', 's_mov_b64 exec, 1', 'buffer_store_dwordx2 v[254:255], v253, s[52:55], s69 offen sc1', 's_mov_b64 exec, -1']
        vrdB = U[24:]; U = U[:24]
        o, rest = merge(pvh(0, 0), sm1); U += o + rest
        o, rest = merge(pvh(0, 1), sm2); U += o + rest
        o, rest = merge(pvh(0, 2), nrm(0, 0) + nrm(0, 1)); U += o + vrdB + rest
        o, rest = merge(pvh(1, 0), nrm(0, 2)); U += o + rest
        o, rest = merge(pvh(1, 1), nrm(1, 0)); U += o + rest
        if FAPOS == 1: U += flagA(2)
        o, rest = merge(pvh(1, 2), nrm(1, 1)); U += o + rest
        if FAPOS == 2: U += flagA(4)
        U += nrm(1, 2)
        if FAPOS == 3: U += flagA(6)
    if not HALF:
        o, rest = merge(pv(0), sm1)
        U += o + rest
    if HALF: pass
    elif OEARLY:
        o, rest = merge(pv(1), onorm(0) + sm2)
        U += o + rest
        o, rest = merge(pv(2), onorm(1))
        U += o + rest
    else:
        o, rest = merge(pv(1), sm2)
        U += o + rest
        o, rest = merge(pv(2), onorm(0) + onorm(1))
        U += o + rest
    if not HALF: U += onorm(2)
    u2, _ = auto_lgkm(U, [])
    for x in u2: p(x)
    dstamp(p, 5)
    p('s_barrier')
    A2 = lambda i, t: 16 + (i*4+t)*4
    FA = lambda st, t: 80 + st*32 + t*4
    FBq = lambda st, i: 96 + st*32 + i*4
    p('s_lshr_b32 s13, s3, 1'); p('s_lshl_b32 s13, s13, 7')
    p(f'v_add_u32 v8, {WO_L}, v6')
    p('v_xor_b32 v8, s13, v8')
    for t in range(4): p(f'v_xor_b32 v{AADR+t}, {t<<5}, v8')
    if UNR:
        for t in range(4): p(f'v_add_u32 v{232+t}, 0x10000, v{AADR+t}')
    p('s_lshl_b32 s13, s12, 10')
    p(f'v_add_u32 v8, s13, v9')
    for i in range(4): p(f'v_xor_b32 v{AADR+4+i}, {i<<10}, v8')
    p('v_lshlrev_b32 v248, 3, v2')
    p('v_mul_u32_u24 v7, 2560, v4')
    p('v_lshl_add_u32 v7, v3, 3, v7')
    def lastflag():
        p('s_waitcnt vmcnt(0)')
        p('s_mov_b64 exec, 1')
        p(f'buffer_store_dwordx2 v[254:255], v253, s[52:55], s69 offen offset:{1024 if HALF else 0} sc1')
        p('s_mov_b64 exec, -1')
        dstamp(p, 6)
    if not HALF:
        lastflag()
        p('s_cmp_ge_u32 s5, 30')
        p('s_cbranch_scc1 L_cdone')
        p('s_barrier')
    else:
        p('s_cmp_lt_u32 s5, 30')
        p('s_cbranch_scc1 L_act')
        lastflag()
        p('s_branch L_cdone')
        p('L_act:')
    if SENT == 2:
        for i in range(4): p(f'v_mov_b32 v{200+i}, -1')
        for k in range(3 * SZ // 1024):
            p(f'buffer_store_dwordx4 v[200:203], v9, s[52:55], s{(39, 43, 48)[k//4]} offen offset:{(k%4)*1024} sc1')
    p('s_barrier')
    if HALF: lastflag()
    if SENT in (1, 3):
        p('s_mov_b64 exec, 15')
        p('buffer_load_dwordx2 v[250:251], v248, s[52:55], s40 offen sc1')
        p('s_mov_b64 exec, -1')
    SR = 144
    if TAGS:
        p('s_mov_b32 s13, 0x01010101')
        p('v_mul_lo_u32 v236, v2, s13')
        p('v_add_u32 v237, s96, v236')
        p('v_add_u32 v236, s70, v236')
        for k in range(9): p(f'v_mov_b32 v{SR+4*k+3}, v236')
        for i in range(3): p(f'v_mov_b32 v{SR+12*i+10}, 0')
    for i in range(64): p(f'v_mov_b32 v{16+i}, 0')
    def reads2(st, kk, stage=0):
        oo = (stage % NOS) * 16384 + kk*8192
        wo_ = (stage % NWS) * 16384 + kk*8192
        ab = AADR if wo_ < 65536 else 232
        wo_ &= 0xffff
        L = [f'ds_read_b128 {vr(FBq(st,0))}, v{AADR+4} offset:{oo}']
        for t in range(4):
            L.append(f'ds_read_b64_tr_b16 {vr(FA(st,t),2)}, v{ab+t} offset:{wo_}')
            L.append(f'ds_read_b64_tr_b16 {vr(FA(st,t)+2,2)}, v{ab+t} offset:{wo_+4096}')
        L += [f'ds_read_b128 {vr(FBq(st,i))}, v{AADR+4+i} offset:{oo}' for i in range(1, 4)]
        if DIAG: L = [L[k] for k in (0, 1, 2, 3, 4, 9, 5, 6, 10, 7, 8, 11)]
        return L
    DORD = [(0,0),(0,1),(1,1),(1,0),(0,2),(1,2),(2,2),(2,1),(2,0),(0,3),(1,3),(2,3),(3,3),(3,2),(3,1),(3,0)]
    def mfd(st): return [f'{MF} {vr(A2(i,t))}, {vr(FA(st,t))}, {vr(FBq(st,i))}, {vr(A2(i,t))}' for i, t in DORD]
    def mf2(st):
        return [f'{MF} {vr(A2(i,t))}, {vr(FA(st,t))}, {vr(FBq(st,i))}, {vr(A2(i,t))}' for i in range(4) for t in (range(4) if not (SNAKE and i & 1) else (3, 2, 1, 0))]
    p('s_mov_b32 s14, 0')
    p('s_mov_b32 s15, 0')
    p('s_barrier')
    dstamp(p, 7)
    pro = reads2(0, 0)
    for x in pro: p(x)
    _, pend0 = auto_lgkm(pro)
    p('s_mov_b32 s13, 0')
    scal = ['s_add_u32 s14, s14, 1', f's_cmp_eq_u32 s14, {NWS}', f's_cselect_b32 s61, {1-NWS}, 1', 's_cselect_b32 s14, 0, s14', 's_lshl_b32 s64, s61, 14',
            's_add_u32 s13, s13, 1', f's_cmp_eq_u32 s13, {NOS}', f's_cselect_b32 s61, {1-NOS}, 1', 's_cselect_b32 s13, 0, s13', 's_lshl_b32 s65, s61, 14',
            's_add_u32 s15, s15, 1', 's_cmp_eq_u32 s15, 16']
    if ORC: scal = scal[-2:]
    n0 = mf2(0); n1 = mf2(1)
    H1 = spread(n0[:12], reads2(1, 1)) + spread(n0[12:], scal, per=3)
    upd = [f'v_add_u32 v{AADR+4+i}, s65, v{AADR+4+i}' for i in range(4)] + [f'v_add_u32 v{AADR+t}, s64, v{AADR+t}' for t in range(4)]
    if ORC: upd = upd[:ORC-1]
    H2a = interleave(n1[:4], upd, per=2) + ['s_waitcnt lgkmcnt(0)', 's_barrier']
    H2b = spread(n1[4:], reads2(0, 0))
    h1, pend = auto_lgkm(H1, pend0)
    h2a, pend_a = auto_lgkm(H2a, pend)
    h2b, _ = auto_lgkm(H2b, pend_a)
    if UNR:
        import math
        per_ = min(NWS * NOS // math.gcd(NWS, NOS), 16)
        exit_at = 15 % per_
        npass = 15 // per_
        p('L_loop2:')
        for j in range(per_):
            sc = []
            if j == exit_at and per_ < 16: sc = [f's_cmp_eq_u32 s15, {npass}']
            if DIAG:
                d0 = mfd(0); r_ = reads2(1, 1, j)
                seq_ = ['s_waitcnt lgkmcnt(6)'] + spread(d0[:4], r_[:4]) + ['s_waitcnt lgkmcnt(7)'] + spread(d0[4:9], r_[4:9]) + ['s_waitcnt lgkmcnt(9)'] + spread(d0[9:12], r_[9:]) + spread(d0[12:], sc)
            else: seq_ = spread(n0[:12], reads2(1, 1, j)) + spread(n0[12:], sc)
            hh1, pend = auto_lgkm(seq_, pend0)
            for x in hh1: p(x)
            if j == exit_at:
                if per_ < 16: p('s_cbranch_scc1 L_tail2')
                else: break
            sc = ['s_add_u32 s15, s15, 1'] if j == per_ - 1 else []
            d1 = mfd(1) if DIAG else n1
            hh2, _ = auto_lgkm((['s_waitcnt lgkmcnt(6)'] if DIAG else []) + spread(d1[:NB2], sc) + ['s_waitcnt lgkmcnt(0)', 's_barrier'] + spread(d1[NB2:], reads2(0, 0, j + 1)), pend)
            for x in hh2: p(x)
        if per_ < 16: p('s_branch L_loop2')
    else:
        p('L_loop2:')
        for x in h1: p(x)
        p('s_cbranch_scc1 L_tail2')
        for x in h2a + h2b: p(x)
        if SENT == 2:
            p('s_and_b32 s61, s15, 7')
            p('s_cmp_lg_u32 s61, 3')
            p('s_cbranch_scc1 L_loop2')
            p('s_cmp_eq_u32 s15, 3')
            p('s_cbranch_scc0 L_ev11')
            p('s_waitcnt vmcnt(0)')
            p('s_mov_b64 exec, 1')
            p('buffer_store_dwordx2 v[254:255], v253, s[52:55], s42 offen sc1')
            p('s_mov_b64 exec, -1')
            p('s_branch L_loop2')
            p('L_ev11:')
            p('s_mov_b64 exec, 15')
            p('buffer_load_dwordx2 v[250:251], v248, s[52:55], s40 offen sc1')
            p('s_mov_b64 exec, -1')
        p('s_branch L_loop2')
    p('L_tail2:')
    last = [n1[i*4+t] for i in (1, 2, 3, 0) for t in range(4)]
    chk = []
    if SENT:
        chk = ['s_waitcnt vmcnt(0)', 's_mov_b64 exec, 15', 'v_cmp_gt_u64 vcc, s[96:97], v[250:251]', 'v_cmp_lt_u64 s[100:101], s[98:99], v[250:251]',
               's_mov_b64 exec, -1', 's_or_b64 vcc, vcc, s[100:101]']
        for x in chk: p(x)
        p('s_cbranch_scc0 L_rdy')
        poll_flags(p, 'L_pf2', 248, 250, 's40', '15')
        p('L_rdy:')
    def send(i):
        L = []
        if PF32:
            L += [f'buffer_store_dwordx4 {vr(A2(i,t))}, v9, s[52:55], s{35+i} offen offset:{t*1024} {PFL}' for t in range(4)]
        elif TAGS:
            b0 = SR + 12*(i-1)
            for k in range(8):
                a = A2(i, k >> 1) + 2*(k & 1)
                L.append(f'v_cvt_pk_bf16_f32 v{b0 + 4*(k//3) + k%3}, v{a}, v{a+1}')
                if k in (2, 5, 7):
                    L.append(f'buffer_store_dwordx4 {vr(b0 + 4*(k//3))}, v9, s[52:55], s{35+i} offen offset:{(k//3)*1024} {PFL}')
        else:
            for hf in range(2):
                L += cvt4(A2(i, 2*hf), A2(i, 2*hf), A2(i, 2*hf+1))
                L.append(f'buffer_store_dwordx4 {vr(A2(i,2*hf))}, v9, s[52:55], s{35+i} offen offset:{hf*1024} {PFL}')
        return L
    seq = last[:8] + spread(last[8:12], send(1), per=3) + spread(last[12:], send(2), per=3) + send(3)
    tl, _ = auto_lgkm(seq, pend)
    for x in tl: p(x)
    dstamp(p, 8)
    R = 80
    nld = 3 * SZ // 1024
    def loads():
        for k in range(nld):
            p(f'buffer_load_dwordx4 {vr(R+4*k)}, v9, s[52:55], s{(39, 43, 48)[k//4]} offen offset:{(k%4)*1024} sc1')
    if TAGS:
        p(f's_mov_b32 s9, {SPIN_MAX}')
        p('s_mov_b32 s13, 0x100000')
        if TAGS == 2:
            p('v_mul_u32_u24 v238, 3072, v2')
            p('s_mov_b64 exec, 7')
            p('L_lp:')
            p('buffer_load_dword v250, v238, s[52:55], s39 offen offset:2060 sc1')
            p('s_waitcnt vmcnt(0)')
            p('v_subrev_u32 v250, s96, v250')
            p('v_cmp_le_u32 vcc, s13, v250')
            p('s_cbranch_vccz L_lp_ok')
            p(f's_sleep {PSLEEP}')
            p('s_sub_u32 s9, s9, 1')
            p('s_cmp_gt_u32 s9, 1')
            p('s_cbranch_scc1 L_lp')
            p('L_lp_ok:')
            p('s_mov_b64 exec, -1')
        p('L_rx:')
        loads()
        for i in range(3):
            p(f's_waitcnt vmcnt({6 - 3*i})')
            t0 = R + 12*i + 3
            p(f'v_xor_b32 v250, v{t0}, v{t0+4}')
            p(f'v_xor_b32 v251, v{t0}, v{t0+8}')
            if i == 0:
                p('v_or_b32 v252, v250, v251'); p(f'v_sub_u32 v249, v{t0}, v237')
            else:
                p('v_or3_b32 v252, v252, v250, v251'); p(f'v_sub_u32 v250, v{t0}, v237'); p('v_max_u32 v249, v249, v250')
        p('v_cmp_ne_u32 vcc, 0, v252')
        p('v_cmp_le_u32 s[100:101], s13, v249')
        p('s_or_b64 vcc, vcc, s[100:101]')
        p('s_cbranch_scc0 L_rx_ok')
        if SSLEEP: p(f's_sleep {SSLEEP}')
        p('s_sub_u32 s9, s9, 1')
        p('s_cmp_lg_u32 s9, 0')
        p('s_cbranch_scc1 L_rx')
        p('L_rx_ok:')
        dstamp(p, 9); dstamp(p, 10)
    elif SENT:
        p(f's_mov_b32 s9, {SPIN_MAX}')
        p('L_rx:')
        loads()
        n = nld * 4
        for k in range(nld):
            p(f's_waitcnt vmcnt({nld-1-k})')
            b_ = R + 4*k
            if k == 0:
                p(f'v_max3_u32 v252, v{b_}, v{b_+1}, v{b_+2}'); p(f'v_max_u32 v252, v252, v{b_+3}')
            else:
                p(f'v_max3_u32 v252, v252, v{b_}, v{b_+1}'); p(f'v_max3_u32 v252, v252, v{b_+2}, v{b_+3}')
        p('v_cmp_eq_u32 vcc, -1, v252')
        p('s_cbranch_vccz L_rx_ok')
        if SSLEEP: p(f's_sleep {SSLEEP}')
        p('s_sub_u32 s9, s9, 1')
        p('s_cmp_lg_u32 s9, 0')
        p('s_cbranch_scc1 L_rx')
        p('L_rx_ok:')
        dstamp(p, 9); dstamp(p, 10)
    else:
        p('s_waitcnt vmcnt(0)')
        p('s_mov_b64 exec, 1')
        p('buffer_store_dwordx2 v[254:255], v253, s[52:55], s42 offen sc1')
        dstamp(p, 9)
        p('s_lshl_b32 s14, 1, s10'); p('s_xor_b32 s14, s14, 15'); p('s_mov_b32 s15, 0')
        poll_flags(p, 'L_pf2', 248, 250, 's40', 's[14:15]')
        dstamp(p, 10)
        loads()
    for i in range(3):
        if PF32:
            if not SENT: p(f's_waitcnt vmcnt({nld - 4*(i+1)})')
            for t in range(4):
                for r in range(4):
                    p(f'v_add_f32 v{A2(0,t)+r}, v{A2(0,t)+r}, v{R+16*i+4*t+r}')
        else:
            if not SENT and not TAGS: p(f's_waitcnt vmcnt({nld - 2*(i+1)})')
            for t in range(4):
                for r2 in range(2):
                    src = R + 8*i + 2*t + r2
                    if TAGS:
                        k = 2*t + r2; src = R + 12*i + 4*(k//3) + k%3
                    p(f'v_lshlrev_b32 v250, 16, v{src}')
                    p(f'v_and_b32 v251, 0xffff0000, v{src}')
                    p(f'v_add_f32 v{A2(0,t)+2*r2}, v{A2(0,t)+2*r2}, v250')
                    p(f'v_add_f32 v{A2(0,t)+2*r2+1}, v{A2(0,t)+2*r2+1}, v251')
    for t in range(4):
        a = A2(0, t)
        p(f'v_cvt_pk_bf16_f32 v{a}, v{a}, v{a+1}')
        p(f'v_cvt_pk_bf16_f32 v{a+1}, v{a+2}, v{a+3}')
        p(f'buffer_store_dwordx2 {vr(a,2)}, v7, s[44:47], s41 offen offset:{t*32}')
    if STAMPS:
        p('s_waitcnt vmcnt(0)')
        dstamp(p, 11)
    p('L_cdone:')
    flush_stamps(p, 12, 0, 0, 'L_fsC')
    p('L_end:')
    p('s_endpgm')
    return p.finalize()

if __name__ == '__main__':
    out = HDR
    out += '; @launch grid=(256,1,1) block=(512,1,1) lds=163840\n'
    out += '.amdgcn_target "amdgcn-amd-amdhsa--gfx950"\n.text\n'
    out += gen() + '\n'
    out += '.section .rodata,"a"\n' + kd(NAME + '_kernel', 256, 102)
    print(out)
```

```python
from common import *
from asmlib import auto_lgkm as _al
CAP = opt('cap', 8)
def auto_lgkm(l, pnd=None): return _al(l, pnd, CAP)
XFL = opt('xfl', 'none').replace('none', '')
WFL2 = opt('wfl2', 'none').replace('none', '')
OFL = opt('ofl', 'sc1').replace('none', '').replace('_', ' ')
ORFL = opt('orfl', 'sc1').replace('none', '').replace('_', ' ')
LAG = opt('lag', 10)
PATA = opt('pata', 's0 s1 s2 s3 K1 s4 s5 Kb ka s6 s7 v0 s8 s9 v1 Wa Wb').replace('_', ' ')
PATB = opt('patb', 's0 s1 s2 s3 s4 K1 s5 s6 Kb ka s7 s8 v0 s9 v1 Wa Wb').replace('_', ' ')
PATSEL = opt('patsel', 6)
if opt('sent', 0) == 3 and 'Z' not in PATA: PATA += ' Z'; PATB += ' Z'
NA = opt('na', 5)
PF32 = opt('pf32', 0)
LPRIO = opt('lprio', 0)
PUB = opt('pub', 1)
WLAG = opt('wlag', 10)
ORC = opt('orc', 0)
PK = opt('pk', 0)
LOWD = opt('lowd', 1)
SNAKE = opt('snake', 1)
NAT = opt('nat', 5)
BURST = opt('burst', 0)
PER1 = opt('per1', 1)
XNOP = opt('xnop', 0)
HALF = opt('half', 1)
FAPOS = opt('fapos', 1)
SENT = opt('sent', 0)
SSLEEP = opt('ssleep', 1)
PFS = opt('pfs', 0)
PF0 = opt('pf0', 0)
PFN = opt('pfn', 10)
FAKEWO = opt('fakewo', 0)
NOPOLL = opt('nopoll', 0)
FASTP = opt('fastp', 0)
WOFL = opt('wofl', 'none').replace('none', '')
WOFL2 = opt('wofl2', 'none').replace('none', '')
PFL = opt('pfl', 'sc1').replace('_', ' ')
CPF2 = opt('cpf2', 5)
WOA = opt('woa', 0)
WOB = opt('wob', 0)
ROT2 = opt('rot2', 0)
CPF = opt('cpf', 0)
ROT = opt('rot', 1)
RB = opt('rb', '0358')
RH = opt('rh', '03581469')
OEARLY = opt('oearly', 1)
KVFL = opt('kvfl', 'nt').replace('none', '')
TICKET = opt('ticket', 0)
CFL = opt('cfl', 'none').replace('none', '')
PSLEEP = opt('psleep', 2)
XS, WS_, SP = 0, 73728, 122880
KB0 = SP - 8192; KB1 = KB0 + 24576
VB0 = XS + 2*24576; VB1 = XS
NWS = opt('nws', 6); NOS = opt('nos', 4)
CPF3 = opt('cpf3', 8)
UNR = opt('unr', 1)
DIAG = opt('diag', 1)
NB2 = opt('nb2', 4)
O_L = 0; WO_L = NOS * 16384
N1 = opt('n1', 6); N2 = opt('n2', 0); LAG2 = opt('lag2', 16)
GST = 1572864 + 16384
O_OFF = 4096; F1_OFF = O_OFF + 1572864; GT_OFF = F1_OFF + 8192
INBOX = 16 << 20
TAGS = opt('tags', 0)
SZ = 4096 if PF32 else (3072 if TAGS else 2048)
assert not (TAGS and (PF32 or opt('sent', 0)))
RST = 48 * SZ + 4096
I_OFF = 1024; F2_OFF = I_OFF + 48 * SZ; RT_OFF = F2_OFF + 2048
WS_SIZE = 48 << 20
TOUCH = opt('touch', 0)
MF = 'v_mfma_f32_16x16x32_bf16'
SPIN_MAX = 1 << 24

def dstamp(p, k):
    if STAMPS: p(f'{"s_memtime" if CLK else "s_memrealtime"} s[{72+2*k}:{73+2*k}]')
def flush_stamps(p, n, base_idx, wave, lbl):
    if not STAMPS: return
    p(f's_cmp_lg_u32 s3, {wave}'); p(f's_cbranch_scc1 {lbl}')
    p('s_waitcnt lgkmcnt(0) vmcnt(0)')
    p('v_mov_b32 v1, 0')
    p('s_mov_b64 exec, 1')
    for k in range(n):
        p(f'v_mov_b32 v{4+2*k}, s{72+2*k}'); p(f'v_mov_b32 v{5+2*k}, s{73+2*k}')
        p(f'buffer_store_dwordx2 v[{4+2*k}:{5+2*k}], v1, s[56:59], s60 offen offset:{(base_idx+k)*8}')
    p('s_waitcnt vmcnt(0)')
    p(f'{lbl}:')
def poll_flags(p, lbl, vaddr, vtmp, soff, maskreg):
    p(f's_mov_b32 s9, {SPIN_MAX}')
    p(f's_mov_b64 exec, {maskreg}')
    p(f'{lbl}:')
    p(f'buffer_load_dwordx2 v[{vtmp}:{vtmp+1}], v{vaddr}, s[52:55], {soff} offen sc1')
    p('s_waitcnt vmcnt(0)')
    p(f'v_cmp_gt_u64 vcc, s[96:97], v[{vtmp}:{vtmp+1}]')
    p(f'v_cmp_lt_u64 s[100:101], s[98:99], v[{vtmp}:{vtmp+1}]')
    p('s_or_b64 vcc, vcc, s[100:101]')
    p(f's_cbranch_scc0 {lbl}_ok')
    p(f's_sleep {PSLEEP}')
    p('s_sub_u32 s9, s9, 1')
    p('s_and_b32 s100, s9, 127')
    p(f's_cbranch_scc1 {lbl}')
    p('s_lshl_b32 s100, s6, 7')
    p('s_load_dwordx2 s[100:101], s[34:35], s100 glc')
    p('s_waitcnt lgkmcnt(0)')
    p('s_cmp_eq_u64 s[100:101], 0')
    p(f's_cbranch_scc1 {lbl}_nz')
    p('s_not_b64 s[96:97], s[100:101]')
    p(f'{lbl}_nz:')
    p('s_cmp_lg_u32 s9, 0')
    p(f's_cbranch_scc1 {lbl}')
    p(f'{lbl}_ok:')
    p('s_mov_b64 exec, -1')

def cvt4(d, a0, a1):
    return [f'v_cvt_pk_bf16_f32 v{d}, v{a0}, v{a0+1}', f'v_cvt_pk_bf16_f32 v{d+1}, v{a0+2}, v{a0+3}',
            f'v_cvt_pk_bf16_f32 v{d+2}, v{a1}, v{a1+1}', f'v_cvt_pk_bf16_f32 v{d+3}, v{a1+2}, v{a1+3}']
def spread(main, fill, extra=(), per=1):
    out = []; fi = 0; ei = 0
    for m in main:
        out.append(m)
        for _ in range(per):
            if fi < len(fill): out.append(fill[fi]); fi += 1
        if ei < len(extra): out.append(extra[ei]); ei += 1
    return out + list(fill[fi:]) + list(extra[ei:])

def p2_ids(p):
    p('s_mul_i32 s66, s5, 52'); p('s_lshr_b32 s66, s66, 8')
    p('s_mul_i32 s67, s66, 5'); p('s_sub_u32 s67, s5, s67')
    p('s_and_b32 s10, s4, 3')

def gen():
    p = Prog()
    K1 = NAME + '_kernel'
    p(f'.globl {K1}\n.p2align 8\n.type {K1},@function\n{K1}:')
    p('s_cmp_ge_u32 s2, 256')
    p('s_cbranch_scc1 L_end')
    p('s_load_dwordx8 s[16:23], s[0:1], 0')
    p('s_memrealtime s[96:97]')
    p('s_load_dwordx8 s[24:31], s[0:1], 40')
    p('s_load_dwordx4 s[32:35], s[0:1], 88')
    dstamp(p, 0)
    p('v_lshrrev_b32 v1, 6, v0')
    p('v_and_b32 v2, 63, v0')
    p('v_readfirstlane_b32 s3, v1')
    if TICKET:
        p('v_mov_b32 v5, 0')
        p('s_cmp_lg_u32 s3, 0')
        p('s_cbranch_scc1 L_tk_wait')
        p('s_getreg_b32 s4, hwreg(HW_REG_XCC_ID)')
        p('s_and_b32 s4, s4, 7')
        p('s_waitcnt lgkmcnt(0)')
        p('L_tk_try:')
        p('s_lshl_b32 s5, s4, 5')
        p('s_add_u32 s5, s5, 16')
        p('s_mov_b32 s6, 1')
        p('s_atomic_add s6, s[32:33], s5 glc')
        p('s_waitcnt lgkmcnt(0)')
        p('s_cmp_lt_u32 s6, 32')
        p('s_cbranch_scc1 L_tk_ok')
        p('s_add_u32 s4, s4, 1')
        p('s_and_b32 s4, s4, 7')
        p('s_branch L_tk_try')
        p('L_tk_ok:')
        p('s_lshl_b32 s6, s6, 3')
        p('s_add_u32 s6, s6, s4')
        p('v_mov_b32 v6, s6')
        p('ds_write_b32 v5, v6')
        p('s_waitcnt lgkmcnt(0)')
        p('L_tk_wait:')
        p('s_barrier')
        p('ds_read_b32 v6, v5')
        p('s_waitcnt lgkmcnt(0)')
        p('v_readfirstlane_b32 s2, v6')
        p('s_barrier')
        p('s_and_b32 s2, s2, 255')
    p('s_and_b32 s4, s2, 7')
    p('s_lshr_b32 s5, s2, 3')
    p('s_lshr_b32 s6, s4, 2')
    p('s_and_b32 s7, s4, 3')
    p('s_lshl_b32 s7, s7, 3')
    p('s_and_b32 s66, s5, 7')
    p('s_add_u32 s7, s7, s66')
    p('s_lshr_b32 s8, s5, 3')
    p('v_lshrrev_b32 v3, 4, v2')
    p('v_and_b32 v4, 15, v2')
    p('s_cmp_lt_u32 s3, 4')
    p('s_cbranch_scc1 L_compute')
    if LPRIO: p(f's_setprio {LPRIO}')
    p('s_and_b32 s11, s3, 3')
    p('v_lshrrev_b32 v5, 3, v2')
    p('s_lshl_b32 s12, s11, 3')
    p('v_add_u32 v5, s12, v5')
    p('v_mul_u32_u24 v5, 1280, v5')
    p('s_and_b32 s12, s11, 1')
    p('s_lshl_b32 s12, s12, 2')
    p('v_add_u32 v6, s12, v3')
    p('v_and_b32 v7, 7, v2')
    p('v_xor_b32 v7, v7, v6')
    p('v_lshl_add_u32 v11, v7, 4, v5')
    p('v_lshlrev_b32 v6, 1, v6')
    p('v_xor_b32 v8, v6, v4')
    p('s_lshl_b32 s12, s11, 2')
    p('v_add_u32 v5, s12, v3')
    p('v_lshlrev_b32 v7, 8, v5')
    p('v_lshl_add_u32 v13, v8, 4, v7')
    p('v_xor_b32 v6, v4, v5')
    p('v_lshl_add_u32 v10, v6, 4, v7')
    p('s_lshr_b32 s12, s11, 1')
    p('s_lshl_b32 s12, s12, 2')
    p('v_add_u32 v6, s12, v3')
    p('v_lshlrev_b32 v6, 1, v6')
    p('v_xor_b32 v6, v6, v4')
    p('v_lshlrev_b32 v7, 13, v5')
    p('v_lshl_add_u32 v12, v6, 4, v7')
    p('s_lshl_b32 s13, s11, 10')
    tb = sum(int(c) << (4*i) for i, c in enumerate(RB)); th = sum(int(c) << (4*i) for i, c in enumerate(RH))
    p('s_lshl_b32 s69, s8, 2'); p(f's_lshr_b32 s69, {tb:#x}, s69'); p('s_and_b32 s69, s69, 15')
    p('s_lshl_b32 s70, s66, 2'); p(f's_lshr_b32 s70, {th:#x}, s70'); p('s_and_b32 s70, s70, 15')
    p('s_add_u32 s69, s69, s70')
    p('s_cmp_ge_u32 s69, 10'); p('s_cselect_b32 s71, 10, 0'); p('s_sub_u32 s69, s69, s71')
    p('s_mul_i32 s9, s8, 245760')
    p('s_lshl_b32 s10, s7, 8')
    p('s_lshl_b32 s12, s8, 6')
    p('s_add_u32 s12, s12, s7')
    p('s_mul_i32 s12, s12, 24576')
    p('s_waitcnt lgkmcnt(0)')
    p('s_cmp_eq_u32 s6, 0')
    for i in range(4):
        p(f's_cselect_b64 s[{16+2*i}:{17+2*i}], s[{16+2*i}:{17+2*i}], s[{24+2*i}:{25+2*i}]')
    p('s_add_u32 s36, s16, s9'); p('s_addc_u32 s37, s17, 0')
    p('s_mov_b32 s38, 245760'); p('s_mov_b32 s39, 0x20000')
    p('s_add_u32 s40, s22, s10'); p('s_addc_u32 s41, s23, 0')
    p('s_sub_u32 s42, 5242880, s10'); p('s_mov_b32 s43, 0x20000')
    p('s_add_u32 s44, s18, s12'); p('s_addc_u32 s45, s19, 0')
    p(f's_mov_b32 s46, {786432+24576}'); p('s_mov_b32 s47, 0x20000')
    p('s_add_u32 s48, s20, s12'); p('s_addc_u32 s49, s21, 0')
    p(f's_mov_b32 s50, {786432+24576}'); p('s_mov_b32 s51, 0x20000')
    p(f's_load_dwordx2 s[16:17], s[0:1], {0 if FAKEWO else 32}')
    p(f's_load_dwordx2 s[18:19], s[0:1], {40 if FAKEWO else 72}')
    srd(p, 52, 34, 35, WS_SIZE)
    p('s_mov_b32 s98, s96'); p('s_add_u32 s99, s97, 1')
    stamp_setup(p, 34, 35)
    p('s_mov_b64 s[34:35], s[32:33]')
    if CPF2 >= 0:
        p('s_getpc_b64 s[22:23]')
        p('L_pc2:')
        p('s_lshl_b32 s9, s5, 2'); p('s_add_u32 s9, s9, s11'); p('s_mul_i32 s9, s9, 192')
        p(f's_min_u32 s9, s9, L_end-L_ld2-128')
        p(f's_add_u32 s9, s9, L_ld2-L_pc2')
        p('s_add_u32 s22, s22, s9'); p('s_addc_u32 s23, s23, 0')
    p('s_not_b64 s[20:21], s[96:97]')
    p('s_lshl_b32 s67, s6, 7')
    p('s_lshl_b32 s68, s11, 3')
    if PUB == 1: p('s_add_u32 s68, s68, s66')
    p(f's_bitcmp1_b32 s2, {PATSEL}')
    p('s_cbranch_scc1 L_patB')

    afterV = []
    def loader(pat, tag):
        stream = []
        for w in pat.split():
            if w[0] == 's': stream += [('x' + w[1:], m) for m in range(6)] + [('w' + w[1:], m) for m in range(4)]
            elif w[0] in 'xw': stream += [(w, m) for m in range(6 if w[0] == 'x' else 4)]
            elif w == 'ka': stream += [('k0', m) for m in range(2)]
            elif w == 'Z': stream += [('Z0', m) for m in range(3 * SZ // 1024)]
            elif w == 'Wa': stream += [('W0', m) for m in range(5)]
            elif w == 'Wb': stream += [('W0', m) for m in range(5, 10)]
            elif w == 'Ka': stream += [('K0', m) for m in range(2)]
            elif w == 'Kb': stream += [('K0', m) for m in range(2, 6)]
            else: stream += [(w, m) for m in range(6)]
        n = len(stream)
        end = {}
        for i, (it, m) in enumerate(stream):
            if it[0] in 'xw': end[int(it[1:])] = i + 1
        staged = [(i, it, m) for i, (it, m) in enumerate(stream) if it[0] in 'kv']
        end[10] = max(max(i for i, (it, m) in enumerate(stream) if it[0] in 'Kk') + 1, end[9])
        endst = max([x[0] + 1 for x in staged] + [end[9]])
        end[11] = max(max(i for i, (it, m) in enumerate(stream) if it[0] in 'Vv') + 1, end[10])
        lastV = end[11]
        def need(it, m):
            if it[0] in 'xw': return int(it[1:]) - 3
            if it == 'K0': return 7 if m < 2 else -9
            if it in ('K1', 'W0', 'Z0', 'k0', 'v0', 'v1'): return -9
            return 7 if it == 'V0' else 8
        bpos = {}; prev = 0
        for s in range(-1, 11):
            pos = min(end[s+1] + LAG, n)
            if s == 9: pos = max(pos, min(lastV, n))
            if staged and s in (8, 9):
                fd = min([i for i, (it, m) in enumerate(stream) if i >= endst and it[0] in 'xwKV'] + [n])
                pos = min(min(end[9] + LAG, n), fd) if s == 8 else min(endst + WLAG, n, fd)
            if staged and s == 10 and all(it[0] not in 'V' for it, m in stream): pos = n
            first_needing = min([i for i, (it, m) in enumerate(stream) if need(it, m) >= s and need(it, m) >= 0] + [n])
            pos = min(pos, first_needing)
            assert pos >= end[s+1], (s, pos, end[s+1])
            pos = max(pos, prev); bpos[s] = pos; prev = pos
        passed = [-2]
        def pf(s):
            if not PFS or s < PF0 or s >= PF0 + PFN: return
            tot = 10240 // PFS
            k = s - PF0
            for i in range(k * tot // PFN, (k + 1) * tot // PFN):
                p(f's_load_dword s28, s[26:27], {i*PFS}')
        def barrier(s, issued):
            if PFS and s == -1:
                p('s_waitcnt lgkmcnt(0)')
                p('s_cmp_eq_u32 s6, 0')
                p('s_cselect_b64 s[26:27], s[16:17], s[18:19]')
                p('s_and_b32 s9, s4, 3'); p('s_lshl_b32 s9, s9, 5'); p('s_add_u32 s9, s9, s5'); p('s_lshl_b32 s9, s9, 2'); p('s_add_u32 s9, s9, s11')
                p('s_mul_i32 s9, s9, 10240')
                p('s_add_u32 s26, s26, s9'); p('s_addc_u32 s27, s27, 0')
            pf(s)
            p(f's_waitcnt vmcnt({issued - end[s+1]})')
            def wr_(kinds):
                for k_, (i_, it_, m_) in enumerate(staged):
                    if it_[0] not in kinds: continue
                    ad = {'k0': KB0, 'v0': VB0, 'v1': VB1}[it_] + m_*4096
                    p(f'ds_write_b128 v{15 + (ad >> 16)}, {vr(32+4*k_)} offset:{ad & 0xffff}')
            if s == 9 and staged:
                p('v_lshl_add_u32 v15, v2, 4, s13')
                p('v_add_u32 v16, 0x10000, v15')
                wr_('k')
                p('s_waitcnt lgkmcnt(0)')
            if (s == 10 and staged) or (s == 9 and not staged): p('s_waitcnt lgkmcnt(0)')
            if s == 10: dstamp(p, 5)
            p(f's_barrier      ; B_{s}')
            passed[0] = s
            if (PUB == 0 and s == 1) or (PUB == 1 and -1 <= s <= 6):
                p(f's_cmp_lg_u32 s68, {s+1 if PUB == 1 else 0}')
                p(f's_cbranch_scc1 L_nopub{tag}{s+1}')
                p('s_atomic_umax_x2 s[20:21], s[34:35], s67 glc')
                p(f'L_nopub{tag}{s+1}:')
            if s == 9 and staged:
                assert issued >= endst
                p(f's_waitcnt vmcnt({issued - endst})')
                wr_('v')
            if s == CPF2:
                p('s_load_dword s24, s[22:23], 0x0'); p('s_load_dword s25, s[22:23], 0x40'); p('s_load_dword s24, s[22:23], 0x80')
            if s in (-1, 2, 5, 8): dstamp(p, 1 + (s+1)//3)
        last_item = None
        for i, (it, m) in enumerate(stream):
            for s in range(-1, 11):
                if bpos[s] == i and passed[0] < s: barrier(s, i)
            assert need(it, m) <= passed[0] or need(it, m) < 0
            if it[0] in 'xw':
                t = int(it[1:]); slot = (t + 1) % 3
                if it != last_item:
                    p(f's_add_u32 s70, s69, {t}')
                    p('s_cmp_ge_u32 s70, 10'); p('s_cselect_b32 s71, 10, 0'); p('s_sub_u32 s70, s70, s71')
                    p(f's_lshl_b32 s64, s70, {7 if it[0]=="x" else 19}')
                if it[0] == 'x':
                    p(f's_add_u32 m0, s13, {XS + slot*24576 + m*4096}')
                    p(f's_add_u32 s14, s64, {m*40960}')
                    p(f'buffer_load_dwordx4 v11, s[36:39], s14 offen {XFL} lds')
                else:
                    p(f's_add_u32 m0, s13, {WS_ + slot*16384 + m*4096}')
                    p(f's_add_u32 s14, s64, {m*131072}')
                    p(f'buffer_load_dwordx4 v12, s[40:43], s14 offen {CFL if t < 3 else WFL2} lds')
            elif it[0] in 'kv':
                b = int(it[1]); k_ = [x[0] for x in staged].index(i)
                vo, sr = (10, 44) if it[0] == 'k' else (13, 48)
                p(f's_mov_b32 s14, {b*786432 + m*4096}')
                p(f'buffer_load_dwordx4 {vr(32+4*k_)}, v{vo}, s[{sr}:{sr+3}], s14 offen {KVFL}')
            elif it == 'Z0':
                if m == 0:
                    p('s_and_b32 s10, s4, 3')
                    p('s_lshl_b32 s61, s6, 5'); p('s_add_u32 s61, s61, s5'); p(f's_mul_i32 s61, s61, {RST}'); p(f's_add_u32 s61, s61, {INBOX}')
                    p('s_lshl_b32 s9, s10, 2'); p('s_add_u32 s9, s9, s11'); p(f's_mul_i32 s9, s9, {3*SZ}'); p('s_add_u32 s9, s9, s61')
                    p('v_lshlrev_b32 v15, 4, v2')
                    for i_ in range(4): p(f'v_mov_b32 v{24+i_}, -1')
                p(f's_add_u32 s14, s9, {I_OFF + m*1024}')
                p('buffer_store_dwordx4 v[24:27], v15, s[52:55], s14 offen sc1')
            elif it == 'W0':
                if m in (0, 5):
                    p('s_waitcnt lgkmcnt(0)')
                    p('s_cmp_eq_u32 s6, 0')
                    p('s_cselect_b64 s[28:29], s[16:17], s[18:19]')
                    p('s_mov_b32 s30, 5242880'); p('s_mov_b32 s31, 0x20000')
                    p('s_and_b32 s9, s4, 3'); p('s_lshl_b32 s9, s9, 5'); p('s_add_u32 s9, s9, s5'); p('s_mul_i32 s9, s9, 40960')
                    p('v_lshl_add_u32 v15, v2, 4, s13')
                p(f's_add_u32 s14, s9, {m*4096}')
                p('buffer_load_dwordx4 v[20:23], v15, s[28:31], s14 offen')
            else:
                b = int(it[1])
                addr = {'K0': KB0, 'K1': KB1, 'V0': VB0, 'V1': VB1}[it] + m*4096
                vo, sr = (10, 44) if it[0] == 'K' else (13, 48)
                p(f's_add_u32 m0, s13, {addr}')
                p(f's_mov_b32 s14, {b*786432 + m*4096}')
                p(f'buffer_load_dwordx4 v{vo}, s[{sr}:{sr+3}], s14 offen {KVFL} lds')
            last_item = it
        for s in range(-1, 11):
            if passed[0] < s: barrier(s, n)
    loader(PATA, 'A')
    p('s_branch L_ld2')
    p('L_patB:')
    loader(PATB, 'B')
    p('L_ld2:')
    p('s_cmp_ge_u32 s5, 30')
    p('s_cbranch_scc1 L_ld_idle')
    p2_ids(p)
    p('s_waitcnt lgkmcnt(0)')
    p('s_cmp_eq_u32 s6, 0')
    p('s_cselect_b64 s[16:17], s[16:17], s[18:19]')
    p(f's_mul_i32 s9, s10, {0 if FAKEWO else 1310720}')
    p('s_lshl_b32 s12, s67, 8')
    p('s_add_u32 s9, s9, s12')
    p('s_add_u32 s36, s16, s9'); p('s_addc_u32 s37, s17, 0')
    p(f's_sub_u32 s38, {983040 if FAKEWO else 1310720}, s12'); p('s_mov_b32 s39, 0x20000')
    p('v_mul_u32_u24 v7, 1280, v5')
    p('v_lshl_add_u32 v12, v8, 4, v7')
    p('v_lshl_add_u32 v11, v2, 4, s13')
    p('s_mul_i32 s69, s66, 43'); p('s_lshr_b32 s69, s69, 4')
    p(f's_mul_i32 s70, s67, {ROT2}'); p('s_add_u32 s69, s69, s70'); p(f's_and_b32 s69, s69, {14 if HALF else 15}')
    p(f's_mul_i32 s65, s4, {GST}')
    p('s_lshl_b32 s12, s66, 13'); p('s_add_u32 s65, s65, s12'); p(f's_add_u32 s65, s65, {O_OFF}')
    p('s_mul_i32 s70, s69, 81920')
    p('s_mul_i32 s71, s69, 98304')
    p('s_add_u32 s71, s71, s65')
    p(f's_add_u32 s63, s65, {16*98304}')
    cnt = [0]
    endo = {}; endw = {}
    def wo_issue(k):
        fl = WOFL if k < 3 else WOFL2
        for m in range(4):
            p(f's_add_u32 m0, s13, {WO_L + (k % NWS)*16384 + m*4096}')
            p(f's_add_u32 s14, s70, {m*20480}')
            p(f'buffer_load_dwordx4 v12, s[36:39], s14 offen {fl} lds')
        if HALF:
            p(f's_add_u32 s70, s70, {2*81920}')
            p(f's_cmp_ge_u32 s70, {16*81920}')
            p(f's_cselect_b32 s12, {16*81920}, 0'); p('s_sub_u32 s70, s70, s12')
            if k == 7: p('s_add_u32 s70, s70, 81920')
        else:
            p('s_add_u32 s70, s70, 81920')
            p(f's_cmp_eq_u32 s70, {16*81920}')
            p('s_cselect_b32 s70, 0, s70')
        cnt[0] += 4; endw[k] = cnt[0]
    def o_issue(k):
        if HALF and k == 8:
            p(f's_waitcnt vmcnt({cnt[0] - endo["f"]})')
            p('s_mov_b64 exec, s[20:21]')
            p('v_cmp_gt_u64 vcc, s[96:97], v[16:17]')
            p('v_cmp_lt_u64 s[100:101], s[98:99], v[16:17]')
            p('s_mov_b64 exec, -1')
            p('s_or_b64 vcc, vcc, s[100:101]')
            p('s_cbranch_scc0 L_fb_ok')
            p('s_add_u32 s15, s15, 1024')
            poll_flags(p, 'L_pf1b', 14, 16, 's15', 's[20:21]')
            p('L_fb_ok:')
        for m in range(4):
            p(f's_add_u32 m0, s13, {O_L + (k % NOS)*16384 + m*4096}')
            p(f's_add_u32 s14, s71, {(0, 4096, 49152, 53248)[m]}')
            p(f'buffer_load_dwordx4 v11, s[52:55], s14 offen {ORFL} lds')
        if HALF:
            p(f's_add_u32 s71, s71, {2*98304}')
            p('s_cmp_ge_u32 s71, s63')
            p(f's_cselect_b32 s12, {16*98304}, 0'); p('s_sub_u32 s71, s71, s12')
            if k == 7: p('s_add_u32 s71, s71, 98304')
        else:
            p('s_add_u32 s71, s71, 98304')
            p('s_cmp_eq_u32 s71, s63')
            p('s_cselect_b32 s71, s65, s71')
        cnt[0] += 4; endo[k] = cnt[0]
        if HALF and k == 5:
            p('s_mov_b64 exec, s[20:21]')
            p('buffer_load_dwordx2 v[16:17], v14, s[52:55], s15 offen offset:1024 sc1')
            p('s_mov_b64 exec, -1')
            cnt[0] += 1; endo['f'] = cnt[0]
    p('s_mul_i32 s12, s66, 171'); p('s_lshr_b32 s12, s12, 6'); p('s_lshl_b32 s12, s12, 6')
    p(f's_mul_i32 s14, s4, {GST}'); p('s_add_u32 s12, s12, s14'); p(f's_add_u32 s15, s12, {F1_OFF}')
    p('s_cmp_eq_u32 s66, 1'); p('s_cselect_b32 s20, -1, 0xffffff')
    p('s_cmp_eq_u32 s66, 4'); p('s_cselect_b32 s20, -1, s20'); p('s_mov_b32 s21, 0')
    p('v_lshlrev_b32 v14, 3, v2')
    if SENT == 3:
        p('s_memrealtime s[24:25]')
        p('s_lshl_b32 s9, s11, 7'); p('s_add_u32 s9, s9, s61'); p('s_lshl_b32 s14, s10, 3'); p('s_add_u32 s9, s9, s14'); p(f's_add_u32 s9, s9, {F2_OFF}')
        p('v_mov_b32 v30, 0')
        p('s_waitcnt vmcnt(0) lgkmcnt(0)')
        p('v_mov_b32 v28, s24'); p('v_mov_b32 v29, s25')
        p('s_mov_b64 exec, 1')
        p('buffer_store_dwordx2 v[28:29], v30, s[52:55], s9 offen sc1')
        p('s_mov_b64 exec, -1')
    p('s_barrier')
    nw = 0
    for _ in range(N1): wo_issue(nw); nw += 1
    if not HALF: p('s_barrier')
    for _ in range(N2): wo_issue(nw); nw += 1
    p('s_cmp_lg_u32 s3, 4')
    p('s_cbranch_scc1 L_nopoll')
    poll_flags(p, 'L_pf1', 14, 16, 's15', 's[20:21]')
    p('L_nopoll:')
    p('s_barrier      ; B_12')
    dstamp(p, 6)
    no = 0
    for c in range(-1, 15):
        def allowed():
            cand = []
            if no < 16 and (no < NOS or no - NOS <= c - 1): cand.append(('o', no))
            if nw < 16 and (nw < NWS or nw - NWS <= c - 1): cand.append(('w', nw))
            cand.sort(key=lambda x: (x[1], x[0] == 'o'))
            return cand
        while True:
            done = (c + 1) in endo and (c + 1) in endw
            if done and cnt[0] - max(endo[c+1], endw[c+1]) >= LAG2: break
            cand = allowed()
            if not cand:
                assert done; break
            if cand[0][0] == 'o': o_issue(no); no += 1
            else: wo_issue(nw); nw += 1
        p(f's_waitcnt vmcnt({cnt[0] - max(endo[c+1], endw[c+1])})')
        p(f's_barrier      ; C_{c}')
        if c == -1: dstamp(p, 7)
        if c == CPF3:
            p('s_getpc_b64 s[22:23]')
            p('L_pc3:')
            p('s_lshl_b32 s9, s5, 2'); p('s_add_u32 s9, s9, s11'); p('s_and_b32 s9, s9, 31'); p('s_lshl_b32 s9, s9, 6')
            p('s_min_u32 s9, s9, L_end-L_tail2')
            p('s_add_u32 s9, s9, L_tail2-L_pc3')
            p('s_add_u32 s22, s22, s9'); p('s_addc_u32 s23, s23, 0')
            p('s_load_dword s24, s[22:23], 0x0')
    assert no == 16 and nw == 16
    dstamp(p, 8)
    flush_stamps(p, 9, 16, 4, 'L_fsL')
    p('s_endpgm')
    p('L_ld_idle:')
    p('s_barrier      ; B_11a')
    p('s_endpgm')

    p('L_compute:')
    G = lambda g: 16 + 4*g
    ACC = lambda t, qt: G(t*3+qt)
    AF = lambda st, t: G(24 + st*8 + t)
    BF = lambda st, qt: G(40 + st*3 + qt)
    AADR = 240; BADR = 248
    p('v_bfe_u32 v5, v2, 2, 2')
    p('v_and_b32 v6, 3, v2')
    p('v_and_b32 v7, 1, v3')
    p('v_lshl_add_u32 v7, v7, 2, v5')
    p('v_lshlrev_b32 v7, 1, v7')
    p('v_lshrrev_b32 v8, 1, v6')
    p('v_xor_b32 v7, v7, v8')
    p('v_lshlrev_b32 v7, 4, v7')
    p('v_and_b32 v8, 1, v6')
    p('v_lshl_add_u32 v7, v8, 3, v7')
    p('v_lshl_add_u32 v8, v3, 3, v5')
    p('v_lshl_add_u32 v8, v8, 8, v7')
    p(f'v_add_u32 v8, {WS_ + 16384}, v8')
    for t in range(8):
        p(f'v_xor_b32 v{AADR+t}, {t<<5}, v8')
    p('v_lshrrev_b32 v8, 1, v4')
    p('v_xor_b32 v8, v8, v3')
    p('v_lshlrev_b32 v8, 4, v8')
    p('v_lshl_add_u32 v8, v4, 7, v8')
    p('s_mul_i32 s13, s3, 6144')
    p(f's_add_u32 s13, s13, {XS + 24576}')
    p(f'v_add_u32 v{BADR}, s13, v8')
    p(f'v_xor_b32 v{BADR+1}, 64, v{BADR}')
    p('s_cmp_lt_u32 s3, 2')
    p(f's_mov_b32 s13, {KB1}'); p(f's_mov_b32 s14, {VB1}')
    p(f's_cselect_b32 s13, {KB0}, s13'); p(f's_cselect_b32 s14, {VB0}, s14')
    p('v_lshrrev_b32 v8, 1, v3')
    p('v_xor_b32 v8, v8, v4')
    p('v_lshlrev_b32 v8, 4, v8')
    p('v_lshl_add_u32 v8, v4, 8, v8')
    p('v_and_b32 v9, 1, v3')
    p('v_lshl_add_u32 v8, v9, 3, v8')
    p('v_add_u32 v10, s13, v8')
    p('v_lshl_add_u32 v8, v3, 2, v5')
    p('v_lshl_add_u32 v6, v8, 8, v7')
    p('v_add_u32 v11, s14, v6')
    p('v_lshlrev_b32 v9, 4, v2')
    for i in range(4): p(f'v_mov_b32 v{12+i}, 0x3f803f80')
    for i in range(96): p(f'v_mov_b32 v{16+i}, 0')
    p('s_mul_i32 s62, s66, 192'); p('s_mul_i32 s14, s8, 12'); p('s_add_u32 s62, s62, s14')
    p('s_mul_i32 s14, s3, 3'); p('s_add_u32 s62, s62, s14'); p('s_lshl_b32 s62, s62, 10')
    p(f's_mul_i32 s68, s4, {GST}'); p('s_add_u32 s62, s62, s68'); p(f's_add_u32 s62, s62, {O_OFF}')
    p(f's_mov_b32 s63, {f32bits(LOG2E_SCALE):#x}')
    p('s_mov_b32 s50, s63'); p('s_mov_b32 s51, s63')
    p('s_lshl_b32 s69, s8, 2'); p('s_add_u32 s69, s69, s3')
    p('s_lshl_b32 s69, s69, 3'); p('s_add_u32 s69, s69, s66'); p('s_lshl_b32 s69, s69, 3'); p('s_add_u32 s69, s69, s68'); p(f's_add_u32 s69, s69, {F1_OFF}')
    p('s_waitcnt lgkmcnt(0)')
    srd(p, 52, 34, 35, WS_SIZE)
    p('s_mov_b32 s98, s96'); p('s_add_u32 s99, s97, 1')
    stamp_setup(p, 34, 35)
    p('s_mov_b64 s[34:35], s[32:33]')
    p('s_load_dwordx2 s[20:21], s[0:1], 80')
    if CPF:
        p('s_cmp_lg_u32 s3, 1')
        p('s_cbranch_scc1 L_nocpf')
        p('s_getpc_b64 s[70:71]')
        p('L_pc:')
        p(f's_sub_u32 s70, s70, L_pc-{K1}')
        p('s_subb_u32 s71, s71, 0')
        p('s_mul_i32 s9, s5, 768')
        p(f's_min_u32 s9, s9, L_end-{K1}-640')
        p('s_add_u32 s70, s70, s9')
        p('s_addc_u32 s71, s71, 0')
        for i in range(6): p(f's_load_dword s{24+i}, s[70:71], {i*128}')
        p('L_nocpf:')
    p('s_waitcnt lgkmcnt(0)')
    srd(p, 44, 20, 21, 8*96*1280*2)
    if PUB == 2:
        p('s_cmp_lg_u32 s3, 3')
        p('s_cbranch_scc1 L_nopubc')
        srd(p, 24, 34, 35, 256)
        p('s_not_b64 s[70:71], s[96:97]')
        p('s_lshl_b32 s9, s6, 7')
        p('v_mov_b32 v250, s70'); p('v_mov_b32 v251, s71'); p('v_mov_b32 v252, 0')
        p('s_mov_b64 exec, 1')
        p('buffer_atomic_umax_x2 v[250:251], v252, s[24:27], s9 offen sc1')
        p('s_mov_b64 exec, -1')
        p('L_nopubc:')
    if TOUCH:
        p('s_cmp_lg_u32 s3, 2')
        p('s_cbranch_scc1 L_notouch')
        p('v_and_b32 v250, 1, v2')
        p(f'v_mul_u32_u24 v251, {GT_OFF}, v250')
        p(f'v_mul_u32_u24 v252, {RT_OFF}, v250')
        p(f'v_mul_u32_u24 v253, {8*96*1280*2 - 128}, v250')
        p('s_mul_i32 s9, s6, 32'); p('s_add_u32 s9, s9, s5'); p(f's_mul_i32 s9, s9, {RST}'); p(f's_add_u32 s9, s9, {INBOX}')
        p('s_mov_b64 exec, 3')
        p('buffer_load_dword v254, v251, s[52:55], s68 offen nt')
        p('buffer_load_dword v254, v252, s[52:55], s9 offen nt')
        p('buffer_load_dword v254, v253, s[44:47], 0 offen nt')
        p('s_mov_b64 exec, -1')
        p('L_notouch:')
    p2_ids(p)
    p('s_and_b32 s12, s3, 1'); p('s_lshl_b32 s12, s12, 2'); p('s_add_u32 s12, s12, s10')
    p('s_mul_i32 s61, s6, 32'); p('s_add_u32 s61, s61, s5'); p(f's_mul_i32 s61, s61, {RST}'); p(f's_add_u32 s61, s61, {INBOX}')
    for i in (1, 2, 3, 0):
        d = 35 + i if i else 39
        p(f's_xor_b32 s{d}, s10, {i}'); p(f's_lshl_b32 s{d}, s{d}, 2'); p(f's_add_u32 s{d}, s{d}, s3'); p(f's_mul_i32 s{d}, s{d}, {3*SZ}')
        p(f's_add_u32 s{d}, s{d}, s61'); p(f's_add_u32 s{d}, s{d}, {I_OFF + (i-1 if i else 0)*SZ}')
    p('s_lshl_b32 s40, s3, 7'); p('s_add_u32 s40, s40, s61'); p(f's_add_u32 s40, s40, {F2_OFF}')
    p('s_lshl_b32 s41, s66, 3'); p('s_add_u32 s41, s41, s12'); p('s_mul_i32 s41, s41, 40960')
    p('s_mul_i32 s13, s6, 1280'); p('s_add_u32 s41, s41, s13'); p('s_lshl_b32 s13, s67, 8'); p('s_add_u32 s41, s41, s13')
    p('s_lshr_b32 s13, s3, 1'); p('s_lshl_b32 s13, s13, 7'); p('s_add_u32 s41, s41, s13')
    p('s_lshl_b32 s42, s10, 3'); p('s_add_u32 s42, s42, s40')
    p('s_add_u32 s43, s39, 4096')
    p('s_add_u32 s48, s39, 8192')
    if SENT == 1:
        p('s_cmp_ge_u32 s5, 30')
        p('s_cbranch_scc1 L_noclr')
        for i in range(4): p(f'v_mov_b32 v{200+i}, -1')
        for k in range(3 * SZ // 1024):
            p(f'buffer_store_dwordx4 v[200:203], v9, s[52:55], s{(39, 43, 48)[k//4]} offen offset:{(k%4)*1024} sc1')
        p('L_noclr:')
    def reads(st, ks):
        L = [f'ds_read_b128 {vr(BF(st,qt))}, v{BADR+ks} offset:{qt*2048}' for qt in range(3)]
        for t in range(8):
            L.append(f'ds_read_b64_tr_b16 {vr(AF(st,t),2)}, v{AADR+t} offset:{ks*8192}')
            L.append(f'ds_read_b64_tr_b16 {vr(AF(st,t)+2,2)}, v{AADR+t} offset:{ks*8192+1024}')
        return L
    def mfmas(st):
        return [f'{MF} {vr(ACC(t,qt))}, {vr(AF(st,t))}, {vr(BF(st,qt))}, {vr(ACC(t,qt))}' for t in range(8) for qt in (range(3) if not (SNAKE and t & 1) else (2, 1, 0))]
    p('s_mov_b32 s14, 1')
    p('s_mov_b32 s15, 0')
    p('s_barrier')
    dstamp(p, 1)
    pro = reads(0, 0)
    for x in pro: p(x)
    _, pend0 = auto_lgkm(pro)
    scal = ['s_add_u32 s14, s14, 1', 's_cmp_eq_u32 s14, 3', 's_cselect_b32 s61, -2, 1', 's_cselect_b32 s14, 0, s14',
            's_mul_i32 s64, s61, 16384', 's_mul_i32 s65, s61, 24576', 's_add_u32 s15, s15, 1', 's_cmp_eq_u32 s15, 10']
    m0_ = mfmas(0); m1 = mfmas(1)
    H1 = spread(m0_[:19], reads(1, 1), per=PER1) + spread(m0_[19:], scal, per=2)
    upd = [f'v_add_u32 v{BADR+i}, s65, v{BADR+i}' for i in range(2)] + [f'v_add_u32 v{AADR+t}, s64, v{AADR+t}' for t in range(8)]
    H2a = interleave(m1[:NA], upd, per=2) + ['s_waitcnt lgkmcnt(0)', 's_barrier']
    H2b = spread(m1[NA:], reads(0, 0), per=PER1)
    if LOWD:
        H1 = reads(1, 1) + (scal + m0_ if LOWD == 2 else spread(m0_, scal))
        H2a = (m1 + upd if LOWD == 2 else interleave(m1, upd, per=1)) + ['s_barrier']
        H2b = reads(0, 0)
        if LOWD == 3:
            H1 = scal + ['s_waitcnt lgkmcnt(0)'] + m0_ + reads(1, 1) + ['s_waitcnt lgkmcnt(0)']
            H2a = m1 + upd + ['s_barrier']
    if BURST:
        r1 = reads(1, 1); r0 = reads(0, 0)
        H1 = r1[:BURST] + spread(m0_[:19], r1[BURST:]) + spread(m0_[19:], scal, per=2)
        H2b = r0[:BURST] + spread(m1[NA:], r0[BURST:])
    if XNOP:
        def addn(L):
            o_ = []; c = 0
            for x in L:
                o_.append(x)
                if x.startswith('v_mfma'):
                    c += 1
                    if c % XNOP == 0: o_.append('s_nop 3')
            return o_
        H1 = addn(H1); H2b = addn(H2b)
    h1, pend = auto_lgkm(H1, pend0)
    h2a, pend_a = auto_lgkm(H2a, pend)
    h2b, _ = auto_lgkm(H2b, pend_a)
    p('L_loop:')
    for x in h1: p(x)
    p('s_cbranch_scc1 L_tail')
    for x in h2a + h2b: p(x)
    p('s_branch L_loop')
    p('L_tail:')
    KFg = list(range(24, 32)) + [40, 41, 42] + list(range(46, 56)) + [32, 33, 34]
    KF = lambda kt, u: G(KFg[kt*4+u])
    QB = lambda u, qt: ACC(2*u, qt)
    Smap = {}
    free_early = [35, 36, 37, 38, 39, 43, 44, 45]
    for kt in range(6): Smap[(kt, 0)] = free_early[kt]
    oddq = lambda qt: [(2*u+1)*3+qt for u in range(4)]
    l1 = oddq(0) + oddq(1)[:2]
    l2 = oddq(1)[2:] + oddq(2)
    for kt in range(6): Smap[(kt, 1)] = l1[kt]; Smap[(kt, 2)] = l2[kt]
    S = lambda kt, qt: G(Smap[(kt, qt)])
    kaddr = [f'v_xor_b32 v{AADR+m}, {m<<5}, v10' for m in range(8)]
    def kread(kt, u):
        return [f'ds_read_b64 {vr(KF(kt,u),2)}, v{AADR+2*u} offset:{kt*4096}', f'ds_read_b64 {vr(KF(kt,u)+2,2)}, v{AADR+2*u+1} offset:{kt*4096}']
    kr = [x for kt in range(6) for u in range(4) for x in kread(kt, u)]
    qcvt = lambda qt: [x for u in range(4) for x in cvt4(QB(u, qt), ACC(2*u, qt), ACC(2*u+1, qt))]
    T = ['s_memrealtime s[70:71]'] + interleave(m1[:NAT], kaddr, per=2) + ['s_waitcnt vmcnt(0) lgkmcnt(0)', 's_barrier']
    T += ['v_mov_b32 v254, s70', 'v_mov_b32 v255, s71', 'v_mov_b32 v253, 0']
    if SENT == 1:
        T += ['s_waitcnt vmcnt(0)', 's_mov_b64 exec, 1', 'buffer_store_dwordx2 v[254:255], v253, s[52:55], s42 offen sc1', 's_mov_b64 exec, -1']
    if STAMPS: T.append(f'{"s_memtime" if CLK else "s_memrealtime"} s[76:77]')
    o, rest = merge(m1[NAT:], kr[:42])
    T += o + rest + kr[42:]
    def smf(qt):
        return [f'{MF} {vr(S(kt,qt))}, {vr(KF(kt,u))}, {vr(QB(u,qt))}, {"0" if u == 0 else vr(S(kt,qt))}' for u in range(4) for kt in range(6)]
    def softmax(qt):
        regs = [S(kt, qt) + r for kt in range(6) for r in range(4)]
        M = 250; Tm = 251; M2 = 249
        L = [f'v_max3_f32 v{M}, v{regs[0]}, v{regs[1]}, v{regs[2]}', f'v_max3_f32 v{M2}, v{regs[3]}, v{regs[4]}, v{regs[5]}']
        for i in range(6, 22, 4):
            L.append(f'v_max3_f32 v{M}, v{M}, v{regs[i]}, v{regs[i+1]}')
            L.append(f'v_max3_f32 v{M2}, v{M2}, v{regs[i+2]}, v{regs[i+3]}')
        L.append(f'v_max3_f32 v{M}, v{M}, v{regs[22]}, v{regs[23]}')
        L.append(f'v_max_f32 v{M}, v{M}, v{M2}')
        L += [f'v_mov_b32 v{Tm}, v{M}', f'v_permlane16_swap_b32 v{M}, v{Tm}', f'v_max_f32 v{M}, v{M}, v{Tm}',
              f'v_mov_b32 v{Tm}, v{M}', f'v_permlane32_swap_b32 v{M}, v{Tm}', f'v_max_f32 v{M}, v{M}, v{Tm}',
              f'v_mul_f32 v{M}, s63, v{M}']
        for u in range(3):
            rr = regs[8*u:8*u+8]
            if PK & 1: L += [f'v_pk_fma_f32 v[{r}:{r+1}], v[{r}:{r+1}], s[50:51], v[{M}:{M+1}] op_sel_hi:[1,0,0] neg_lo:[0,0,1] neg_hi:[0,0,1]' for r in rr[::2]]
            else: L += [f'v_fma_f32 v{r}, v{r}, s63, -v{M}' for r in rr]
            L += [f'v_exp_f32 v{r}, v{r}' for r in rr]
            L += cvt4(S(2*u, qt), S(2*u, qt), S(2*u+1, qt))
        return L
    PB = lambda u, qt: S(2*u, qt)
    VF = lambda t, u: G(KFg[t*3+u])
    T += qcvt(0)
    o, rest = merge(smf(0), qcvt(1) + qcvt(2))
    T += o + rest
    sm0 = softmax(0)
    m12 = smf(1) + smf(2)
    o, rest0 = merge(m12[4:], sm0)
    T += m12[:4] + o + rest0
    T += [f'v_xor_b32 v{AADR+t}, {t<<5}, v11' for t in range(8)]
    t2, _ = auto_lgkm(T, pend)
    for x in t2: p(x)
    dstamp(p, 3)
    p('s_barrier')
    dstamp(p, 4)
    U = []
    for t in range(8):
        for u in range(3):
            U.append(f'ds_read_b64_tr_b16 {vr(VF(t,u),2)}, v{AADR+t} offset:{u*8192}')
            U.append(f'ds_read_b64_tr_b16 {vr(VF(t,u)+2,2)}, v{AADR+t} offset:{u*8192+4096}')
    qbg = [(2*u)*3+qt for u in range(4) for qt in range(3)]
    Og = {0: qbg[:9], 1: qbg[9:] + [44, 45] + [Smap[(1,0)], Smap[(3,0)], Smap[(5,0)]] + [Smap[(1,1)]]}
    Og[2] = [Smap[(0,0)], Smap[(2,0)], Smap[(4,0)], Smap[(3,1)], Smap[(5,1)], Smap[(1,2)], Smap[(3,2)], Smap[(5,2)], Smap[(0,1)]]
    OA = lambda t, qt: G(Og[qt][t])
    def pv(qt):
        L = []
        for u in range(3):
            L.append(f'{MF} {vr(OA(8,qt))}, v[12:15], {vr(PB(u,qt))}, {"0" if u == 0 else vr(OA(8,qt))}')
        for t2_ in range(0, 8, 2):
            for u in range(3):
                for t in (t2_, t2_+1):
                    L.append(f'{MF} {vr(OA(t,qt))}, {vr(VF(t,u))}, {vr(PB(u,qt))}, {"0" if u == 0 else vr(OA(t,qt))}')
        return L
    def onorm(qt):
        l = OA(8, qt)
        L = [f'v_rcp_f32 v{l}, v{l}']
        for v in range(4):
            a0 = OA(2*v, qt); a1 = OA(2*v+1, qt)
            L += [f'v_mul_f32 v{a+r}, v{a+r}, v{l}' for a in (a0, a1) for r in range(4)]
            L += cvt4(a0, a0, a1)
            L.append(f's_add_u32 s14, s62, {v*48*1024}')
            L.append(f'buffer_store_dwordx4 {vr(a0)}, v9, s[52:55], s14 offen offset:{qt*1024} {OFL}')
        return L
    sm1 = softmax(1); sm2 = softmax(2)
    if HALF:
        Lg = [44, 45, Smap[(1,0)]]
        Bg = [Smap[(3,0)], Smap[(5,0)], Smap[(1,1)], Smap[(3,1)], Smap[(5,1)], Smap[(1,2)], Smap[(3,2)], Smap[(5,2)]] + KFg[:4]
        OH = lambda t, qt: G(qbg[qt*4+t]) if t < 4 else G(Bg[qt*4+t-4])
        def pvh(h, qt):
            L = []
            if h == 0:
                l = G(Lg[qt])
                L += [f'{MF} {vr(l)}, v[12:15], {vr(PB(u,qt))}, {"0" if u == 0 else vr(l)}' for u in range(3)]
            for t2_ in (4*h, 4*h+2):
                for u in range(3):
                    for t in (t2_, t2_+1):
                        L.append(f'{MF} {vr(OH(t,qt))}, {vr(VF(t,u))}, {vr(PB(u,qt))}, {"0" if u == 0 else vr(OH(t,qt))}')
            return L
        def nrm(h, qt):
            l = G(Lg[qt])
            L = [f'v_rcp_f32 v{l}, v{l}'] if h == 0 else []
            for v in (2*h, 2*h+1):
                a0 = OH(2*v, qt); a1 = OH(2*v+1, qt)
                if PK & 2: L += [f'v_pk_mul_f32 v[{a+r}:{a+r+1}], v[{a+r}:{a+r+1}], v[{l}:{l+1}] op_sel_hi:[1,0]' for a in (a0, a1) for r in (0, 2)]
                else: L += [f'v_mul_f32 v{a+r}, v{a+r}, v{l}' for a in (a0, a1) for r in range(4)]
                L += cvt4(a0, a0, a1)
                L.append(f's_add_u32 s14, s62, {v*48*1024}')
                L.append(f'buffer_store_dwordx4 {vr(a0)}, v9, s[52:55], s14 offen offset:{qt*1024} {OFL}')
            return L
        flagA = lambda k: [f's_waitcnt vmcnt({k})', 's_mov_b64 exec, 1', 'buffer_store_dwordx2 v[254:255], v253, s[52:55], s69 offen sc1', 's_mov_b64 exec, -1']
        vrdB = U[24:]; U = U[:24]
        o, rest = merge(pvh(0, 0), sm1); U += o + rest
        o, rest = merge(pvh(0, 1), sm2); U += o + rest
        o, rest = merge(pvh(0, 2), nrm(0, 0) + nrm(0, 1)); U += o + vrdB + rest
        o, rest = merge(pvh(1, 0), nrm(0, 2)); U += o + rest
        o, rest = merge(pvh(1, 1), nrm(1, 0)); U += o + rest
        if FAPOS == 1: U += flagA(2)
        o, rest = merge(pvh(1, 2), nrm(1, 1)); U += o + rest
        if FAPOS == 2: U += flagA(4)
        U += nrm(1, 2)
        if FAPOS == 3: U += flagA(6)
    if not HALF:
        o, rest = merge(pv(0), sm1)
        U += o + rest
    if HALF: pass
    elif OEARLY:
        o, rest = merge(pv(1), onorm(0) + sm2)
        U += o + rest
        o, rest = merge(pv(2), onorm(1))
        U += o + rest
    else:
        o, rest = merge(pv(1), sm2)
        U += o + rest
        o, rest = merge(pv(2), onorm(0) + onorm(1))
        U += o + rest
    if not HALF: U += onorm(2)
    u2, _ = auto_lgkm(U, [])
    for x in u2: p(x)
    dstamp(p, 5)
    p('s_barrier')
    A2 = lambda i, t: 16 + (i*4+t)*4
    FA = lambda st, t: 80 + st*32 + t*4
    FBq = lambda st, i: 96 + st*32 + i*4
    p('s_lshr_b32 s13, s3, 1'); p('s_lshl_b32 s13, s13, 7')
    p(f'v_add_u32 v8, {WO_L}, v6')
    p('v_xor_b32 v8, s13, v8')
    for t in range(4): p(f'v_xor_b32 v{AADR+t}, {t<<5}, v8')
    if UNR:
        for t in range(4): p(f'v_add_u32 v{232+t}, 0x10000, v{AADR+t}')
    p('s_lshl_b32 s13, s12, 10')
    p(f'v_add_u32 v8, s13, v9')
    for i in range(4): p(f'v_xor_b32 v{AADR+4+i}, {i<<10}, v8')
    p('v_lshlrev_b32 v248, 3, v2')
    p('v_mul_u32_u24 v7, 2560, v4')
    p('v_lshl_add_u32 v7, v3, 3, v7')
    def lastflag():
        p('s_waitcnt vmcnt(0)')
        p('s_mov_b64 exec, 1')
        p(f'buffer_store_dwordx2 v[254:255], v253, s[52:55], s69 offen offset:{1024 if HALF else 0} sc1')
        p('s_mov_b64 exec, -1')
        dstamp(p, 6)
    if not HALF:
        lastflag()
        p('s_cmp_ge_u32 s5, 30')
        p('s_cbranch_scc1 L_cdone')
        p('s_barrier')
    else:
        p('s_cmp_lt_u32 s5, 30')
        p('s_cbranch_scc1 L_act')
        lastflag()
        p('s_branch L_cdone')
        p('L_act:')
    if SENT == 2:
        for i in range(4): p(f'v_mov_b32 v{200+i}, -1')
        for k in range(3 * SZ // 1024):
            p(f'buffer_store_dwordx4 v[200:203], v9, s[52:55], s{(39, 43, 48)[k//4]} offen offset:{(k%4)*1024} sc1')
    p('s_barrier')
    if HALF: lastflag()
    if SENT in (1, 3):
        p('s_mov_b64 exec, 15')
        p('buffer_load_dwordx2 v[250:251], v248, s[52:55], s40 offen sc1')
        p('s_mov_b64 exec, -1')
    SR = 144
    if TAGS:
        p('s_mov_b32 s13, 0x01010101')
        p('v_mul_lo_u32 v236, v2, s13')
        p('v_add_u32 v237, s96, v236')
        p('v_add_u32 v236, s70, v236')
        for k in range(9): p(f'v_mov_b32 v{SR+4*k+3}, v236')
        for i in range(3): p(f'v_mov_b32 v{SR+12*i+10}, 0')
    for i in range(64): p(f'v_mov_b32 v{16+i}, 0')
    def reads2(st, kk, stage=0):
        oo = (stage % NOS) * 16384 + kk*8192
        wo_ = (stage % NWS) * 16384 + kk*8192
        ab = AADR if wo_ < 65536 else 232
        wo_ &= 0xffff
        L = [f'ds_read_b128 {vr(FBq(st,0))}, v{AADR+4} offset:{oo}']
        for t in range(4):
            L.append(f'ds_read_b64_tr_b16 {vr(FA(st,t),2)}, v{ab+t} offset:{wo_}')
            L.append(f'ds_read_b64_tr_b16 {vr(FA(st,t)+2,2)}, v{ab+t} offset:{wo_+4096}')
        L += [f'ds_read_b128 {vr(FBq(st,i))}, v{AADR+4+i} offset:{oo}' for i in range(1, 4)]
        if DIAG: L = [L[k] for k in (0, 1, 2, 3, 4, 9, 5, 6, 10, 7, 8, 11)]
        return L
    DORD = [(0,0),(0,1),(1,1),(1,0),(0,2),(1,2),(2,2),(2,1),(2,0),(0,3),(1,3),(2,3),(3,3),(3,2),(3,1),(3,0)]
    def mfd(st): return [f'{MF} {vr(A2(i,t))}, {vr(FA(st,t))}, {vr(FBq(st,i))}, {vr(A2(i,t))}' for i, t in DORD]
    def mf2(st):
        return [f'{MF} {vr(A2(i,t))}, {vr(FA(st,t))}, {vr(FBq(st,i))}, {vr(A2(i,t))}' for i in range(4) for t in (range(4) if not (SNAKE and i & 1) else (3, 2, 1, 0))]
    p('s_mov_b32 s14, 0')
    p('s_mov_b32 s15, 0')
    p('s_barrier')
    dstamp(p, 7)
    pro = reads2(0, 0)
    for x in pro: p(x)
    _, pend0 = auto_lgkm(pro)
    p('s_mov_b32 s13, 0')
    scal = ['s_add_u32 s14, s14, 1', f's_cmp_eq_u32 s14, {NWS}', f's_cselect_b32 s61, {1-NWS}, 1', 's_cselect_b32 s14, 0, s14', 's_lshl_b32 s64, s61, 14',
            's_add_u32 s13, s13, 1', f's_cmp_eq_u32 s13, {NOS}', f's_cselect_b32 s61, {1-NOS}, 1', 's_cselect_b32 s13, 0, s13', 's_lshl_b32 s65, s61, 14',
            's_add_u32 s15, s15, 1', 's_cmp_eq_u32 s15, 16']
    if ORC: scal = scal[-2:]
    n0 = mf2(0); n1 = mf2(1)
    H1 = spread(n0[:12], reads2(1, 1)) + spread(n0[12:], scal, per=3)
    upd = [f'v_add_u32 v{AADR+4+i}, s65, v{AADR+4+i}' for i in range(4)] + [f'v_add_u32 v{AADR+t}, s64, v{AADR+t}' for t in range(4)]
    if ORC: upd = upd[:ORC-1]
    H2a = interleave(n1[:4], upd, per=2) + ['s_waitcnt lgkmcnt(0)', 's_barrier']
    H2b = spread(n1[4:], reads2(0, 0))
    h1, pend = auto_lgkm(H1, pend0)
    h2a, pend_a = auto_lgkm(H2a, pend)
    h2b, _ = auto_lgkm(H2b, pend_a)
    if UNR:
        import math
        per_ = min(NWS * NOS // math.gcd(NWS, NOS), 16)
        exit_at = 15 % per_
        npass = 15 // per_
        p('L_loop2:')
        for j in range(per_):
            sc = []
            if j == exit_at and per_ < 16: sc = [f's_cmp_eq_u32 s15, {npass}']
            if DIAG:
                d0 = mfd(0); r_ = reads2(1, 1, j)
                seq_ = ['s_waitcnt lgkmcnt(6)'] + spread(d0[:4], r_[:4]) + ['s_waitcnt lgkmcnt(7)'] + spread(d0[4:9], r_[4:9]) + ['s_waitcnt lgkmcnt(9)'] + spread(d0[9:12], r_[9:]) + spread(d0[12:], sc)
            else: seq_ = spread(n0[:12], reads2(1, 1, j)) + spread(n0[12:], sc)
            hh1, pend = auto_lgkm(seq_, pend0)
            for x in hh1: p(x)
            if j == exit_at:
                if per_ < 16: p('s_cbranch_scc1 L_tail2')
                else: break
            sc = ['s_add_u32 s15, s15, 1'] if j == per_ - 1 else []
            d1 = mfd(1) if DIAG else n1
            hh2, _ = auto_lgkm((['s_waitcnt lgkmcnt(6)'] if DIAG else []) + spread(d1[:NB2], sc) + ['s_waitcnt lgkmcnt(0)', 's_barrier'] + spread(d1[NB2:], reads2(0, 0, j + 1)), pend)
            for x in hh2: p(x)
        if per_ < 16: p('s_branch L_loop2')
    else:
        p('L_loop2:')
        for x in h1: p(x)
        p('s_cbranch_scc1 L_tail2')
        for x in h2a + h2b: p(x)
        if SENT == 2:
            p('s_and_b32 s61, s15, 7')
            p('s_cmp_lg_u32 s61, 3')
            p('s_cbranch_scc1 L_loop2')
            p('s_cmp_eq_u32 s15, 3')
            p('s_cbranch_scc0 L_ev11')
            p('s_waitcnt vmcnt(0)')
            p('s_mov_b64 exec, 1')
            p('buffer_store_dwordx2 v[254:255], v253, s[52:55], s42 offen sc1')
            p('s_mov_b64 exec, -1')
            p('s_branch L_loop2')
            p('L_ev11:')
            p('s_mov_b64 exec, 15')
            p('buffer_load_dwordx2 v[250:251], v248, s[52:55], s40 offen sc1')
            p('s_mov_b64 exec, -1')
        p('s_branch L_loop2')
    p('L_tail2:')
    last = [n1[i*4+t] for i in (1, 2, 3, 0) for t in range(4)]
    chk = []
    if SENT:
        chk = ['s_waitcnt vmcnt(0)', 's_mov_b64 exec, 15', 'v_cmp_gt_u64 vcc, s[96:97], v[250:251]', 'v_cmp_lt_u64 s[100:101], s[98:99], v[250:251]',
               's_mov_b64 exec, -1', 's_or_b64 vcc, vcc, s[100:101]']
        for x in chk: p(x)
        p('s_cbranch_scc0 L_rdy')
        poll_flags(p, 'L_pf2', 248, 250, 's40', '15')
        p('L_rdy:')
    def send(i):
        L = []
        if PF32:
            L += [f'buffer_store_dwordx4 {vr(A2(i,t))}, v9, s[52:55], s{35+i} offen offset:{t*1024} {PFL}' for t in range(4)]
        elif TAGS:
            b0 = SR + 12*(i-1)
            for k in range(8):
                a = A2(i, k >> 1) + 2*(k & 1)
                L.append(f'v_cvt_pk_bf16_f32 v{b0 + 4*(k//3) + k%3}, v{a}, v{a+1}')
                if k in (2, 5, 7):
                    L.append(f'buffer_store_dwordx4 {vr(b0 + 4*(k//3))}, v9, s[52:55], s{35+i} offen offset:{(k//3)*1024} {PFL}')
        else:
            for hf in range(2):
                L += cvt4(A2(i, 2*hf), A2(i, 2*hf), A2(i, 2*hf+1))
                L.append(f'buffer_store_dwordx4 {vr(A2(i,2*hf))}, v9, s[52:55], s{35+i} offen offset:{hf*1024} {PFL}')
        return L
    seq = last[:8] + spread(last[8:12], send(1), per=3) + spread(last[12:], send(2), per=3) + send(3)
    tl, _ = auto_lgkm(seq, pend)
    for x in tl: p(x)
    dstamp(p, 8)
    R = 80
    nld = 3 * SZ // 1024
    def loads():
        for k in range(nld):
            p(f'buffer_load_dwordx4 {vr(R+4*k)}, v9, s[52:55], s{(39, 43, 48)[k//4]} offen offset:{(k%4)*1024} sc1')
    if TAGS:
        p(f's_mov_b32 s9, {SPIN_MAX}')
        p('s_mov_b32 s13, 0x100000')
        if TAGS == 2:
            p('v_mul_u32_u24 v238, 3072, v2')
            p('s_mov_b64 exec, 7')
            p('L_lp:')
            p('buffer_load_dword v250, v238, s[52:55], s39 offen offset:2060 sc1')
            p('s_waitcnt vmcnt(0)')
            p('v_subrev_u32 v250, s96, v250')
            p('v_cmp_le_u32 vcc, s13, v250')
            p('s_cbranch_vccz L_lp_ok')
            p(f's_sleep {PSLEEP}')
            p('s_sub_u32 s9, s9, 1')
            p('s_cmp_gt_u32 s9, 1')
            p('s_cbranch_scc1 L_lp')
            p('L_lp_ok:')
            p('s_mov_b64 exec, -1')
        p('L_rx:')
        loads()
        for i in range(3):
            p(f's_waitcnt vmcnt({6 - 3*i})')
            t0 = R + 12*i + 3
            p(f'v_xor_b32 v250, v{t0}, v{t0+4}')
            p(f'v_xor_b32 v251, v{t0}, v{t0+8}')
            if i == 0:
                p('v_or_b32 v252, v250, v251'); p(f'v_sub_u32 v249, v{t0}, v237')
            else:
                p('v_or3_b32 v252, v252, v250, v251'); p(f'v_sub_u32 v250, v{t0}, v237'); p('v_max_u32 v249, v249, v250')
        p('v_cmp_ne_u32 vcc, 0, v252')
        p('v_cmp_le_u32 s[100:101], s13, v249')
        p('s_or_b64 vcc, vcc, s[100:101]')
        p('s_cbranch_scc0 L_rx_ok')
        if SSLEEP: p(f's_sleep {SSLEEP}')
        p('s_sub_u32 s9, s9, 1')
        p('s_cmp_lg_u32 s9, 0')
        p('s_cbranch_scc1 L_rx')
        p('L_rx_ok:')
        dstamp(p, 9); dstamp(p, 10)
    elif SENT:
        p(f's_mov_b32 s9, {SPIN_MAX}')
        p('L_rx:')
        loads()
        n = nld * 4
        for k in range(nld):
            p(f's_waitcnt vmcnt({nld-1-k})')
            b_ = R + 4*k
            if k == 0:
                p(f'v_max3_u32 v252, v{b_}, v{b_+1}, v{b_+2}'); p(f'v_max_u32 v252, v252, v{b_+3}')
            else:
                p(f'v_max3_u32 v252, v252, v{b_}, v{b_+1}'); p(f'v_max3_u32 v252, v252, v{b_+2}, v{b_+3}')
        p('v_cmp_eq_u32 vcc, -1, v252')
        p('s_cbranch_vccz L_rx_ok')
        if SSLEEP: p(f's_sleep {SSLEEP}')
        p('s_sub_u32 s9, s9, 1')
        p('s_cmp_lg_u32 s9, 0')
        p('s_cbranch_scc1 L_rx')
        p('L_rx_ok:')
        dstamp(p, 9); dstamp(p, 10)
    else:
        p('s_waitcnt vmcnt(0)')
        p('s_mov_b64 exec, 1')
        p('buffer_store_dwordx2 v[254:255], v253, s[52:55], s42 offen sc1')
        dstamp(p, 9)
        p('s_lshl_b32 s14, 1, s10'); p('s_xor_b32 s14, s14, 15'); p('s_mov_b32 s15, 0')
        poll_flags(p, 'L_pf2', 248, 250, 's40', 's[14:15]')
        dstamp(p, 10)
        loads()
    for i in range(3):
        if PF32:
            if not SENT: p(f's_waitcnt vmcnt({nld - 4*(i+1)})')
            for t in range(4):
                for r in range(4):
                    p(f'v_add_f32 v{A2(0,t)+r}, v{A2(0,t)+r}, v{R+16*i+4*t+r}')
        else:
            if not SENT and not TAGS: p(f's_waitcnt vmcnt({nld - 2*(i+1)})')
            for t in range(4):
                for r2 in range(2):
                    src = R + 8*i + 2*t + r2
                    if TAGS:
                        k = 2*t + r2; src = R + 12*i + 4*(k//3) + k%3
                    p(f'v_lshlrev_b32 v250, 16, v{src}')
                    p(f'v_and_b32 v251, 0xffff0000, v{src}')
                    p(f'v_add_f32 v{A2(0,t)+2*r2}, v{A2(0,t)+2*r2}, v250')
                    p(f'v_add_f32 v{A2(0,t)+2*r2+1}, v{A2(0,t)+2*r2+1}, v251')
    for t in range(4):
        a = A2(0, t)
        p(f'v_cvt_pk_bf16_f32 v{a}, v{a}, v{a+1}')
        p(f'v_cvt_pk_bf16_f32 v{a+1}, v{a+2}, v{a+3}')
        p(f'buffer_store_dwordx2 {vr(a,2)}, v7, s[44:47], s41 offen offset:{t*32}')
    if STAMPS:
        p('s_waitcnt vmcnt(0)')
        dstamp(p, 11)
    p('L_cdone:')
    flush_stamps(p, 12, 0, 0, 'L_fsC')
    p('L_end:')
    p('s_endpgm')
    return p.finalize()

if __name__ == '__main__':
    out = HDR
    out += '; @launch grid=(256,1,1) block=(512,1,1) lds=163840\n'
    out += '.amdgcn_target "amdgcn-amd-amdhsa--gfx950"\n.text\n'
    out += gen() + '\n'
    out += '.section .rodata,"a"\n' + kd(NAME + '_kernel', 256, 102)
    print(out)
```

```python
from common import *
from asmlib import auto_lgkm as _al
CAP = opt('cap', 8)
def auto_lgkm(l, pnd=None): return _al(l, pnd, CAP)
XFL = opt('xfl', 'none').replace('none', '')
WFL2 = opt('wfl2', 'none').replace('none', '')
OFL = opt('ofl', 'sc1').replace('none', '').replace('_', ' ')
ORFL = opt('orfl', 'sc1').replace('none', '').replace('_', ' ')
LAG = opt('lag', 7)
PATA = opt('pata', 's0 s1 s2 s3 K1 s4 s5 Kb ka s6 s7 v0 s8 s9 v1 Wa Wb').replace('_', ' ')
PATB = opt('patb', 's0 s1 s2 s3 K1 s4 s5 Kb ka s6 s7 v0 s8 s9 v1 Wa Wb').replace('_', ' ')
PATSEL = opt('patsel', 6)
if opt('sent', 0) == 3 and 'Z' not in PATA: PATA += ' Z'; PATB += ' Z'
NA = opt('na', 5)
PF32 = opt('pf32', 0)
LPRIO = opt('lprio', 0)
FWARM = opt('fwarm', 3)
DEFER = opt('defer', 4)
FSPLIT = opt('fsplit', 8)
POLLF = opt('pollf', 'sc1').replace('_', ' ')
FLAGF = opt('flagf', 'sc1').replace('_', ' ')
PUB = opt('pub', 1)
assert not (opt('early', 0) and opt('lowd', 3) != 3)
WLAG = opt('wlag', 10)
ORC = opt('orc', 0)
PK = opt('pk', 0)
LOWD = opt('lowd', 3)
EARLY = opt('early', 0)
LAG0 = opt('lag0', 7)
LAGE = opt('lage', 5)
SNAKE = opt('snake', 1)
NAT = opt('nat', 5)
BURST = opt('burst', 0)
PER1 = opt('per1', 1)
XNOP = opt('xnop', 0)
HALF = opt('half', 1)
FAPOS = opt('fapos', 1)
SENT = opt('sent', 0)
SSLEEP = opt('ssleep', 1)
PFS = opt('pfs', 0)
PF0 = opt('pf0', 0)
PFN = opt('pfn', 10)
FAKEWO = opt('fakewo', 0)
NOPOLL = opt('nopoll', 0)
FASTP = opt('fastp', 0)
WOFL = opt('wofl', 'none').replace('none', '')
WOFL2 = opt('wofl2', 'none').replace('none', '')
PFL = opt('pfl', 'sc1').replace('_', ' ')
CPF2 = opt('cpf2', 5)
WOA = opt('woa', 0)
WOB = opt('wob', 0)
ROT2 = opt('rot2', 0)
CPF = opt('cpf', 0)
ROT = opt('rot', 1)
RB = opt('rb', '0358')
RH = opt('rh', '03581469')
OEARLY = opt('oearly', 1)
KVFL = opt('kvfl', 'nt').replace('none', '')
TICKET = opt('ticket', 0)
CFL = opt('cfl', 'none').replace('none', '')
PSLEEP = opt('psleep', 2)
XS, WS_, SP = 0, 73728, 122880
KB0 = SP - 8192; KB1 = KB0 + 24576
VB0 = XS + 2*24576; VB1 = XS
NWS = opt('nws', 6); NOS = opt('nos', 4)
CPF3 = opt('cpf3', 8)
UNR = opt('unr', 1)
DIAG = opt('diag', 1)
NB2 = opt('nb2', 4)
O_L = 0; WO_L = NOS * 16384
NE = opt('ne', 0); N1 = opt('n1', 6); N2 = opt('n2', 0); LAG2 = opt('lag2', 16)
FS1 = opt('fs1', 3); FS2 = opt('fs2', 7)
FBO = 1024 if FS1 == 3 else 8
GST = 1572864 + 28672
O_OFF = 4096; F1_OFF = O_OFF + 1572864; GT_OFF = F1_OFF + 20480
INBOX = 16 << 20
TAGS = opt('tags', 0)
SZ = 4096 if PF32 else (3072 if TAGS else 2048)
assert not (TAGS and (PF32 or opt('sent', 0)))
RST = 48 * SZ + 4096
I_OFF = 1024; F2_OFF = I_OFF + 48 * SZ; RT_OFF = F2_OFF + 2048
WS_SIZE = 48 << 20
TOUCH = opt('touch', 0)
MF = 'v_mfma_f32_16x16x32_bf16'
SPIN_MAX = 1 << 24

def dstamp(p, k):
    if STAMPS: p(f'{"s_memtime" if CLK else "s_memrealtime"} s[{72+2*k}:{73+2*k}]')
def flush_stamps(p, n, base_idx, wave, lbl):
    if not STAMPS: return
    p(f's_cmp_lg_u32 s3, {wave}'); p(f's_cbranch_scc1 {lbl}')
    p('s_waitcnt lgkmcnt(0) vmcnt(0)')
    p('v_mov_b32 v1, 0')
    p('s_mov_b64 exec, 1')
    for k in range(n):
        p(f'v_mov_b32 v{4+2*k}, s{72+2*k}'); p(f'v_mov_b32 v{5+2*k}, s{73+2*k}')
        p(f'buffer_store_dwordx2 v[{4+2*k}:{5+2*k}], v1, s[56:59], s60 offen offset:{(base_idx+k)*8}')
    p('s_waitcnt vmcnt(0)')
    p(f'{lbl}:')
def poll_flags(p, lbl, vaddr, vtmp, soff, maskreg):
    p(f's_mov_b32 s9, {SPIN_MAX}')
    p(f's_mov_b64 exec, {maskreg}')
    p(f'{lbl}:')
    p(f'buffer_load_dwordx2 v[{vtmp}:{vtmp+1}], v{vaddr}, s[52:55], {soff} offen {POLLF}')
    p('s_waitcnt vmcnt(0)')
    p(f'v_cmp_gt_u64 vcc, s[96:97], v[{vtmp}:{vtmp+1}]')
    p(f'v_cmp_lt_u64 s[100:101], s[98:99], v[{vtmp}:{vtmp+1}]')
    p('s_or_b64 vcc, vcc, s[100:101]')
    p(f's_cbranch_scc0 {lbl}_ok')
    p(f's_sleep {PSLEEP}')
    p('s_sub_u32 s9, s9, 1')
    p('s_and_b32 s100, s9, 127')
    p(f's_cbranch_scc1 {lbl}')
    p('s_lshl_b32 s100, s6, 7')
    p('s_load_dwordx2 s[100:101], s[34:35], s100 glc')
    p('s_waitcnt lgkmcnt(0)')
    p('s_cmp_eq_u64 s[100:101], 0')
    p(f's_cbranch_scc1 {lbl}_nz')
    p('s_not_b64 s[96:97], s[100:101]')
    p(f'{lbl}_nz:')
    p('s_cmp_lg_u32 s9, 0')
    p(f's_cbranch_scc1 {lbl}')
    p(f'{lbl}_ok:')
    p('s_mov_b64 exec, -1')

def cvt4(d, a0, a1):
    return [f'v_cvt_pk_bf16_f32 v{d}, v{a0}, v{a0+1}', f'v_cvt_pk_bf16_f32 v{d+1}, v{a0+2}, v{a0+3}',
            f'v_cvt_pk_bf16_f32 v{d+2}, v{a1}, v{a1+1}', f'v_cvt_pk_bf16_f32 v{d+3}, v{a1+2}, v{a1+3}']
def spread(main, fill, extra=(), per=1):
    out = []; fi = 0; ei = 0
    for m in main:
        out.append(m)
        for _ in range(per):
            if fi < len(fill): out.append(fill[fi]); fi += 1
        if ei < len(extra): out.append(extra[ei]); ei += 1
    return out + list(fill[fi:]) + list(extra[ei:])

def p2_ids(p):
    p('s_mul_i32 s66, s5, 52'); p('s_lshr_b32 s66, s66, 8')
    p('s_mul_i32 s67, s66, 5'); p('s_sub_u32 s67, s5, s67')
    p('s_and_b32 s10, s4, 3')

def gen():
    p = Prog()
    K1 = NAME + '_kernel'
    p(f'.globl {K1}\n.p2align 8\n.type {K1},@function\n{K1}:')
    p('s_cmp_ge_u32 s2, 256')
    p('s_cbranch_scc1 L_end')
    p('s_load_dwordx8 s[16:23], s[0:1], 0')
    p('s_memrealtime s[96:97]')
    p('s_load_dwordx8 s[24:31], s[0:1], 40')
    p('s_load_dwordx4 s[32:35], s[0:1], 88')
    dstamp(p, 0)
    p('v_lshrrev_b32 v1, 6, v0')
    p('v_and_b32 v2, 63, v0')
    p('v_readfirstlane_b32 s3, v1')
    if TICKET:
        p('v_mov_b32 v5, 0')
        p('s_cmp_lg_u32 s3, 0')
        p('s_cbranch_scc1 L_tk_wait')
        p('s_getreg_b32 s4, hwreg(HW_REG_XCC_ID)')
        p('s_and_b32 s4, s4, 7')
        p('s_waitcnt lgkmcnt(0)')
        p('L_tk_try:')
        p('s_lshl_b32 s5, s4, 5')
        p('s_add_u32 s5, s5, 16')
        p('s_mov_b32 s6, 1')
        p('s_atomic_add s6, s[32:33], s5 glc')
        p('s_waitcnt lgkmcnt(0)')
        p('s_cmp_lt_u32 s6, 32')
        p('s_cbranch_scc1 L_tk_ok')
        p('s_add_u32 s4, s4, 1')
        p('s_and_b32 s4, s4, 7')
        p('s_branch L_tk_try')
        p('L_tk_ok:')
        p('s_lshl_b32 s6, s6, 3')
        p('s_add_u32 s6, s6, s4')
        p('v_mov_b32 v6, s6')
        p('ds_write_b32 v5, v6')
        p('s_waitcnt lgkmcnt(0)')
        p('L_tk_wait:')
        p('s_barrier')
        p('ds_read_b32 v6, v5')
        p('s_waitcnt lgkmcnt(0)')
        p('v_readfirstlane_b32 s2, v6')
        p('s_barrier')
        p('s_and_b32 s2, s2, 255')
    p('s_and_b32 s4, s2, 7')
    p('s_lshr_b32 s5, s2, 3')
    p('s_lshr_b32 s6, s4, 2')
    p('s_and_b32 s7, s4, 3')
    p('s_lshl_b32 s7, s7, 3')
    p('s_and_b32 s66, s5, 7')
    p('s_add_u32 s7, s7, s66')
    p('s_lshr_b32 s8, s5, 3')
    p('v_lshrrev_b32 v3, 4, v2')
    p('v_and_b32 v4, 15, v2')
    p('s_cmp_lt_u32 s3, 4')
    p('s_cbranch_scc1 L_compute')
    if LPRIO: p(f's_setprio {LPRIO}')
    p('s_and_b32 s11, s3, 3')
    p('v_lshrrev_b32 v5, 3, v2')
    p('s_lshl_b32 s12, s11, 3')
    p('v_add_u32 v5, s12, v5')
    p('v_mul_u32_u24 v5, 1280, v5')
    p('s_and_b32 s12, s11, 1')
    p('s_lshl_b32 s12, s12, 2')
    p('v_add_u32 v6, s12, v3')
    p('v_and_b32 v7, 7, v2')
    p('v_xor_b32 v7, v7, v6')
    p('v_lshl_add_u32 v11, v7, 4, v5')
    p('v_lshlrev_b32 v6, 1, v6')
    p('v_xor_b32 v8, v6, v4')
    p('s_lshl_b32 s12, s11, 2')
    p('v_add_u32 v5, s12, v3')
    p('s_lshr_b32 s12, s11, 1')
    p('s_lshl_b32 s12, s12, 2')
    p('v_add_u32 v6, s12, v3')
    p('v_lshlrev_b32 v6, 1, v6')
    p('v_xor_b32 v6, v6, v4')
    p('v_lshlrev_b32 v7, 13, v5')
    p('v_lshl_add_u32 v12, v6, 4, v7')
    p('s_lshl_b32 s13, s11, 10')
    tb = sum(int(c) << (4*i) for i, c in enumerate(RB)); th = sum(int(c) << (4*i) for i, c in enumerate(RH))
    p('s_lshl_b32 s69, s8, 2'); p(f's_lshr_b32 s69, {tb:#x}, s69'); p('s_and_b32 s69, s69, 15')
    p('s_lshl_b32 s70, s66, 2'); p(f's_lshr_b32 s70, {th:#x}, s70'); p('s_and_b32 s70, s70, 15')
    p('s_add_u32 s69, s69, s70')
    p('s_cmp_ge_u32 s69, 10'); p('s_cselect_b32 s71, 10, 0'); p('s_sub_u32 s69, s69, s71')
    p('s_mul_i32 s9, s8, 245760')
    p('s_lshl_b32 s10, s7, 8')
    p('s_waitcnt lgkmcnt(0)')
    p('s_cmp_eq_u32 s6, 0')
    for i in range(4):
        p(f's_cselect_b64 s[{16+2*i}:{17+2*i}], s[{16+2*i}:{17+2*i}], s[{24+2*i}:{25+2*i}]')
    p('s_add_u32 s36, s16, s9'); p('s_addc_u32 s37, s17, 0')
    p('s_mov_b32 s38, 245760'); p('s_mov_b32 s39, 0x20000')
    p('s_add_u32 s40, s22, s10'); p('s_addc_u32 s41, s23, 0')
    p('s_sub_u32 s42, 5242880, s10'); p('s_mov_b32 s43, 0x20000')
    def late_setup(p):
        p('v_lshlrev_b32 v7, 8, v5')
        p('v_lshl_add_u32 v13, v8, 4, v7')
        p('v_xor_b32 v6, v4, v5')
        p('v_lshl_add_u32 v10, v6, 4, v7')
        p('s_lshl_b32 s12, s8, 6'); p('s_add_u32 s12, s12, s7'); p('s_mul_i32 s12, s12, 24576')
        p('s_add_u32 s44, s18, s12'); p('s_addc_u32 s45, s19, 0')
        p(f's_mov_b32 s46, {786432+24576}'); p('s_mov_b32 s47, 0x20000')
        p('s_add_u32 s48, s20, s12'); p('s_addc_u32 s49, s21, 0')
        p(f's_mov_b32 s50, {786432+24576}'); p('s_mov_b32 s51, 0x20000')
        p(f's_load_dwordx2 s[16:17], s[0:1], {0 if FAKEWO else 32}')
        p(f's_load_dwordx2 s[18:19], s[0:1], {40 if FAKEWO else 72}')
        srd(p, 52, 34, 35, WS_SIZE)
        p('s_mov_b32 s98, s96'); p('s_add_u32 s99, s97, 1')
        stamp_setup(p, 34, 35)
        p('s_mov_b64 s[34:35], s[32:33]')
        if CPF2 >= 0:
            p('s_getpc_b64 s[22:23]')
            p('L_pc2:')
            p('s_lshl_b32 s9, s5, 2'); p('s_add_u32 s9, s9, s11'); p('s_lshl_b32 s9, s9, 8')
            p(f's_min_u32 s9, s9, L_end-L_ld2-192')
            p(f's_add_u32 s9, s9, L_ld2-L_pc2')
            p('s_add_u32 s22, s22, s9'); p('s_addc_u32 s23, s23, 0')
        p('s_not_b64 s[20:21], s[96:97]')
        p('s_lshl_b32 s67, s6, 7')
        p('s_lshl_b32 s68, s11, 3')
        if PUB == 1: p('s_add_u32 s68, s68, s66')

    afterV = []
    def loader(pat, tag):
        p = Prog()
        stream = []
        for w in pat.split():
            if w[0] == 's': stream += [('x' + w[1:], m) for m in range(6)] + [('w' + w[1:], m) for m in range(4)]
            elif w[0] in 'xw': stream += [(w, m) for m in range(6 if w[0] == 'x' else 4)]
            elif w == 'ka': stream += [('k0', m) for m in range(2)]
            elif w == 'Z': stream += [('Z0', m) for m in range(3 * SZ // 1024)]
            elif w == 'Wa': stream += [('W0', m) for m in range(5)]
            elif w == 'Wb': stream += [('W0', m) for m in range(5, 10)]
            elif w == 'Ka': stream += [('K0', m) for m in range(2)]
            elif w == 'Kb': stream += [('K0', m) for m in range(2, 6)]
            else: stream += [(w, m) for m in range(6)]
        n = len(stream)
        end = {}
        for i, (it, m) in enumerate(stream):
            if it[0] in 'xw': end[int(it[1:])] = i + 1
        staged = [(i, it, m) for i, (it, m) in enumerate(stream) if it[0] in 'kv']
        end[10] = max(max(i for i, (it, m) in enumerate(stream) if it[0] in 'Kk') + 1, end[9])
        endst = max([x[0] + 1 for x in staged] + [end[9]])
        end[11] = max(max(i for i, (it, m) in enumerate(stream) if it[0] in 'Vv') + 1, end[10])
        lastV = end[11]
        def need(it, m):
            if it[0] in 'xw': return int(it[1:]) - 3
            if it == 'K0': return 7 if m < 2 else -9
            if it in ('K1', 'W0', 'Z0', 'k0', 'v0', 'v1'): return -9
            return 7 if it == 'V0' else 8
        bpos = {}; prev = 0
        for s in range(-1, 11):
            pos = min(end[s+1] + (LAG0 if s == -1 else LAG), n)
            if s == 9: pos = max(pos, min(lastV, n))
            if staged and s in (8, 9):
                fd = min([i for i, (it, m) in enumerate(stream) if i >= endst and it[0] in 'xwKV'] + [n])
                pos = min(min(end[9] + LAG, n), fd) if s == 8 else min(endst + WLAG, n, fd)
            if staged and s == 10 and all(it[0] not in 'V' for it, m in stream): pos = n
            first_needing = min([i for i, (it, m) in enumerate(stream) if need(it, m) >= s and need(it, m) >= 0] + [n])
            pos = min(pos, first_needing)
            assert pos >= end[s+1], (s, pos, end[s+1])
            pos = max(pos, prev); bpos[s] = pos; prev = pos
        passed = [-2]
        def pf(s):
            if not PFS or s < PF0 or s >= PF0 + PFN: return
            tot = 10240 // PFS
            k = s - PF0
            for i in range(k * tot // PFN, (k + 1) * tot // PFN):
                p(f's_load_dword s28, s[26:27], {i*PFS}')
        def barrier(s, issued):
            if PFS and s == -1:
                p('s_waitcnt lgkmcnt(0)')
                p('s_cmp_eq_u32 s6, 0')
                p('s_cselect_b64 s[26:27], s[16:17], s[18:19]')
                p('s_and_b32 s9, s4, 3'); p('s_lshl_b32 s9, s9, 5'); p('s_add_u32 s9, s9, s5'); p('s_lshl_b32 s9, s9, 2'); p('s_add_u32 s9, s9, s11')
                p('s_mul_i32 s9, s9, 10240')
                p('s_add_u32 s26, s26, s9'); p('s_addc_u32 s27, s27, 0')
            pf(s)
            p(f's_waitcnt vmcnt({issued - end[s+1]})')
            def wr_(kinds):
                for k_, (i_, it_, m_) in enumerate(staged):
                    if it_[0] not in kinds: continue
                    ad = {'k0': KB0, 'v0': VB0, 'v1': VB1}[it_] + m_*4096
                    p(f'ds_write_b128 v{15 + (ad >> 16)}, {vr(32+4*k_)} offset:{ad & 0xffff}')
            if s == 9 and staged:
                p('v_lshl_add_u32 v15, v2, 4, s13')
                p('v_add_u32 v16, 0x10000, v15')
                wr_('k')
                p('s_waitcnt lgkmcnt(0)')
            if (s == 10 and staged) or (s == 9 and not staged): p('s_waitcnt lgkmcnt(0)')
            if s == 10: dstamp(p, 5)
            p(f's_barrier      ; B_{s}')
            passed[0] = s
            if (PUB == 0 and s == 1) or (PUB == 1 and -1 <= s <= 6):
                p(f's_cmp_lg_u32 s68, {s+1 if PUB == 1 else 0}')
                p(f's_cbranch_scc1 L_nopub{tag}{s+1}')
                p('s_atomic_umax_x2 s[20:21], s[34:35], s67 glc')
                p(f'L_nopub{tag}{s+1}:')
            if s == 9 and staged:
                assert issued >= endst
                p(f's_waitcnt vmcnt({issued - endst})')
                wr_('v')
            if s == CPF2:
                p('s_load_dword s24, s[22:23], 0x0'); p('s_load_dword s25, s[22:23], 0x40'); p('s_load_dword s24, s[22:23], 0x80'); p('s_load_dword s25, s[22:23], 0xc0')
            if s in (-1, 2, 5, 8): dstamp(p, 1 + (s+1)//3)
        last_item = None
        for i, (it, m) in enumerate(stream):
            if i == 10: late_setup(p)
            if EARLY and i == 8 + LAGE:
                assert stream[7] == ('w0', 1) and i <= bpos[-1]
                p(f's_waitcnt vmcnt({LAGE})')
                p('s_barrier      ; B_-2')
            for s in range(-1, 11):
                if bpos[s] == i and passed[0] < s: barrier(s, i)
            assert need(it, m) <= passed[0] or need(it, m) < 0
            if it[0] in 'xw':
                t = int(it[1:]); slot = (t + 1) % 3
                if it != last_item:
                    p(f's_add_u32 s70, s69, {t}')
                    p('s_cmp_ge_u32 s70, 10'); p('s_cselect_b32 s71, 10, 0'); p('s_sub_u32 s70, s70, s71')
                    p(f's_lshl_b32 s64, s70, {7 if it[0]=="x" else 19}')
                if it[0] == 'x':
                    p(f's_add_u32 m0, s13, {XS + slot*24576 + m*4096}')
                    p(f's_add_u32 s14, s64, {m*40960}')
                    p(f'buffer_load_dwordx4 v11, s[36:39], s14 offen {XFL} lds')
                else:
                    p(f's_add_u32 m0, s13, {WS_ + slot*16384 + m*4096}')
                    p(f's_add_u32 s14, s64, {m*131072}')
                    p(f'buffer_load_dwordx4 v12, s[40:43], s14 offen {CFL if t < 3 else WFL2} lds')
            elif it[0] in 'kv':
                b = int(it[1]); k_ = [x[0] for x in staged].index(i)
                vo, sr = (10, 44) if it[0] == 'k' else (13, 48)
                p(f's_mov_b32 s14, {b*786432 + m*4096}')
                p(f'buffer_load_dwordx4 {vr(32+4*k_)}, v{vo}, s[{sr}:{sr+3}], s14 offen {KVFL}')
            elif it == 'Z0':
                if m == 0:
                    p('s_and_b32 s10, s4, 3')
                    p('s_lshl_b32 s61, s6, 5'); p('s_add_u32 s61, s61, s5'); p(f's_mul_i32 s61, s61, {RST}'); p(f's_add_u32 s61, s61, {INBOX}')
                    p('s_lshl_b32 s9, s10, 2'); p('s_add_u32 s9, s9, s11'); p(f's_mul_i32 s9, s9, {3*SZ}'); p('s_add_u32 s9, s9, s61')
                    p('v_lshlrev_b32 v15, 4, v2')
                    for i_ in range(4): p(f'v_mov_b32 v{24+i_}, -1')
                p(f's_add_u32 s14, s9, {I_OFF + m*1024}')
                p('buffer_store_dwordx4 v[24:27], v15, s[52:55], s14 offen sc1')
            elif it == 'W0':
                if m in (0, 5):
                    p('s_waitcnt lgkmcnt(0)')
                    p('s_cmp_eq_u32 s6, 0')
                    p('s_cselect_b64 s[28:29], s[16:17], s[18:19]')
                    p('s_mov_b32 s30, 5242880'); p('s_mov_b32 s31, 0x20000')
                    p('s_and_b32 s9, s4, 3'); p('s_lshl_b32 s9, s9, 5'); p('s_add_u32 s9, s9, s5'); p('s_mul_i32 s9, s9, 40960')
                    p('v_lshl_add_u32 v15, v2, 4, s13')
                p(f's_add_u32 s14, s9, {m*4096}')
                p('buffer_load_dwordx4 v[20:23], v15, s[28:31], s14 offen')
            else:
                b = int(it[1])
                addr = {'K0': KB0, 'K1': KB1, 'V0': VB0, 'V1': VB1}[it] + m*4096
                vo, sr = (10, 44) if it[0] == 'K' else (13, 48)
                p(f's_add_u32 m0, s13, {addr}')
                p(f's_mov_b32 s14, {b*786432 + m*4096}')
                p(f'buffer_load_dwordx4 v{vo}, s[{sr}:{sr+3}], s14 offen {KVFL} lds')
            last_item = it
        for s in range(-1, 11):
            if passed[0] < s: barrier(s, n)
        return p.lines
    la = loader(PATA, 'A'); lb = loader(PATB, 'B')
    k = 0
    while k < min(len(la), len(lb)) and la[k].replace('nopubA', 'nopub') == lb[k].replace('nopubB', 'nopub'): k += 1
    while k < len(la) and not la[k-1].startswith('buffer_load'): k -= 1
    for x in la[:k]: p(x)
    if k < len(la) or k < len(lb):
        p(f's_bitcmp1_b32 s2, {PATSEL}')
        p('s_cbranch_scc1 L_patB')
        for x in la[k:]: p(x)
        p('s_branch L_ld2')
        p('L_patB:')
        for x in lb[k:]: p(x)
    p('L_ld2:')
    p('s_cmp_ge_u32 s5, 30')
    p('s_cbranch_scc1 L_ld_idle')
    p2_ids(p)
    p('s_waitcnt lgkmcnt(0)')
    p('s_cmp_eq_u32 s6, 0')
    p('s_cselect_b64 s[16:17], s[16:17], s[18:19]')
    p(f's_mul_i32 s9, s10, {0 if FAKEWO else 1310720}')
    p('s_lshl_b32 s12, s67, 8')
    p('s_add_u32 s9, s9, s12')
    p('s_add_u32 s36, s16, s9'); p('s_addc_u32 s37, s17, 0')
    p(f's_sub_u32 s38, {983040 if FAKEWO else 1310720}, s12'); p('s_mov_b32 s39, 0x20000')
    p('v_mul_u32_u24 v7, 1280, v5')
    p('v_lshl_add_u32 v12, v8, 4, v7')
    p('v_lshl_add_u32 v11, v2, 4, s13')
    p('s_mul_i32 s69, s66, 43'); p('s_lshr_b32 s69, s69, 4')
    p(f's_mul_i32 s70, s67, {ROT2}'); p('s_add_u32 s69, s69, s70'); p(f's_and_b32 s69, s69, {14 if HALF else 15}')
    p(f's_mul_i32 s65, s4, {GST}')
    p('s_lshl_b32 s12, s66, 13'); p('s_add_u32 s65, s65, s12'); p(f's_add_u32 s65, s65, {O_OFF}')
    p('s_mul_i32 s70, s69, 81920')
    p('s_mul_i32 s71, s69, 98304')
    p('s_add_u32 s71, s71, s65')
    p(f's_add_u32 s63, s65, {16*98304}')
    cnt = [0]
    endo = {}; endw = {}
    def wo_issue(k):
        fl = WOFL if k < 3 else WOFL2
        for m in range(4):
            p(f's_add_u32 m0, s13, {WO_L + ((k + 1) % NWS)*16384 + m*4096}')
            p(f's_add_u32 s14, s70, {m*20480}')
            p(f'buffer_load_dwordx4 v12, s[36:39], s14 offen {fl} lds')
        if HALF:
            p(f's_add_u32 s70, s70, {2*81920}')
            p(f's_cmp_ge_u32 s70, {16*81920}')
            p(f's_cselect_b32 s12, {16*81920}, 0'); p('s_sub_u32 s70, s70, s12')
            if k == 7: p('s_add_u32 s70, s70, 81920')
        else:
            p('s_add_u32 s70, s70, 81920')
            p(f's_cmp_eq_u32 s70, {16*81920}')
            p('s_cselect_b32 s70, 0, s70')
        cnt[0] += 4; endw[k] = cnt[0]
    def o_issue(k):
        if HALF and k == 8:
            p(f's_waitcnt vmcnt({cnt[0] - endo["f"]})')
            p('s_mov_b64 exec, s[20:21]')
            p('v_cmp_gt_u64 vcc, s[96:97], v[16:17]')
            p('v_cmp_lt_u64 s[100:101], s[98:99], v[16:17]')
            p('s_mov_b64 exec, -1')
            p('s_or_b64 vcc, vcc, s[100:101]')
            p('s_cbranch_scc0 L_fb_ok')
            p(f's_add_u32 s15, s15, {FBO}')
            poll_flags(p, 'L_pf1b', 14, 16, 's15', 's[20:21]')
            p('L_fb_ok:')
        for m in range(4):
            p(f's_add_u32 m0, s13, {O_L + (k % NOS)*16384 + m*4096}')
            p(f's_add_u32 s14, s71, {(0, 4096, 49152, 53248)[m]}')
            p(f'buffer_load_dwordx4 v11, s[52:55], s14 offen {ORFL} lds')
        if HALF:
            p(f's_add_u32 s71, s71, {2*98304}')
            p('s_cmp_ge_u32 s71, s63')
            p(f's_cselect_b32 s12, {16*98304}, 0'); p('s_sub_u32 s71, s71, s12')
            if k == 7: p('s_add_u32 s71, s71, 98304')
        else:
            p('s_add_u32 s71, s71, 98304')
            p('s_cmp_eq_u32 s71, s63')
            p('s_cselect_b32 s71, s65, s71')
        cnt[0] += 4; endo[k] = cnt[0]
        if HALF and k == 5:
            p('s_mov_b64 exec, s[20:21]')
            p(f'buffer_load_dwordx2 v[16:17], v14, s[52:55], s15 offen offset:{FBO} sc1')
            p('s_mov_b64 exec, -1')
            cnt[0] += 1; endo['f'] = cnt[0]
    p('s_mul_i32 s12, s66, 171'); p('s_lshr_b32 s12, s12, 6'); p(f's_lshl_b32 s12, s12, {FS1+3}')
    p(f's_mul_i32 s14, s4, {GST}'); p('s_add_u32 s12, s12, s14'); p(f's_add_u32 s15, s12, {F1_OFF}')
    p('s_cmp_eq_u32 s66, 1'); p('s_cselect_b32 s20, -1, 0xffffff')
    p('s_cmp_eq_u32 s66, 4'); p('s_cselect_b32 s20, -1, s20'); p('s_mov_b32 s21, 0')
    p(f'v_lshlrev_b32 v14, {FS1}, v2')
    if SENT == 3:
        p('s_memrealtime s[24:25]')
        p('s_lshl_b32 s9, s11, 7'); p('s_add_u32 s9, s9, s61'); p('s_lshl_b32 s14, s10, 3'); p('s_add_u32 s9, s9, s14'); p(f's_add_u32 s9, s9, {F2_OFF}')
        p('v_mov_b32 v30, 0')
        p('s_waitcnt vmcnt(0) lgkmcnt(0)')
        p('v_mov_b32 v28, s24'); p('v_mov_b32 v29, s25')
        p('s_mov_b64 exec, 1')
        p('buffer_store_dwordx2 v[28:29], v30, s[52:55], s9 offen sc1')
        p('s_mov_b64 exec, -1')
    nw = 0
    assert UNR and NE <= NWS - 1 and WO_L + 16384 >= VB0 + 24576
    for _ in range(NE): wo_issue(nw); nw += 1
    p('s_barrier')
    for _ in range(N1 - NE): wo_issue(nw); nw += 1
    if not HALF: p('s_barrier')
    for _ in range(N2): wo_issue(nw); nw += 1
    p('s_cmp_lg_u32 s3, 4')
    p('s_cbranch_scc1 L_nopoll')
    poll_flags(p, 'L_pf1', 14, 16, 's15', 's[20:21]')
    p('L_nopoll:')
    p('s_barrier      ; B_12')
    dstamp(p, 6)
    no = 0
    for c in range(-1, 15):
        def allowed():
            cand = []
            if no < 16 and (no < NOS or no - NOS <= c - 1): cand.append(('o', no))
            if nw < 16 and (nw < NWS or nw - NWS <= c - 1): cand.append(('w', nw))
            cand.sort(key=lambda x: (x[1], x[0] == 'o'))
            return cand
        while True:
            done = (c + 1) in endo and (c + 1) in endw
            if done and cnt[0] - max(endo[c+1], endw[c+1]) >= LAG2: break
            cand = allowed()
            if not cand:
                assert done; break
            if cand[0][0] == 'o': o_issue(no); no += 1
            else: wo_issue(nw); nw += 1
        p(f's_waitcnt vmcnt({cnt[0] - max(endo[c+1], endw[c+1])})')
        p(f's_barrier      ; C_{c}')
        if c == -1: dstamp(p, 7)
        if c == CPF3:
            p('s_getpc_b64 s[22:23]')
            p('L_pc3:')
            p('s_lshl_b32 s9, s5, 2'); p('s_add_u32 s9, s9, s11'); p('s_and_b32 s9, s9, 63'); p('s_lshl_b32 s9, s9, 6')
            p('s_min_u32 s9, s9, L_end-L_tail2')
            p('s_add_u32 s9, s9, L_tail2-L_pc3')
            p('s_add_u32 s22, s22, s9'); p('s_addc_u32 s23, s23, 0')
            p('s_load_dword s24, s[22:23], 0x0')
    assert no == 16 and nw == 16
    dstamp(p, 8)
    flush_stamps(p, 9, 16, 4, 'L_fsL')
    p('s_endpgm')
    p('L_ld_idle:')
    p('s_barrier      ; B_11a')
    p('s_endpgm')

    p('L_compute:')
    G = lambda g: 16 + 4*g
    ACC = lambda t, qt: G(t*3+qt)
    AF = lambda st, t: G(24 + st*8 + t)
    BF = lambda st, qt: G(40 + st*3 + qt)
    AADR = 240; BADR = 248
    p('v_bfe_u32 v5, v2, 2, 2')
    p('v_and_b32 v6, 3, v2')
    p('v_and_b32 v7, 1, v3')
    p('v_lshl_add_u32 v7, v7, 2, v5')
    p('v_lshlrev_b32 v7, 1, v7')
    p('v_lshrrev_b32 v8, 1, v6')
    p('v_xor_b32 v7, v7, v8')
    p('v_lshlrev_b32 v7, 4, v7')
    p('v_and_b32 v8, 1, v6')
    p('v_lshl_add_u32 v7, v8, 3, v7')
    p('v_lshl_add_u32 v8, v3, 3, v5')
    p('v_lshl_add_u32 v8, v8, 8, v7')
    p(f'v_add_u32 v8, {WS_ + 16384}, v8')
    for t in range(8):
        p(f'v_xor_b32 v{AADR+t}, {t<<5}, v8')
    p('v_lshrrev_b32 v8, 1, v4')
    p('v_xor_b32 v8, v8, v3')
    p('v_lshlrev_b32 v8, 4, v8')
    p('v_lshl_add_u32 v8, v4, 7, v8')
    p('s_mul_i32 s13, s3, 6144')
    p(f's_add_u32 s13, s13, {XS + 24576}')
    p(f'v_add_u32 v{BADR}, s13, v8')
    p(f'v_xor_b32 v{BADR+1}, 64, v{BADR}')
    p('s_cmp_lt_u32 s3, 2')
    p(f's_mov_b32 s13, {KB1}'); p(f's_mov_b32 s14, {VB1}')
    p(f's_cselect_b32 s13, {KB0}, s13'); p(f's_cselect_b32 s14, {VB0}, s14')
    p('v_lshrrev_b32 v8, 1, v3')
    p('v_xor_b32 v8, v8, v4')
    p('v_lshlrev_b32 v8, 4, v8')
    p('v_lshl_add_u32 v8, v4, 8, v8')
    p('v_and_b32 v9, 1, v3')
    p('v_lshl_add_u32 v8, v9, 3, v8')
    p('v_add_u32 v10, s13, v8')
    p('v_lshl_add_u32 v8, v3, 2, v5')
    p('v_lshl_add_u32 v6, v8, 8, v7')
    p('v_add_u32 v11, s14, v6')
    p('v_lshlrev_b32 v9, 4, v2')
    for i in range(4): p(f'v_mov_b32 v{12+i}, 0x3f803f80')
    for i in range(96): p(f'v_mov_b32 v{16+i}, 0')
    p('s_mul_i32 s62, s66, 192'); p('s_mul_i32 s14, s8, 12'); p('s_add_u32 s62, s62, s14')
    p('s_mul_i32 s14, s3, 3'); p('s_add_u32 s62, s62, s14'); p('s_lshl_b32 s62, s62, 10')
    p(f's_mul_i32 s68, s4, {GST}'); p('s_add_u32 s62, s62, s68'); p(f's_add_u32 s62, s62, {O_OFF}')
    p(f's_mov_b32 s63, {f32bits(LOG2E_SCALE):#x}')
    p('s_mov_b32 s50, s63'); p('s_mov_b32 s51, s63')
    p('s_lshl_b32 s69, s8, 2'); p('s_add_u32 s69, s69, s3')
    p('s_lshl_b32 s69, s69, 3'); p('s_add_u32 s69, s69, s66'); p(f's_lshl_b32 s69, s69, {FS1}'); p('s_add_u32 s69, s69, s68'); p(f's_add_u32 s69, s69, {F1_OFF}')
    p('s_waitcnt lgkmcnt(0)')
    srd(p, 52, 34, 35, WS_SIZE)
    p('s_mov_b32 s98, s96'); p('s_add_u32 s99, s97, 1')
    stamp_setup(p, 34, 35)
    p('s_mov_b64 s[34:35], s[32:33]')
    p('s_load_dwordx2 s[20:21], s[0:1], 80')
    if CPF:
        p('s_cmp_lg_u32 s3, 1')
        p('s_cbranch_scc1 L_nocpf')
        p('s_getpc_b64 s[70:71]')
        p('L_pc:')
        p(f's_sub_u32 s70, s70, L_pc-{K1}')
        p('s_subb_u32 s71, s71, 0')
        p('s_mul_i32 s9, s5, 256')
        p(f's_min_u32 s9, s9, L_end-{K1}-640')
        p('s_add_u32 s70, s70, s9')
        p('s_addc_u32 s71, s71, 0')
        for i in range(4): p(f's_load_dword s{24+i}, s[70:71], {i*64}')
        p('L_nocpf:')
    p('s_waitcnt lgkmcnt(0)')
    srd(p, 44, 20, 21, 8*96*1280*2)
    if PUB == 2:
        p('s_cmp_lg_u32 s3, 3')
        p('s_cbranch_scc1 L_nopubc')
        srd(p, 24, 34, 35, 256)
        p('s_not_b64 s[70:71], s[96:97]')
        p('s_lshl_b32 s9, s6, 7')
        p('v_mov_b32 v250, s70'); p('v_mov_b32 v251, s71'); p('v_mov_b32 v252, 0')
        p('s_mov_b64 exec, 1')
        p('buffer_atomic_umax_x2 v[250:251], v252, s[24:27], s9 offen sc1')
        p('s_mov_b64 exec, -1')
        p('L_nopubc:')
    if TOUCH:
        p('s_cmp_lg_u32 s3, 2')
        p('s_cbranch_scc1 L_notouch')
        p('v_and_b32 v250, 1, v2')
        p(f'v_mul_u32_u24 v251, {GT_OFF}, v250')
        p(f'v_mul_u32_u24 v252, {RT_OFF}, v250')
        p(f'v_mul_u32_u24 v253, {8*96*1280*2 - 128}, v250')
        p('s_mul_i32 s9, s6, 32'); p('s_add_u32 s9, s9, s5'); p(f's_mul_i32 s9, s9, {RST}'); p(f's_add_u32 s9, s9, {INBOX}')
        p('s_mov_b64 exec, 3')
        p('buffer_load_dword v254, v251, s[52:55], s68 offen nt')
        p('buffer_load_dword v254, v252, s[52:55], s9 offen nt')
        p('buffer_load_dword v254, v253, s[44:47], 0 offen nt')
        p('s_mov_b64 exec, -1')
        p('L_notouch:')
    p2_ids(p)
    p('s_and_b32 s12, s3, 1'); p('s_lshl_b32 s12, s12, 2'); p('s_add_u32 s12, s12, s10')
    p('s_mul_i32 s61, s6, 32'); p('s_add_u32 s61, s61, s5'); p(f's_mul_i32 s61, s61, {RST}'); p(f's_add_u32 s61, s61, {INBOX}')
    for i in (1, 2, 3, 0):
        d = 35 + i if i else 39
        p(f's_xor_b32 s{d}, s10, {i}'); p(f's_lshl_b32 s{d}, s{d}, 2'); p(f's_add_u32 s{d}, s{d}, s3'); p(f's_mul_i32 s{d}, s{d}, {3*SZ}')
        p(f's_add_u32 s{d}, s{d}, s61'); p(f's_add_u32 s{d}, s{d}, {I_OFF + (i-1 if i else 0)*SZ}')
    p(f's_lshl_b32 s40, s3, {max(7, FS2+2)}'); p('s_add_u32 s40, s40, s61'); p(f's_add_u32 s40, s40, {F2_OFF}')
    p('s_lshl_b32 s41, s66, 3'); p('s_add_u32 s41, s41, s12'); p('s_mul_i32 s41, s41, 40960')
    p('s_mul_i32 s13, s6, 1280'); p('s_add_u32 s41, s41, s13'); p('s_lshl_b32 s13, s67, 8'); p('s_add_u32 s41, s41, s13')
    p('s_lshr_b32 s13, s3, 1'); p('s_lshl_b32 s13, s13, 7'); p('s_add_u32 s41, s41, s13')
    p(f's_lshl_b32 s42, s10, {FS2}'); p('s_add_u32 s42, s42, s40')
    p('s_add_u32 s43, s39, 4096')
    p('s_add_u32 s48, s39, 8192')
    if FWARM:
        p('v_mov_b32 v250, 0')
        p('s_mov_b64 exec, 1')
        if FWARM & 1:
            p('buffer_load_dword v251, v250, s[52:55], s69 offen sc1')
            p(f'buffer_load_dword v251, v250, s[52:55], s69 offen offset:{FBO} sc1')
        if FWARM & 2: p('buffer_load_dword v251, v250, s[52:55], s42 offen sc1')
        p('s_mov_b64 exec, -1')
    if SENT == 1:
        p('s_cmp_ge_u32 s5, 30')
        p('s_cbranch_scc1 L_noclr')
        for i in range(4): p(f'v_mov_b32 v{200+i}, -1')
        for k in range(3 * SZ // 1024):
            p(f'buffer_store_dwordx4 v[200:203], v9, s[52:55], s{(39, 43, 48)[k//4]} offen offset:{(k%4)*1024} sc1')
        p('L_noclr:')
    def reads(st, ks):
        L = [f'ds_read_b128 {vr(BF(st,qt))}, v{BADR+ks} offset:{qt*2048}' for qt in range(3)]
        for t in range(8):
            L.append(f'ds_read_b64_tr_b16 {vr(AF(st,t),2)}, v{AADR+t} offset:{ks*8192}')
            L.append(f'ds_read_b64_tr_b16 {vr(AF(st,t)+2,2)}, v{AADR+t} offset:{ks*8192+1024}')
        return L
    def mfmas(st):
        return [f'{MF} {vr(ACC(t,qt))}, {vr(AF(st,t))}, {vr(BF(st,qt))}, {vr(ACC(t,qt))}' for t in range(8) for qt in (range(3) if not (SNAKE and t & 1) else (2, 1, 0))]
    p('s_mov_b32 s14, 1')
    p('s_mov_b32 s15, 0')
    p('s_barrier')
    dstamp(p, 1)
    pro = reads(0, 0)
    for x in pro: p(x)
    _, pend0 = auto_lgkm(pro)
    scal = ['s_add_u32 s14, s14, 1', 's_cmp_eq_u32 s14, 3', 's_cselect_b32 s61, -2, 1', 's_cselect_b32 s14, 0, s14',
            's_mul_i32 s64, s61, 16384', 's_mul_i32 s65, s61, 24576', 's_add_u32 s15, s15, 1', 's_cmp_eq_u32 s15, 10']
    m0_ = mfmas(0); m1 = mfmas(1)
    H1 = spread(m0_[:19], reads(1, 1), per=PER1) + spread(m0_[19:], scal, per=2)
    upd = [f'v_add_u32 v{BADR+i}, s65, v{BADR+i}' for i in range(2)] + [f'v_add_u32 v{AADR+t}, s64, v{AADR+t}' for t in range(8)]
    H2a = interleave(m1[:NA], upd, per=2) + ['s_waitcnt lgkmcnt(0)', 's_barrier']
    H2b = spread(m1[NA:], reads(0, 0), per=PER1)
    if LOWD:
        H1 = reads(1, 1) + (scal + m0_ if LOWD == 2 else spread(m0_, scal))
        H2a = (m1 + upd if LOWD == 2 else interleave(m1, upd, per=1)) + ['s_barrier']
        H2b = reads(0, 0)
        if LOWD == 3:
            H1 = scal + ['s_waitcnt lgkmcnt(0)'] + m0_ + reads(1, 1) + ['s_waitcnt lgkmcnt(0)']
            if EARLY:
                H1 = scal[:-1] + ['s_cmp_lg_u32 s15, 1', 's_waitcnt lgkmcnt(0)'] + m0_ + ['s_cbranch_scc1 L_nb1', 's_barrier', 'L_nb1:'] + reads(1, 1) + [scal[-1], 's_waitcnt lgkmcnt(0)']
            H2a = m1 + upd + ['s_barrier']
    if BURST:
        r1 = reads(1, 1); r0 = reads(0, 0)
        H1 = r1[:BURST] + spread(m0_[:19], r1[BURST:]) + spread(m0_[19:], scal, per=2)
        H2b = r0[:BURST] + spread(m1[NA:], r0[BURST:])
    if XNOP:
        def addn(L):
            o_ = []; c = 0
            for x in L:
                o_.append(x)
                if x.startswith('v_mfma'):
                    c += 1
                    if c % XNOP == 0: o_.append('s_nop 3')
            return o_
        H1 = addn(H1); H2b = addn(H2b)
    h1, pend = auto_lgkm(H1, pend0)
    h2a, pend_a = auto_lgkm(H2a, pend)
    h2b, _ = auto_lgkm(H2b, pend_a)
    p('L_loop:')
    for x in h1: p(x)
    p('s_cbranch_scc1 L_tail')
    for x in h2a + h2b: p(x)
    p('s_branch L_loop')
    p('L_tail:')
    KFg = list(range(24, 32)) + [40, 41, 42] + list(range(46, 56)) + [32, 33, 34]
    KF = lambda kt, u: G(KFg[kt*4+u])
    QB = lambda u, qt: ACC(2*u, qt)
    Smap = {}
    free_early = [35, 36, 37, 38, 39, 43, 44, 45]
    for kt in range(6): Smap[(kt, 0)] = free_early[kt]
    oddq = lambda qt: [(2*u+1)*3+qt for u in range(4)]
    l1 = oddq(0) + oddq(1)[:2]
    l2 = oddq(1)[2:] + oddq(2)
    for kt in range(6): Smap[(kt, 1)] = l1[kt]; Smap[(kt, 2)] = l2[kt]
    S = lambda kt, qt: G(Smap[(kt, qt)])
    kaddr = [f'v_xor_b32 v{AADR+m}, {m<<5}, v10' for m in range(8)]
    def kread(kt, u):
        return [f'ds_read_b64 {vr(KF(kt,u),2)}, v{AADR+2*u} offset:{kt*4096}', f'ds_read_b64 {vr(KF(kt,u)+2,2)}, v{AADR+2*u+1} offset:{kt*4096}']
    kr = [x for kt in range(6) for u in range(4) for x in kread(kt, u)]
    qcvt = lambda qt: [x for u in range(4) for x in cvt4(QB(u, qt), ACC(2*u, qt), ACC(2*u+1, qt))]
    T = ['s_memrealtime s[70:71]'] + interleave(m1[:NAT], kaddr, per=2) + ['s_waitcnt vmcnt(0) lgkmcnt(0)', 's_barrier']
    T += ['v_mov_b32 v254, s70', 'v_mov_b32 v255, s71', 'v_mov_b32 v253, 0']
    if SENT == 1:
        T += ['s_waitcnt vmcnt(0)', 's_mov_b64 exec, 1', 'buffer_store_dwordx2 v[254:255], v253, s[52:55], s42 offen sc1', 's_mov_b64 exec, -1']
    if STAMPS: T.append(f'{"s_memtime" if CLK else "s_memrealtime"} s[76:77]')
    o, rest = merge(m1[NAT:], kr[:42])
    T += o + rest + kr[42:]
    def smf(qt):
        return [f'{MF} {vr(S(kt,qt))}, {vr(KF(kt,u))}, {vr(QB(u,qt))}, {"0" if u == 0 else vr(S(kt,qt))}' for u in range(4) for kt in range(6)]
    def softmax(qt):
        regs = [S(kt, qt) + r for kt in range(6) for r in range(4)]
        M = 250; Tm = 251; M2 = 249
        L = [f'v_max3_f32 v{M}, v{regs[0]}, v{regs[1]}, v{regs[2]}', f'v_max3_f32 v{M2}, v{regs[3]}, v{regs[4]}, v{regs[5]}']
        for i in range(6, 22, 4):
            L.append(f'v_max3_f32 v{M}, v{M}, v{regs[i]}, v{regs[i+1]}')
            L.append(f'v_max3_f32 v{M2}, v{M2}, v{regs[i+2]}, v{regs[i+3]}')
        L.append(f'v_max3_f32 v{M}, v{M}, v{regs[22]}, v{regs[23]}')
        L.append(f'v_max_f32 v{M}, v{M}, v{M2}')
        L += [f'v_mov_b32 v{Tm}, v{M}', f'v_permlane16_swap_b32 v{M}, v{Tm}', f'v_max_f32 v{M}, v{M}, v{Tm}',
              f'v_mov_b32 v{Tm}, v{M}', f'v_permlane32_swap_b32 v{M}, v{Tm}', f'v_max_f32 v{M}, v{M}, v{Tm}',
              f'v_mul_f32 v{M}, s63, v{M}']
        for u in range(3):
            rr = regs[8*u:8*u+8]
            if PK & 1: L += [f'v_pk_fma_f32 v[{r}:{r+1}], v[{r}:{r+1}], s[50:51], v[{M}:{M+1}] op_sel_hi:[1,0,0] neg_lo:[0,0,1] neg_hi:[0,0,1]' for r in rr[::2]]
            else: L += [f'v_fma_f32 v{r}, v{r}, s63, -v{M}' for r in rr]
            L += [f'v_exp_f32 v{r}, v{r}' for r in rr]
            L += cvt4(S(2*u, qt), S(2*u, qt), S(2*u+1, qt))
        return L
    PB = lambda u, qt: S(2*u, qt)
    VF = lambda t, u: G(KFg[t*3+u])
    T += qcvt(0)
    o, rest = merge(smf(0), qcvt(1) + qcvt(2))
    T += o + rest
    sm0 = softmax(0)
    m12 = smf(1) + smf(2)
    o, rest0 = merge(m12[4:], sm0)
    T += m12[:4] + o + rest0
    T += [f'v_xor_b32 v{AADR+t}, {t<<5}, v11' for t in range(8)]
    t2, _ = auto_lgkm(T, pend)
    for x in t2: p(x)
    dstamp(p, 3)
    p('s_barrier')
    dstamp(p, 4)
    U = []
    for t in range(8):
        for u in range(3):
            U.append(f'ds_read_b64_tr_b16 {vr(VF(t,u),2)}, v{AADR+t} offset:{u*8192}')
            U.append(f'ds_read_b64_tr_b16 {vr(VF(t,u)+2,2)}, v{AADR+t} offset:{u*8192+4096}')
    qbg = [(2*u)*3+qt for u in range(4) for qt in range(3)]
    Og = {0: qbg[:9], 1: qbg[9:] + [44, 45] + [Smap[(1,0)], Smap[(3,0)], Smap[(5,0)]] + [Smap[(1,1)]]}
    Og[2] = [Smap[(0,0)], Smap[(2,0)], Smap[(4,0)], Smap[(3,1)], Smap[(5,1)], Smap[(1,2)], Smap[(3,2)], Smap[(5,2)], Smap[(0,1)]]
    OA = lambda t, qt: G(Og[qt][t])
    def pv(qt):
        L = []
        for u in range(3):
            L.append(f'{MF} {vr(OA(8,qt))}, v[12:15], {vr(PB(u,qt))}, {"0" if u == 0 else vr(OA(8,qt))}')
        for t2_ in range(0, 8, 2):
            for u in range(3):
                for t in (t2_, t2_+1):
                    L.append(f'{MF} {vr(OA(t,qt))}, {vr(VF(t,u))}, {vr(PB(u,qt))}, {"0" if u == 0 else vr(OA(t,qt))}')
        return L
    def onorm(qt):
        l = OA(8, qt)
        L = [f'v_rcp_f32 v{l}, v{l}']
        for v in range(4):
            a0 = OA(2*v, qt); a1 = OA(2*v+1, qt)
            L += [f'v_mul_f32 v{a+r}, v{a+r}, v{l}' for a in (a0, a1) for r in range(4)]
            L += cvt4(a0, a0, a1)
            L.append(f's_add_u32 s14, s62, {v*48*1024}')
            L.append(f'buffer_store_dwordx4 {vr(a0)}, v9, s[52:55], s14 offen offset:{qt*1024} {OFL}')
        return L
    sm1 = softmax(1); sm2 = softmax(2)
    if HALF:
        Lg = [44, 45, Smap[(1,0)]]
        Bg = [Smap[(3,0)], Smap[(5,0)], Smap[(1,1)], Smap[(3,1)], Smap[(5,1)], Smap[(1,2)], Smap[(3,2)], Smap[(5,2)]] + KFg[:4]
        OH = lambda t, qt: G(qbg[qt*4+t]) if t < 4 else G(Bg[qt*4+t-4])
        def pvh(h, qt):
            L = []
            if h == 0:
                l = G(Lg[qt])
                L += [f'{MF} {vr(l)}, v[12:15], {vr(PB(u,qt))}, {"0" if u == 0 else vr(l)}' for u in range(3)]
            for t2_ in (4*h, 4*h+2):
                for u in range(3):
                    for t in (t2_, t2_+1):
                        L.append(f'{MF} {vr(OH(t,qt))}, {vr(VF(t,u))}, {vr(PB(u,qt))}, {"0" if u == 0 else vr(OH(t,qt))}')
            return L
        def nrm(h, qt):
            l = G(Lg[qt])
            L = [f'v_rcp_f32 v{l}, v{l}'] if h == 0 else []
            for v in (2*h, 2*h+1):
                a0 = OH(2*v, qt); a1 = OH(2*v+1, qt)
                if PK & 2: L += [f'v_pk_mul_f32 v[{a+r}:{a+r+1}], v[{a+r}:{a+r+1}], v[{l}:{l+1}] op_sel_hi:[1,0]' for a in (a0, a1) for r in (0, 2)]
                else: L += [f'v_mul_f32 v{a+r}, v{a+r}, v{l}' for a in (a0, a1) for r in range(4)]
                L += cvt4(a0, a0, a1)
                L.append(f's_add_u32 s14, s62, {v*48*1024}')
                L.append(f'buffer_store_dwordx4 {vr(a0)}, v9, s[52:55], s14 offen offset:{qt*1024} {OFL}')
            return L
        flagA = lambda k: [f's_waitcnt vmcnt({k})', 's_mov_b64 exec, 1', f'buffer_store_dwordx2 v[254:255], v253, s[52:55], s69 offen {FLAGF}', 's_mov_b64 exec, -1']
        vrdB = U[24:]; U = U[:24]
        o, rest = merge(pvh(0, 0), sm1); U += o + rest
        o, rest = merge(pvh(0, 1), sm2); U += o + rest
        o, rest = merge(pvh(0, 2), nrm(0, 0) + nrm(0, 1)); U += o + vrdB + rest
        o, rest = merge(pvh(1, 0), nrm(0, 2)); U += o + rest
        o, rest = merge(pvh(1, 1), nrm(1, 0)); U += o + rest
        if FAPOS == 1: U += flagA(2)
        o, rest = merge(pvh(1, 2), nrm(1, 1)); U += o + rest
        if FAPOS == 2: U += flagA(4)
        U += nrm(1, 2)
        if FAPOS == 3: U += flagA(6)
    if not HALF:
        o, rest = merge(pv(0), sm1)
        U += o + rest
    if HALF: pass
    elif OEARLY:
        o, rest = merge(pv(1), onorm(0) + sm2)
        U += o + rest
        o, rest = merge(pv(2), onorm(1))
        U += o + rest
    else:
        o, rest = merge(pv(1), sm2)
        U += o + rest
        o, rest = merge(pv(2), onorm(0) + onorm(1))
        U += o + rest
    if not HALF: U += onorm(2)
    u2, _ = auto_lgkm(U, [])
    for x in u2: p(x)
    dstamp(p, 5)
    p('s_barrier')
    A2 = lambda i, t: 16 + (i*4+t)*4
    FA = lambda st, t: 80 + st*32 + t*4
    FBq = lambda st, i: 96 + st*32 + i*4
    p('s_lshr_b32 s13, s3, 1'); p('s_lshl_b32 s13, s13, 7')
    p(f'v_add_u32 v8, {WO_L}, v6')
    p('v_xor_b32 v8, s13, v8')
    for t in range(4): p(f'v_xor_b32 v{AADR+t}, {t<<5}, v8')
    if UNR:
        for t in range(4): p(f'v_add_u32 v{232+t}, 0x10000, v{AADR+t}')
    p('s_lshl_b32 s13, s12, 10')
    p(f'v_add_u32 v8, s13, v9')
    for i in range(4): p(f'v_xor_b32 v{AADR+4+i}, {i<<10}, v8')
    p(f'v_lshlrev_b32 v248, {FS2}, v2')
    p('v_mul_u32_u24 v7, 2560, v4')
    p('v_lshl_add_u32 v7, v3, 3, v7')
    def lastflag():
        p('s_waitcnt vmcnt(0)')
        p('s_mov_b64 exec, 1')
        p(f'buffer_store_dwordx2 v[254:255], v253, s[52:55], s69 offen offset:{FBO if HALF else 0} {FLAGF}')
        p('s_mov_b64 exec, -1')
        dstamp(p, 6)
    if not HALF:
        lastflag()
        p('s_cmp_ge_u32 s5, 30')
        p('s_cbranch_scc1 L_cdone')
        p('s_barrier')
    else:
        p('s_cmp_lt_u32 s5, 30')
        p('s_cbranch_scc1 L_act')
        lastflag()
        p('s_branch L_cdone')
        p('L_act:')
    if SENT == 2:
        for i in range(4): p(f'v_mov_b32 v{200+i}, -1')
        for k in range(3 * SZ // 1024):
            p(f'buffer_store_dwordx4 v[200:203], v9, s[52:55], s{(39, 43, 48)[k//4]} offen offset:{(k%4)*1024} sc1')
    p('s_barrier')
    if HALF: lastflag()
    if SENT in (1, 3):
        p('s_mov_b64 exec, 15')
        p('buffer_load_dwordx2 v[250:251], v248, s[52:55], s40 offen sc1')
        p('s_mov_b64 exec, -1')
    SR = 144
    if TAGS:
        p('s_mov_b32 s13, 0x01010101')
        p('v_mul_lo_u32 v236, v2, s13')
        p('v_add_u32 v237, s96, v236')
        p('v_add_u32 v236, s70, v236')
        for k in range(9): p(f'v_mov_b32 v{SR+4*k+3}, v236')
        for i in range(3): p(f'v_mov_b32 v{SR+12*i+10}, 0')
    for i in range(64): p(f'v_mov_b32 v{16+i}, 0')
    def reads2(st, kk, stage=0):
        oo = (stage % NOS) * 16384 + kk*8192
        wo_ = ((stage + 1) % NWS) * 16384 + kk*8192
        ab = AADR if wo_ < 65536 else 232
        wo_ &= 0xffff
        L = [f'ds_read_b128 {vr(FBq(st,0))}, v{AADR+4} offset:{oo}']
        for t in range(4):
            L.append(f'ds_read_b64_tr_b16 {vr(FA(st,t),2)}, v{ab+t} offset:{wo_}')
            L.append(f'ds_read_b64_tr_b16 {vr(FA(st,t)+2,2)}, v{ab+t} offset:{wo_+4096}')
        L += [f'ds_read_b128 {vr(FBq(st,i))}, v{AADR+4+i} offset:{oo}' for i in range(1, 4)]
        if DIAG: L = [L[k] for k in (9, 1, 2, 3, 4, 10, 5, 6, 11, 7, 8, 0)]
        return L
    DORD = [(0,0),(0,1),(1,1),(1,0),(0,2),(1,2),(2,2),(2,1),(2,0),(0,3),(1,3),(2,3),(3,3),(3,2),(3,1),(3,0)]
    DORD = [((i + 1) % 4, t) for i, t in DORD]
    def mfd(st): return [f'{MF} {vr(A2(i,t))}, {vr(FA(st,t))}, {vr(FBq(st,i))}, {vr(A2(i,t))}' for i, t in DORD]
    def mf2(st):
        return [f'{MF} {vr(A2(i,t))}, {vr(FA(st,t))}, {vr(FBq(st,i))}, {vr(A2(i,t))}' for i in range(4) for t in (range(4) if not (SNAKE and i & 1) else (3, 2, 1, 0))]
    p('s_mov_b32 s14, 0')
    p('s_mov_b32 s15, 0')
    p('s_barrier')
    dstamp(p, 7)
    pro = reads2(0, 0)
    for x in pro: p(x)
    _, pend0 = auto_lgkm(pro)
    p('s_mov_b32 s13, 0')
    scal = ['s_add_u32 s14, s14, 1', f's_cmp_eq_u32 s14, {NWS}', f's_cselect_b32 s61, {1-NWS}, 1', 's_cselect_b32 s14, 0, s14', 's_lshl_b32 s64, s61, 14',
            's_add_u32 s13, s13, 1', f's_cmp_eq_u32 s13, {NOS}', f's_cselect_b32 s61, {1-NOS}, 1', 's_cselect_b32 s13, 0, s13', 's_lshl_b32 s65, s61, 14',
            's_add_u32 s15, s15, 1', 's_cmp_eq_u32 s15, 16']
    if ORC: scal = scal[-2:]
    n0 = mf2(0); n1 = mf2(1)
    H1 = spread(n0[:12], reads2(1, 1)) + spread(n0[12:], scal, per=3)
    upd = [f'v_add_u32 v{AADR+4+i}, s65, v{AADR+4+i}' for i in range(4)] + [f'v_add_u32 v{AADR+t}, s64, v{AADR+t}' for t in range(4)]
    if ORC: upd = upd[:ORC-1]
    H2a = interleave(n1[:4], upd, per=2) + ['s_waitcnt lgkmcnt(0)', 's_barrier']
    H2b = spread(n1[4:], reads2(0, 0))
    h1, pend = auto_lgkm(H1, pend0)
    h2a, pend_a = auto_lgkm(H2a, pend)
    h2b, _ = auto_lgkm(H2b, pend_a)
    if DEFER:
        assert DIAG and UNR and DEFER <= NOS
        pend = pend0
        for j in range(16):
            df = j >= 16 - DEFER; dfn = j + 1 >= 16 - DEFER
            d0 = mfd(0); d1 = mfd(1); r_ = reads2(1, 1, j); rn = reads2(0, 0, j + 1)
            if df: d0 = d0[:12]; d1 = d1[:12]; r_ = r_[:11]
            if dfn: rn = rn[:11]
            o_ = 1 if df else 0
            seq_ = [f's_waitcnt lgkmcnt({6-o_})'] + spread(d0[:4], r_[:4]) + [f's_waitcnt lgkmcnt({7-o_})'] + spread(d0[4:9], r_[4:9]) + ['s_waitcnt lgkmcnt(9)'] + spread(d0[9:], r_[9:])
            hh1, pend = auto_lgkm(seq_, pend)
            for x in hh1: p(x)
            if j == 15: break
            nb_ = NB2 if not df else 3
            hh2, pend = auto_lgkm([f's_waitcnt lgkmcnt({6-o_})'] + d1[:nb_] + ['s_waitcnt lgkmcnt(0)', 's_barrier'] + interleave(d1[nb_:], rn), pend)
            for x in hh2: p(x)
    elif UNR:
        import math
        per_ = min(NWS * NOS // math.gcd(NWS, NOS), 16)
        exit_at = 15 % per_
        npass = 15 // per_
        p('L_loop2:')
        for j in range(per_):
            sc = []
            if j == exit_at and per_ < 16: sc = [f's_cmp_eq_u32 s15, {npass}']
            if DIAG:
                d0 = mfd(0); r_ = reads2(1, 1, j)
                seq_ = ['s_waitcnt lgkmcnt(6)'] + spread(d0[:4], r_[:4]) + ['s_waitcnt lgkmcnt(7)'] + spread(d0[4:9], r_[4:9]) + ['s_waitcnt lgkmcnt(9)'] + spread(d0[9:12], r_[9:]) + spread(d0[12:], sc)
            else: seq_ = spread(n0[:12], reads2(1, 1, j)) + spread(n0[12:], sc)
            hh1, pend = auto_lgkm(seq_, pend0)
            for x in hh1: p(x)
            if j == exit_at:
                if per_ < 16: p('s_cbranch_scc1 L_tail2')
                else: break
            sc = ['s_add_u32 s15, s15, 1'] if j == per_ - 1 else []
            d1 = mfd(1) if DIAG else n1
            hh2, _ = auto_lgkm((['s_waitcnt lgkmcnt(6)'] if DIAG else []) + spread(d1[:NB2], sc) + ['s_waitcnt lgkmcnt(0)', 's_barrier'] + spread(d1[NB2:], reads2(0, 0, j + 1)), pend)
            for x in hh2: p(x)
        if per_ < 16: p('s_branch L_loop2')
    else:
        p('L_loop2:')
        for x in h1: p(x)
        p('s_cbranch_scc1 L_tail2')
        for x in h2a + h2b: p(x)
        if SENT == 2:
            p('s_and_b32 s61, s15, 7')
            p('s_cmp_lg_u32 s61, 3')
            p('s_cbranch_scc1 L_loop2')
            p('s_cmp_eq_u32 s15, 3')
            p('s_cbranch_scc0 L_ev11')
            p('s_waitcnt vmcnt(0)')
            p('s_mov_b64 exec, 1')
            p('buffer_store_dwordx2 v[254:255], v253, s[52:55], s42 offen sc1')
            p('s_mov_b64 exec, -1')
            p('s_branch L_loop2')
            p('L_ev11:')
            p('s_mov_b64 exec, 15')
            p('buffer_load_dwordx2 v[250:251], v248, s[52:55], s40 offen sc1')
            p('s_mov_b64 exec, -1')
        p('s_branch L_loop2')
    p('L_tail2:')
    last = [f'{MF} {vr(A2(i,t))}, {vr(FA(1,t))}, {vr(FBq(1,i))}, {vr(A2(i,t))}' for i in (1, 2, 3, 0) for t in range(4)]
    chk = []
    if SENT:
        chk = ['s_waitcnt vmcnt(0)', 's_mov_b64 exec, 15', 'v_cmp_gt_u64 vcc, s[96:97], v[250:251]', 'v_cmp_lt_u64 s[100:101], s[98:99], v[250:251]',
               's_mov_b64 exec, -1', 's_or_b64 vcc, vcc, s[100:101]']
        for x in chk: p(x)
        p('s_cbranch_scc0 L_rdy')
        poll_flags(p, 'L_pf2', 248, 250, 's40', '15')
        p('L_rdy:')
    def send(i):
        L = []
        if PF32:
            L += [f'buffer_store_dwordx4 {vr(A2(i,t))}, v9, s[52:55], s{35+i} offen offset:{t*1024} {PFL}' for t in range(4)]
        elif TAGS:
            b0 = SR + 12*(i-1)
            for k in range(8):
                a = A2(i, k >> 1) + 2*(k & 1)
                L.append(f'v_cvt_pk_bf16_f32 v{b0 + 4*(k//3) + k%3}, v{a}, v{a+1}')
                if k in (2, 5, 7):
                    L.append(f'buffer_store_dwordx4 {vr(b0 + 4*(k//3))}, v9, s[52:55], s{35+i} offen offset:{(k//3)*1024} {PFL}')
        else:
            for hf in range(2):
                L += cvt4(A2(i, 2*hf), A2(i, 2*hf), A2(i, 2*hf+1))
                L.append(f'buffer_store_dwordx4 {vr(A2(i,2*hf))}, v9, s[52:55], s{35+i} offen offset:{hf*1024} {PFL}')
        return L
    seq = last[:8] + spread(last[8:12], send(1), per=3) + spread(last[12:], send(2), per=3) + send(3)
    if DEFER:
        steps = [(j, kk) for j in range(16 - DEFER, 16) for kk in range(2)]
        def ownr(n):
            j, kk = steps[n]; r_ = reads2(n & 1, kk, j)
            return [r_[11]] + [r_[k] for k in (1, 2, 3, 4, 6, 7, 9, 10)]
        seq = last[:8] + spread(last[8:12], send(1), per=3) + send(2) + send(3) + ownr(0)
        if STAMPS: seq.append(f'{"s_memtime" if CLK else "s_memrealtime"} s[88:89]')
        for n in range(len(steps)):
            om = [f'{MF} {vr(A2(0,t))}, {vr(FA(n&1,t))}, {vr(FBq(n&1,0))}, {vr(A2(0,t))}' for t in range(4)]
            nx = ownr(n + 1) if n + 1 < len(steps) else []
            if n == FSPLIT:
                seq += ['s_waitcnt vmcnt(0)', 's_mov_b64 exec, 1', f'buffer_store_dwordx2 v[254:255], v253, s[52:55], s42 offen {FLAGF}', 's_mov_b64 exec, -1']
            seq += nx[:3] + interleave(om, nx[3:])
    tl, _ = auto_lgkm(seq, pend)
    for x in tl: p(x)
    if not DEFER: dstamp(p, 8)
    R = 80
    nld = 3 * SZ // 1024
    def loads():
        for k in range(nld):
            p(f'buffer_load_dwordx4 {vr(R+4*k)}, v9, s[52:55], s{(39, 43, 48)[k//4]} offen offset:{(k%4)*1024} sc1')
    if TAGS:
        p(f's_mov_b32 s9, {SPIN_MAX}')
        p('s_mov_b32 s13, 0x100000')
        if TAGS == 2:
            p('v_mul_u32_u24 v238, 3072, v2')
            p('s_mov_b64 exec, 7')
            p('L_lp:')
            p('buffer_load_dword v250, v238, s[52:55], s39 offen offset:2060 sc1')
            p('s_waitcnt vmcnt(0)')
            p('v_subrev_u32 v250, s96, v250')
            p('v_cmp_le_u32 vcc, s13, v250')
            p('s_cbranch_vccz L_lp_ok')
            p(f's_sleep {PSLEEP}')
            p('s_sub_u32 s9, s9, 1')
            p('s_cmp_gt_u32 s9, 1')
            p('s_cbranch_scc1 L_lp')
            p('L_lp_ok:')
            p('s_mov_b64 exec, -1')
        p('L_rx:')
        loads()
        for i in range(3):
            p(f's_waitcnt vmcnt({6 - 3*i})')
            t0 = R + 12*i + 3
            p(f'v_xor_b32 v250, v{t0}, v{t0+4}')
            p(f'v_xor_b32 v251, v{t0}, v{t0+8}')
            if i == 0:
                p('v_or_b32 v252, v250, v251'); p(f'v_sub_u32 v249, v{t0}, v237')
            else:
                p('v_or3_b32 v252, v252, v250, v251'); p(f'v_sub_u32 v250, v{t0}, v237'); p('v_max_u32 v249, v249, v250')
        p('v_cmp_ne_u32 vcc, 0, v252')
        p('v_cmp_le_u32 s[100:101], s13, v249')
        p('s_or_b64 vcc, vcc, s[100:101]')
        p('s_cbranch_scc0 L_rx_ok')
        if SSLEEP: p(f's_sleep {SSLEEP}')
        p('s_sub_u32 s9, s9, 1')
        p('s_cmp_lg_u32 s9, 0')
        p('s_cbranch_scc1 L_rx')
        p('L_rx_ok:')
        dstamp(p, 9); dstamp(p, 10)
    elif SENT:
        p(f's_mov_b32 s9, {SPIN_MAX}')
        p('L_rx:')
        loads()
        n = nld * 4
        for k in range(nld):
            p(f's_waitcnt vmcnt({nld-1-k})')
            b_ = R + 4*k
            if k == 0:
                p(f'v_max3_u32 v252, v{b_}, v{b_+1}, v{b_+2}'); p(f'v_max_u32 v252, v252, v{b_+3}')
            else:
                p(f'v_max3_u32 v252, v252, v{b_}, v{b_+1}'); p(f'v_max3_u32 v252, v252, v{b_+2}, v{b_+3}')
        p('v_cmp_eq_u32 vcc, -1, v252')
        p('s_cbranch_vccz L_rx_ok')
        if SSLEEP: p(f's_sleep {SSLEEP}')
        p('s_sub_u32 s9, s9, 1')
        p('s_cmp_lg_u32 s9, 0')
        p('s_cbranch_scc1 L_rx')
        p('L_rx_ok:')
        dstamp(p, 9); dstamp(p, 10)
    else:
        if not (DEFER and FSPLIT < 2*DEFER):
            p('s_waitcnt vmcnt(0)')
            p('s_mov_b64 exec, 1')
            p(f'buffer_store_dwordx2 v[254:255], v253, s[52:55], s42 offen {FLAGF}')
        dstamp(p, 9)
        p('s_lshl_b32 s14, 1, s10'); p('s_xor_b32 s14, s14, 15'); p('s_mov_b32 s15, 0')
        poll_flags(p, 'L_pf2', 248, 250, 's40', 's[14:15]')
        dstamp(p, 10)
        loads()
    for i in range(3):
        if PF32:
            if not SENT: p(f's_waitcnt vmcnt({nld - 4*(i+1)})')
            for t in range(4):
                for r in range(4):
                    p(f'v_add_f32 v{A2(0,t)+r}, v{A2(0,t)+r}, v{R+16*i+4*t+r}')
        else:
            if not SENT and not TAGS: p(f's_waitcnt vmcnt({nld - 2*(i+1)})')
            for t in range(4):
                for r2 in range(2):
                    src = R + 8*i + 2*t + r2
                    if TAGS:
                        k = 2*t + r2; src = R + 12*i + 4*(k//3) + k%3
                    p(f'v_lshlrev_b32 v250, 16, v{src}')
                    p(f'v_and_b32 v251, 0xffff0000, v{src}')
                    p(f'v_add_f32 v{A2(0,t)+2*r2}, v{A2(0,t)+2*r2}, v250')
                    p(f'v_add_f32 v{A2(0,t)+2*r2+1}, v{A2(0,t)+2*r2+1}, v251')
    for t in range(4):
        a = A2(0, t)
        p(f'v_cvt_pk_bf16_f32 v{a}, v{a}, v{a+1}')
        p(f'v_cvt_pk_bf16_f32 v{a+1}, v{a+2}, v{a+3}')
        p(f'buffer_store_dwordx2 {vr(a,2)}, v7, s[44:47], s41 offen offset:{t*32}')
    if STAMPS:
        p('s_waitcnt vmcnt(0)')
        dstamp(p, 11)
    p('L_cdone:')
    flush_stamps(p, 12, 0, 0, 'L_fsC')
    p('L_end:')
    p('s_endpgm')
    return p.finalize()

if __name__ == '__main__':
    out = HDR
    out += '; @launch grid=(256,1,1) block=(512,1,1) lds=163840\n'
    out += '.amdgcn_target "amdgcn-amd-amdhsa--gfx950"\n.text\n'
    out += gen() + '\n'
    out += '.section .rodata,"a"\n' + kd(NAME + '_kernel', 256, 102)
    print(out)
```

```python
from common import *
from asmlib import auto_lgkm as _al
CAP = opt('cap', 8)
def auto_lgkm(l, pnd=None): return _al(l, pnd, CAP)
XFL = opt('xfl', 'none').replace('none', '')
WFL2 = opt('wfl2', 'none').replace('none', '')
OFL = opt('ofl', 'sc1').replace('none', '').replace('_', ' ')
ORFL = opt('orfl', 'sc1').replace('none', '').replace('_', ' ')
LAG = opt('lag', 7)
PATA = opt('pata', 's0 s1 s2 s3 K1 s4 s5 Kb ka s6 s7 v0 s8 s9 v1 Wa Wb').replace('_', ' ')
PATB = opt('patb', 's0 s1 s2 s3 K1 s4 s5 Kb ka s6 s7 v0 s8 s9 v1 Wa Wb').replace('_', ' ')
PATSEL = opt('patsel', 6)
if opt('sent', 0) == 3 and 'Z' not in PATA: PATA += ' Z'; PATB += ' Z'
NA = opt('na', 5)
PF32 = opt('pf32', 0)
LPRIO = opt('lprio', 0)
PSRC = opt('psrc', 0)
VW = opt('vw', 0)
ORH = opt('orh', 0)
WGF = opt('wgf', 0)
OUTF = opt('outf', 'none').replace('none', '').replace('_', ' ')
WIDE = opt('wide', 0)
FWARM = opt('fwarm', 3)
DEFER = opt('defer', 4)
FSPLIT = opt('fsplit', 8)
POLLF = opt('pollf', 'sc1').replace('_', ' ')
FLAGF = opt('flagf', 'sc1').replace('_', ' ')
PUB = opt('pub', 1)
assert opt('half', 1) or not opt('wgf', 0)
assert not (opt('early', 0) and opt('lowd', 2) != 3)
WLAG = opt('wlag', 10)
ORC = opt('orc', 0)
PK = opt('pk', 0)
LOWD = opt('lowd', 2)
EARLY = opt('early', 0)
LAG0 = opt('lag0', 7)
LAGE = opt('lage', 5)
SNAKE = opt('snake', 1)
NAT = opt('nat', 5)
BURST = opt('burst', 0)
PER1 = opt('per1', 1)
XNOP = opt('xnop', 0)
HALF = opt('half', 1)
FAPOS = opt('fapos', 1)
SENT = opt('sent', 0)
SSLEEP = opt('ssleep', 1)
PFS = opt('pfs', 0)
PF0 = opt('pf0', 0)
PFN = opt('pfn', 10)
FAKEWO = opt('fakewo', 0)
NOPOLL = opt('nopoll', 0)
FASTP = opt('fastp', 0)
WOFL = opt('wofl', 'none').replace('none', '')
WOFL2 = opt('wofl2', 'none').replace('none', '')
PFL = opt('pfl', 'sc1').replace('_', ' ')
CPF2 = opt('cpf2', 5)
WOA = opt('woa', 0)
WOB = opt('wob', 0)
ROT2 = opt('rot2', 0)
CPF = opt('cpf', 0)
ROT = opt('rot', 1)
RB = opt('rb', '0358')
RH = opt('rh', '03581469')
OEARLY = opt('oearly', 1)
KVFL = opt('kvfl', 'nt').replace('none', '')
TICKET = opt('ticket', 0)
CFL = opt('cfl', 'none').replace('none', '')
PSLEEP = opt('psleep', 2)
XS, WS_, SP = 0, 73728, 122880
KB0 = SP - 8192; KB1 = KB0 + 24576
VB0 = XS + 2*24576; VB1 = XS
NWS = opt('nws', 6); NOS = opt('nos', 4)
CPF3 = opt('cpf3', 8)
UNR = opt('unr', 1)
DIAG = opt('diag', 1)
NB2 = opt('nb2', 4)
O_L = 0; WO_L = NOS * 16384
NE = opt('ne', 0); N1 = opt('n1', 6); N2 = opt('n2', 0); LAG2 = opt('lag2', 16)
FS1 = opt('fs1', 3); FS2 = opt('fs2', 7)
FBO = 1024 if FS1 == 3 else 8
GST = 1572864 + 28672
O_OFF = 4096; F1_OFF = O_OFF + 1572864; GT_OFF = F1_OFF + 20480
INBOX = 16 << 20
TAGS = opt('tags', 0)
SZ = 4096 if PF32 else (3072 if TAGS else 2048)
assert not (TAGS and (PF32 or opt('sent', 0)))
RST = 48 * SZ + 4096
I_OFF = 1024; F2_OFF = I_OFF + 48 * SZ; RT_OFF = F2_OFF + 2048
WS_SIZE = 48 << 20
TOUCH = opt('touch', 0)
MF = 'v_mfma_f32_16x16x32_bf16'
SPIN_MAX = 1 << 24

def dstamp(p, k):
    if STAMPS: p(f'{"s_memtime" if CLK else "s_memrealtime"} s[{72+2*k}:{73+2*k}]')
def flush_stamps(p, n, base_idx, wave, lbl):
    if not STAMPS: return
    p(f's_cmp_lg_u32 s3, {wave}'); p(f's_cbranch_scc1 {lbl}')
    p('s_waitcnt lgkmcnt(0) vmcnt(0)')
    p('v_mov_b32 v1, 0')
    p('s_mov_b64 exec, 1')
    for k in range(n):
        p(f'v_mov_b32 v{4+2*k}, s{72+2*k}'); p(f'v_mov_b32 v{5+2*k}, s{73+2*k}')
        p(f'buffer_store_dwordx2 v[{4+2*k}:{5+2*k}], v1, s[56:59], s60 offen offset:{(base_idx+k)*8}')
    p('s_waitcnt vmcnt(0)')
    p(f'{lbl}:')
def poll_flags(p, lbl, vaddr, vtmp, soff, maskreg):
    p(f's_mov_b32 s9, {SPIN_MAX}')
    p(f's_mov_b64 exec, {maskreg}')
    p(f'{lbl}:')
    p(f'buffer_load_dwordx2 v[{vtmp}:{vtmp+1}], v{vaddr}, s[52:55], {soff} offen {POLLF}')
    p('s_waitcnt vmcnt(0)')
    p(f'v_cmp_gt_u64 vcc, s[96:97], v[{vtmp}:{vtmp+1}]')
    p(f'v_cmp_lt_u64 s[100:101], s[98:99], v[{vtmp}:{vtmp+1}]')
    p('s_or_b64 vcc, vcc, s[100:101]')
    p(f's_cbranch_scc0 {lbl}_ok')
    p(f's_sleep {PSLEEP}')
    p('s_sub_u32 s9, s9, 1')
    p('s_and_b32 s100, s9, 127')
    p(f's_cbranch_scc1 {lbl}')
    p('s_lshl_b32 s100, s6, 7')
    p('s_load_dwordx2 s[100:101], s[34:35], s100 glc')
    p('s_waitcnt lgkmcnt(0)')
    p('s_cmp_eq_u64 s[100:101], 0')
    p(f's_cbranch_scc1 {lbl}_nz')
    p('s_not_b64 s[96:97], s[100:101]')
    p(f'{lbl}_nz:')
    p('s_cmp_lg_u32 s9, 0')
    p(f's_cbranch_scc1 {lbl}')
    p(f'{lbl}_ok:')
    p('s_mov_b64 exec, -1')

def cvt4(d, a0, a1):
    return [f'v_cvt_pk_bf16_f32 v{d}, v{a0}, v{a0+1}', f'v_cvt_pk_bf16_f32 v{d+1}, v{a0+2}, v{a0+3}',
            f'v_cvt_pk_bf16_f32 v{d+2}, v{a1}, v{a1+1}', f'v_cvt_pk_bf16_f32 v{d+3}, v{a1+2}, v{a1+3}']
def spread(main, fill, extra=(), per=1):
    out = []; fi = 0; ei = 0
    for m in main:
        out.append(m)
        for _ in range(per):
            if fi < len(fill): out.append(fill[fi]); fi += 1
        if ei < len(extra): out.append(extra[ei]); ei += 1
    return out + list(fill[fi:]) + list(extra[ei:])

def p2_ids(p):
    p('s_mul_i32 s66, s5, 52'); p('s_lshr_b32 s66, s66, 8')
    p('s_mul_i32 s67, s66, 5'); p('s_sub_u32 s67, s5, s67')
    p('s_and_b32 s10, s4, 3')

def gen():
    p = Prog()
    K1 = NAME + '_kernel'
    p(f'.globl {K1}\n.p2align 8\n.type {K1},@function\n{K1}:')
    p('s_cmp_ge_u32 s2, 256')
    p('s_cbranch_scc1 L_end')
    p('s_load_dwordx8 s[16:23], s[0:1], 0')
    p('s_memrealtime s[96:97]')
    p('s_load_dwordx8 s[24:31], s[0:1], 40')
    p('s_load_dwordx4 s[32:35], s[0:1], 88')
    dstamp(p, 0)
    p('v_lshrrev_b32 v1, 6, v0')
    p('v_and_b32 v2, 63, v0')
    p('v_readfirstlane_b32 s3, v1')
    if TICKET:
        p('v_mov_b32 v5, 0')
        p('s_cmp_lg_u32 s3, 0')
        p('s_cbranch_scc1 L_tk_wait')
        p('s_getreg_b32 s4, hwreg(HW_REG_XCC_ID)')
        p('s_and_b32 s4, s4, 7')
        p('s_waitcnt lgkmcnt(0)')
        p('L_tk_try:')
        p('s_lshl_b32 s5, s4, 5')
        p('s_add_u32 s5, s5, 16')
        p('s_mov_b32 s6, 1')
        p('s_atomic_add s6, s[32:33], s5 glc')
        p('s_waitcnt lgkmcnt(0)')
        p('s_cmp_lt_u32 s6, 32')
        p('s_cbranch_scc1 L_tk_ok')
        p('s_add_u32 s4, s4, 1')
        p('s_and_b32 s4, s4, 7')
        p('s_branch L_tk_try')
        p('L_tk_ok:')
        p('s_lshl_b32 s6, s6, 3')
        p('s_add_u32 s6, s6, s4')
        p('v_mov_b32 v6, s6')
        p('ds_write_b32 v5, v6')
        p('s_waitcnt lgkmcnt(0)')
        p('L_tk_wait:')
        p('s_barrier')
        p('ds_read_b32 v6, v5')
        p('s_waitcnt lgkmcnt(0)')
        p('v_readfirstlane_b32 s2, v6')
        p('s_barrier')
        p('s_and_b32 s2, s2, 255')
    p('s_and_b32 s4, s2, 7')
    p('s_lshr_b32 s5, s2, 3')
    p('s_lshr_b32 s6, s4, 2')
    p('s_and_b32 s7, s4, 3')
    p('s_lshl_b32 s7, s7, 3')
    p('s_and_b32 s66, s5, 7')
    p('s_add_u32 s7, s7, s66')
    p('s_lshr_b32 s8, s5, 3')
    p('v_lshrrev_b32 v3, 4, v2')
    p('v_and_b32 v4, 15, v2')
    p('s_cmp_lt_u32 s3, 4')
    p('s_cbranch_scc1 L_compute')
    if LPRIO: p(f's_setprio {LPRIO}')
    p('s_and_b32 s11, s3, 3')
    p('v_lshrrev_b32 v5, 3, v2')
    p('s_lshl_b32 s12, s11, 3')
    p('v_add_u32 v5, s12, v5')
    p('v_mul_u32_u24 v5, 1280, v5')
    p('s_and_b32 s12, s11, 1')
    p('s_lshl_b32 s12, s12, 2')
    p('v_add_u32 v6, s12, v3')
    p('v_and_b32 v7, 7, v2')
    p('v_xor_b32 v7, v7, v6')
    p('v_lshl_add_u32 v11, v7, 4, v5')
    p('v_lshlrev_b32 v6, 1, v6')
    p('v_xor_b32 v8, v6, v4')
    p('s_lshl_b32 s12, s11, 2')
    p('v_add_u32 v5, s12, v3')
    p('s_lshr_b32 s12, s11, 1')
    p('s_lshl_b32 s12, s12, 2')
    p('v_add_u32 v6, s12, v3')
    p('v_lshlrev_b32 v6, 1, v6')
    p('v_xor_b32 v6, v6, v4')
    p('v_lshlrev_b32 v7, 13, v5')
    p('v_lshl_add_u32 v12, v6, 4, v7')
    p('s_lshl_b32 s13, s11, 10')
    tb = sum(int(c) << (4*i) for i, c in enumerate(RB)); th = sum(int(c) << (4*i) for i, c in enumerate(RH))
    p('s_lshl_b32 s69, s8, 2'); p(f's_lshr_b32 s69, {tb:#x}, s69'); p('s_and_b32 s69, s69, 15')
    p('s_lshl_b32 s70, s66, 2'); p(f's_lshr_b32 s70, {th:#x}, s70'); p('s_and_b32 s70, s70, 15')
    p('s_add_u32 s69, s69, s70')
    p('s_cmp_ge_u32 s69, 10'); p('s_cselect_b32 s71, 10, 0'); p('s_sub_u32 s69, s69, s71')
    p('s_mul_i32 s9, s8, 245760')
    p('s_lshl_b32 s10, s7, 8')
    p('s_waitcnt lgkmcnt(0)')
    p('s_cmp_eq_u32 s6, 0')
    for i in range(4):
        p(f's_cselect_b64 s[{16+2*i}:{17+2*i}], s[{16+2*i}:{17+2*i}], s[{24+2*i}:{25+2*i}]')
    p('s_add_u32 s36, s16, s9'); p('s_addc_u32 s37, s17, 0')
    p('s_mov_b32 s38, 245760'); p('s_mov_b32 s39, 0x20000')
    p('s_add_u32 s40, s22, s10'); p('s_addc_u32 s41, s23, 0')
    p('s_sub_u32 s42, 5242880, s10'); p('s_mov_b32 s43, 0x20000')
    def late_setup(p):
        p('v_lshlrev_b32 v7, 8, v5')
        p('v_lshl_add_u32 v13, v8, 4, v7')
        p('v_xor_b32 v6, v4, v5')
        p('v_lshl_add_u32 v10, v6, 4, v7')
        p('s_lshl_b32 s12, s8, 6'); p('s_add_u32 s12, s12, s7'); p('s_mul_i32 s12, s12, 24576')
        p('s_add_u32 s44, s18, s12'); p('s_addc_u32 s45, s19, 0')
        p(f's_mov_b32 s46, {786432+24576}'); p('s_mov_b32 s47, 0x20000')
        p('s_add_u32 s48, s20, s12'); p('s_addc_u32 s49, s21, 0')
        p(f's_mov_b32 s50, {786432+24576}'); p('s_mov_b32 s51, 0x20000')
        p(f's_load_dwordx2 s[16:17], s[0:1], {0 if FAKEWO else 32}')
        p(f's_load_dwordx2 s[18:19], s[0:1], {40 if FAKEWO else 72}')
        srd(p, 52, 34, 35, WS_SIZE)
        p('s_mov_b32 s98, s96'); p('s_add_u32 s99, s97, 1')
        stamp_setup(p, 34, 35)
        p('s_mov_b64 s[34:35], s[32:33]')
        if CPF2 >= 0:
            p('s_getpc_b64 s[22:23]')
            p('L_pc2:')
            p('s_lshl_b32 s9, s5, 2'); p('s_add_u32 s9, s9, s11'); p('s_lshl_b32 s9, s9, 8')
            p(f's_min_u32 s9, s9, L_end-L_ld2-192')
            p(f's_add_u32 s9, s9, L_ld2-L_pc2')
            p('s_add_u32 s22, s22, s9'); p('s_addc_u32 s23, s23, 0')
        p('s_not_b64 s[20:21], s[96:97]')
        p('s_lshl_b32 s67, s6, 7')
        p('s_lshl_b32 s68, s11, 3')
        if PUB == 1: p('s_add_u32 s68, s68, s66')

    afterV = []
    def loader(pat, tag):
        p = Prog()
        stream = []
        for w in pat.split():
            if w[0] == 's': stream += [('x' + w[1:], m) for m in range(6)] + [('w' + w[1:], m) for m in range(4)]
            elif w[0] in 'xw': stream += [(w, m) for m in range(6 if w[0] == 'x' else 4)]
            elif w == 'ka': stream += [('k0', m) for m in range(2)]
            elif w == 'Z': stream += [('Z0', m) for m in range(3 * SZ // 1024)]
            elif w == 'Wa': stream += [('W0', m) for m in range(5)]
            elif w == 'Wb': stream += [('W0', m) for m in range(5, 10)]
            elif w == 'Ka': stream += [('K0', m) for m in range(2)]
            elif w == 'Kb': stream += [('K0', m) for m in range(2, 6)]
            else: stream += [(w, m) for m in range(6)]
        n = len(stream)
        end = {}
        for i, (it, m) in enumerate(stream):
            if it[0] in 'xw': end[int(it[1:])] = i + 1
        staged = [(i, it, m) for i, (it, m) in enumerate(stream) if it[0] in 'kv']
        end[10] = max(max(i for i, (it, m) in enumerate(stream) if it[0] in 'Kk') + 1, end[9])
        endst = max([x[0] + 1 for x in staged] + [end[9]])
        end[11] = max(max(i for i, (it, m) in enumerate(stream) if it[0] in 'Vv') + 1, end[10])
        lastV = end[11]
        def need(it, m):
            if it[0] in 'xw': return int(it[1:]) - 3
            if it == 'K0': return 7 if m < 2 else -9
            if it in ('K1', 'W0', 'Z0', 'k0', 'v0', 'v1'): return -9
            return 7 if it == 'V0' else 8
        bpos = {}; prev = 0
        for s in range(-1, 11):
            pos = min(end[s+1] + (LAG0 if s == -1 else LAG), n)
            if s == 9: pos = max(pos, min(lastV, n))
            if staged and s in (8, 9):
                fd = min([i for i, (it, m) in enumerate(stream) if i >= endst and it[0] in 'xwKV'] + [n])
                pos = min(min(end[9] + LAG, n), fd) if s == 8 else min(endst + WLAG, n, fd)
            if staged and s == 10 and all(it[0] not in 'V' for it, m in stream): pos = n
            first_needing = min([i for i, (it, m) in enumerate(stream) if need(it, m) >= s and need(it, m) >= 0] + [n])
            pos = min(pos, first_needing)
            assert pos >= end[s+1], (s, pos, end[s+1])
            pos = max(pos, prev); bpos[s] = pos; prev = pos
        passed = [-2]
        def pf(s):
            if not PFS or s < PF0 or s >= PF0 + PFN: return
            tot = 10240 // PFS
            k = s - PF0
            for i in range(k * tot // PFN, (k + 1) * tot // PFN):
                p(f's_load_dword s28, s[26:27], {i*PFS}')
        def barrier(s, issued):
            if PFS and s == -1:
                p('s_waitcnt lgkmcnt(0)')
                p('s_cmp_eq_u32 s6, 0')
                p('s_cselect_b64 s[26:27], s[16:17], s[18:19]')
                p('s_and_b32 s9, s4, 3'); p('s_lshl_b32 s9, s9, 5'); p('s_add_u32 s9, s9, s5'); p('s_lshl_b32 s9, s9, 2'); p('s_add_u32 s9, s9, s11')
                p('s_mul_i32 s9, s9, 10240')
                p('s_add_u32 s26, s26, s9'); p('s_addc_u32 s27, s27, 0')
            pf(s)
            p(f's_waitcnt vmcnt({issued - end[s+1]})')
            def wr_(kinds):
                for k_, (i_, it_, m_) in enumerate(staged):
                    if it_ not in kinds: continue
                    ad = {'k0': KB0, 'v0': VB0, 'v1': VB1}[it_] + m_*4096
                    p(f'ds_write_b128 v{15 + (ad >> 16)}, {vr(32+4*k_)} offset:{ad & 0xffff}')
            if s == 9 and staged:
                p('v_lshl_add_u32 v15, v2, 4, s13')
                p('v_add_u32 v16, 0x10000, v15')
                if VW != 2: wr_(('k0', 'v0') if VW == 1 else ('k0',))
                p('s_waitcnt lgkmcnt(0)')
            if (s == 10 and staged) or (s == 9 and not staged): p('s_waitcnt lgkmcnt(0)')
            if s == 10: dstamp(p, 5)
            p(f's_barrier      ; B_{s}')
            passed[0] = s
            if (PUB == 0 and s == 1) or (PUB == 1 and -1 <= s <= 6):
                p(f's_cmp_lg_u32 s68, {s+1 if PUB == 1 else 0}')
                p(f's_cbranch_scc1 L_nopub{tag}{s+1}')
                p('s_atomic_umax_x2 s[20:21], s[34:35], s67 glc')
                p(f'L_nopub{tag}{s+1}:')
            if s == 8 and staged and VW == 2:
                p('v_lshl_add_u32 v15, v2, 4, s13')
                p('v_add_u32 v16, 0x10000, v15')
                wr_(('k0', 'v0'))
            if s == 9 and staged:
                assert issued >= endst
                p(f's_waitcnt vmcnt({issued - endst})')
                wr_(('v1',) if VW else ('v0', 'v1'))
            if s == CPF2:
                p('s_load_dword s24, s[22:23], 0x0'); p('s_load_dword s25, s[22:23], 0x40'); p('s_load_dword s24, s[22:23], 0x80'); p('s_load_dword s25, s[22:23], 0xc0')
            if s in (-1, 2, 5, 8): dstamp(p, 1 + (s+1)//3)
        last_item = None
        for i, (it, m) in enumerate(stream):
            if i == 10: late_setup(p)
            if EARLY and i == 8 + LAGE:
                assert stream[7] == ('w0', 1) and i <= bpos[-1]
                p(f's_waitcnt vmcnt({LAGE})')
                p('s_barrier      ; B_-2')
            for s in range(-1, 11):
                if bpos[s] == i and passed[0] < s: barrier(s, i)
            assert need(it, m) <= passed[0] or need(it, m) < 0
            if it[0] in 'xw':
                t = int(it[1:]); slot = (t + 1) % 3
                if it != last_item:
                    p(f's_add_u32 s70, s69, {t}')
                    p('s_cmp_ge_u32 s70, 10'); p('s_cselect_b32 s71, 10, 0'); p('s_sub_u32 s70, s70, s71')
                    p(f's_lshl_b32 s64, s70, {7 if it[0]=="x" else 19}')
                if it[0] == 'x':
                    p(f's_add_u32 m0, s13, {XS + slot*24576 + m*4096}')
                    p(f's_add_u32 s14, s64, {m*40960}')
                    p(f'buffer_load_dwordx4 v11, s[36:39], s14 offen {XFL} lds')
                else:
                    p(f's_add_u32 m0, s13, {WS_ + slot*16384 + m*4096}')
                    p(f's_add_u32 s14, s64, {m*131072}')
                    p(f'buffer_load_dwordx4 v12, s[40:43], s14 offen {CFL if t < 3 else WFL2} lds')
            elif it[0] in 'kv':
                b = int(it[1]); k_ = [x[0] for x in staged].index(i)
                vo, sr = (10, 44) if it[0] == 'k' else (13, 48)
                p(f's_mov_b32 s14, {b*786432 + m*4096}')
                p(f'buffer_load_dwordx4 {vr(32+4*k_)}, v{vo}, s[{sr}:{sr+3}], s14 offen {KVFL}')
            elif it == 'Z0':
                if m == 0:
                    p('s_and_b32 s10, s4, 3')
                    p('s_lshl_b32 s61, s6, 5'); p('s_add_u32 s61, s61, s5'); p(f's_mul_i32 s61, s61, {RST}'); p(f's_add_u32 s61, s61, {INBOX}')
                    p('s_lshl_b32 s9, s10, 2'); p('s_add_u32 s9, s9, s11'); p(f's_mul_i32 s9, s9, {3*SZ}'); p('s_add_u32 s9, s9, s61')
                    p('v_lshlrev_b32 v15, 4, v2')
                    for i_ in range(4): p(f'v_mov_b32 v{24+i_}, -1')
                p(f's_add_u32 s14, s9, {I_OFF + m*1024}')
                p('buffer_store_dwordx4 v[24:27], v15, s[52:55], s14 offen sc1')
            elif it == 'W0':
                if m in (0, 5):
                    p('s_waitcnt lgkmcnt(0)')
                    p('s_cmp_eq_u32 s6, 0')
                    p('s_cselect_b64 s[28:29], s[16:17], s[18:19]')
                    p('s_mov_b32 s30, 5242880'); p('s_mov_b32 s31, 0x20000')
                    p('s_and_b32 s9, s4, 3'); p('s_lshl_b32 s9, s9, 5'); p('s_add_u32 s9, s9, s5'); p('s_mul_i32 s9, s9, 40960')
                    p('v_lshl_add_u32 v15, v2, 4, s13')
                p(f's_add_u32 s14, s9, {m*4096}')
                p('buffer_load_dwordx4 v[20:23], v15, s[28:31], s14 offen')
            else:
                b = int(it[1])
                addr = {'K0': KB0, 'K1': KB1, 'V0': VB0, 'V1': VB1}[it] + m*4096
                vo, sr = (10, 44) if it[0] == 'K' else (13, 48)
                p(f's_add_u32 m0, s13, {addr}')
                p(f's_mov_b32 s14, {b*786432 + m*4096}')
                p(f'buffer_load_dwordx4 v{vo}, s[{sr}:{sr+3}], s14 offen {KVFL} lds')
            last_item = it
        for s in range(-1, 11):
            if passed[0] < s: barrier(s, n)
        return p.lines
    la = loader(PATA, 'A'); lb = loader(PATB, 'B')
    k = 0
    while k < min(len(la), len(lb)) and la[k].replace('nopubA', 'nopub') == lb[k].replace('nopubB', 'nopub'): k += 1
    while k < len(la) and not la[k-1].startswith('buffer_load'): k -= 1
    for x in la[:k]: p(x)
    if k < len(la) or k < len(lb):
        p(f's_bitcmp1_b32 s2, {PATSEL}')
        p('s_cbranch_scc1 L_patB')
        for x in la[k:]: p(x)
        p('s_branch L_ld2')
        p('L_patB:')
        for x in lb[k:]: p(x)
    p('L_ld2:')
    def wgflag(off, lbl):
        p('s_cmp_lg_u32 s3, 5')
        p(f's_cbranch_scc1 {lbl}')
        p('s_mov_b64 exec, 1')
        p(f'buffer_store_dwordx2 v[28:29], v30, s[52:55], s68 offen offset:{off} {FLAGF}')
        p('s_mov_b64 exec, -1')
        p(f'{lbl}:')
    if WGF:
        p('s_memrealtime s[24:25]')
        p(f's_lshl_b32 s68, s5, {FS1}'); p(f's_mul_i32 s9, s4, {GST}'); p('s_add_u32 s68, s68, s9'); p(f's_add_u32 s68, s68, {F1_OFF}')
        p('v_mov_b32 v30, 0')
        p('s_waitcnt lgkmcnt(0)')
        p('v_mov_b32 v28, s24'); p('v_mov_b32 v29, s25')
    p('s_cmp_ge_u32 s5, 30')
    p('s_cbranch_scc1 L_ld_idle')
    p2_ids(p)
    p('s_waitcnt lgkmcnt(0)')
    p('s_cmp_eq_u32 s6, 0')
    p('s_cselect_b64 s[16:17], s[16:17], s[18:19]')
    p(f's_mul_i32 s9, s10, {0 if FAKEWO else 1310720}')
    p('s_lshl_b32 s12, s67, 8')
    p('s_add_u32 s9, s9, s12')
    p('s_add_u32 s36, s16, s9'); p('s_addc_u32 s37, s17, 0')
    p(f's_sub_u32 s38, {983040 if FAKEWO else 1310720}, s12'); p('s_mov_b32 s39, 0x20000')
    p('v_mul_u32_u24 v7, 1280, v5')
    p('v_lshl_add_u32 v12, v8, 4, v7')
    p('v_lshl_add_u32 v11, v2, 4, s13')
    p('s_mul_i32 s69, s66, 43'); p('s_lshr_b32 s69, s69, 4')
    p(f's_mul_i32 s70, s67, {ROT2}'); p('s_add_u32 s69, s69, s70'); p(f's_and_b32 s69, s69, {14 if HALF else 15}')
    p(f's_mul_i32 s65, s4, {GST}')
    p('s_lshl_b32 s12, s66, 13'); p('s_add_u32 s65, s65, s12'); p(f's_add_u32 s65, s65, {O_OFF}')
    p('s_mul_i32 s70, s69, 81920')
    p('s_mul_i32 s71, s69, 98304')
    p('s_add_u32 s71, s71, s65')
    p(f's_add_u32 s63, s65, {16*98304}')
    cnt = [0]
    endo = {}; endw = {}
    def wo_issue(k):
        fl = WOFL if k < 3 else WOFL2
        for m in range(4):
            p(f's_add_u32 m0, s13, {WO_L + ((k + 1) % NWS)*16384 + m*4096}')
            p(f's_add_u32 s14, s70, {m*20480}')
            p(f'buffer_load_dwordx4 v12, s[36:39], s14 offen {fl} lds')
        if HALF:
            p(f's_add_u32 s70, s70, {2*81920}')
            p(f's_cmp_ge_u32 s70, {16*81920}')
            p(f's_cselect_b32 s12, {16*81920}, 0'); p('s_sub_u32 s70, s70, s12')
            if k == 7: p('s_add_u32 s70, s70, 81920')
        else:
            p('s_add_u32 s70, s70, 81920')
            p(f's_cmp_eq_u32 s70, {16*81920}')
            p('s_cselect_b32 s70, 0, s70')
        cnt[0] += 4; endw[k] = cnt[0]
    def o_issue(k):
        if HALF and k == 8:
            p(f's_waitcnt vmcnt({cnt[0] - endo["f"]})')
            p('s_mov_b64 exec, s[20:21]')
            p('v_cmp_gt_u64 vcc, s[96:97], v[16:17]')
            p('v_cmp_lt_u64 s[100:101], s[98:99], v[16:17]')
            p('s_mov_b64 exec, -1')
            p('s_or_b64 vcc, vcc, s[100:101]')
            p('s_cbranch_scc0 L_fb_ok')
            p(f's_add_u32 s15, s15, {FBO}')
            poll_flags(p, 'L_pf1b', 14, 16, 's15', 's[20:21]')
            p('L_fb_ok:')
        for m in range(4):
            p(f's_add_u32 m0, s13, {O_L + (k % NOS)*16384 + m*4096}')
            p(f's_add_u32 s14, s71, {(0, 4096, 49152, 53248)[m]}')
            p(f'buffer_load_dwordx4 v11, s[52:55], s14 offen {ORFL} lds')
        if HALF:
            p(f's_add_u32 s71, s71, {2*98304}')
            p('s_cmp_ge_u32 s71, s63')
            p(f's_cselect_b32 s12, {16*98304}, 0'); p('s_sub_u32 s71, s71, s12')
            if k == 7: p('s_add_u32 s71, s71, 98304')
        else:
            p('s_add_u32 s71, s71, 98304')
            p('s_cmp_eq_u32 s71, s63')
            p('s_cselect_b32 s71, s65, s71')
        cnt[0] += 4; endo[k] = cnt[0]
        if HALF and k == 5:
            p('s_mov_b64 exec, s[20:21]')
            p(f'buffer_load_dwordx2 v[16:17], v14, s[52:55], s15 offen offset:{FBO} sc1')
            p('s_mov_b64 exec, -1')
            cnt[0] += 1; endo['f'] = cnt[0]
    if WGF:
        p('s_mul_i32 s12, s66, 43'); p('s_lshr_b32 s12, s12, 6'); p(f's_lshl_b32 s12, s12, {FS1+3}')
    else:
        p('s_mul_i32 s12, s66, 171'); p('s_lshr_b32 s12, s12, 6'); p(f's_lshl_b32 s12, s12, {FS1+3}')
    p(f's_mul_i32 s14, s4, {GST}'); p('s_add_u32 s12, s12, s14'); p(f's_add_u32 s15, s12, {F1_OFF}')
    if WGF:
        p('s_movk_i32 s21, 0xff')
        p('s_cmp_eq_u32 s66, 1'); p('s_cselect_b32 s20, 0xffff, s21')
        p('s_cmp_eq_u32 s66, 4'); p('s_cselect_b32 s20, 0xffff, s20'); p('s_mov_b32 s21, 0')
    else:
        p('s_cmp_eq_u32 s66, 1'); p('s_cselect_b32 s20, -1, 0xffffff')
        p('s_cmp_eq_u32 s66, 4'); p('s_cselect_b32 s20, -1, s20'); p('s_mov_b32 s21, 0')
    p(f'v_lshlrev_b32 v14, {FS1}, v2')
    if SENT == 3:
        p('s_memrealtime s[24:25]')
        p('s_lshl_b32 s9, s11, 7'); p('s_add_u32 s9, s9, s61'); p('s_lshl_b32 s14, s10, 3'); p('s_add_u32 s9, s9, s14'); p(f's_add_u32 s9, s9, {F2_OFF}')
        p('v_mov_b32 v30, 0')
        p('s_waitcnt vmcnt(0) lgkmcnt(0)')
        p('v_mov_b32 v28, s24'); p('v_mov_b32 v29, s25')
        p('s_mov_b64 exec, 1')
        p('buffer_store_dwordx2 v[28:29], v30, s[52:55], s9 offen sc1')
        p('s_mov_b64 exec, -1')
    nw = 0
    assert UNR and NE <= NWS - 1 and WO_L + 16384 >= VB0 + 24576
    for _ in range(NE): wo_issue(nw); nw += 1
    if WGF:
        p('s_barrier')
        wgflag(0, 'L_wfa')
    p('s_barrier')
    for _ in range(N1 - NE): wo_issue(nw); nw += 1
    if not HALF: p('s_barrier')
    for _ in range(N2): wo_issue(nw); nw += 1
    p('s_cmp_lg_u32 s3, 4')
    p('s_cbranch_scc1 L_nopoll')
    poll_flags(p, 'L_pf1', 14, 16, 's15', 's[20:21]')
    p('L_nopoll:')
    p('s_barrier      ; B_12')
    dstamp(p, 6)
    no = 0
    for c in range(-1, 15):
        def allowed():
            cand = []
            if no < 16 and (no < NOS or no - NOS <= c - 1): cand.append(('o', no))
            if nw < 16 and (nw < NWS or nw - NWS <= c - 1): cand.append(('w', nw))
            cand.sort(key=lambda x: (x[1], x[0] == 'o'))
            return cand
        while True:
            done = (c + 1) in endo and (c + 1) in endw
            if done and cnt[0] - max(endo[c+1], endw[c+1]) >= LAG2: break
            cand = allowed()
            if not cand:
                assert done; break
            if cand[0][0] == 'o': o_issue(no); no += 1
            else: wo_issue(nw); nw += 1
        p(f's_waitcnt vmcnt({cnt[0] - max(endo[c+1], endw[c+1])})')
        p(f's_barrier      ; C_{c}')
        if c == -1: dstamp(p, 7)
        if c == -1 and WGF: wgflag(FBO, 'L_wfb')
        if c == CPF3:
            p('s_getpc_b64 s[22:23]')
            p('L_pc3:')
            p('s_lshl_b32 s9, s5, 2'); p('s_add_u32 s9, s9, s11'); p('s_and_b32 s9, s9, 63'); p('s_lshl_b32 s9, s9, 6')
            p('s_min_u32 s9, s9, L_end-L_tail2')
            p('s_add_u32 s9, s9, L_tail2-L_pc3')
            p('s_add_u32 s22, s22, s9'); p('s_addc_u32 s23, s23, 0')
            p('s_load_dword s24, s[22:23], 0x0')
    assert no == 16 and nw == 16
    dstamp(p, 8)
    flush_stamps(p, 9, 16, 4, 'L_fsL')
    p('s_endpgm')
    p('L_ld_idle:')
    if WGF:
        p('s_barrier      ; FA')
        wgflag(0, 'L_wfa2')
    p('s_barrier      ; B_11a')
    if WGF:
        p('s_barrier')
        wgflag(FBO, 'L_wfb2')
    p('s_endpgm')

    p('L_compute:')
    G = lambda g: 16 + 4*g
    ACC = lambda t, qt: G(t*3+qt)
    AF = lambda st, t: G(24 + st*8 + t)
    BF = lambda st, qt: G(40 + st*3 + qt)
    AADR = 240; BADR = 248
    p('v_bfe_u32 v5, v2, 2, 2')
    p('v_and_b32 v6, 3, v2')
    p('v_and_b32 v7, 1, v3')
    p('v_lshl_add_u32 v7, v7, 2, v5')
    p('v_lshlrev_b32 v7, 1, v7')
    p('v_lshrrev_b32 v8, 1, v6')
    p('v_xor_b32 v7, v7, v8')
    p('v_lshlrev_b32 v7, 4, v7')
    p('v_and_b32 v8, 1, v6')
    p('v_lshl_add_u32 v7, v8, 3, v7')
    p('v_lshl_add_u32 v8, v3, 3, v5')
    p('v_lshl_add_u32 v8, v8, 8, v7')
    p(f'v_add_u32 v8, {WS_ + 16384}, v8')
    for t in range(8):
        p(f'v_xor_b32 v{AADR+t}, {t<<5}, v8')
    p('v_lshrrev_b32 v8, 1, v4')
    p('v_xor_b32 v8, v8, v3')
    p('v_lshlrev_b32 v8, 4, v8')
    p('v_lshl_add_u32 v8, v4, 7, v8')
    p('s_mul_i32 s13, s3, 6144')
    p(f's_add_u32 s13, s13, {XS + 24576}')
    p(f'v_add_u32 v{BADR}, s13, v8')
    p(f'v_xor_b32 v{BADR+1}, 64, v{BADR}')
    p('s_cmp_lt_u32 s3, 2')
    p(f's_mov_b32 s13, {KB1}'); p(f's_mov_b32 s14, {VB1}')
    p(f's_cselect_b32 s13, {KB0}, s13'); p(f's_cselect_b32 s14, {VB0}, s14')
    p('v_lshrrev_b32 v8, 1, v3')
    p('v_xor_b32 v8, v8, v4')
    p('v_lshlrev_b32 v8, 4, v8')
    p('v_lshl_add_u32 v8, v4, 8, v8')
    p('v_and_b32 v9, 1, v3')
    p('v_lshl_add_u32 v8, v9, 3, v8')
    p('v_add_u32 v10, s13, v8')
    p('v_lshl_add_u32 v8, v3, 2, v5')
    p('v_lshl_add_u32 v6, v8, 8, v7')
    p('v_add_u32 v11, s14, v6')
    p('v_lshlrev_b32 v9, 4, v2')
    for i in range(4): p(f'v_mov_b32 v{12+i}, 0x3f803f80')
    for i in range(96): p(f'v_mov_b32 v{16+i}, 0')
    p('s_mul_i32 s62, s66, 192'); p('s_mul_i32 s14, s8, 12'); p('s_add_u32 s62, s62, s14')
    p('s_mul_i32 s14, s3, 3'); p('s_add_u32 s62, s62, s14'); p('s_lshl_b32 s62, s62, 10')
    p(f's_mul_i32 s68, s4, {GST}'); p('s_add_u32 s62, s62, s68'); p(f's_add_u32 s62, s62, {O_OFF}')
    p(f's_mov_b32 s63, {f32bits(LOG2E_SCALE):#x}')
    p('s_mov_b32 s50, s63'); p('s_mov_b32 s51, s63')
    p('s_lshl_b32 s69, s8, 2'); p('s_add_u32 s69, s69, s3')
    p('s_lshl_b32 s69, s69, 3'); p('s_add_u32 s69, s69, s66'); p(f's_lshl_b32 s69, s69, {FS1}'); p('s_add_u32 s69, s69, s68'); p(f's_add_u32 s69, s69, {F1_OFF}')
    p('s_waitcnt lgkmcnt(0)')
    srd(p, 52, 34, 35, WS_SIZE)
    p('s_mov_b32 s98, s96'); p('s_add_u32 s99, s97, 1')
    stamp_setup(p, 34, 35)
    p('s_mov_b64 s[34:35], s[32:33]')
    p('s_load_dwordx2 s[20:21], s[0:1], 80')
    if CPF:
        p('s_cmp_lg_u32 s3, 1')
        p('s_cbranch_scc1 L_nocpf')
        p('s_getpc_b64 s[70:71]')
        p('L_pc:')
        p(f's_sub_u32 s70, s70, L_pc-{K1}')
        p('s_subb_u32 s71, s71, 0')
        p('s_mul_i32 s9, s5, 256')
        p(f's_min_u32 s9, s9, L_end-{K1}-640')
        p('s_add_u32 s70, s70, s9')
        p('s_addc_u32 s71, s71, 0')
        for i in range(4): p(f's_load_dword s{24+i}, s[70:71], {i*64}')
        p('L_nocpf:')
    p('s_waitcnt lgkmcnt(0)')
    srd(p, 44, 20, 21, 8*96*1280*2)
    if PUB == 2:
        p('s_cmp_lg_u32 s3, 3')
        p('s_cbranch_scc1 L_nopubc')
        srd(p, 24, 34, 35, 256)
        p('s_not_b64 s[70:71], s[96:97]')
        p('s_lshl_b32 s9, s6, 7')
        p('v_mov_b32 v250, s70'); p('v_mov_b32 v251, s71'); p('v_mov_b32 v252, 0')
        p('s_mov_b64 exec, 1')
        p('buffer_atomic_umax_x2 v[250:251], v252, s[24:27], s9 offen sc1')
        p('s_mov_b64 exec, -1')
        p('L_nopubc:')
    if TOUCH:
        p('s_cmp_lg_u32 s3, 2')
        p('s_cbranch_scc1 L_notouch')
        p('v_and_b32 v250, 1, v2')
        p(f'v_mul_u32_u24 v251, {GT_OFF}, v250')
        p(f'v_mul_u32_u24 v252, {RT_OFF}, v250')
        p(f'v_mul_u32_u24 v253, {8*96*1280*2 - 128}, v250')
        p('s_mul_i32 s9, s6, 32'); p('s_add_u32 s9, s9, s5'); p(f's_mul_i32 s9, s9, {RST}'); p(f's_add_u32 s9, s9, {INBOX}')
        p('s_mov_b64 exec, 3')
        p('buffer_load_dword v254, v251, s[52:55], s68 offen nt')
        p('buffer_load_dword v254, v252, s[52:55], s9 offen nt')
        p('buffer_load_dword v254, v253, s[44:47], 0 offen nt')
        p('s_mov_b64 exec, -1')
        p('L_notouch:')
    p2_ids(p)
    p('s_and_b32 s12, s3, 1'); p('s_lshl_b32 s12, s12, 2'); p('s_add_u32 s12, s12, s10')
    p('s_mul_i32 s61, s6, 32'); p('s_add_u32 s61, s61, s5'); p(f's_mul_i32 s61, s61, {RST}'); p(f's_add_u32 s61, s61, {INBOX}')
    for i in (1, 2, 3, 0):
        d = 35 + i if i else 39
        p(f's_xor_b32 s{d}, s10, {i}'); p(f's_lshl_b32 s{d}, s{d}, 2'); p(f's_add_u32 s{d}, s{d}, s3'); p(f's_mul_i32 s{d}, s{d}, {3*SZ}')
        p(f's_add_u32 s{d}, s{d}, s61'); p(f's_add_u32 s{d}, s{d}, {I_OFF + (i-1 if i else 0)*SZ}')
    p(f's_lshl_b32 s40, s3, {max(7, FS2+2)}'); p('s_add_u32 s40, s40, s61'); p(f's_add_u32 s40, s40, {F2_OFF}')
    p('s_lshl_b32 s41, s66, 3'); p('s_add_u32 s41, s41, s12'); p('s_mul_i32 s41, s41, 40960')
    p('s_mul_i32 s13, s6, 1280'); p('s_add_u32 s41, s41, s13'); p('s_lshl_b32 s13, s67, 8'); p('s_add_u32 s41, s41, s13')
    p('s_lshr_b32 s13, s3, 1'); p('s_lshl_b32 s13, s13, 7'); p('s_add_u32 s41, s41, s13')
    p(f's_lshl_b32 s42, s10, {FS2}'); p('s_add_u32 s42, s42, s40')
    p('s_add_u32 s43, s39, 4096')
    p('s_add_u32 s48, s39, 8192')
    if WGF:
        p(f's_lshl_b32 s69, s5, {FS1}'); p('s_add_u32 s69, s69, s68'); p(f's_add_u32 s69, s69, {F1_OFF}')
    if FWARM:
        p('v_mov_b32 v250, 0')
        p('s_mov_b64 exec, 1')
        if FWARM & 1:
            p('buffer_load_dword v251, v250, s[52:55], s69 offen sc1')
            p(f'buffer_load_dword v251, v250, s[52:55], s69 offen offset:{FBO} sc1')
        if FWARM & 2: p('buffer_load_dword v251, v250, s[52:55], s42 offen sc1')
        p('s_mov_b64 exec, -1')
    if SENT == 1:
        p('s_cmp_ge_u32 s5, 30')
        p('s_cbranch_scc1 L_noclr')
        for i in range(4): p(f'v_mov_b32 v{200+i}, -1')
        for k in range(3 * SZ // 1024):
            p(f'buffer_store_dwordx4 v[200:203], v9, s[52:55], s{(39, 43, 48)[k//4]} offen offset:{(k%4)*1024} sc1')
        p('L_noclr:')
    def reads(st, ks):
        L = [f'ds_read_b128 {vr(BF(st,qt))}, v{BADR+ks} offset:{qt*2048}' for qt in range(3)]
        for t in range(8):
            L.append(f'ds_read_b64_tr_b16 {vr(AF(st,t),2)}, v{AADR+t} offset:{ks*8192}')
            L.append(f'ds_read_b64_tr_b16 {vr(AF(st,t)+2,2)}, v{AADR+t} offset:{ks*8192+1024}')
        return L
    def mfmas(st):
        return [f'{MF} {vr(ACC(t,qt))}, {vr(AF(st,t))}, {vr(BF(st,qt))}, {vr(ACC(t,qt))}' for t in range(8) for qt in (range(3) if not (SNAKE and t & 1) else (2, 1, 0))]
    p('s_mov_b32 s14, 1')
    p('s_mov_b32 s15, 0')
    p('s_barrier')
    dstamp(p, 1)
    pro = reads(0, 0)
    for x in pro: p(x)
    _, pend0 = auto_lgkm(pro)
    scal = ['s_add_u32 s14, s14, 1', 's_cmp_eq_u32 s14, 3', 's_cselect_b32 s61, -2, 1', 's_cselect_b32 s14, 0, s14',
            's_mul_i32 s64, s61, 16384', 's_mul_i32 s65, s61, 24576', 's_add_u32 s15, s15, 1', 's_cmp_eq_u32 s15, 10']
    m0_ = mfmas(0); m1 = mfmas(1)
    H1 = spread(m0_[:19], reads(1, 1), per=PER1) + spread(m0_[19:], scal, per=2)
    upd = [f'v_add_u32 v{BADR+i}, s65, v{BADR+i}' for i in range(2)] + [f'v_add_u32 v{AADR+t}, s64, v{AADR+t}' for t in range(8)]
    H2a = interleave(m1[:NA], upd, per=2) + ['s_waitcnt lgkmcnt(0)', 's_barrier']
    H2b = spread(m1[NA:], reads(0, 0), per=PER1)
    if LOWD:
        H1 = reads(1, 1) + (scal + m0_ if LOWD == 2 else spread(m0_, scal))
        H2a = (m1 + upd if LOWD == 2 else interleave(m1, upd, per=1)) + ['s_barrier']
        H2b = reads(0, 0)
        if LOWD == 3:
            H1 = scal + ['s_waitcnt lgkmcnt(0)'] + m0_ + reads(1, 1) + ['s_waitcnt lgkmcnt(0)']
            if EARLY:
                H1 = scal[:-1] + ['s_cmp_lg_u32 s15, 1', 's_waitcnt lgkmcnt(0)'] + m0_ + ['s_cbranch_scc1 L_nb1', 's_barrier', 'L_nb1:'] + reads(1, 1) + [scal[-1], 's_waitcnt lgkmcnt(0)']
            H2a = m1 + upd + ['s_barrier']
    if BURST:
        r1 = reads(1, 1); r0 = reads(0, 0)
        H1 = r1[:BURST] + spread(m0_[:19], r1[BURST:]) + spread(m0_[19:], scal, per=2)
        H2b = r0[:BURST] + spread(m1[NA:], r0[BURST:])
    if XNOP:
        def addn(L):
            o_ = []; c = 0
            for x in L:
                o_.append(x)
                if x.startswith('v_mfma'):
                    c += 1
                    if c % XNOP == 0: o_.append('s_nop 3')
            return o_
        H1 = addn(H1); H2b = addn(H2b)
    h1, pend = auto_lgkm(H1, pend0)
    h2a, pend_a = auto_lgkm(H2a, pend)
    h2b, _ = auto_lgkm(H2b, pend_a)
    p('L_loop:')
    for x in h1: p(x)
    p('s_cbranch_scc1 L_tail')
    for x in h2a + h2b: p(x)
    p('s_branch L_loop')
    p('L_tail:')
    KFg = list(range(24, 32)) + [40, 41, 42] + list(range(46, 56)) + [32, 33, 34]
    KF = lambda kt, u: G(KFg[kt*4+u])
    QB = lambda u, qt: ACC(2*u, qt)
    Smap = {}
    free_early = [35, 36, 37, 38, 39, 43, 44, 45]
    for kt in range(6): Smap[(kt, 0)] = free_early[kt]
    oddq = lambda qt: [(2*u+1)*3+qt for u in range(4)]
    l1 = oddq(0) + oddq(1)[:2]
    l2 = oddq(1)[2:] + oddq(2)
    for kt in range(6): Smap[(kt, 1)] = l1[kt]; Smap[(kt, 2)] = l2[kt]
    S = lambda kt, qt: G(Smap[(kt, qt)])
    kaddr = [f'v_xor_b32 v{AADR+m}, {m<<5}, v10' for m in range(8)]
    def kread(kt, u):
        return [f'ds_read_b64 {vr(KF(kt,u),2)}, v{AADR+2*u} offset:{kt*4096}', f'ds_read_b64 {vr(KF(kt,u)+2,2)}, v{AADR+2*u+1} offset:{kt*4096}']
    kr = [x for kt in range(6) for u in range(4) for x in kread(kt, u)]
    qcvt = lambda qt: [x for u in range(4) for x in cvt4(QB(u, qt), ACC(2*u, qt), ACC(2*u+1, qt))]
    T = ['s_memrealtime s[70:71]'] + interleave(m1[:NAT], kaddr, per=2) + ['s_waitcnt vmcnt(0) lgkmcnt(0)', 's_barrier']
    T += ['v_mov_b32 v254, s70', 'v_mov_b32 v255, s71', 'v_mov_b32 v253, 0']
    if SENT == 1:
        T += ['s_waitcnt vmcnt(0)', 's_mov_b64 exec, 1', 'buffer_store_dwordx2 v[254:255], v253, s[52:55], s42 offen sc1', 's_mov_b64 exec, -1']
    if STAMPS: T.append(f'{"s_memtime" if CLK else "s_memrealtime"} s[76:77]')
    o, rest = merge(m1[NAT:], kr[:42])
    T += o + rest + kr[42:]
    def smf(qt):
        return [f'{MF} {vr(S(kt,qt))}, {vr(KF(kt,u))}, {vr(QB(u,qt))}, {"0" if u == 0 else vr(S(kt,qt))}' for u in range(4) for kt in range(6)]
    def softmax(qt):
        regs = [S(kt, qt) + r for kt in range(6) for r in range(4)]
        M = 250; Tm = 251; M2 = 249
        L = [f'v_max3_f32 v{M}, v{regs[0]}, v{regs[1]}, v{regs[2]}', f'v_max3_f32 v{M2}, v{regs[3]}, v{regs[4]}, v{regs[5]}']
        for i in range(6, 22, 4):
            L.append(f'v_max3_f32 v{M}, v{M}, v{regs[i]}, v{regs[i+1]}')
            L.append(f'v_max3_f32 v{M2}, v{M2}, v{regs[i+2]}, v{regs[i+3]}')
        L.append(f'v_max3_f32 v{M}, v{M}, v{regs[22]}, v{regs[23]}')
        L.append(f'v_max_f32 v{M}, v{M}, v{M2}')
        L += [f'v_mov_b32 v{Tm}, v{M}', f'v_permlane16_swap_b32 v{M}, v{Tm}', f'v_max_f32 v{M}, v{M}, v{Tm}',
              f'v_mov_b32 v{Tm}, v{M}', f'v_permlane32_swap_b32 v{M}, v{Tm}', f'v_max_f32 v{M}, v{M}, v{Tm}',
              f'v_mul_f32 v{M}, s63, v{M}']
        for u in range(3):
            rr = regs[8*u:8*u+8]
            if PK & 1: L += [f'v_pk_fma_f32 v[{r}:{r+1}], v[{r}:{r+1}], s[50:51], v[{M}:{M+1}] op_sel_hi:[1,0,0] neg_lo:[0,0,1] neg_hi:[0,0,1]' for r in rr[::2]]
            else: L += [f'v_fma_f32 v{r}, v{r}, s63, -v{M}' for r in rr]
            L += [f'v_exp_f32 v{r}, v{r}' for r in rr]
            L += cvt4(S(2*u, qt), S(2*u, qt), S(2*u+1, qt))
        return L
    PB = lambda u, qt: S(2*u, qt)
    VF = lambda t, u: G(KFg[t*3+u])
    T += qcvt(0)
    o, rest = merge(smf(0), qcvt(1) + qcvt(2))
    T += o + rest
    sm0 = softmax(0)
    m12 = smf(1) + (smf(2) if not ORH else [])
    o, rest0 = merge(m12[4:], sm0)
    T += m12[:4] + o + rest0
    T += [f'v_xor_b32 v{AADR+t}, {t<<5}, v11' for t in range(8)]
    t2, _ = auto_lgkm(T, pend)
    for x in t2: p(x)
    dstamp(p, 3)
    p('s_barrier')
    dstamp(p, 4)
    U = []
    for t in range(8):
        for u in range(3):
            U.append(f'ds_read_b64_tr_b16 {vr(VF(t,u),2)}, v{AADR+t} offset:{u*8192}')
            U.append(f'ds_read_b64_tr_b16 {vr(VF(t,u)+2,2)}, v{AADR+t} offset:{u*8192+4096}')
    qbg = [(2*u)*3+qt for u in range(4) for qt in range(3)]
    Og = {0: qbg[:9], 1: qbg[9:] + [44, 45] + [Smap[(1,0)], Smap[(3,0)], Smap[(5,0)]] + [Smap[(1,1)]]}
    Og[2] = [Smap[(0,0)], Smap[(2,0)], Smap[(4,0)], Smap[(3,1)], Smap[(5,1)], Smap[(1,2)], Smap[(3,2)], Smap[(5,2)], Smap[(0,1)]]
    OA = lambda t, qt: G(Og[qt][t])
    def pv(qt):
        L = []
        for u in range(3):
            L.append(f'{MF} {vr(OA(8,qt))}, v[12:15], {vr(PB(u,qt))}, {"0" if u == 0 else vr(OA(8,qt))}')
        for t2_ in range(0, 8, 2):
            for u in range(3):
                for t in (t2_, t2_+1):
                    L.append(f'{MF} {vr(OA(t,qt))}, {vr(VF(t,u))}, {vr(PB(u,qt))}, {"0" if u == 0 else vr(OA(t,qt))}')
        return L
    def onorm(qt):
        l = OA(8, qt)
        L = [f'v_rcp_f32 v{l}, v{l}']
        for v in range(4):
            a0 = OA(2*v, qt); a1 = OA(2*v+1, qt)
            L += [f'v_mul_f32 v{a+r}, v{a+r}, v{l}' for a in (a0, a1) for r in range(4)]
            L += cvt4(a0, a0, a1)
            L.append(f's_add_u32 s14, s62, {v*48*1024}')
            L.append(f'buffer_store_dwordx4 {vr(a0)}, v9, s[52:55], s14 offen offset:{qt*1024} {OFL}')
        return L
    sm1 = softmax(1); sm2 = softmax(2)
    if HALF:
        Lg = [44, 45, Smap[(1,0)]]
        Bg = [Smap[(3,0)], Smap[(5,0)], Smap[(1,1)], Smap[(3,1)], Smap[(5,1)], Smap[(1,2)], Smap[(3,2)], Smap[(5,2)]] + KFg[:4]
        OH = lambda t, qt: G(qbg[qt*4+t]) if t < 4 else G(Bg[qt*4+t-4])
        def pvh(h, qt):
            L = []
            if h == 0:
                l = G(Lg[qt])
                L += [f'{MF} {vr(l)}, v[12:15], {vr(PB(u,qt))}, {"0" if u == 0 else vr(l)}' for u in range(3)]
            for t2_ in (4*h, 4*h+2):
                for u in range(3):
                    for t in (t2_, t2_+1):
                        L.append(f'{MF} {vr(OH(t,qt))}, {vr(VF(t,u))}, {vr(PB(u,qt))}, {"0" if u == 0 else vr(OH(t,qt))}')
            return L
        def nrm(h, qt):
            l = G(Lg[qt])
            L = [f'v_rcp_f32 v{l}, v{l}'] if h == 0 else []
            for v in (2*h, 2*h+1):
                a0 = OH(2*v, qt); a1 = OH(2*v+1, qt)
                if PK & 2: L += [f'v_pk_mul_f32 v[{a+r}:{a+r+1}], v[{a+r}:{a+r+1}], v[{l}:{l+1}] op_sel_hi:[1,0]' for a in (a0, a1) for r in (0, 2)]
                else: L += [f'v_mul_f32 v{a+r}, v{a+r}, v{l}' for a in (a0, a1) for r in range(4)]
                L += cvt4(a0, a0, a1)
                L.append(f's_add_u32 s14, s62, {v*48*1024}')
                L.append(f'buffer_store_dwordx4 {vr(a0)}, v9, s[52:55], s14 offen offset:{qt*1024} {OFL}')
            return L
        flagA = lambda k: [f's_waitcnt vmcnt({k})', 's_mov_b64 exec, 1', f'buffer_store_dwordx2 v[254:255], v253, s[52:55], s69 offen {FLAGF}', 's_mov_b64 exec, -1']
        if WGF: flagA = lambda k: [f's_waitcnt vmcnt({k})', 's_barrier']
        vrdB = U[24:]; U = U[:24]
        if ORH:
            st_ = lambda h: [x for x in nrm(h, 2) if x.startswith(('buffer', 's_add'))]
            o, rest = merge(pvh(0, 0), sm1); U += o + rest
            o, rest = merge(pvh(0, 1), nrm(0, 0)); U += o + vrdB + rest + st_(0)
            o, rest = merge(pvh(1, 0), nrm(0, 1)); U += o + rest
            o, rest = merge(pvh(1, 1), nrm(1, 0)); U += o + rest + flagA(2) + st_(1) + nrm(1, 1)
            U_done = list(U)
        o, rest = merge(pvh(0, 0), sm1); U += o + rest
        o, rest = merge(pvh(0, 1), sm2); U += o + rest
        o, rest = merge(pvh(0, 2), nrm(0, 0) + nrm(0, 1)); U += o + vrdB + rest
        o, rest = merge(pvh(1, 0), nrm(0, 2)); U += o + rest
        o, rest = merge(pvh(1, 1), nrm(1, 0)); U += o + rest
        if FAPOS == 1: U += flagA(2)
        o, rest = merge(pvh(1, 2), nrm(1, 1)); U += o + rest
        if FAPOS == 2: U += flagA(4)
        U += nrm(1, 2)
        if FAPOS == 3: U += flagA(6)
    if ORH: U = U_done
    if not HALF:
        o, rest = merge(pv(0), sm1)
        U += o + rest
    if HALF: pass
    elif OEARLY:
        o, rest = merge(pv(1), onorm(0) + sm2)
        U += o + rest
        o, rest = merge(pv(2), onorm(1))
        U += o + rest
    else:
        o, rest = merge(pv(1), sm2)
        U += o + rest
        o, rest = merge(pv(2), onorm(0) + onorm(1))
        U += o + rest
    if not HALF: U += onorm(2)
    u2, _ = auto_lgkm(U, [])
    for x in u2: p(x)
    dstamp(p, 5)
    p('s_barrier')
    A2 = lambda i, t: 16 + (i*4+t)*4
    FA = lambda st, t: 80 + st*32 + t*4
    FBq = lambda st, i: 96 + st*32 + i*4
    p('s_lshr_b32 s13, s3, 1'); p('s_lshl_b32 s13, s13, 7')
    p(f'v_add_u32 v8, {WO_L}, v6')
    p('v_xor_b32 v8, s13, v8')
    for t in range(4): p(f'v_xor_b32 v{AADR+t}, {t<<5}, v8')
    if UNR:
        for t in range(4): p(f'v_add_u32 v{232+t}, 0x10000, v{AADR+t}')
    p('s_lshl_b32 s13, s12, 10')
    p(f'v_add_u32 v8, s13, v9')
    for i in range(4): p(f'v_xor_b32 v{AADR+4+i}, {i<<10}, v8')
    p(f'v_lshlrev_b32 v248, {FS2}, v2')
    p('v_mul_u32_u24 v7, 2560, v4')
    if WIDE:
        p('v_and_b32 v8, 1, v3'); p('v_lshl_add_u32 v7, v8, 5, v7')
        p('v_lshrrev_b32 v8, 1, v3'); p('v_lshl_add_u32 v7, v8, 4, v7')
    else: p('v_lshl_add_u32 v7, v3, 3, v7')
    def lastflag():
        p('s_waitcnt vmcnt(0)')
        if WGF:
            dstamp(p, 6); return
        p('s_mov_b64 exec, 1')
        p(f'buffer_store_dwordx2 v[254:255], v253, s[52:55], s69 offen offset:{FBO if HALF else 0} {FLAGF}')
        p('s_mov_b64 exec, -1')
        dstamp(p, 6)
    if not HALF:
        lastflag()
        p('s_cmp_ge_u32 s5, 30')
        p('s_cbranch_scc1 L_cdone')
        p('s_barrier')
    else:
        p('s_cmp_lt_u32 s5, 30')
        p('s_cbranch_scc1 L_act')
        lastflag()
        if WGF: p('s_barrier')
        p('s_branch L_cdone')
        p('L_act:')
    if SENT == 2:
        for i in range(4): p(f'v_mov_b32 v{200+i}, -1')
        for k in range(3 * SZ // 1024):
            p(f'buffer_store_dwordx4 v[200:203], v9, s[52:55], s{(39, 43, 48)[k//4]} offen offset:{(k%4)*1024} sc1')
    p('s_barrier')
    if HALF: lastflag()
    if SENT in (1, 3):
        p('s_mov_b64 exec, 15')
        p('buffer_load_dwordx2 v[250:251], v248, s[52:55], s40 offen sc1')
        p('s_mov_b64 exec, -1')
    SR = 144
    if TAGS:
        p('s_mov_b32 s13, 0x01010101')
        p('v_mul_lo_u32 v236, v2, s13')
        p('v_add_u32 v237, s96, v236')
        p('v_add_u32 v236, s70, v236')
        for k in range(9): p(f'v_mov_b32 v{SR+4*k+3}, v236')
        for i in range(3): p(f'v_mov_b32 v{SR+12*i+10}, 0')
    for i in range(64): p(f'v_mov_b32 v{16+i}, 0')
    def reads2(st, kk, stage=0):
        oo = (stage % NOS) * 16384 + kk*8192
        wo_ = ((stage + 1) % NWS) * 16384 + kk*8192
        ab = AADR if wo_ < 65536 else 232
        wo_ &= 0xffff
        L = [f'ds_read_b128 {vr(FBq(st,0))}, v{AADR+4} offset:{oo}']
        for t in range(4):
            L.append(f'ds_read_b64_tr_b16 {vr(FA(st,t),2)}, v{ab+t} offset:{wo_}')
            L.append(f'ds_read_b64_tr_b16 {vr(FA(st,t)+2,2)}, v{ab+t} offset:{wo_+4096}')
        L += [f'ds_read_b128 {vr(FBq(st,i))}, v{AADR+4+i} offset:{oo}' for i in range(1, 4)]
        if DIAG: L = [L[k] for k in (9, 1, 2, 3, 4, 10, 5, 6, 11, 7, 8, 0)]
        return L
    DORD = [(0,0),(0,1),(1,1),(1,0),(0,2),(1,2),(2,2),(2,1),(2,0),(0,3),(1,3),(2,3),(3,3),(3,2),(3,1),(3,0)]
    DORD = [((i + 1) % 4, t) for i, t in DORD]
    def mfd(st): return [f'{MF} {vr(A2(i,t))}, {vr(FA(st,t))}, {vr(FBq(st,i))}, {vr(A2(i,t))}' for i, t in DORD]
    def mf2(st):
        return [f'{MF} {vr(A2(i,t))}, {vr(FA(st,t))}, {vr(FBq(st,i))}, {vr(A2(i,t))}' for i in range(4) for t in (range(4) if not (SNAKE and i & 1) else (3, 2, 1, 0))]
    p('s_mov_b32 s14, 0')
    p('s_mov_b32 s15, 0')
    p('s_barrier')
    dstamp(p, 7)
    pro = reads2(0, 0)
    for x in pro: p(x)
    _, pend0 = auto_lgkm(pro)
    p('s_mov_b32 s13, 0')
    scal = ['s_add_u32 s14, s14, 1', f's_cmp_eq_u32 s14, {NWS}', f's_cselect_b32 s61, {1-NWS}, 1', 's_cselect_b32 s14, 0, s14', 's_lshl_b32 s64, s61, 14',
            's_add_u32 s13, s13, 1', f's_cmp_eq_u32 s13, {NOS}', f's_cselect_b32 s61, {1-NOS}, 1', 's_cselect_b32 s13, 0, s13', 's_lshl_b32 s65, s61, 14',
            's_add_u32 s15, s15, 1', 's_cmp_eq_u32 s15, 16']
    if ORC: scal = scal[-2:]
    n0 = mf2(0); n1 = mf2(1)
    H1 = spread(n0[:12], reads2(1, 1)) + spread(n0[12:], scal, per=3)
    upd = [f'v_add_u32 v{AADR+4+i}, s65, v{AADR+4+i}' for i in range(4)] + [f'v_add_u32 v{AADR+t}, s64, v{AADR+t}' for t in range(4)]
    if ORC: upd = upd[:ORC-1]
    H2a = interleave(n1[:4], upd, per=2) + ['s_waitcnt lgkmcnt(0)', 's_barrier']
    H2b = spread(n1[4:], reads2(0, 0))
    h1, pend = auto_lgkm(H1, pend0)
    h2a, pend_a = auto_lgkm(H2a, pend)
    h2b, _ = auto_lgkm(H2b, pend_a)
    if DEFER:
        assert DIAG and UNR and DEFER <= NOS
        pend = pend0
        for j in range(16):
            df = j >= 16 - DEFER; dfn = j + 1 >= 16 - DEFER
            d0 = mfd(0); d1 = mfd(1); r_ = reads2(1, 1, j); rn = reads2(0, 0, j + 1)
            if df: d0 = d0[:12]; d1 = d1[:12]; r_ = r_[:11]
            if dfn: rn = rn[:11]
            o_ = 1 if df else 0
            seq_ = [f's_waitcnt lgkmcnt({6-o_})'] + spread(d0[:4], r_[:4]) + [f's_waitcnt lgkmcnt({7-o_})'] + spread(d0[4:9], r_[4:9]) + ['s_waitcnt lgkmcnt(9)'] + spread(d0[9:], r_[9:])
            hh1, pend = auto_lgkm(seq_, pend)
            for x in hh1: p(x)
            if j == 15: break
            nb_ = NB2 if not df else 3
            hh2, pend = auto_lgkm([f's_waitcnt lgkmcnt({6-o_})'] + d1[:nb_] + ['s_waitcnt lgkmcnt(0)', 's_barrier'] + interleave(d1[nb_:], rn), pend)
            for x in hh2: p(x)
    elif UNR:
        import math
        per_ = min(NWS * NOS // math.gcd(NWS, NOS), 16)
        exit_at = 15 % per_
        npass = 15 // per_
        p('L_loop2:')
        for j in range(per_):
            sc = []
            if j == exit_at and per_ < 16: sc = [f's_cmp_eq_u32 s15, {npass}']
            if DIAG:
                d0 = mfd(0); r_ = reads2(1, 1, j)
                seq_ = ['s_waitcnt lgkmcnt(6)'] + spread(d0[:4], r_[:4]) + ['s_waitcnt lgkmcnt(7)'] + spread(d0[4:9], r_[4:9]) + ['s_waitcnt lgkmcnt(9)'] + spread(d0[9:12], r_[9:]) + spread(d0[12:], sc)
            else: seq_ = spread(n0[:12], reads2(1, 1, j)) + spread(n0[12:], sc)
            hh1, pend = auto_lgkm(seq_, pend0)
            for x in hh1: p(x)
            if j == exit_at:
                if per_ < 16: p('s_cbranch_scc1 L_tail2')
                else: break
            sc = ['s_add_u32 s15, s15, 1'] if j == per_ - 1 else []
            d1 = mfd(1) if DIAG else n1
            hh2, _ = auto_lgkm((['s_waitcnt lgkmcnt(6)'] if DIAG else []) + spread(d1[:NB2], sc) + ['s_waitcnt lgkmcnt(0)', 's_barrier'] + spread(d1[NB2:], reads2(0, 0, j + 1)), pend)
            for x in hh2: p(x)
        if per_ < 16: p('s_branch L_loop2')
    else:
        p('L_loop2:')
        for x in h1: p(x)
        p('s_cbranch_scc1 L_tail2')
        for x in h2a + h2b: p(x)
        if SENT == 2:
            p('s_and_b32 s61, s15, 7')
            p('s_cmp_lg_u32 s61, 3')
            p('s_cbranch_scc1 L_loop2')
            p('s_cmp_eq_u32 s15, 3')
            p('s_cbranch_scc0 L_ev11')
            p('s_waitcnt vmcnt(0)')
            p('s_mov_b64 exec, 1')
            p('buffer_store_dwordx2 v[254:255], v253, s[52:55], s42 offen sc1')
            p('s_mov_b64 exec, -1')
            p('s_branch L_loop2')
            p('L_ev11:')
            p('s_mov_b64 exec, 15')
            p('buffer_load_dwordx2 v[250:251], v248, s[52:55], s40 offen sc1')
            p('s_mov_b64 exec, -1')
        p('s_branch L_loop2')
    p('L_tail2:')
    last = [f'{MF} {vr(A2(i,t))}, {vr(FA(1,t))}, {vr(FBq(1,i))}, {vr(A2(i,t))}' for i in (1, 2, 3, 0) for t in range(4)]
    chk = []
    if SENT:
        chk = ['s_waitcnt vmcnt(0)', 's_mov_b64 exec, 15', 'v_cmp_gt_u64 vcc, s[96:97], v[250:251]', 'v_cmp_lt_u64 s[100:101], s[98:99], v[250:251]',
               's_mov_b64 exec, -1', 's_or_b64 vcc, vcc, s[100:101]']
        for x in chk: p(x)
        p('s_cbranch_scc0 L_rdy')
        poll_flags(p, 'L_pf2', 248, 250, 's40', '15')
        p('L_rdy:')
    def send(i):
        L = []
        if PF32:
            L += [f'buffer_store_dwordx4 {vr(A2(i,t))}, v9, s[52:55], s{35+i} offen offset:{t*1024} {PFL}' for t in range(4)]
        elif TAGS:
            b0 = SR + 12*(i-1)
            for k in range(8):
                a = A2(i, k >> 1) + 2*(k & 1)
                L.append(f'v_cvt_pk_bf16_f32 v{b0 + 4*(k//3) + k%3}, v{a}, v{a+1}')
                if k in (2, 5, 7):
                    L.append(f'buffer_store_dwordx4 {vr(b0 + 4*(k//3))}, v9, s[52:55], s{35+i} offen offset:{(k//3)*1024} {PFL}')
        else:
            for hf in range(2):
                L += cvt4(A2(i, 2*hf), A2(i, 2*hf), A2(i, 2*hf+1))
                L.append(f'buffer_store_dwordx4 {vr(A2(i,2*hf))}, v9, s[52:55], s{35+i} offen offset:{hf*1024} {PFL}')
        return L
    seq = last[:8] + spread(last[8:12], send(1), per=3) + spread(last[12:], send(2), per=3) + send(3)
    if DEFER:
        steps = [(j, kk) for j in range(16 - DEFER, 16) for kk in range(2)]
        def ownr(n):
            j, kk = steps[n]; r_ = reads2(n & 1, kk, j)
            return [r_[11]] + [r_[k] for k in (1, 2, 3, 4, 6, 7, 9, 10)]
        seq = last[:8] + spread(last[8:12], send(1), per=3) + send(2) + send(3) + ownr(0)
        if STAMPS: seq.append(f'{"s_memtime" if CLK else "s_memrealtime"} s[88:89]')
        for n in range(len(steps)):
            om = [f'{MF} {vr(A2(0,t))}, {vr(FA(n&1,t))}, {vr(FBq(n&1,0))}, {vr(A2(0,t))}' for t in range(4)]
            nx = ownr(n + 1) if n + 1 < len(steps) else []
            if n == FSPLIT:
                seq += ['s_waitcnt vmcnt(0)', 's_mov_b64 exec, 1', f'buffer_store_dwordx2 v[254:255], v253, s[52:55], s42 offen {FLAGF}', 's_mov_b64 exec, -1']
            seq += nx[:3] + interleave(om, nx[3:])
    tl, _ = auto_lgkm(seq, pend)
    for x in tl: p(x)
    if not DEFER: dstamp(p, 8)
    R = 80
    nld = 3 * SZ // 1024
    def loads():
        for k in range(nld):
            p(f'buffer_load_dwordx4 {vr(R+4*k)}, v9, s[52:55], s{(39, 43, 48)[k//4]} offen offset:{(k%4)*1024} sc1')
    if TAGS:
        p(f's_mov_b32 s9, {SPIN_MAX}')
        p('s_mov_b32 s13, 0x100000')
        if TAGS == 2:
            p('v_mul_u32_u24 v238, 3072, v2')
            p('s_mov_b64 exec, 7')
            p('L_lp:')
            p('buffer_load_dword v250, v238, s[52:55], s39 offen offset:2060 sc1')
            p('s_waitcnt vmcnt(0)')
            p('v_subrev_u32 v250, s96, v250')
            p('v_cmp_le_u32 vcc, s13, v250')
            p('s_cbranch_vccz L_lp_ok')
            p(f's_sleep {PSLEEP}')
            p('s_sub_u32 s9, s9, 1')
            p('s_cmp_gt_u32 s9, 1')
            p('s_cbranch_scc1 L_lp')
            p('L_lp_ok:')
            p('s_mov_b64 exec, -1')
        p('L_rx:')
        loads()
        for i in range(3):
            p(f's_waitcnt vmcnt({6 - 3*i})')
            t0 = R + 12*i + 3
            p(f'v_xor_b32 v250, v{t0}, v{t0+4}')
            p(f'v_xor_b32 v251, v{t0}, v{t0+8}')
            if i == 0:
                p('v_or_b32 v252, v250, v251'); p(f'v_sub_u32 v249, v{t0}, v237')
            else:
                p('v_or3_b32 v252, v252, v250, v251'); p(f'v_sub_u32 v250, v{t0}, v237'); p('v_max_u32 v249, v249, v250')
        p('v_cmp_ne_u32 vcc, 0, v252')
        p('v_cmp_le_u32 s[100:101], s13, v249')
        p('s_or_b64 vcc, vcc, s[100:101]')
        p('s_cbranch_scc0 L_rx_ok')
        if SSLEEP: p(f's_sleep {SSLEEP}')
        p('s_sub_u32 s9, s9, 1')
        p('s_cmp_lg_u32 s9, 0')
        p('s_cbranch_scc1 L_rx')
        p('L_rx_ok:')
        dstamp(p, 9); dstamp(p, 10)
    elif SENT:
        p(f's_mov_b32 s9, {SPIN_MAX}')
        p('L_rx:')
        loads()
        n = nld * 4
        for k in range(nld):
            p(f's_waitcnt vmcnt({nld-1-k})')
            b_ = R + 4*k
            if k == 0:
                p(f'v_max3_u32 v252, v{b_}, v{b_+1}, v{b_+2}'); p(f'v_max_u32 v252, v252, v{b_+3}')
            else:
                p(f'v_max3_u32 v252, v252, v{b_}, v{b_+1}'); p(f'v_max3_u32 v252, v252, v{b_+2}, v{b_+3}')
        p('v_cmp_eq_u32 vcc, -1, v252')
        p('s_cbranch_vccz L_rx_ok')
        if SSLEEP: p(f's_sleep {SSLEEP}')
        p('s_sub_u32 s9, s9, 1')
        p('s_cmp_lg_u32 s9, 0')
        p('s_cbranch_scc1 L_rx')
        p('L_rx_ok:')
        dstamp(p, 9); dstamp(p, 10)
    else:
        if not (DEFER and FSPLIT < 2*DEFER):
            p('s_waitcnt vmcnt(0)')
            p('s_mov_b64 exec, 1')
            p(f'buffer_store_dwordx2 v[254:255], v253, s[52:55], s42 offen {FLAGF}')
        dstamp(p, 9)
        p('s_lshl_b32 s14, 1, s10'); p('s_xor_b32 s14, s14, 15'); p('s_mov_b32 s15, 0')
        if PSRC and not PF32:
            p('s_mov_b64 exec, s[14:15]')
            p(f'buffer_load_dwordx2 v[250:251], v248, s[52:55], s40 offen {POLLF}')
            p('s_waitcnt vmcnt(0)')
            p('v_cmp_gt_u64 vcc, s[96:97], v[250:251]')
            p('v_cmp_lt_u64 s[100:101], s[98:99], v[250:251]')
            p('s_mov_b64 exec, -1')
            p('s_or_b64 s[14:15], vcc, s[100:101]')
            def part(i, lbl, want):
                p(f's_xor_b32 s13, s10, {i}')
                p('s_bitcmp1_b32 s14, s13')
                p(f's_cbranch_scc{0 if want else 1} {lbl}')
                for k in (2*(i-1), 2*(i-1)+1):
                    p(f'buffer_load_dwordx4 {vr(R+4*k)}, v9, s[52:55], s{(39, 43, 48)[k//4]} offen offset:{(k%4)*1024} sc1')
                p(f'{lbl}:')
            for i in (1, 2, 3): part(i, f'L_e{i}', 0)
            p('s_cmp_eq_u32 s14, 0')
            p('s_cbranch_scc1 L_allin')
            poll_flags(p, 'L_pf2', 248, 250, 's40', 's[14:15]')
            for i in (1, 2, 3): part(i, f'L_l{i}', 1)
            p('L_allin:')
            dstamp(p, 10)
            p('s_waitcnt vmcnt(0)')
        else:
            poll_flags(p, 'L_pf2', 248, 250, 's40', 's[14:15]')
            dstamp(p, 10)
            loads()
    for i in range(3):
        if PF32:
            if not SENT: p(f's_waitcnt vmcnt({nld - 4*(i+1)})')
            for t in range(4):
                for r in range(4):
                    p(f'v_add_f32 v{A2(0,t)+r}, v{A2(0,t)+r}, v{R+16*i+4*t+r}')
        else:
            if not SENT and not TAGS: p(f's_waitcnt vmcnt({nld - 2*(i+1)})')
            for t in range(4):
                for r2 in range(2):
                    src = R + 8*i + 2*t + r2
                    if TAGS:
                        k = 2*t + r2; src = R + 12*i + 4*(k//3) + k%3
                    p(f'v_lshlrev_b32 v250, 16, v{src}')
                    p(f'v_and_b32 v251, 0xffff0000, v{src}')
                    p(f'v_add_f32 v{A2(0,t)+2*r2}, v{A2(0,t)+2*r2}, v250')
                    p(f'v_add_f32 v{A2(0,t)+2*r2+1}, v{A2(0,t)+2*r2+1}, v251')
    if WIDE:
        for v in range(2):
            a = A2(0, 2*v)
            for x in cvt4(a, a, A2(0, 2*v+1)): p(x)
            p(f'v_permlane16_swap_b32 v{a}, v{a+2}')
            p(f'v_permlane16_swap_b32 v{a+1}, v{a+3}')
            p(f'buffer_store_dwordx4 {vr(a)}, v7, s[44:47], s41 offen offset:{v*64} {OUTF}')
    else:
        for t in range(4):
            a = A2(0, t)
            p(f'v_cvt_pk_bf16_f32 v{a}, v{a}, v{a+1}')
            p(f'v_cvt_pk_bf16_f32 v{a+1}, v{a+2}, v{a+3}')
            p(f'buffer_store_dwordx2 {vr(a,2)}, v7, s[44:47], s41 offen offset:{t*32} {OUTF}')
    if STAMPS:
        p('s_waitcnt vmcnt(0)')
        dstamp(p, 11)
    p('L_cdone:')
    flush_stamps(p, 12, 0, 0, 'L_fsC')
    p('L_end:')
    p('s_endpgm')
    return p.finalize()


DOC = """; ---------------------------------------------------------------------------------------------
; ---------------------------------------------------------------------------------------------
"""

if __name__ == '__main__':
    out = HDR
    out += '; @launch grid=(256,1,1) block=(512,1,1) lds=163840\n'
    out += DOC
    out += '.amdgcn_target "amdgcn-amd-amdhsa--gfx950"\n.text\n'
    out += gen() + '\n'
    out += '.section .rodata,"a"\n' + kd(NAME + '_kernel', 256, 102)
    print(out)
```

```python
from common import *
from asmlib import auto_lgkm as _al
CAP = opt('cap', 8)
def auto_lgkm(l, pnd=None): return _al(l, pnd, CAP)
XFL = opt('xfl', 'none').replace('none', '')
WFL2 = opt('wfl2', 'none').replace('none', '')
OFL = opt('ofl', 'sc1').replace('none', '').replace('_', ' ')
ORFL = opt('orfl', 'sc1').replace('none', '').replace('_', ' ')
LAG = opt('lag', 7)
PATA = opt('pata', 's0 s1 s2 s3 K1 s4 s5 Kb ka s6 s7 v0 s8 s9 v1 Wa Wb').replace('_', ' ')
PATB = opt('patb', 's0 s1 s2 s3 K1 s4 s5 Kb ka s6 s7 v0 s8 s9 v1 Wa Wb').replace('_', ' ')
PATSEL = opt('patsel', 6)
if opt('sent', 0) == 3 and 'Z' not in PATA: PATA += ' Z'; PATB += ' Z'
NA = opt('na', 5)
PF32 = opt('pf32', 0)
LPRIO = opt('lprio', 0)
B11 = opt('b11', 0)
PSRC = opt('psrc', 0)
VW = opt('vw', 0)
ORH = opt('orh', 0)
WGF = opt('wgf', 0)
OUTF = opt('outf', 'none').replace('none', '').replace('_', ' ')
WIDE = opt('wide', 0)
FWARM = opt('fwarm', 3)
DEFER = opt('defer', 4)
FSPLIT = opt('fsplit', 8)
POLLF = opt('pollf', 'sc1').replace('_', ' ')
FLAGF = opt('flagf', 'sc1').replace('_', ' ')
PUB = opt('pub', 1)
assert opt('half', 1) or not opt('wgf', 0)
assert not (opt('early', 0) and opt('lowd', 2) != 3)
WLAG = opt('wlag', 10)
ORC = opt('orc', 0)
PK = opt('pk', 0)
LOWD = opt('lowd', 2)
EARLY = opt('early', 0)
LAG0 = opt('lag0', 7)
LAGE = opt('lage', 5)
SNAKE = opt('snake', 1)
NAT = opt('nat', 5)
BURST = opt('burst', 0)
PER1 = opt('per1', 1)
XNOP = opt('xnop', 0)
HALF = opt('half', 1)
FAPOS = opt('fapos', 1)
SENT = opt('sent', 0)
SSLEEP = opt('ssleep', 1)
PFS = opt('pfs', 0)
PF0 = opt('pf0', 0)
PFN = opt('pfn', 10)
FAKEWO = opt('fakewo', 0)
NOPOLL = opt('nopoll', 0)
FASTP = opt('fastp', 0)
WOFL = opt('wofl', 'none').replace('none', '')
WOFL2 = opt('wofl2', 'none').replace('none', '')
PFL = opt('pfl', 'sc1').replace('_', ' ')
CPF2 = opt('cpf2', 5)
WOA = opt('woa', 0)
WOB = opt('wob', 0)
ROT2 = opt('rot2', 0)
CPF = opt('cpf', 0)
ROT = opt('rot', 1)
RB = opt('rb', '0358')
RH = opt('rh', '03603603')
RK = opt('rk', '0120')
OEARLY = opt('oearly', 1)
KVFL = opt('kvfl', 'nt').replace('none', '')
TICKET = opt('ticket', 0)
CFL = opt('cfl', 'none').replace('none', '')
PSLEEP = opt('psleep', 2)
XS, WS_, SP = 0, 73728, 122880
KB0 = SP - 8192; KB1 = KB0 + 24576
VB0 = XS + 2*24576; VB1 = XS
NWS = opt('nws', 6); NOS = opt('nos', 4)
CPF3 = opt('cpf3', 8)
UNR = opt('unr', 1)
DIAG = opt('diag', 1)
NB2 = opt('nb2', 4)
O_L = 0; WO_L = NOS * 16384
NE = opt('ne', 0); N1 = opt('n1', 6); N2 = opt('n2', 0); LAG2 = opt('lag2', 16)
FS1 = opt('fs1', 3); FS2 = opt('fs2', 7)
FBO = 1024 if FS1 == 3 else 8
GST = 1572864 + 28672
O_OFF = 4096; F1_OFF = O_OFF + 1572864; GT_OFF = F1_OFF + 20480
INBOX = 16 << 20
TAGS = opt('tags', 0)
SZ = 4096 if PF32 else (3072 if TAGS else 2048)
assert not (TAGS and (PF32 or opt('sent', 0)))
RST = 48 * SZ + 4096
I_OFF = 1024; F2_OFF = I_OFF + 48 * SZ; RT_OFF = F2_OFF + 2048
WS_SIZE = 48 << 20
TOUCH = opt('touch', 0)
MF = 'v_mfma_f32_16x16x32_bf16'
SPIN_MAX = 1 << 24

def dstamp(p, k):
    if STAMPS: p(f'{"s_memtime" if CLK else "s_memrealtime"} s[{72+2*k}:{73+2*k}]')
def flush_stamps(p, n, base_idx, wave, lbl):
    if not STAMPS: return
    p(f's_cmp_lg_u32 s3, {wave}'); p(f's_cbranch_scc1 {lbl}')
    p('s_waitcnt lgkmcnt(0) vmcnt(0)')
    p('v_mov_b32 v1, 0')
    p('s_mov_b64 exec, 1')
    for k in range(n):
        p(f'v_mov_b32 v{4+2*k}, s{72+2*k}'); p(f'v_mov_b32 v{5+2*k}, s{73+2*k}')
        p(f'buffer_store_dwordx2 v[{4+2*k}:{5+2*k}], v1, s[56:59], s60 offen offset:{(base_idx+k)*8}')
    p('s_waitcnt vmcnt(0)')
    p(f'{lbl}:')
def poll_flags(p, lbl, vaddr, vtmp, soff, maskreg):
    p(f's_mov_b32 s9, {SPIN_MAX}')
    p(f's_mov_b64 exec, {maskreg}')
    p(f'{lbl}:')
    p(f'buffer_load_dwordx2 v[{vtmp}:{vtmp+1}], v{vaddr}, s[52:55], {soff} offen {POLLF}')
    p('s_waitcnt vmcnt(0)')
    p(f'v_cmp_gt_u64 vcc, s[96:97], v[{vtmp}:{vtmp+1}]')
    p(f'v_cmp_lt_u64 s[100:101], s[98:99], v[{vtmp}:{vtmp+1}]')
    p('s_or_b64 vcc, vcc, s[100:101]')
    p(f's_cbranch_scc0 {lbl}_ok')
    p(f's_sleep {PSLEEP}')
    p('s_sub_u32 s9, s9, 1')
    p('s_and_b32 s100, s9, 127')
    p(f's_cbranch_scc1 {lbl}')
    p('s_lshl_b32 s100, s6, 7')
    p('s_load_dwordx2 s[100:101], s[34:35], s100 glc')
    p('s_waitcnt lgkmcnt(0)')
    p('s_cmp_eq_u64 s[100:101], 0')
    p(f's_cbranch_scc1 {lbl}_nz')
    p('s_not_b64 s[96:97], s[100:101]')
    p(f'{lbl}_nz:')
    p('s_cmp_lg_u32 s9, 0')
    p(f's_cbranch_scc1 {lbl}')
    p(f'{lbl}_ok:')
    p('s_mov_b64 exec, -1')

def cvt4(d, a0, a1):
    return [f'v_cvt_pk_bf16_f32 v{d}, v{a0}, v{a0+1}', f'v_cvt_pk_bf16_f32 v{d+1}, v{a0+2}, v{a0+3}',
            f'v_cvt_pk_bf16_f32 v{d+2}, v{a1}, v{a1+1}', f'v_cvt_pk_bf16_f32 v{d+3}, v{a1+2}, v{a1+3}']
def spread(main, fill, extra=(), per=1):
    out = []; fi = 0; ei = 0
    for m in main:
        out.append(m)
        for _ in range(per):
            if fi < len(fill): out.append(fill[fi]); fi += 1
        if ei < len(extra): out.append(extra[ei]); ei += 1
    return out + list(fill[fi:]) + list(extra[ei:])

def p2_ids(p):
    p('s_mul_i32 s66, s5, 52'); p('s_lshr_b32 s66, s66, 8')
    p('s_mul_i32 s67, s66, 5'); p('s_sub_u32 s67, s5, s67')
    p('s_and_b32 s10, s4, 3')

def gen():
    p = Prog()
    K1 = NAME + '_kernel'
    p(f'.globl {K1}\n.p2align 8\n.type {K1},@function\n{K1}:')
    p('s_cmp_ge_u32 s2, 256')
    p('s_cbranch_scc1 L_end')
    p('s_load_dwordx8 s[16:23], s[0:1], 0')
    p('s_memrealtime s[96:97]')
    p('s_load_dwordx8 s[24:31], s[0:1], 40')
    p('s_load_dwordx4 s[32:35], s[0:1], 88')
    dstamp(p, 0)
    p('v_lshrrev_b32 v1, 6, v0')
    p('v_and_b32 v2, 63, v0')
    p('v_readfirstlane_b32 s3, v1')
    if TICKET:
        p('v_mov_b32 v5, 0')
        p('s_cmp_lg_u32 s3, 0')
        p('s_cbranch_scc1 L_tk_wait')
        p('s_getreg_b32 s4, hwreg(HW_REG_XCC_ID)')
        p('s_and_b32 s4, s4, 7')
        p('s_waitcnt lgkmcnt(0)')
        p('L_tk_try:')
        p('s_lshl_b32 s5, s4, 5')
        p('s_add_u32 s5, s5, 16')
        p('s_mov_b32 s6, 1')
        p('s_atomic_add s6, s[32:33], s5 glc')
        p('s_waitcnt lgkmcnt(0)')
        p('s_cmp_lt_u32 s6, 32')
        p('s_cbranch_scc1 L_tk_ok')
        p('s_add_u32 s4, s4, 1')
        p('s_and_b32 s4, s4, 7')
        p('s_branch L_tk_try')
        p('L_tk_ok:')
        p('s_lshl_b32 s6, s6, 3')
        p('s_add_u32 s6, s6, s4')
        p('v_mov_b32 v6, s6')
        p('ds_write_b32 v5, v6')
        p('s_waitcnt lgkmcnt(0)')
        p('L_tk_wait:')
        p('s_barrier')
        p('ds_read_b32 v6, v5')
        p('s_waitcnt lgkmcnt(0)')
        p('v_readfirstlane_b32 s2, v6')
        p('s_barrier')
        p('s_and_b32 s2, s2, 255')
    p('s_and_b32 s4, s2, 7')
    p('s_lshr_b32 s5, s2, 3')
    p('s_lshr_b32 s6, s4, 2')
    p('s_and_b32 s7, s4, 3')
    p('s_lshl_b32 s7, s7, 3')
    p('s_and_b32 s66, s5, 7')
    p('s_add_u32 s7, s7, s66')
    p('s_lshr_b32 s8, s5, 3')
    p('v_lshrrev_b32 v3, 4, v2')
    p('v_and_b32 v4, 15, v2')
    p('s_cmp_lt_u32 s3, 4')
    p('s_cbranch_scc1 L_compute')
    if LPRIO: p(f's_setprio {LPRIO}')
    p('s_and_b32 s11, s3, 3')
    p('v_lshrrev_b32 v5, 3, v2')
    p('s_lshl_b32 s12, s11, 3')
    p('v_add_u32 v5, s12, v5')
    p('v_mul_u32_u24 v5, 1280, v5')
    p('s_and_b32 s12, s11, 1')
    p('s_lshl_b32 s12, s12, 2')
    p('v_add_u32 v6, s12, v3')
    p('v_and_b32 v7, 7, v2')
    p('v_xor_b32 v7, v7, v6')
    p('v_lshl_add_u32 v11, v7, 4, v5')
    p('v_lshlrev_b32 v6, 1, v6')
    p('v_xor_b32 v8, v6, v4')
    p('s_lshl_b32 s12, s11, 2')
    p('v_add_u32 v5, s12, v3')
    p('s_lshr_b32 s12, s11, 1')
    p('s_lshl_b32 s12, s12, 2')
    p('v_add_u32 v6, s12, v3')
    p('v_lshlrev_b32 v6, 1, v6')
    p('v_xor_b32 v6, v6, v4')
    p('v_lshlrev_b32 v7, 13, v5')
    p('v_lshl_add_u32 v12, v6, 4, v7')
    p('s_lshl_b32 s13, s11, 10')
    tb = sum(int(c) << (4*i) for i, c in enumerate(RB)); th = sum(int(c) << (4*i) for i, c in enumerate(RH))
    p('s_lshl_b32 s69, s8, 2'); p(f's_lshr_b32 s69, {tb:#x}, s69'); p('s_and_b32 s69, s69, 15')
    p('s_lshl_b32 s70, s66, 2'); p(f's_lshr_b32 s70, {th:#x}, s70'); p('s_and_b32 s70, s70, 15')
    p('s_add_u32 s69, s69, s70')
    p('s_cmp_ge_u32 s69, 10'); p('s_cselect_b32 s71, 10, 0'); p('s_sub_u32 s69, s69, s71')
    if RK != '0000':
        tk = sum(int(c) << (4*i) for i, c in enumerate(RK))
        p('s_and_b32 s70, s4, 3'); p('s_lshl_b32 s70, s70, 2'); p(f's_lshr_b32 s70, {tk:#x}, s70'); p('s_and_b32 s70, s70, 15')
        p('s_add_u32 s69, s69, s70')
        p('s_cmp_ge_u32 s69, 10'); p('s_cselect_b32 s71, 10, 0'); p('s_sub_u32 s69, s69, s71')
    p('s_mul_i32 s9, s8, 245760')
    p('s_lshl_b32 s10, s7, 8')
    p('s_waitcnt lgkmcnt(0)')
    p('s_cmp_eq_u32 s6, 0')
    for i in range(4):
        p(f's_cselect_b64 s[{16+2*i}:{17+2*i}], s[{16+2*i}:{17+2*i}], s[{24+2*i}:{25+2*i}]')
    p('s_add_u32 s36, s16, s9'); p('s_addc_u32 s37, s17, 0')
    p('s_mov_b32 s38, 245760'); p('s_mov_b32 s39, 0x20000')
    p('s_add_u32 s40, s22, s10'); p('s_addc_u32 s41, s23, 0')
    p('s_sub_u32 s42, 5242880, s10'); p('s_mov_b32 s43, 0x20000')
    def late_setup(p):
        p('v_lshlrev_b32 v7, 8, v5')
        p('v_lshl_add_u32 v13, v8, 4, v7')
        p('v_xor_b32 v6, v4, v5')
        p('v_lshl_add_u32 v10, v6, 4, v7')
        p('s_lshl_b32 s12, s8, 6'); p('s_add_u32 s12, s12, s7'); p('s_mul_i32 s12, s12, 24576')
        p('s_add_u32 s44, s18, s12'); p('s_addc_u32 s45, s19, 0')
        p(f's_mov_b32 s46, {786432+24576}'); p('s_mov_b32 s47, 0x20000')
        p('s_add_u32 s48, s20, s12'); p('s_addc_u32 s49, s21, 0')
        p(f's_mov_b32 s50, {786432+24576}'); p('s_mov_b32 s51, 0x20000')
        p(f's_load_dwordx2 s[16:17], s[0:1], {0 if FAKEWO else 32}')
        p(f's_load_dwordx2 s[18:19], s[0:1], {40 if FAKEWO else 72}')
        srd(p, 52, 34, 35, WS_SIZE)
        p('s_mov_b32 s98, s96'); p('s_add_u32 s99, s97, 1')
        stamp_setup(p, 34, 35)
        p('s_mov_b64 s[34:35], s[32:33]')
        if CPF2 >= 0:
            p('s_getpc_b64 s[22:23]')
            p('L_pc2:')
            p('s_lshl_b32 s9, s5, 2'); p('s_add_u32 s9, s9, s11'); p('s_lshl_b32 s9, s9, 8')
            p(f's_min_u32 s9, s9, L_end-L_ld2-192')
            p(f's_add_u32 s9, s9, L_ld2-L_pc2')
            p('s_add_u32 s22, s22, s9'); p('s_addc_u32 s23, s23, 0')
        p('s_not_b64 s[20:21], s[96:97]')
        p('s_lshl_b32 s67, s6, 7')
        p('s_lshl_b32 s68, s11, 3')
        if PUB == 1: p('s_add_u32 s68, s68, s66')

    afterV = []
    def loader(pat, tag):
        p = Prog()
        stream = []
        for w in pat.split():
            if w[0] == 's': stream += [('x' + w[1:], m) for m in range(6)] + [('w' + w[1:], m) for m in range(4)]
            elif w[0] in 'xw': stream += [(w, m) for m in range(6 if w[0] == 'x' else 4)]
            elif w == 'ka': stream += [('k0', m) for m in range(2)]
            elif w == 'Z': stream += [('Z0', m) for m in range(3 * SZ // 1024)]
            elif w == 'Wa': stream += [('W0', m) for m in range(5)]
            elif w == 'Wb': stream += [('W0', m) for m in range(5, 10)]
            elif w == 'Ka': stream += [('K0', m) for m in range(2)]
            elif w == 'Kb': stream += [('K0', m) for m in range(2, 6)]
            else: stream += [(w, m) for m in range(6)]
        n = len(stream)
        end = {}
        for i, (it, m) in enumerate(stream):
            if it[0] in 'xw': end[int(it[1:])] = i + 1
        staged = [(i, it, m) for i, (it, m) in enumerate(stream) if it[0] in 'kv']
        end[10] = max(max(i for i, (it, m) in enumerate(stream) if it[0] in 'Kk') + 1, end[9])
        endst = max([x[0] + 1 for x in staged] + [end[9]])
        end[11] = max(max(i for i, (it, m) in enumerate(stream) if it[0] in 'Vv') + 1, end[10])
        lastV = end[11]
        def need(it, m):
            if it[0] in 'xw': return int(it[1:]) - 3
            if it == 'K0': return 7 if m < 2 else -9
            if it in ('K1', 'W0', 'Z0', 'k0', 'v0', 'v1'): return -9
            return 7 if it == 'V0' else 8
        bpos = {}; prev = 0
        for s in range(-1, 11):
            pos = min(end[s+1] + (LAG0 if s == -1 else LAG), n)
            if s == 9: pos = max(pos, min(lastV, n))
            if staged and s in (8, 9):
                fd = min([i for i, (it, m) in enumerate(stream) if i >= endst and it[0] in 'xwKV'] + [n])
                pos = min(min(end[9] + LAG, n), fd) if s == 8 else min(endst + WLAG, n, fd)
            if staged and s == 10 and all(it[0] not in 'V' for it, m in stream): pos = n
            first_needing = min([i for i, (it, m) in enumerate(stream) if need(it, m) >= s and need(it, m) >= 0] + [n])
            pos = min(pos, first_needing)
            assert pos >= end[s+1], (s, pos, end[s+1])
            pos = max(pos, prev); bpos[s] = pos; prev = pos
        passed = [-2]
        def pf(s):
            if not PFS or s < PF0 or s >= PF0 + PFN: return
            tot = 10240 // PFS
            k = s - PF0
            for i in range(k * tot // PFN, (k + 1) * tot // PFN):
                p(f's_load_dword s28, s[26:27], {i*PFS}')
        def barrier(s, issued):
            if PFS and s == -1:
                p('s_waitcnt lgkmcnt(0)')
                p('s_cmp_eq_u32 s6, 0')
                p('s_cselect_b64 s[26:27], s[16:17], s[18:19]')
                p('s_and_b32 s9, s4, 3'); p('s_lshl_b32 s9, s9, 5'); p('s_add_u32 s9, s9, s5'); p('s_lshl_b32 s9, s9, 2'); p('s_add_u32 s9, s9, s11')
                p('s_mul_i32 s9, s9, 10240')
                p('s_add_u32 s26, s26, s9'); p('s_addc_u32 s27, s27, 0')
            pf(s)
            p(f's_waitcnt vmcnt({issued - end[s+1]})')
            def wr_(kinds):
                for k_, (i_, it_, m_) in enumerate(staged):
                    if it_ not in kinds: continue
                    ad = {'k0': KB0, 'v0': VB0, 'v1': VB1}[it_] + m_*4096
                    p(f'ds_write_b128 v{15 + (ad >> 16)}, {vr(32+4*k_)} offset:{ad & 0xffff}')
            if s == 9 and staged:
                p('v_lshl_add_u32 v15, v2, 4, s13')
                p('v_add_u32 v16, 0x10000, v15')
                if VW != 2: wr_(('k0', 'v0') if VW == 1 else ('k0',))
                p('s_waitcnt lgkmcnt(0)')
            if (s == 10 and staged) or (s == 9 and not staged): p('s_waitcnt lgkmcnt(0)')
            if s == 10: dstamp(p, 5)
            p(f's_barrier      ; B_{s}')
            passed[0] = s
            if (PUB == 0 and s == 1) or (PUB == 1 and -1 <= s <= 6):
                p(f's_cmp_lg_u32 s68, {s+1 if PUB == 1 else 0}')
                p(f's_cbranch_scc1 L_nopub{tag}{s+1}')
                p('s_atomic_umax_x2 s[20:21], s[34:35], s67 glc')
                p(f'L_nopub{tag}{s+1}:')
            if s == 8 and staged and VW == 2:
                p('v_lshl_add_u32 v15, v2, 4, s13')
                p('v_add_u32 v16, 0x10000, v15')
                wr_(('k0', 'v0'))
            if s == 9 and staged:
                assert issued >= endst
                p(f's_waitcnt vmcnt({issued - endst})')
                wr_(('v1',) if VW else ('v0', 'v1'))
            if s == CPF2:
                p('s_load_dword s24, s[22:23], 0x0'); p('s_load_dword s25, s[22:23], 0x40'); p('s_load_dword s24, s[22:23], 0x80'); p('s_load_dword s25, s[22:23], 0xc0')
            if s in (-1, 2, 5, 8): dstamp(p, 1 + (s+1)//3)
        last_item = None
        for i, (it, m) in enumerate(stream):
            if i == 10: late_setup(p)
            if EARLY and i == 8 + LAGE:
                assert stream[7] == ('w0', 1) and i <= bpos[-1]
                p(f's_waitcnt vmcnt({LAGE})')
                p('s_barrier      ; B_-2')
            for s in range(-1, 11):
                if bpos[s] == i and passed[0] < s: barrier(s, i)
            assert need(it, m) <= passed[0] or need(it, m) < 0
            if it[0] in 'xw':
                t = int(it[1:]); slot = (t + 1) % 3
                if it != last_item:
                    p(f's_add_u32 s70, s69, {t}')
                    p('s_cmp_ge_u32 s70, 10'); p('s_cselect_b32 s71, 10, 0'); p('s_sub_u32 s70, s70, s71')
                    p(f's_lshl_b32 s64, s70, {7 if it[0]=="x" else 19}')
                if it[0] == 'x':
                    p(f's_add_u32 m0, s13, {XS + slot*24576 + m*4096}')
                    p(f's_add_u32 s14, s64, {m*40960}')
                    p(f'buffer_load_dwordx4 v11, s[36:39], s14 offen {XFL} lds')
                else:
                    p(f's_add_u32 m0, s13, {WS_ + slot*16384 + m*4096}')
                    p(f's_add_u32 s14, s64, {m*131072}')
                    p(f'buffer_load_dwordx4 v12, s[40:43], s14 offen {CFL if t < 3 else WFL2} lds')
            elif it[0] in 'kv':
                b = int(it[1]); k_ = [x[0] for x in staged].index(i)
                vo, sr = (10, 44) if it[0] == 'k' else (13, 48)
                p(f's_mov_b32 s14, {b*786432 + m*4096}')
                p(f'buffer_load_dwordx4 {vr(32+4*k_)}, v{vo}, s[{sr}:{sr+3}], s14 offen {KVFL}')
            elif it == 'Z0':
                if m == 0:
                    p('s_and_b32 s10, s4, 3')
                    p('s_lshl_b32 s61, s6, 5'); p('s_add_u32 s61, s61, s5'); p(f's_mul_i32 s61, s61, {RST}'); p(f's_add_u32 s61, s61, {INBOX}')
                    p('s_lshl_b32 s9, s10, 2'); p('s_add_u32 s9, s9, s11'); p(f's_mul_i32 s9, s9, {3*SZ}'); p('s_add_u32 s9, s9, s61')
                    p('v_lshlrev_b32 v15, 4, v2')
                    for i_ in range(4): p(f'v_mov_b32 v{24+i_}, -1')
                p(f's_add_u32 s14, s9, {I_OFF + m*1024}')
                p('buffer_store_dwordx4 v[24:27], v15, s[52:55], s14 offen sc1')
            elif it == 'W0':
                if m in (0, 5):
                    p('s_waitcnt lgkmcnt(0)')
                    p('s_cmp_eq_u32 s6, 0')
                    p('s_cselect_b64 s[28:29], s[16:17], s[18:19]')
                    p('s_mov_b32 s30, 5242880'); p('s_mov_b32 s31, 0x20000')
                    p('s_and_b32 s9, s4, 3'); p('s_lshl_b32 s9, s9, 5'); p('s_add_u32 s9, s9, s5'); p('s_mul_i32 s9, s9, 40960')
                    p('v_lshl_add_u32 v15, v2, 4, s13')
                p(f's_add_u32 s14, s9, {m*4096}')
                p('buffer_load_dwordx4 v[20:23], v15, s[28:31], s14 offen')
            else:
                b = int(it[1])
                addr = {'K0': KB0, 'K1': KB1, 'V0': VB0, 'V1': VB1}[it] + m*4096
                vo, sr = (10, 44) if it[0] == 'K' else (13, 48)
                p(f's_add_u32 m0, s13, {addr}')
                p(f's_mov_b32 s14, {b*786432 + m*4096}')
                p(f'buffer_load_dwordx4 v{vo}, s[{sr}:{sr+3}], s14 offen {KVFL} lds')
            last_item = it
        for s in range(-1, 11):
            if passed[0] < s: barrier(s, n)
        return p.lines
    la = loader(PATA, 'A'); lb = loader(PATB, 'B')
    k = 0
    while k < min(len(la), len(lb)) and la[k].replace('nopubA', 'nopub') == lb[k].replace('nopubB', 'nopub'): k += 1
    while k < len(la) and not la[k-1].startswith('buffer_load'): k -= 1
    for x in la[:k]: p(x)
    if k < len(la) or k < len(lb):
        p(f's_bitcmp1_b32 s2, {PATSEL}')
        p('s_cbranch_scc1 L_patB')
        for x in la[k:]: p(x)
        p('s_branch L_ld2')
        p('L_patB:')
        for x in lb[k:]: p(x)
    p('L_ld2:')
    def wgflag(off, lbl):
        p('s_cmp_lg_u32 s3, 5')
        p(f's_cbranch_scc1 {lbl}')
        p('s_mov_b64 exec, 1')
        p(f'buffer_store_dwordx2 v[28:29], v30, s[52:55], s68 offen offset:{off} {FLAGF}')
        p('s_mov_b64 exec, -1')
        p(f'{lbl}:')
    if WGF:
        p('s_memrealtime s[24:25]')
        p(f's_lshl_b32 s68, s5, {FS1}'); p(f's_mul_i32 s9, s4, {GST}'); p('s_add_u32 s68, s68, s9'); p(f's_add_u32 s68, s68, {F1_OFF}')
        p('v_mov_b32 v30, 0')
        p('s_waitcnt lgkmcnt(0)')
        p('v_mov_b32 v28, s24'); p('v_mov_b32 v29, s25')
    p('s_cmp_ge_u32 s5, 30')
    p('s_cbranch_scc1 L_ld_idle')
    p2_ids(p)
    p('s_waitcnt lgkmcnt(0)')
    p('s_cmp_eq_u32 s6, 0')
    p('s_cselect_b64 s[16:17], s[16:17], s[18:19]')
    p(f's_mul_i32 s9, s10, {0 if FAKEWO else 1310720}')
    p('s_lshl_b32 s12, s67, 8')
    p('s_add_u32 s9, s9, s12')
    p('s_add_u32 s36, s16, s9'); p('s_addc_u32 s37, s17, 0')
    p(f's_sub_u32 s38, {983040 if FAKEWO else 1310720}, s12'); p('s_mov_b32 s39, 0x20000')
    p('v_mul_u32_u24 v7, 1280, v5')
    p('v_lshl_add_u32 v12, v8, 4, v7')
    p('v_lshl_add_u32 v11, v2, 4, s13')
    p('s_mul_i32 s69, s66, 43'); p('s_lshr_b32 s69, s69, 4')
    p(f's_mul_i32 s70, s67, {ROT2}'); p('s_add_u32 s69, s69, s70'); p(f's_and_b32 s69, s69, {14 if HALF else 15}')
    p(f's_mul_i32 s65, s4, {GST}')
    p('s_lshl_b32 s12, s66, 13'); p('s_add_u32 s65, s65, s12'); p(f's_add_u32 s65, s65, {O_OFF}')
    p('s_mul_i32 s70, s69, 81920')
    p('s_mul_i32 s71, s69, 98304')
    p('s_add_u32 s71, s71, s65')
    p(f's_add_u32 s63, s65, {16*98304}')
    cnt = [0]
    endo = {}; endw = {}
    def wo_issue(k):
        fl = WOFL if k < 3 else WOFL2
        for m in range(4):
            p(f's_add_u32 m0, s13, {WO_L + ((k + 1) % NWS)*16384 + m*4096}')
            p(f's_add_u32 s14, s70, {m*20480}')
            p(f'buffer_load_dwordx4 v12, s[36:39], s14 offen {fl} lds')
        if HALF:
            p(f's_add_u32 s70, s70, {2*81920}')
            p(f's_cmp_ge_u32 s70, {16*81920}')
            p(f's_cselect_b32 s12, {16*81920}, 0'); p('s_sub_u32 s70, s70, s12')
            if k == 7: p('s_add_u32 s70, s70, 81920')
        else:
            p('s_add_u32 s70, s70, 81920')
            p(f's_cmp_eq_u32 s70, {16*81920}')
            p('s_cselect_b32 s70, 0, s70')
        cnt[0] += 4; endw[k] = cnt[0]
    def o_issue(k):
        if HALF and k == 8:
            p(f's_waitcnt vmcnt({cnt[0] - endo["f"]})')
            p('s_mov_b64 exec, s[20:21]')
            p('v_cmp_gt_u64 vcc, s[96:97], v[16:17]')
            p('v_cmp_lt_u64 s[100:101], s[98:99], v[16:17]')
            p('s_mov_b64 exec, -1')
            p('s_or_b64 vcc, vcc, s[100:101]')
            p('s_cbranch_scc0 L_fb_ok')
            p(f's_add_u32 s15, s15, {FBO}')
            poll_flags(p, 'L_pf1b', 14, 16, 's15', 's[20:21]')
            p('L_fb_ok:')
        for m in range(4):
            p(f's_add_u32 m0, s13, {O_L + (k % NOS)*16384 + m*4096}')
            p(f's_add_u32 s14, s71, {(0, 4096, 49152, 53248)[m]}')
            p(f'buffer_load_dwordx4 v11, s[52:55], s14 offen {ORFL} lds')
        if HALF:
            p(f's_add_u32 s71, s71, {2*98304}')
            p('s_cmp_ge_u32 s71, s63')
            p(f's_cselect_b32 s12, {16*98304}, 0'); p('s_sub_u32 s71, s71, s12')
            if k == 7: p('s_add_u32 s71, s71, 98304')
        else:
            p('s_add_u32 s71, s71, 98304')
            p('s_cmp_eq_u32 s71, s63')
            p('s_cselect_b32 s71, s65, s71')
        cnt[0] += 4; endo[k] = cnt[0]
        if HALF and k == 5:
            p('s_mov_b64 exec, s[20:21]')
            p(f'buffer_load_dwordx2 v[16:17], v14, s[52:55], s15 offen offset:{FBO} sc1')
            p('s_mov_b64 exec, -1')
            cnt[0] += 1; endo['f'] = cnt[0]
    if WGF:
        p('s_mul_i32 s12, s66, 43'); p('s_lshr_b32 s12, s12, 6'); p(f's_lshl_b32 s12, s12, {FS1+3}')
    else:
        p('s_mul_i32 s12, s66, 171'); p('s_lshr_b32 s12, s12, 6'); p(f's_lshl_b32 s12, s12, {FS1+3}')
    p(f's_mul_i32 s14, s4, {GST}'); p('s_add_u32 s12, s12, s14'); p(f's_add_u32 s15, s12, {F1_OFF}')
    if WGF:
        p('s_movk_i32 s21, 0xff')
        p('s_cmp_eq_u32 s66, 1'); p('s_cselect_b32 s20, 0xffff, s21')
        p('s_cmp_eq_u32 s66, 4'); p('s_cselect_b32 s20, 0xffff, s20'); p('s_mov_b32 s21, 0')
    else:
        p('s_cmp_eq_u32 s66, 1'); p('s_cselect_b32 s20, -1, 0xffffff')
        p('s_cmp_eq_u32 s66, 4'); p('s_cselect_b32 s20, -1, s20'); p('s_mov_b32 s21, 0')
    p(f'v_lshlrev_b32 v14, {FS1}, v2')
    if SENT == 3:
        p('s_memrealtime s[24:25]')
        p('s_lshl_b32 s9, s11, 7'); p('s_add_u32 s9, s9, s61'); p('s_lshl_b32 s14, s10, 3'); p('s_add_u32 s9, s9, s14'); p(f's_add_u32 s9, s9, {F2_OFF}')
        p('v_mov_b32 v30, 0')
        p('s_waitcnt vmcnt(0) lgkmcnt(0)')
        p('v_mov_b32 v28, s24'); p('v_mov_b32 v29, s25')
        p('s_mov_b64 exec, 1')
        p('buffer_store_dwordx2 v[28:29], v30, s[52:55], s9 offen sc1')
        p('s_mov_b64 exec, -1')
    nw = 0
    assert UNR and NE <= NWS - 1 and WO_L + 16384 >= VB0 + 24576
    for _ in range(NE): wo_issue(nw); nw += 1
    if WGF:
        p('s_barrier')
        wgflag(0, 'L_wfa')
    p('s_barrier')
    for _ in range(N1 - NE): wo_issue(nw); nw += 1
    if not HALF or B11: p('s_barrier')
    for _ in range(N2): wo_issue(nw); nw += 1
    p('s_cmp_lg_u32 s3, 4')
    p('s_cbranch_scc1 L_nopoll')
    poll_flags(p, 'L_pf1', 14, 16, 's15', 's[20:21]')
    p('L_nopoll:')
    p('s_barrier      ; B_12')
    dstamp(p, 6)
    no = 0
    for c in range(-1, 15):
        def allowed():
            cand = []
            if no < 16 and (no < NOS or no - NOS <= c - 1): cand.append(('o', no))
            if nw < 16 and (nw < NWS or nw - NWS <= c - 1): cand.append(('w', nw))
            cand.sort(key=lambda x: (x[1], x[0] == 'o'))
            return cand
        while True:
            done = (c + 1) in endo and (c + 1) in endw
            if done and cnt[0] - max(endo[c+1], endw[c+1]) >= LAG2: break
            cand = allowed()
            if not cand:
                assert done; break
            if cand[0][0] == 'o': o_issue(no); no += 1
            else: wo_issue(nw); nw += 1
        p(f's_waitcnt vmcnt({cnt[0] - max(endo[c+1], endw[c+1])})')
        p(f's_barrier      ; C_{c}')
        if c == -1: dstamp(p, 7)
        if c == -1 and WGF: wgflag(FBO, 'L_wfb')
        if c == CPF3:
            p('s_getpc_b64 s[22:23]')
            p('L_pc3:')
            p('s_lshl_b32 s9, s5, 2'); p('s_add_u32 s9, s9, s11'); p('s_and_b32 s9, s9, 63'); p('s_lshl_b32 s9, s9, 6')
            p('s_min_u32 s9, s9, L_end-L_tail2')
            p('s_add_u32 s9, s9, L_tail2-L_pc3')
            p('s_add_u32 s22, s22, s9'); p('s_addc_u32 s23, s23, 0')
            p('s_load_dword s24, s[22:23], 0x0')
    assert no == 16 and nw == 16
    dstamp(p, 8)
    flush_stamps(p, 9, 16, 4, 'L_fsL')
    p('s_endpgm')
    p('L_ld_idle:')
    if WGF:
        p('s_barrier      ; FA')
        wgflag(0, 'L_wfa2')
    p('s_barrier      ; B_11a')
    if WGF:
        p('s_barrier')
        wgflag(FBO, 'L_wfb2')
    p('s_endpgm')

    p('L_compute:')
    G = lambda g: 16 + 4*g
    ACC = lambda t, qt: G(t*3+qt)
    AF = lambda st, t: G(24 + st*8 + t)
    BF = lambda st, qt: G(40 + st*3 + qt)
    AADR = 240; BADR = 248
    p('v_bfe_u32 v5, v2, 2, 2')
    p('v_and_b32 v6, 3, v2')
    p('v_and_b32 v7, 1, v3')
    p('v_lshl_add_u32 v7, v7, 2, v5')
    p('v_lshlrev_b32 v7, 1, v7')
    p('v_lshrrev_b32 v8, 1, v6')
    p('v_xor_b32 v7, v7, v8')
    p('v_lshlrev_b32 v7, 4, v7')
    p('v_and_b32 v8, 1, v6')
    p('v_lshl_add_u32 v7, v8, 3, v7')
    p('v_lshl_add_u32 v8, v3, 3, v5')
    p('v_lshl_add_u32 v8, v8, 8, v7')
    p(f'v_add_u32 v8, {WS_ + 16384}, v8')
    for t in range(8):
        p(f'v_xor_b32 v{AADR+t}, {t<<5}, v8')
    p('v_lshrrev_b32 v8, 1, v4')
    p('v_xor_b32 v8, v8, v3')
    p('v_lshlrev_b32 v8, 4, v8')
    p('v_lshl_add_u32 v8, v4, 7, v8')
    p('s_mul_i32 s13, s3, 6144')
    p(f's_add_u32 s13, s13, {XS + 24576}')
    p(f'v_add_u32 v{BADR}, s13, v8')
    p(f'v_xor_b32 v{BADR+1}, 64, v{BADR}')
    p('s_cmp_lt_u32 s3, 2')
    p(f's_mov_b32 s13, {KB1}'); p(f's_mov_b32 s14, {VB1}')
    p(f's_cselect_b32 s13, {KB0}, s13'); p(f's_cselect_b32 s14, {VB0}, s14')
    p('v_lshrrev_b32 v8, 1, v3')
    p('v_xor_b32 v8, v8, v4')
    p('v_lshlrev_b32 v8, 4, v8')
    p('v_lshl_add_u32 v8, v4, 8, v8')
    p('v_and_b32 v9, 1, v3')
    p('v_lshl_add_u32 v8, v9, 3, v8')
    p('v_add_u32 v10, s13, v8')
    p('v_lshl_add_u32 v8, v3, 2, v5')
    p('v_lshl_add_u32 v6, v8, 8, v7')
    p('v_add_u32 v11, s14, v6')
    p('v_lshlrev_b32 v9, 4, v2')
    for i in range(4): p(f'v_mov_b32 v{12+i}, 0x3f803f80')
    for i in range(96): p(f'v_mov_b32 v{16+i}, 0')
    p('s_mul_i32 s62, s66, 192'); p('s_mul_i32 s14, s8, 12'); p('s_add_u32 s62, s62, s14')
    p('s_mul_i32 s14, s3, 3'); p('s_add_u32 s62, s62, s14'); p('s_lshl_b32 s62, s62, 10')
    p(f's_mul_i32 s68, s4, {GST}'); p('s_add_u32 s62, s62, s68'); p(f's_add_u32 s62, s62, {O_OFF}')
    p(f's_mov_b32 s63, {f32bits(LOG2E_SCALE):#x}')
    p('s_mov_b32 s50, s63'); p('s_mov_b32 s51, s63')
    p('s_lshl_b32 s69, s8, 2'); p('s_add_u32 s69, s69, s3')
    p('s_lshl_b32 s69, s69, 3'); p('s_add_u32 s69, s69, s66'); p(f's_lshl_b32 s69, s69, {FS1}'); p('s_add_u32 s69, s69, s68'); p(f's_add_u32 s69, s69, {F1_OFF}')
    p('s_waitcnt lgkmcnt(0)')
    srd(p, 52, 34, 35, WS_SIZE)
    p('s_mov_b32 s98, s96'); p('s_add_u32 s99, s97, 1')
    stamp_setup(p, 34, 35)
    p('s_mov_b64 s[34:35], s[32:33]')
    p('s_load_dwordx2 s[20:21], s[0:1], 80')
    if CPF:
        p('s_cmp_lg_u32 s3, 1')
        p('s_cbranch_scc1 L_nocpf')
        p('s_getpc_b64 s[70:71]')
        p('L_pc:')
        p(f's_sub_u32 s70, s70, L_pc-{K1}')
        p('s_subb_u32 s71, s71, 0')
        p('s_mul_i32 s9, s5, 256')
        p(f's_min_u32 s9, s9, L_end-{K1}-640')
        p('s_add_u32 s70, s70, s9')
        p('s_addc_u32 s71, s71, 0')
        for i in range(4): p(f's_load_dword s{24+i}, s[70:71], {i*64}')
        p('L_nocpf:')
    p('s_waitcnt lgkmcnt(0)')
    srd(p, 44, 20, 21, 8*96*1280*2)
    if PUB == 2:
        p('s_cmp_lg_u32 s3, 3')
        p('s_cbranch_scc1 L_nopubc')
        srd(p, 24, 34, 35, 256)
        p('s_not_b64 s[70:71], s[96:97]')
        p('s_lshl_b32 s9, s6, 7')
        p('v_mov_b32 v250, s70'); p('v_mov_b32 v251, s71'); p('v_mov_b32 v252, 0')
        p('s_mov_b64 exec, 1')
        p('buffer_atomic_umax_x2 v[250:251], v252, s[24:27], s9 offen sc1')
        p('s_mov_b64 exec, -1')
        p('L_nopubc:')
    if TOUCH:
        p('s_cmp_lg_u32 s3, 2')
        p('s_cbranch_scc1 L_notouch')
        p('v_and_b32 v250, 1, v2')
        p(f'v_mul_u32_u24 v251, {GT_OFF}, v250')
        p(f'v_mul_u32_u24 v252, {RT_OFF}, v250')
        p(f'v_mul_u32_u24 v253, {8*96*1280*2 - 128}, v250')
        p('s_mul_i32 s9, s6, 32'); p('s_add_u32 s9, s9, s5'); p(f's_mul_i32 s9, s9, {RST}'); p(f's_add_u32 s9, s9, {INBOX}')
        p('s_mov_b64 exec, 3')
        p('buffer_load_dword v254, v251, s[52:55], s68 offen nt')
        p('buffer_load_dword v254, v252, s[52:55], s9 offen nt')
        p('buffer_load_dword v254, v253, s[44:47], 0 offen nt')
        p('s_mov_b64 exec, -1')
        p('L_notouch:')
    p2_ids(p)
    p('s_and_b32 s12, s3, 1'); p('s_lshl_b32 s12, s12, 2'); p('s_add_u32 s12, s12, s10')
    p('s_mul_i32 s61, s6, 32'); p('s_add_u32 s61, s61, s5'); p(f's_mul_i32 s61, s61, {RST}'); p(f's_add_u32 s61, s61, {INBOX}')
    for i in (1, 2, 3, 0):
        d = 35 + i if i else 39
        p(f's_xor_b32 s{d}, s10, {i}'); p(f's_lshl_b32 s{d}, s{d}, 2'); p(f's_add_u32 s{d}, s{d}, s3'); p(f's_mul_i32 s{d}, s{d}, {3*SZ}')
        p(f's_add_u32 s{d}, s{d}, s61'); p(f's_add_u32 s{d}, s{d}, {I_OFF + (i-1 if i else 0)*SZ}')
    p(f's_lshl_b32 s40, s3, {max(7, FS2+2)}'); p('s_add_u32 s40, s40, s61'); p(f's_add_u32 s40, s40, {F2_OFF}')
    p('s_lshl_b32 s41, s66, 3'); p('s_add_u32 s41, s41, s12'); p('s_mul_i32 s41, s41, 40960')
    p('s_mul_i32 s13, s6, 1280'); p('s_add_u32 s41, s41, s13'); p('s_lshl_b32 s13, s67, 8'); p('s_add_u32 s41, s41, s13')
    p('s_lshr_b32 s13, s3, 1'); p('s_lshl_b32 s13, s13, 7'); p('s_add_u32 s41, s41, s13')
    p(f's_lshl_b32 s42, s10, {FS2}'); p('s_add_u32 s42, s42, s40')
    p('s_add_u32 s43, s39, 4096')
    p('s_add_u32 s48, s39, 8192')
    if WGF:
        p(f's_lshl_b32 s69, s5, {FS1}'); p('s_add_u32 s69, s69, s68'); p(f's_add_u32 s69, s69, {F1_OFF}')
    if FWARM:
        p('v_mov_b32 v250, 0')
        p('s_mov_b64 exec, 1')
        if FWARM & 1:
            p('buffer_load_dword v251, v250, s[52:55], s69 offen sc1')
            p(f'buffer_load_dword v251, v250, s[52:55], s69 offen offset:{FBO} sc1')
        if FWARM & 2: p('buffer_load_dword v251, v250, s[52:55], s42 offen sc1')
        p('s_mov_b64 exec, -1')
    if SENT == 1:
        p('s_cmp_ge_u32 s5, 30')
        p('s_cbranch_scc1 L_noclr')
        for i in range(4): p(f'v_mov_b32 v{200+i}, -1')
        for k in range(3 * SZ // 1024):
            p(f'buffer_store_dwordx4 v[200:203], v9, s[52:55], s{(39, 43, 48)[k//4]} offen offset:{(k%4)*1024} sc1')
        p('L_noclr:')
    def reads(st, ks):
        L = [f'ds_read_b128 {vr(BF(st,qt))}, v{BADR+ks} offset:{qt*2048}' for qt in range(3)]
        for t in range(8):
            L.append(f'ds_read_b64_tr_b16 {vr(AF(st,t),2)}, v{AADR+t} offset:{ks*8192}')
            L.append(f'ds_read_b64_tr_b16 {vr(AF(st,t)+2,2)}, v{AADR+t} offset:{ks*8192+1024}')
        return L
    def mfmas(st):
        return [f'{MF} {vr(ACC(t,qt))}, {vr(AF(st,t))}, {vr(BF(st,qt))}, {vr(ACC(t,qt))}' for t in range(8) for qt in (range(3) if not (SNAKE and t & 1) else (2, 1, 0))]
    p('s_mov_b32 s14, 1')
    p('s_mov_b32 s15, 0')
    p('s_barrier')
    dstamp(p, 1)
    pro = reads(0, 0)
    for x in pro: p(x)
    _, pend0 = auto_lgkm(pro)
    scal = ['s_add_u32 s14, s14, 1', 's_cmp_eq_u32 s14, 3', 's_cselect_b32 s61, -2, 1', 's_cselect_b32 s14, 0, s14',
            's_mul_i32 s64, s61, 16384', 's_mul_i32 s65, s61, 24576', 's_add_u32 s15, s15, 1', 's_cmp_eq_u32 s15, 10']
    m0_ = mfmas(0); m1 = mfmas(1)
    H1 = spread(m0_[:19], reads(1, 1), per=PER1) + spread(m0_[19:], scal, per=2)
    upd = [f'v_add_u32 v{BADR+i}, s65, v{BADR+i}' for i in range(2)] + [f'v_add_u32 v{AADR+t}, s64, v{AADR+t}' for t in range(8)]
    H2a = interleave(m1[:NA], upd, per=2) + ['s_waitcnt lgkmcnt(0)', 's_barrier']
    H2b = spread(m1[NA:], reads(0, 0), per=PER1)
    if LOWD:
        H1 = reads(1, 1) + (scal + m0_ if LOWD == 2 else spread(m0_, scal))
        H2a = (m1 + upd if LOWD == 2 else interleave(m1, upd, per=1)) + ['s_barrier']
        H2b = reads(0, 0)
        if LOWD == 3:
            H1 = scal + ['s_waitcnt lgkmcnt(0)'] + m0_ + reads(1, 1) + ['s_waitcnt lgkmcnt(0)']
            if EARLY:
                H1 = scal[:-1] + ['s_cmp_lg_u32 s15, 1', 's_waitcnt lgkmcnt(0)'] + m0_ + ['s_cbranch_scc1 L_nb1', 's_barrier', 'L_nb1:'] + reads(1, 1) + [scal[-1], 's_waitcnt lgkmcnt(0)']
            H2a = m1 + upd + ['s_barrier']
    if BURST:
        r1 = reads(1, 1); r0 = reads(0, 0)
        H1 = r1[:BURST] + spread(m0_[:19], r1[BURST:]) + spread(m0_[19:], scal, per=2)
        H2b = r0[:BURST] + spread(m1[NA:], r0[BURST:])
    if XNOP:
        def addn(L):
            o_ = []; c = 0
            for x in L:
                o_.append(x)
                if x.startswith('v_mfma'):
                    c += 1
                    if c % XNOP == 0: o_.append('s_nop 3')
            return o_
        H1 = addn(H1); H2b = addn(H2b)
    h1, pend = auto_lgkm(H1, pend0)
    h2a, pend_a = auto_lgkm(H2a, pend)
    h2b, _ = auto_lgkm(H2b, pend_a)
    p('L_loop:')
    for x in h1: p(x)
    p('s_cbranch_scc1 L_tail')
    for x in h2a + h2b: p(x)
    p('s_branch L_loop')
    p('L_tail:')
    KFg = list(range(24, 32)) + [40, 41, 42] + list(range(46, 56)) + [32, 33, 34]
    KF = lambda kt, u: G(KFg[kt*4+u])
    QB = lambda u, qt: ACC(2*u, qt)
    Smap = {}
    free_early = [35, 36, 37, 38, 39, 43, 44, 45]
    for kt in range(6): Smap[(kt, 0)] = free_early[kt]
    oddq = lambda qt: [(2*u+1)*3+qt for u in range(4)]
    l1 = oddq(0) + oddq(1)[:2]
    l2 = oddq(1)[2:] + oddq(2)
    for kt in range(6): Smap[(kt, 1)] = l1[kt]; Smap[(kt, 2)] = l2[kt]
    S = lambda kt, qt: G(Smap[(kt, qt)])
    kaddr = [f'v_xor_b32 v{AADR+m}, {m<<5}, v10' for m in range(8)]
    def kread(kt, u):
        return [f'ds_read_b64 {vr(KF(kt,u),2)}, v{AADR+2*u} offset:{kt*4096}', f'ds_read_b64 {vr(KF(kt,u)+2,2)}, v{AADR+2*u+1} offset:{kt*4096}']
    kr = [x for kt in range(6) for u in range(4) for x in kread(kt, u)]
    qcvt = lambda qt: [x for u in range(4) for x in cvt4(QB(u, qt), ACC(2*u, qt), ACC(2*u+1, qt))]
    T = ['s_memrealtime s[70:71]'] + interleave(m1[:NAT], kaddr, per=2) + ['s_waitcnt vmcnt(0) lgkmcnt(0)', 's_barrier']
    T += ['v_mov_b32 v254, s70', 'v_mov_b32 v255, s71', 'v_mov_b32 v253, 0']
    if SENT == 1:
        T += ['s_waitcnt vmcnt(0)', 's_mov_b64 exec, 1', 'buffer_store_dwordx2 v[254:255], v253, s[52:55], s42 offen sc1', 's_mov_b64 exec, -1']
    if STAMPS: T.append(f'{"s_memtime" if CLK else "s_memrealtime"} s[76:77]')
    o, rest = merge(m1[NAT:], kr[:42])
    T += o + rest + kr[42:]
    def smf(qt):
        return [f'{MF} {vr(S(kt,qt))}, {vr(KF(kt,u))}, {vr(QB(u,qt))}, {"0" if u == 0 else vr(S(kt,qt))}' for u in range(4) for kt in range(6)]
    def softmax(qt):
        regs = [S(kt, qt) + r for kt in range(6) for r in range(4)]
        M = 250; Tm = 251; M2 = 249
        L = [f'v_max3_f32 v{M}, v{regs[0]}, v{regs[1]}, v{regs[2]}', f'v_max3_f32 v{M2}, v{regs[3]}, v{regs[4]}, v{regs[5]}']
        for i in range(6, 22, 4):
            L.append(f'v_max3_f32 v{M}, v{M}, v{regs[i]}, v{regs[i+1]}')
            L.append(f'v_max3_f32 v{M2}, v{M2}, v{regs[i+2]}, v{regs[i+3]}')
        L.append(f'v_max3_f32 v{M}, v{M}, v{regs[22]}, v{regs[23]}')
        L.append(f'v_max_f32 v{M}, v{M}, v{M2}')
        L += [f'v_mov_b32 v{Tm}, v{M}', f'v_permlane16_swap_b32 v{M}, v{Tm}', f'v_max_f32 v{M}, v{M}, v{Tm}',
              f'v_mov_b32 v{Tm}, v{M}', f'v_permlane32_swap_b32 v{M}, v{Tm}', f'v_max_f32 v{M}, v{M}, v{Tm}',
              f'v_mul_f32 v{M}, s63, v{M}']
        for u in range(3):
            rr = regs[8*u:8*u+8]
            if PK & 1: L += [f'v_pk_fma_f32 v[{r}:{r+1}], v[{r}:{r+1}], s[50:51], v[{M}:{M+1}] op_sel_hi:[1,0,0] neg_lo:[0,0,1] neg_hi:[0,0,1]' for r in rr[::2]]
            else: L += [f'v_fma_f32 v{r}, v{r}, s63, -v{M}' for r in rr]
            L += [f'v_exp_f32 v{r}, v{r}' for r in rr]
            L += cvt4(S(2*u, qt), S(2*u, qt), S(2*u+1, qt))
        return L
    PB = lambda u, qt: S(2*u, qt)
    VF = lambda t, u: G(KFg[t*3+u])
    T += qcvt(0)
    o, rest = merge(smf(0), qcvt(1) + qcvt(2))
    T += o + rest
    sm0 = softmax(0)
    m12 = smf(1) + (smf(2) if not ORH else [])
    o, rest0 = merge(m12[4:], sm0)
    T += m12[:4] + o + rest0
    T += [f'v_xor_b32 v{AADR+t}, {t<<5}, v11' for t in range(8)]
    t2, _ = auto_lgkm(T, pend)
    for x in t2: p(x)
    dstamp(p, 3)
    p('s_barrier')
    dstamp(p, 4)
    U = []
    for t in range(8):
        for u in range(3):
            U.append(f'ds_read_b64_tr_b16 {vr(VF(t,u),2)}, v{AADR+t} offset:{u*8192}')
            U.append(f'ds_read_b64_tr_b16 {vr(VF(t,u)+2,2)}, v{AADR+t} offset:{u*8192+4096}')
    qbg = [(2*u)*3+qt for u in range(4) for qt in range(3)]
    Og = {0: qbg[:9], 1: qbg[9:] + [44, 45] + [Smap[(1,0)], Smap[(3,0)], Smap[(5,0)]] + [Smap[(1,1)]]}
    Og[2] = [Smap[(0,0)], Smap[(2,0)], Smap[(4,0)], Smap[(3,1)], Smap[(5,1)], Smap[(1,2)], Smap[(3,2)], Smap[(5,2)], Smap[(0,1)]]
    OA = lambda t, qt: G(Og[qt][t])
    def pv(qt):
        L = []
        for u in range(3):
            L.append(f'{MF} {vr(OA(8,qt))}, v[12:15], {vr(PB(u,qt))}, {"0" if u == 0 else vr(OA(8,qt))}')
        for t2_ in range(0, 8, 2):
            for u in range(3):
                for t in (t2_, t2_+1):
                    L.append(f'{MF} {vr(OA(t,qt))}, {vr(VF(t,u))}, {vr(PB(u,qt))}, {"0" if u == 0 else vr(OA(t,qt))}')
        return L
    def onorm(qt):
        l = OA(8, qt)
        L = [f'v_rcp_f32 v{l}, v{l}']
        for v in range(4):
            a0 = OA(2*v, qt); a1 = OA(2*v+1, qt)
            L += [f'v_mul_f32 v{a+r}, v{a+r}, v{l}' for a in (a0, a1) for r in range(4)]
            L += cvt4(a0, a0, a1)
            L.append(f's_add_u32 s14, s62, {v*48*1024}')
            L.append(f'buffer_store_dwordx4 {vr(a0)}, v9, s[52:55], s14 offen offset:{qt*1024} {OFL}')
        return L
    sm1 = softmax(1); sm2 = softmax(2)
    if HALF:
        Lg = [44, 45, Smap[(1,0)]]
        Bg = [Smap[(3,0)], Smap[(5,0)], Smap[(1,1)], Smap[(3,1)], Smap[(5,1)], Smap[(1,2)], Smap[(3,2)], Smap[(5,2)]] + KFg[:4]
        OH = lambda t, qt: G(qbg[qt*4+t]) if t < 4 else G(Bg[qt*4+t-4])
        def pvh(h, qt):
            L = []
            if h == 0:
                l = G(Lg[qt])
                L += [f'{MF} {vr(l)}, v[12:15], {vr(PB(u,qt))}, {"0" if u == 0 else vr(l)}' for u in range(3)]
            for t2_ in (4*h, 4*h+2):
                for u in range(3):
                    for t in (t2_, t2_+1):
                        L.append(f'{MF} {vr(OH(t,qt))}, {vr(VF(t,u))}, {vr(PB(u,qt))}, {"0" if u == 0 else vr(OH(t,qt))}')
            return L
        def nrm(h, qt):
            l = G(Lg[qt])
            L = [f'v_rcp_f32 v{l}, v{l}'] if h == 0 else []
            for v in (2*h, 2*h+1):
                a0 = OH(2*v, qt); a1 = OH(2*v+1, qt)
                if PK & 2: L += [f'v_pk_mul_f32 v[{a+r}:{a+r+1}], v[{a+r}:{a+r+1}], v[{l}:{l+1}] op_sel_hi:[1,0]' for a in (a0, a1) for r in (0, 2)]
                else: L += [f'v_mul_f32 v{a+r}, v{a+r}, v{l}' for a in (a0, a1) for r in range(4)]
                L += cvt4(a0, a0, a1)
                L.append(f's_add_u32 s14, s62, {v*48*1024}')
                L.append(f'buffer_store_dwordx4 {vr(a0)}, v9, s[52:55], s14 offen offset:{qt*1024} {OFL}')
            return L
        flagA = lambda k: [f's_waitcnt vmcnt({k})', 's_mov_b64 exec, 1', f'buffer_store_dwordx2 v[254:255], v253, s[52:55], s69 offen {FLAGF}', 's_mov_b64 exec, -1']
        if WGF: flagA = lambda k: [f's_waitcnt vmcnt({k})', 's_barrier']
        vrdB = U[24:]; U = U[:24]
        if ORH:
            st_ = lambda h: [x for x in nrm(h, 2) if x.startswith(('buffer', 's_add'))]
            o, rest = merge(pvh(0, 0), sm1); U += o + rest
            o, rest = merge(pvh(0, 1), nrm(0, 0)); U += o + vrdB + rest + st_(0)
            o, rest = merge(pvh(1, 0), nrm(0, 1)); U += o + rest
            o, rest = merge(pvh(1, 1), nrm(1, 0)); U += o + rest + flagA(2) + st_(1) + nrm(1, 1)
            U_done = list(U)
        o, rest = merge(pvh(0, 0), sm1); U += o + rest
        o, rest = merge(pvh(0, 1), sm2); U += o + rest
        o, rest = merge(pvh(0, 2), nrm(0, 0) + nrm(0, 1)); U += o + vrdB + rest
        o, rest = merge(pvh(1, 0), nrm(0, 2)); U += o + rest
        o, rest = merge(pvh(1, 1), nrm(1, 0)); U += o + rest
        if FAPOS == 1: U += flagA(2)
        o, rest = merge(pvh(1, 2), nrm(1, 1)); U += o + rest
        if FAPOS == 2: U += flagA(4)
        U += nrm(1, 2)
        if FAPOS == 3: U += flagA(6)
    if ORH: U = U_done
    if not HALF:
        o, rest = merge(pv(0), sm1)
        U += o + rest
    if HALF: pass
    elif OEARLY:
        o, rest = merge(pv(1), onorm(0) + sm2)
        U += o + rest
        o, rest = merge(pv(2), onorm(1))
        U += o + rest
    else:
        o, rest = merge(pv(1), sm2)
        U += o + rest
        o, rest = merge(pv(2), onorm(0) + onorm(1))
        U += o + rest
    if not HALF: U += onorm(2)
    u2, _ = auto_lgkm(U, [])
    for x in u2: p(x)
    dstamp(p, 5)
    p('s_barrier')
    A2 = lambda i, t: 16 + (i*4+t)*4
    FA = lambda st, t: 80 + st*32 + t*4
    FBq = lambda st, i: 96 + st*32 + i*4
    p('s_lshr_b32 s13, s3, 1'); p('s_lshl_b32 s13, s13, 7')
    p(f'v_add_u32 v8, {WO_L}, v6')
    p('v_xor_b32 v8, s13, v8')
    for t in range(4): p(f'v_xor_b32 v{AADR+t}, {t<<5}, v8')
    if UNR:
        for t in range(4): p(f'v_add_u32 v{232+t}, 0x10000, v{AADR+t}')
    p('s_lshl_b32 s13, s12, 10')
    p(f'v_add_u32 v8, s13, v9')
    for i in range(4): p(f'v_xor_b32 v{AADR+4+i}, {i<<10}, v8')
    p(f'v_lshlrev_b32 v248, {FS2}, v2')
    p('v_mul_u32_u24 v7, 2560, v4')
    if WIDE:
        p('v_and_b32 v8, 1, v3'); p('v_lshl_add_u32 v7, v8, 5, v7')
        p('v_lshrrev_b32 v8, 1, v3'); p('v_lshl_add_u32 v7, v8, 4, v7')
    else: p('v_lshl_add_u32 v7, v3, 3, v7')
    def lastflag():
        p('s_waitcnt vmcnt(0)')
        if WGF:
            dstamp(p, 6); return
        p('s_mov_b64 exec, 1')
        p(f'buffer_store_dwordx2 v[254:255], v253, s[52:55], s69 offen offset:{FBO if HALF else 0} {FLAGF}')
        p('s_mov_b64 exec, -1')
        dstamp(p, 6)
    if not HALF:
        lastflag()
        p('s_cmp_ge_u32 s5, 30')
        p('s_cbranch_scc1 L_cdone')
        p('s_barrier')
    else:
        p('s_cmp_lt_u32 s5, 30')
        p('s_cbranch_scc1 L_act')
        lastflag()
        if WGF: p('s_barrier')
        p('s_branch L_cdone')
        p('L_act:')
    if SENT == 2:
        for i in range(4): p(f'v_mov_b32 v{200+i}, -1')
        for k in range(3 * SZ // 1024):
            p(f'buffer_store_dwordx4 v[200:203], v9, s[52:55], s{(39, 43, 48)[k//4]} offen offset:{(k%4)*1024} sc1')
    if HALF and B11:
        lastflag()
        p('s_barrier')
    p('s_barrier')
    if HALF and not B11: lastflag()
    if SENT in (1, 3):
        p('s_mov_b64 exec, 15')
        p('buffer_load_dwordx2 v[250:251], v248, s[52:55], s40 offen sc1')
        p('s_mov_b64 exec, -1')
    SR = 144
    if TAGS:
        p('s_mov_b32 s13, 0x01010101')
        p('v_mul_lo_u32 v236, v2, s13')
        p('v_add_u32 v237, s96, v236')
        p('v_add_u32 v236, s70, v236')
        for k in range(9): p(f'v_mov_b32 v{SR+4*k+3}, v236')
        for i in range(3): p(f'v_mov_b32 v{SR+12*i+10}, 0')
    for i in range(64): p(f'v_mov_b32 v{16+i}, 0')
    def reads2(st, kk, stage=0):
        oo = (stage % NOS) * 16384 + kk*8192
        wo_ = ((stage + 1) % NWS) * 16384 + kk*8192
        ab = AADR if wo_ < 65536 else 232
        wo_ &= 0xffff
        L = [f'ds_read_b128 {vr(FBq(st,0))}, v{AADR+4} offset:{oo}']
        for t in range(4):
            L.append(f'ds_read_b64_tr_b16 {vr(FA(st,t),2)}, v{ab+t} offset:{wo_}')
            L.append(f'ds_read_b64_tr_b16 {vr(FA(st,t)+2,2)}, v{ab+t} offset:{wo_+4096}')
        L += [f'ds_read_b128 {vr(FBq(st,i))}, v{AADR+4+i} offset:{oo}' for i in range(1, 4)]
        if DIAG: L = [L[k] for k in (9, 1, 2, 3, 4, 10, 5, 6, 11, 7, 8, 0)]
        return L
    DORD = [(0,0),(0,1),(1,1),(1,0),(0,2),(1,2),(2,2),(2,1),(2,0),(0,3),(1,3),(2,3),(3,3),(3,2),(3,1),(3,0)]
    DORD = [((i + 1) % 4, t) for i, t in DORD]
    def mfd(st): return [f'{MF} {vr(A2(i,t))}, {vr(FA(st,t))}, {vr(FBq(st,i))}, {vr(A2(i,t))}' for i, t in DORD]
    def mf2(st):
        return [f'{MF} {vr(A2(i,t))}, {vr(FA(st,t))}, {vr(FBq(st,i))}, {vr(A2(i,t))}' for i in range(4) for t in (range(4) if not (SNAKE and i & 1) else (3, 2, 1, 0))]
    p('s_mov_b32 s14, 0')
    p('s_mov_b32 s15, 0')
    p('s_barrier')
    dstamp(p, 7)
    pro = reads2(0, 0)
    for x in pro: p(x)
    _, pend0 = auto_lgkm(pro)
    p('s_mov_b32 s13, 0')
    scal = ['s_add_u32 s14, s14, 1', f's_cmp_eq_u32 s14, {NWS}', f's_cselect_b32 s61, {1-NWS}, 1', 's_cselect_b32 s14, 0, s14', 's_lshl_b32 s64, s61, 14',
            's_add_u32 s13, s13, 1', f's_cmp_eq_u32 s13, {NOS}', f's_cselect_b32 s61, {1-NOS}, 1', 's_cselect_b32 s13, 0, s13', 's_lshl_b32 s65, s61, 14',
            's_add_u32 s15, s15, 1', 's_cmp_eq_u32 s15, 16']
    if ORC: scal = scal[-2:]
    n0 = mf2(0); n1 = mf2(1)
    H1 = spread(n0[:12], reads2(1, 1)) + spread(n0[12:], scal, per=3)
    upd = [f'v_add_u32 v{AADR+4+i}, s65, v{AADR+4+i}' for i in range(4)] + [f'v_add_u32 v{AADR+t}, s64, v{AADR+t}' for t in range(4)]
    if ORC: upd = upd[:ORC-1]
    H2a = interleave(n1[:4], upd, per=2) + ['s_waitcnt lgkmcnt(0)', 's_barrier']
    H2b = spread(n1[4:], reads2(0, 0))
    h1, pend = auto_lgkm(H1, pend0)
    h2a, pend_a = auto_lgkm(H2a, pend)
    h2b, _ = auto_lgkm(H2b, pend_a)
    if DEFER:
        assert DIAG and UNR and DEFER <= NOS
        pend = pend0
        for j in range(16):
            df = j >= 16 - DEFER; dfn = j + 1 >= 16 - DEFER
            d0 = mfd(0); d1 = mfd(1); r_ = reads2(1, 1, j); rn = reads2(0, 0, j + 1)
            if df: d0 = d0[:12]; d1 = d1[:12]; r_ = r_[:11]
            if dfn: rn = rn[:11]
            o_ = 1 if df else 0
            seq_ = [f's_waitcnt lgkmcnt({6-o_})'] + spread(d0[:4], r_[:4]) + [f's_waitcnt lgkmcnt({7-o_})'] + spread(d0[4:9], r_[4:9]) + ['s_waitcnt lgkmcnt(9)'] + spread(d0[9:], r_[9:])
            hh1, pend = auto_lgkm(seq_, pend)
            for x in hh1: p(x)
            if j == 15: break
            nb_ = NB2 if not df else 3
            hh2, pend = auto_lgkm([f's_waitcnt lgkmcnt({6-o_})'] + d1[:nb_] + ['s_waitcnt lgkmcnt(0)', 's_barrier'] + interleave(d1[nb_:], rn), pend)
            for x in hh2: p(x)
    elif UNR:
        import math
        per_ = min(NWS * NOS // math.gcd(NWS, NOS), 16)
        exit_at = 15 % per_
        npass = 15 // per_
        p('L_loop2:')
        for j in range(per_):
            sc = []
            if j == exit_at and per_ < 16: sc = [f's_cmp_eq_u32 s15, {npass}']
            if DIAG:
                d0 = mfd(0); r_ = reads2(1, 1, j)
                seq_ = ['s_waitcnt lgkmcnt(6)'] + spread(d0[:4], r_[:4]) + ['s_waitcnt lgkmcnt(7)'] + spread(d0[4:9], r_[4:9]) + ['s_waitcnt lgkmcnt(9)'] + spread(d0[9:12], r_[9:]) + spread(d0[12:], sc)
            else: seq_ = spread(n0[:12], reads2(1, 1, j)) + spread(n0[12:], sc)
            hh1, pend = auto_lgkm(seq_, pend0)
            for x in hh1: p(x)
            if j == exit_at:
                if per_ < 16: p('s_cbranch_scc1 L_tail2')
                else: break
            sc = ['s_add_u32 s15, s15, 1'] if j == per_ - 1 else []
            d1 = mfd(1) if DIAG else n1
            hh2, _ = auto_lgkm((['s_waitcnt lgkmcnt(6)'] if DIAG else []) + spread(d1[:NB2], sc) + ['s_waitcnt lgkmcnt(0)', 's_barrier'] + spread(d1[NB2:], reads2(0, 0, j + 1)), pend)
            for x in hh2: p(x)
        if per_ < 16: p('s_branch L_loop2')
    else:
        p('L_loop2:')
        for x in h1: p(x)
        p('s_cbranch_scc1 L_tail2')
        for x in h2a + h2b: p(x)
        if SENT == 2:
            p('s_and_b32 s61, s15, 7')
            p('s_cmp_lg_u32 s61, 3')
            p('s_cbranch_scc1 L_loop2')
            p('s_cmp_eq_u32 s15, 3')
            p('s_cbranch_scc0 L_ev11')
            p('s_waitcnt vmcnt(0)')
            p('s_mov_b64 exec, 1')
            p('buffer_store_dwordx2 v[254:255], v253, s[52:55], s42 offen sc1')
            p('s_mov_b64 exec, -1')
            p('s_branch L_loop2')
            p('L_ev11:')
            p('s_mov_b64 exec, 15')
            p('buffer_load_dwordx2 v[250:251], v248, s[52:55], s40 offen sc1')
            p('s_mov_b64 exec, -1')
        p('s_branch L_loop2')
    p('L_tail2:')
    last = [f'{MF} {vr(A2(i,t))}, {vr(FA(1,t))}, {vr(FBq(1,i))}, {vr(A2(i,t))}' for i in (1, 2, 3, 0) for t in range(4)]
    chk = []
    if SENT:
        chk = ['s_waitcnt vmcnt(0)', 's_mov_b64 exec, 15', 'v_cmp_gt_u64 vcc, s[96:97], v[250:251]', 'v_cmp_lt_u64 s[100:101], s[98:99], v[250:251]',
               's_mov_b64 exec, -1', 's_or_b64 vcc, vcc, s[100:101]']
        for x in chk: p(x)
        p('s_cbranch_scc0 L_rdy')
        poll_flags(p, 'L_pf2', 248, 250, 's40', '15')
        p('L_rdy:')
    def send(i):
        L = []
        if PF32:
            L += [f'buffer_store_dwordx4 {vr(A2(i,t))}, v9, s[52:55], s{35+i} offen offset:{t*1024} {PFL}' for t in range(4)]
        elif TAGS:
            b0 = SR + 12*(i-1)
            for k in range(8):
                a = A2(i, k >> 1) + 2*(k & 1)
                L.append(f'v_cvt_pk_bf16_f32 v{b0 + 4*(k//3) + k%3}, v{a}, v{a+1}')
                if k in (2, 5, 7):
                    L.append(f'buffer_store_dwordx4 {vr(b0 + 4*(k//3))}, v9, s[52:55], s{35+i} offen offset:{(k//3)*1024} {PFL}')
        else:
            for hf in range(2):
                L += cvt4(A2(i, 2*hf), A2(i, 2*hf), A2(i, 2*hf+1))
                L.append(f'buffer_store_dwordx4 {vr(A2(i,2*hf))}, v9, s[52:55], s{35+i} offen offset:{hf*1024} {PFL}')
        return L
    seq = last[:8] + spread(last[8:12], send(1), per=3) + spread(last[12:], send(2), per=3) + send(3)
    if DEFER:
        steps = [(j, kk) for j in range(16 - DEFER, 16) for kk in range(2)]
        def ownr(n):
            j, kk = steps[n]; r_ = reads2(n & 1, kk, j)
            return [r_[11]] + [r_[k] for k in (1, 2, 3, 4, 6, 7, 9, 10)]
        seq = last[:8] + spread(last[8:12], send(1), per=3) + send(2) + send(3) + ownr(0)
        if STAMPS: seq.append(f'{"s_memtime" if CLK else "s_memrealtime"} s[88:89]')
        for n in range(len(steps)):
            om = [f'{MF} {vr(A2(0,t))}, {vr(FA(n&1,t))}, {vr(FBq(n&1,0))}, {vr(A2(0,t))}' for t in range(4)]
            nx = ownr(n + 1) if n + 1 < len(steps) else []
            if n == FSPLIT:
                seq += ['s_waitcnt vmcnt(0)', 's_mov_b64 exec, 1', f'buffer_store_dwordx2 v[254:255], v253, s[52:55], s42 offen {FLAGF}', 's_mov_b64 exec, -1']
            seq += nx[:3] + interleave(om, nx[3:])
    tl, _ = auto_lgkm(seq, pend)
    for x in tl: p(x)
    if not DEFER: dstamp(p, 8)
    R = 80
    nld = 3 * SZ // 1024
    def loads():
        for k in range(nld):
            p(f'buffer_load_dwordx4 {vr(R+4*k)}, v9, s[52:55], s{(39, 43, 48)[k//4]} offen offset:{(k%4)*1024} sc1')
    if TAGS:
        p(f's_mov_b32 s9, {SPIN_MAX}')
        p('s_mov_b32 s13, 0x100000')
        if TAGS == 2:
            p('v_mul_u32_u24 v238, 3072, v2')
            p('s_mov_b64 exec, 7')
            p('L_lp:')
            p('buffer_load_dword v250, v238, s[52:55], s39 offen offset:2060 sc1')
            p('s_waitcnt vmcnt(0)')
            p('v_subrev_u32 v250, s96, v250')
            p('v_cmp_le_u32 vcc, s13, v250')
            p('s_cbranch_vccz L_lp_ok')
            p(f's_sleep {PSLEEP}')
            p('s_sub_u32 s9, s9, 1')
            p('s_cmp_gt_u32 s9, 1')
            p('s_cbranch_scc1 L_lp')
            p('L_lp_ok:')
            p('s_mov_b64 exec, -1')
        p('L_rx:')
        loads()
        for i in range(3):
            p(f's_waitcnt vmcnt({6 - 3*i})')
            t0 = R + 12*i + 3
            p(f'v_xor_b32 v250, v{t0}, v{t0+4}')
            p(f'v_xor_b32 v251, v{t0}, v{t0+8}')
            if i == 0:
                p('v_or_b32 v252, v250, v251'); p(f'v_sub_u32 v249, v{t0}, v237')
            else:
                p('v_or3_b32 v252, v252, v250, v251'); p(f'v_sub_u32 v250, v{t0}, v237'); p('v_max_u32 v249, v249, v250')
        p('v_cmp_ne_u32 vcc, 0, v252')
        p('v_cmp_le_u32 s[100:101], s13, v249')
        p('s_or_b64 vcc, vcc, s[100:101]')
        p('s_cbranch_scc0 L_rx_ok')
        if SSLEEP: p(f's_sleep {SSLEEP}')
        p('s_sub_u32 s9, s9, 1')
        p('s_cmp_lg_u32 s9, 0')
        p('s_cbranch_scc1 L_rx')
        p('L_rx_ok:')
        dstamp(p, 9); dstamp(p, 10)
    elif SENT:
        p(f's_mov_b32 s9, {SPIN_MAX}')
        p('L_rx:')
        loads()
        n = nld * 4
        for k in range(nld):
            p(f's_waitcnt vmcnt({nld-1-k})')
            b_ = R + 4*k
            if k == 0:
                p(f'v_max3_u32 v252, v{b_}, v{b_+1}, v{b_+2}'); p(f'v_max_u32 v252, v252, v{b_+3}')
            else:
                p(f'v_max3_u32 v252, v252, v{b_}, v{b_+1}'); p(f'v_max3_u32 v252, v252, v{b_+2}, v{b_+3}')
        p('v_cmp_eq_u32 vcc, -1, v252')
        p('s_cbranch_vccz L_rx_ok')
        if SSLEEP: p(f's_sleep {SSLEEP}')
        p('s_sub_u32 s9, s9, 1')
        p('s_cmp_lg_u32 s9, 0')
        p('s_cbranch_scc1 L_rx')
        p('L_rx_ok:')
        dstamp(p, 9); dstamp(p, 10)
    else:
        if not (DEFER and FSPLIT < 2*DEFER):
            p('s_waitcnt vmcnt(0)')
            p('s_mov_b64 exec, 1')
            p(f'buffer_store_dwordx2 v[254:255], v253, s[52:55], s42 offen {FLAGF}')
        dstamp(p, 9)
        p('s_lshl_b32 s14, 1, s10'); p('s_xor_b32 s14, s14, 15'); p('s_mov_b32 s15, 0')
        if PSRC and not PF32:
            p('s_mov_b64 exec, s[14:15]')
            p(f'buffer_load_dwordx2 v[250:251], v248, s[52:55], s40 offen {POLLF}')
            p('s_waitcnt vmcnt(0)')
            p('v_cmp_gt_u64 vcc, s[96:97], v[250:251]')
            p('v_cmp_lt_u64 s[100:101], s[98:99], v[250:251]')
            p('s_mov_b64 exec, -1')
            p('s_or_b64 s[14:15], vcc, s[100:101]')
            def part(i, lbl, want):
                p(f's_xor_b32 s13, s10, {i}')
                p('s_bitcmp1_b32 s14, s13')
                p(f's_cbranch_scc{0 if want else 1} {lbl}')
                for k in (2*(i-1), 2*(i-1)+1):
                    p(f'buffer_load_dwordx4 {vr(R+4*k)}, v9, s[52:55], s{(39, 43, 48)[k//4]} offen offset:{(k%4)*1024} sc1')
                p(f'{lbl}:')
            for i in (1, 2, 3): part(i, f'L_e{i}', 0)
            p('s_cmp_eq_u32 s14, 0')
            p('s_cbranch_scc1 L_allin')
            poll_flags(p, 'L_pf2', 248, 250, 's40', 's[14:15]')
            for i in (1, 2, 3): part(i, f'L_l{i}', 1)
            p('L_allin:')
            dstamp(p, 10)
            p('s_waitcnt vmcnt(0)')
        else:
            poll_flags(p, 'L_pf2', 248, 250, 's40', 's[14:15]')
            dstamp(p, 10)
            loads()
    for i in range(3):
        if PF32:
            if not SENT: p(f's_waitcnt vmcnt({nld - 4*(i+1)})')
            for t in range(4):
                for r in range(4):
                    p(f'v_add_f32 v{A2(0,t)+r}, v{A2(0,t)+r}, v{R+16*i+4*t+r}')
        else:
            if not SENT and not TAGS: p(f's_waitcnt vmcnt({nld - 2*(i+1)})')
            for t in range(4):
                for r2 in range(2):
                    src = R + 8*i + 2*t + r2
                    if TAGS:
                        k = 2*t + r2; src = R + 12*i + 4*(k//3) + k%3
                    p(f'v_lshlrev_b32 v250, 16, v{src}')
                    p(f'v_and_b32 v251, 0xffff0000, v{src}')
                    p(f'v_add_f32 v{A2(0,t)+2*r2}, v{A2(0,t)+2*r2}, v250')
                    p(f'v_add_f32 v{A2(0,t)+2*r2+1}, v{A2(0,t)+2*r2+1}, v251')
    if WIDE:
        for v in range(2):
            a = A2(0, 2*v)
            for x in cvt4(a, a, A2(0, 2*v+1)): p(x)
            p(f'v_permlane16_swap_b32 v{a}, v{a+2}')
            p(f'v_permlane16_swap_b32 v{a+1}, v{a+3}')
            p(f'buffer_store_dwordx4 {vr(a)}, v7, s[44:47], s41 offen offset:{v*64} {OUTF}')
    else:
        for t in range(4):
            a = A2(0, t)
            p(f'v_cvt_pk_bf16_f32 v{a}, v{a}, v{a+1}')
            p(f'v_cvt_pk_bf16_f32 v{a+1}, v{a+2}, v{a+3}')
            p(f'buffer_store_dwordx2 {vr(a,2)}, v7, s[44:47], s41 offen offset:{t*32} {OUTF}')
    if STAMPS:
        p('s_waitcnt vmcnt(0)')
        dstamp(p, 11)
    p('L_cdone:')
    flush_stamps(p, 12, 0, 0, 'L_fsC')
    p('L_end:')
    p('s_endpgm')
    return p.finalize()


DOC = """; ---------------------------------------------------------------------------------------------
; ---------------------------------------------------------------------------------------------
"""

if __name__ == '__main__':
    out = HDR
    out += '; @launch grid=(256,1,1) block=(512,1,1) lds=163840\n'
    out += DOC
    out += '.amdgcn_target "amdgcn-amd-amdhsa--gfx950"\n.text\n'
    out += gen() + '\n'
    out += '.section .rodata,"a"\n' + kd(NAME + '_kernel', 256, 102)
    print(out)
```

```python
import sys, subprocess
N='concat_heads__gqa_block_cached__gqa_block_cached__near_ridge'
out, a_, b_ = sys.argv[1], int(sys.argv[2]), int(sys.argv[3])
s = subprocess.run(['python', 'kfull.py', '--stamps'] + sys.argv[4:], capture_output=True, text=True, check=True).stdout
k2 = f'''
.globl wait_kernel
.p2align 8
.type wait_kernel,@function
wait_kernel:
    s_cmp_ge_u32 s2, 1
    s_cbranch_scc1 LW_end
    s_load_dwordx2 s[4:5], s[0:1], 96
    s_waitcnt lgkmcnt(0)
    s_add_u32 s4, s4, {0xF000000}
    s_addc_u32 s5, s5, 0
    s_load_dword s6, s[4:5], 0
    s_mov_b32 s12, 0
    s_mov_b32 s13, 60
LW_scan:
    s_load_dword s16, s[4:5], {8*a_}
    s_load_dword s17, s[4:5], {8*b_}
    s_load_dword s18, s[4:5], {256+8*a_}
    s_load_dword s19, s[4:5], {256+8*b_}
    s_load_dword s20, s[4:5], {512+8*a_}
    s_load_dword s21, s[4:5], {512+8*b_}
    s_load_dword s22, s[4:5], {768+8*a_}
    s_load_dword s23, s[4:5], {768+8*b_}
    s_waitcnt lgkmcnt(0)
    s_sub_u32 s17, s17, s16
    s_sub_u32 s19, s19, s18
    s_sub_u32 s21, s21, s20
    s_sub_u32 s23, s23, s22
    s_max_u32 s12, s12, s17
    s_max_u32 s12, s12, s19
    s_max_u32 s12, s12, s21
    s_max_u32 s12, s12, s23
    s_add_u32 s4, s4, 1024
    s_addc_u32 s5, s5, 0
    s_sub_u32 s13, s13, 1
    s_cmp_lg_u32 s13, 0
    s_cbranch_scc1 LW_scan
    s_mov_b32 s10, 200000
    s_min_u32 s12, s12, 3000
    s_mul_i32 s12, s12, 10
    s_add_u32 s12, s12, 4000
LW_loop:
    s_memrealtime s[8:9]
    s_waitcnt lgkmcnt(0)
    s_sub_u32 s8, s8, s6
    s_cmp_ge_u32 s8, s12
    s_cbranch_scc1 LW_end
    s_sub_u32 s10, s10, 1
    s_cmp_lg_u32 s10, 0
    s_cbranch_scc1 LW_loop
LW_end:
    s_endpgm
'''
w = open('fw6000.s').read()
kd = w[w.index('.p2align 6\n.amdhsa_kernel wait_kernel'):].replace('next_free_sgpr 16', 'next_free_sgpr 32')
l = f'; @launch kernel={N}_kernel grid=(256,1,1) block=(512,1,1) lds=163840\n; @launch kernel=wait_kernel grid=(1,1,1) block=(64,1,1) lds=0\n'
old = '; @launch grid=(256,1,1) block=(512,1,1) lds=163840\n'
open(f'cdna_kernels/{out}.s', 'w').write(s.replace(old, l).replace('.section .rodata,"a"', k2 + '.section .rodata,"a"') + kd)
```

```python
from common import *
from asmlib import auto_lgkm as _al
CAP = opt('cap', 8)
def auto_lgkm(l, pnd=None): return _al(l, pnd, CAP)
XFL = opt('xfl', 'none').replace('none', '')
WFL2 = opt('wfl2', 'none').replace('none', '')
OFL = opt('ofl', 'sc1').replace('none', '').replace('_', ' ')
ORFL = opt('orfl', 'sc1').replace('none', '').replace('_', ' ')
LAG = opt('lag', 7)
PATA = opt('pata', 's0 s1 s2 s3 K1 s4 s5 Kb ka s6 s7 v0 s8 s9 v1 Wa Wb').replace('_', ' ')
PATB = opt('patb', 's0 s1 s2 s3 K1 s4 s5 Kb ka s6 s7 v0 s8 s9 v1 Wa Wb').replace('_', ' ')
PATSEL = opt('patsel', 6)
if opt('sent', 0) == 3 and 'Z' not in PATA: PATA += ' Z'; PATB += ' Z'
NA = opt('na', 5)
PF32 = opt('pf32', 0)
LPRIO = opt('lprio', 0)
B11 = opt('b11', 0)
PSRC = opt('psrc', 0)
VW = opt('vw', 0)
ORH = opt('orh', 0)
WGF = opt('wgf', 0)
OUTF = opt('outf', 'none').replace('none', '').replace('_', ' ')
WIDE = opt('wide', 0)
FWARM = opt('fwarm', 3)
DEFER = opt('defer', 4)
FSPLIT = opt('fsplit', 8)
POLLF = opt('pollf', 'sc1').replace('_', ' ')
FLAGF = opt('flagf', 'sc1').replace('_', ' ')
PUB = opt('pub', 1)
assert opt('half', 1) or not opt('wgf', 0)
assert not (opt('early', 0) and opt('lowd', 2) != 3)
WLAG = opt('wlag', 10)
ORC = opt('orc', 0)
PK = opt('pk', 0)
LOWD = opt('lowd', 2)
EARLY = opt('early', 0)
LAG0 = opt('lag0', 7)
LAGE = opt('lage', 5)
SNAKE = opt('snake', 1)
NAT = opt('nat', 5)
BURST = opt('burst', 0)
PER1 = opt('per1', 1)
XNOP = opt('xnop', 0)
HALF = opt('half', 1)
FAPOS = opt('fapos', 1)
SENT = opt('sent', 0)
SSLEEP = opt('ssleep', 1)
PFS = opt('pfs', 0)
PF0 = opt('pf0', 0)
PFN = opt('pfn', 10)
FAKEWO = opt('fakewo', 0)
NOPOLL = opt('nopoll', 0)
FASTP = opt('fastp', 0)
WOFL = opt('wofl', 'none').replace('none', '')
WOFL2 = opt('wofl2', 'none').replace('none', '')
PFL = opt('pfl', 'sc1').replace('_', ' ')
CPF2 = opt('cpf2', 6)
CPF4 = opt('cpf4', -9)
RPF = opt('rpf', 0)
PEEL = opt('peel', 0)
SOFFS = opt('soffs', 1)
WOA = opt('woa', 0)
WOB = opt('wob', 0)
ROT2 = opt('rot2', 0)
CPF = opt('cpf', 0)
ROT = opt('rot', 1)
RB = opt('rb', '0358')
RH = opt('rh', '03603603')
RK = opt('rk', '0120')
OEARLY = opt('oearly', 1)
KVFL = opt('kvfl', 'nt').replace('none', '')
TICKET = opt('ticket', 0)
CFL = opt('cfl', 'none').replace('none', '')
PSLEEP = opt('psleep', 2)
XS, WS_, SP = 0, 73728, 122880
KB0 = SP - 8192; KB1 = KB0 + 24576
VB0 = XS + 2*24576; VB1 = XS
NWS = opt('nws', 6); NOS = opt('nos', 4)
CPF3 = opt('cpf3', 8)
UNR = opt('unr', 1)
DIAG = opt('diag', 1)
NB2 = opt('nb2', 4)
O_L = 0; WO_L = NOS * 16384
NE = opt('ne', 0); N1 = opt('n1', 6); N2 = opt('n2', 0); LAG2 = opt('lag2', 16)
FS1 = opt('fs1', 3); FS2 = opt('fs2', 7)
FBO = 1024 if FS1 == 3 else 8
GST = 1572864 + 28672
O_OFF = 4096; F1_OFF = O_OFF + 1572864; GT_OFF = F1_OFF + 20480
INBOX = 16 << 20
TAGS = opt('tags', 0)
SZ = 4096 if PF32 else (3072 if TAGS else 2048)
assert not (TAGS and (PF32 or opt('sent', 0)))
RST = 48 * SZ + 4096
I_OFF = 1024; F2_OFF = I_OFF + 48 * SZ; RT_OFF = F2_OFF + 2048
WS_SIZE = 48 << 20
TOUCH = opt('touch', 0)
MF = 'v_mfma_f32_16x16x32_bf16'
SPIN_MAX = 1 << 24

def dstamp(p, k):
    if STAMPS: p(f'{"s_memtime" if CLK else "s_memrealtime"} s[{72+2*k}:{73+2*k}]')
def flush_stamps(p, n, base_idx, wave, lbl):
    if not STAMPS: return
    p(f's_cmp_lg_u32 s3, {wave}'); p(f's_cbranch_scc1 {lbl}')
    p('s_waitcnt lgkmcnt(0) vmcnt(0)')
    p('v_mov_b32 v1, 0')
    p('s_mov_b64 exec, 1')
    for k in range(n):
        p(f'v_mov_b32 v{4+2*k}, s{72+2*k}'); p(f'v_mov_b32 v{5+2*k}, s{73+2*k}')
        p(f'buffer_store_dwordx2 v[{4+2*k}:{5+2*k}], v1, s[56:59], s60 offen offset:{(base_idx+k)*8}')
    p('s_waitcnt vmcnt(0)')
    p(f'{lbl}:')
def poll_flags(p, lbl, vaddr, vtmp, soff, maskreg):
    p(f's_mov_b32 s9, {SPIN_MAX}')
    p(f's_mov_b64 exec, {maskreg}')
    p(f'{lbl}:')
    p(f'buffer_load_dwordx2 v[{vtmp}:{vtmp+1}], v{vaddr}, s[52:55], {soff} offen {POLLF}')
    p('s_waitcnt vmcnt(0)')
    p(f'v_cmp_gt_u64 vcc, s[96:97], v[{vtmp}:{vtmp+1}]')
    p(f'v_cmp_lt_u64 s[100:101], s[98:99], v[{vtmp}:{vtmp+1}]')
    p('s_or_b64 vcc, vcc, s[100:101]')
    p(f's_cbranch_scc0 {lbl}_ok')
    p(f's_sleep {PSLEEP}')
    p('s_sub_u32 s9, s9, 1')
    p('s_and_b32 s100, s9, 127')
    p(f's_cbranch_scc1 {lbl}')
    p('s_lshl_b32 s100, s6, 7')
    p('s_load_dwordx2 s[100:101], s[34:35], s100 glc')
    p('s_waitcnt lgkmcnt(0)')
    p('s_cmp_eq_u64 s[100:101], 0')
    p(f's_cbranch_scc1 {lbl}_nz')
    p('s_not_b64 s[96:97], s[100:101]')
    p(f'{lbl}_nz:')
    p('s_cmp_lg_u32 s9, 0')
    p(f's_cbranch_scc1 {lbl}')
    p(f'{lbl}_ok:')
    p('s_mov_b64 exec, -1')

def cvt4(d, a0, a1):
    return [f'v_cvt_pk_bf16_f32 v{d}, v{a0}, v{a0+1}', f'v_cvt_pk_bf16_f32 v{d+1}, v{a0+2}, v{a0+3}',
            f'v_cvt_pk_bf16_f32 v{d+2}, v{a1}, v{a1+1}', f'v_cvt_pk_bf16_f32 v{d+3}, v{a1+2}, v{a1+3}']
def spread(main, fill, extra=(), per=1):
    out = []; fi = 0; ei = 0
    for m in main:
        out.append(m)
        for _ in range(per):
            if fi < len(fill): out.append(fill[fi]); fi += 1
        if ei < len(extra): out.append(extra[ei]); ei += 1
    return out + list(fill[fi:]) + list(extra[ei:])

def p2_ids(p):
    p('s_mul_i32 s66, s5, 52'); p('s_lshr_b32 s66, s66, 8')
    p('s_mul_i32 s67, s66, 5'); p('s_sub_u32 s67, s5, s67')
    p('s_and_b32 s10, s4, 3')

def gen():
    p = Prog()
    K1 = NAME + '_kernel'
    p(f'.globl {K1}\n.p2align 8\n.type {K1},@function\n{K1}:')
    p('s_cmp_ge_u32 s2, 256')
    p('s_cbranch_scc1 L_end')
    p('s_load_dwordx8 s[16:23], s[0:1], 0')
    p('s_memrealtime s[96:97]')
    p('s_load_dwordx8 s[24:31], s[0:1], 40')
    p('s_load_dwordx4 s[32:35], s[0:1], 88')
    dstamp(p, 0)
    p('v_lshrrev_b32 v1, 6, v0')
    p('v_and_b32 v2, 63, v0')
    p('v_readfirstlane_b32 s3, v1')
    if TICKET:
        p('v_mov_b32 v5, 0')
        p('s_cmp_lg_u32 s3, 0')
        p('s_cbranch_scc1 L_tk_wait')
        p('s_getreg_b32 s4, hwreg(HW_REG_XCC_ID)')
        p('s_and_b32 s4, s4, 7')
        p('s_waitcnt lgkmcnt(0)')
        p('L_tk_try:')
        p('s_lshl_b32 s5, s4, 5')
        p('s_add_u32 s5, s5, 16')
        p('s_mov_b32 s6, 1')
        p('s_atomic_add s6, s[32:33], s5 glc')
        p('s_waitcnt lgkmcnt(0)')
        p('s_cmp_lt_u32 s6, 32')
        p('s_cbranch_scc1 L_tk_ok')
        p('s_add_u32 s4, s4, 1')
        p('s_and_b32 s4, s4, 7')
        p('s_branch L_tk_try')
        p('L_tk_ok:')
        p('s_lshl_b32 s6, s6, 3')
        p('s_add_u32 s6, s6, s4')
        p('v_mov_b32 v6, s6')
        p('ds_write_b32 v5, v6')
        p('s_waitcnt lgkmcnt(0)')
        p('L_tk_wait:')
        p('s_barrier')
        p('ds_read_b32 v6, v5')
        p('s_waitcnt lgkmcnt(0)')
        p('v_readfirstlane_b32 s2, v6')
        p('s_barrier')
        p('s_and_b32 s2, s2, 255')
    p('s_and_b32 s4, s2, 7')
    p('s_lshr_b32 s5, s2, 3')
    p('s_lshr_b32 s6, s4, 2')
    p('s_and_b32 s7, s4, 3')
    p('s_lshl_b32 s7, s7, 3')
    p('s_and_b32 s66, s5, 7')
    p('s_add_u32 s7, s7, s66')
    p('s_lshr_b32 s8, s5, 3')
    p('v_lshrrev_b32 v3, 4, v2')
    p('v_and_b32 v4, 15, v2')
    p('s_cmp_lt_u32 s3, 4')
    p('s_cbranch_scc1 L_compute')
    if LPRIO: p(f's_setprio {LPRIO}')
    p('s_and_b32 s11, s3, 3')
    p('v_lshrrev_b32 v5, 3, v2')
    p('s_lshl_b32 s12, s11, 3')
    p('v_add_u32 v5, s12, v5')
    p('v_mul_u32_u24 v5, 1280, v5')
    p('s_and_b32 s12, s11, 1')
    p('s_lshl_b32 s12, s12, 2')
    p('v_add_u32 v6, s12, v3')
    p('v_and_b32 v7, 7, v2')
    p('v_xor_b32 v7, v7, v6')
    p('v_lshl_add_u32 v11, v7, 4, v5')
    p('v_lshlrev_b32 v6, 1, v6')
    p('v_xor_b32 v8, v6, v4')
    p('s_lshl_b32 s12, s11, 2')
    p('v_add_u32 v5, s12, v3')
    p('s_lshr_b32 s12, s11, 1')
    p('s_lshl_b32 s12, s12, 2')
    p('v_add_u32 v6, s12, v3')
    p('v_lshlrev_b32 v6, 1, v6')
    p('v_xor_b32 v6, v6, v4')
    p('v_lshlrev_b32 v7, 13, v5')
    p('v_lshl_add_u32 v12, v6, 4, v7')
    p('s_lshl_b32 s13, s11, 10')
    tb = sum(int(c) << (4*i) for i, c in enumerate(RB)); th = sum(int(c) << (4*i) for i, c in enumerate(RH))
    p('s_lshl_b32 s69, s8, 2'); p(f's_lshr_b32 s69, {tb:#x}, s69'); p('s_and_b32 s69, s69, 15')
    p('s_lshl_b32 s70, s66, 2'); p(f's_lshr_b32 s70, {th:#x}, s70'); p('s_and_b32 s70, s70, 15')
    p('s_add_u32 s69, s69, s70')
    p('s_cmp_ge_u32 s69, 10'); p('s_cselect_b32 s71, 10, 0'); p('s_sub_u32 s69, s69, s71')
    if RK != '0000':
        tk = sum(int(c) << (4*i) for i, c in enumerate(RK))
        p('s_and_b32 s70, s4, 3'); p('s_lshl_b32 s70, s70, 2'); p(f's_lshr_b32 s70, {tk:#x}, s70'); p('s_and_b32 s70, s70, 15')
        p('s_add_u32 s69, s69, s70')
        p('s_cmp_ge_u32 s69, 10'); p('s_cselect_b32 s71, 10, 0'); p('s_sub_u32 s69, s69, s71')
    p('s_mul_i32 s9, s8, 245760')
    p('s_lshl_b32 s10, s7, 8')
    p('s_waitcnt lgkmcnt(0)')
    p('s_cmp_eq_u32 s6, 0')
    for i in range(4):
        p(f's_cselect_b64 s[{16+2*i}:{17+2*i}], s[{16+2*i}:{17+2*i}], s[{24+2*i}:{25+2*i}]')
    p('s_add_u32 s36, s16, s9'); p('s_addc_u32 s37, s17, 0')
    p('s_mov_b32 s38, 245760'); p('s_mov_b32 s39, 0x20000')
    p('s_add_u32 s40, s22, s10'); p('s_addc_u32 s41, s23, 0')
    p('s_sub_u32 s42, 5242880, s10'); p('s_mov_b32 s43, 0x20000')
    def late_setup(p):
        p('v_lshlrev_b32 v7, 8, v5')
        p('v_lshl_add_u32 v13, v8, 4, v7')
        p('v_xor_b32 v6, v4, v5')
        p('v_lshl_add_u32 v10, v6, 4, v7')
        p('s_lshl_b32 s12, s8, 6'); p('s_add_u32 s12, s12, s7'); p('s_mul_i32 s12, s12, 24576')
        p('s_add_u32 s44, s18, s12'); p('s_addc_u32 s45, s19, 0')
        p(f's_mov_b32 s46, {786432+24576}'); p('s_mov_b32 s47, 0x20000')
        p('s_add_u32 s48, s20, s12'); p('s_addc_u32 s49, s21, 0')
        p(f's_mov_b32 s50, {786432+24576}'); p('s_mov_b32 s51, 0x20000')
        p(f's_load_dwordx2 s[16:17], s[0:1], {0 if FAKEWO else 32}')
        p(f's_load_dwordx2 s[18:19], s[0:1], {40 if FAKEWO else 72}')
        srd(p, 52, 34, 35, WS_SIZE)
        p('s_mov_b32 s98, s96'); p('s_add_u32 s99, s97, 1')
        stamp_setup(p, 34, 35)
        p('s_mov_b64 s[34:35], s[32:33]')
        if CPF2 >= 0:
            p('s_getpc_b64 s[22:23]')
            p('L_pc2:')
            p('s_lshl_b32 s9, s5, 2'); p('s_add_u32 s9, s9, s11'); p('s_lshl_b32 s9, s9, 8')
            p(f's_min_u32 s9, s9, L_end-L_ld2-192')
            p(f's_add_u32 s9, s9, L_ld2-L_pc2')
            p('s_add_u32 s22, s22, s9'); p('s_addc_u32 s23, s23, 0')
        p('s_not_b64 s[20:21], s[96:97]')
        p('s_lshl_b32 s67, s6, 7')
        p('s_lshl_b32 s68, s11, 3')
        if PUB == 1: p('s_add_u32 s68, s68, s66')

    afterV = []
    def loader(pat, tag):
        p = Prog()
        stream = []
        for w in pat.split():
            if w[0] == 's': stream += [('x' + w[1:], m) for m in range(6)] + [('w' + w[1:], m) for m in range(4)]
            elif w[0] in 'xw': stream += [(w, m) for m in range(6 if w[0] == 'x' else 4)]
            elif w == 'ka': stream += [('k0', m) for m in range(2)]
            elif w == 'Z': stream += [('Z0', m) for m in range(3 * SZ // 1024)]
            elif w == 'Wa': stream += [('W0', m) for m in range(5)]
            elif w == 'Wb': stream += [('W0', m) for m in range(5, 10)]
            elif w == 'Ka': stream += [('K0', m) for m in range(2)]
            elif w == 'Kb': stream += [('K0', m) for m in range(2, 6)]
            else: stream += [(w, m) for m in range(6)]
        n = len(stream)
        end = {}
        for i, (it, m) in enumerate(stream):
            if it[0] in 'xw': end[int(it[1:])] = i + 1
        staged = [(i, it, m) for i, (it, m) in enumerate(stream) if it[0] in 'kv']
        end[10] = max(max(i for i, (it, m) in enumerate(stream) if it[0] in 'Kk') + 1, end[9])
        endst = max([x[0] + 1 for x in staged] + [end[9]])
        end[11] = max(max(i for i, (it, m) in enumerate(stream) if it[0] in 'Vv') + 1, end[10])
        lastV = end[11]
        def need(it, m):
            if it[0] in 'xw': return int(it[1:]) - 3
            if it == 'K0': return 7 if m < 2 else -9
            if it in ('K1', 'W0', 'Z0', 'k0', 'v0', 'v1'): return -9
            return 7 if it == 'V0' else 8
        bpos = {}; prev = 0
        for s in range(-1, 11):
            pos = min(end[s+1] + (LAG0 if s == -1 else LAG), n)
            if s == 9: pos = max(pos, min(lastV, n))
            if staged and s in (8, 9):
                fd = min([i for i, (it, m) in enumerate(stream) if i >= endst and it[0] in 'xwKV'] + [n])
                pos = min(min(end[9] + LAG, n), fd) if s == 8 else min(endst + WLAG, n, fd)
            if staged and s == 10 and all(it[0] not in 'V' for it, m in stream): pos = n
            first_needing = min([i for i, (it, m) in enumerate(stream) if need(it, m) >= s and need(it, m) >= 0] + [n])
            pos = min(pos, first_needing)
            assert pos >= end[s+1], (s, pos, end[s+1])
            pos = max(pos, prev); bpos[s] = pos; prev = pos
        passed = [-2]
        def pf(s):
            if not PFS or s < PF0 or s >= PF0 + PFN: return
            tot = 10240 // PFS
            k = s - PF0
            for i in range(k * tot // PFN, (k + 1) * tot // PFN):
                p(f's_load_dword s28, s[26:27], {i*PFS}')
        def barrier(s, issued):
            if PFS and s == -1:
                p('s_waitcnt lgkmcnt(0)')
                p('s_cmp_eq_u32 s6, 0')
                p('s_cselect_b64 s[26:27], s[16:17], s[18:19]')
                p('s_and_b32 s9, s4, 3'); p('s_lshl_b32 s9, s9, 5'); p('s_add_u32 s9, s9, s5'); p('s_lshl_b32 s9, s9, 2'); p('s_add_u32 s9, s9, s11')
                p('s_mul_i32 s9, s9, 10240')
                p('s_add_u32 s26, s26, s9'); p('s_addc_u32 s27, s27, 0')
            pf(s)
            p(f's_waitcnt vmcnt({issued - end[s+1]})')
            def wr_(kinds):
                for k_, (i_, it_, m_) in enumerate(staged):
                    if it_ not in kinds: continue
                    ad = {'k0': KB0, 'v0': VB0, 'v1': VB1}[it_] + m_*4096
                    p(f'ds_write_b128 v{15 + (ad >> 16)}, {vr(32+4*k_)} offset:{ad & 0xffff}')
            if s == 9 and staged:
                p('v_lshl_add_u32 v15, v2, 4, s13')
                p('v_add_u32 v16, 0x10000, v15')
                if VW != 2: wr_(('k0', 'v0') if VW == 1 else ('k0',))
                p('s_waitcnt lgkmcnt(0)')
            if (s == 10 and staged) or (s == 9 and not staged): p('s_waitcnt lgkmcnt(0)')
            if s == 10: dstamp(p, 5)
            p(f's_barrier      ; B_{s}')
            passed[0] = s
            if (PUB == 0 and s == 1) or (PUB == 1 and -1 <= s <= 6):
                p(f's_cmp_lg_u32 s68, {s+1 if PUB == 1 else 0}')
                p(f's_cbranch_scc1 L_nopub{tag}{s+1}')
                p('s_atomic_umax_x2 s[20:21], s[34:35], s67 glc')
                p(f'L_nopub{tag}{s+1}:')
            if s == 8 and staged and VW == 2:
                p('v_lshl_add_u32 v15, v2, 4, s13')
                p('v_add_u32 v16, 0x10000, v15')
                wr_(('k0', 'v0'))
            if s == 9 and staged:
                assert issued >= endst
                p(f's_waitcnt vmcnt({issued - endst})')
                wr_(('v1',) if VW else ('v0', 'v1'))
            if s == CPF2 or s == CPF4:
                p('s_load_dword s24, s[22:23], 0x0'); p('s_load_dword s25, s[22:23], 0x40'); p('s_load_dword s24, s[22:23], 0x80'); p('s_load_dword s25, s[22:23], 0xc0')
            if s in (-1, 2, 5, 8): dstamp(p, 1 + (s+1)//3)
        last_item = None
        for i, (it, m) in enumerate(stream):
            if i == 10: late_setup(p)
            if EARLY and i == 8 + LAGE:
                assert stream[7] == ('w0', 1) and i <= bpos[-1]
                p(f's_waitcnt vmcnt({LAGE})')
                p('s_barrier      ; B_-2')
            for s in range(-1, 11):
                if bpos[s] == i and passed[0] < s: barrier(s, i)
            assert need(it, m) <= passed[0] or need(it, m) < 0
            if it[0] in 'xw':
                t = int(it[1:]); slot = (t + 1) % 3
                if it != last_item:
                    p(f's_add_u32 s70, s69, {t}')
                    p('s_cmp_ge_u32 s70, 10'); p('s_cselect_b32 s71, 10, 0'); p('s_sub_u32 s70, s70, s71')
                    p(f's_lshl_b32 s64, s70, {7 if it[0]=="x" else 19}')
                if it[0] == 'x':
                    p(f's_add_u32 m0, s13, {XS + slot*24576 + m*4096}')
                    p(f's_add_u32 s14, s64, {m*40960}')
                    p(f'buffer_load_dwordx4 v11, s[36:39], s14 offen {XFL} lds')
                else:
                    p(f's_add_u32 m0, s13, {WS_ + slot*16384 + m*4096}')
                    p(f's_add_u32 s14, s64, {m*131072}')
                    p(f'buffer_load_dwordx4 v12, s[40:43], s14 offen {CFL if t < 3 else WFL2} lds')
            elif it[0] in 'kv':
                b = int(it[1]); k_ = [x[0] for x in staged].index(i)
                vo, sr = (10, 44) if it[0] == 'k' else (13, 48)
                p(f's_mov_b32 s14, {b*786432 + m*4096}')
                p(f'buffer_load_dwordx4 {vr(32+4*k_)}, v{vo}, s[{sr}:{sr+3}], s14 offen {KVFL}')
            elif it == 'Z0':
                if m == 0:
                    p('s_and_b32 s10, s4, 3')
                    p('s_lshl_b32 s61, s6, 5'); p('s_add_u32 s61, s61, s5'); p(f's_mul_i32 s61, s61, {RST}'); p(f's_add_u32 s61, s61, {INBOX}')
                    p('s_lshl_b32 s9, s10, 2'); p('s_add_u32 s9, s9, s11'); p(f's_mul_i32 s9, s9, {3*SZ}'); p('s_add_u32 s9, s9, s61')
                    p('v_lshlrev_b32 v15, 4, v2')
                    for i_ in range(4): p(f'v_mov_b32 v{24+i_}, -1')
                p(f's_add_u32 s14, s9, {I_OFF + m*1024}')
                p('buffer_store_dwordx4 v[24:27], v15, s[52:55], s14 offen sc1')
            elif it == 'W0':
                if m in (0, 5):
                    p('s_waitcnt lgkmcnt(0)')
                    p('s_cmp_eq_u32 s6, 0')
                    p('s_cselect_b64 s[28:29], s[16:17], s[18:19]')
                    p('s_mov_b32 s30, 5242880'); p('s_mov_b32 s31, 0x20000')
                    p('s_and_b32 s9, s4, 3'); p('s_lshl_b32 s9, s9, 5'); p('s_add_u32 s9, s9, s5'); p('s_mul_i32 s9, s9, 40960')
                    p('v_lshl_add_u32 v15, v2, 4, s13')
                p(f's_add_u32 s14, s9, {m*4096}')
                p('buffer_load_dwordx4 v[20:23], v15, s[28:31], s14 offen')
            else:
                b = int(it[1])
                addr = {'K0': KB0, 'K1': KB1, 'V0': VB0, 'V1': VB1}[it] + m*4096
                vo, sr = (10, 44) if it[0] == 'K' else (13, 48)
                p(f's_add_u32 m0, s13, {addr}')
                p(f's_mov_b32 s14, {b*786432 + m*4096}')
                p(f'buffer_load_dwordx4 v{vo}, s[{sr}:{sr+3}], s14 offen {KVFL} lds')
            last_item = it
        for s in range(-1, 11):
            if passed[0] < s: barrier(s, n)
        return p.lines
    la = loader(PATA, 'A'); lb = loader(PATB, 'B')
    k = 0
    while k < min(len(la), len(lb)) and la[k].replace('nopubA', 'nopub') == lb[k].replace('nopubB', 'nopub'): k += 1
    while k < len(la) and not la[k-1].startswith('buffer_load'): k -= 1
    for x in la[:k]: p(x)
    if k < len(la) or k < len(lb):
        p(f's_bitcmp1_b32 s2, {PATSEL}')
        p('s_cbranch_scc1 L_patB')
        for x in la[k:]: p(x)
        p('s_branch L_ld2')
        p('L_patB:')
        for x in lb[k:]: p(x)
    p('L_ld2:')
    def wgflag(off, lbl):
        p('s_cmp_lg_u32 s3, 5')
        p(f's_cbranch_scc1 {lbl}')
        p('s_mov_b64 exec, 1')
        p(f'buffer_store_dwordx2 v[28:29], v30, s[52:55], s68 offen offset:{off} {FLAGF}')
        p('s_mov_b64 exec, -1')
        p(f'{lbl}:')
    if WGF:
        p('s_memrealtime s[24:25]')
        p(f's_lshl_b32 s68, s5, {FS1}'); p(f's_mul_i32 s9, s4, {GST}'); p('s_add_u32 s68, s68, s9'); p(f's_add_u32 s68, s68, {F1_OFF}')
        p('v_mov_b32 v30, 0')
        p('s_waitcnt lgkmcnt(0)')
        p('v_mov_b32 v28, s24'); p('v_mov_b32 v29, s25')
    p('s_cmp_ge_u32 s5, 30')
    p('s_cbranch_scc1 L_ld_idle')
    p2_ids(p)
    p('s_waitcnt lgkmcnt(0)')
    p('s_cmp_eq_u32 s6, 0')
    p('s_cselect_b64 s[16:17], s[16:17], s[18:19]')
    p(f's_mul_i32 s9, s10, {0 if FAKEWO else 1310720}')
    p('s_lshl_b32 s12, s67, 8')
    p('s_add_u32 s9, s9, s12')
    p('s_add_u32 s36, s16, s9'); p('s_addc_u32 s37, s17, 0')
    p(f's_sub_u32 s38, {983040 if FAKEWO else 1310720}, s12'); p('s_mov_b32 s39, 0x20000')
    p('v_mul_u32_u24 v7, 1280, v5')
    p('v_lshl_add_u32 v12, v8, 4, v7')
    p('v_lshl_add_u32 v11, v2, 4, s13')
    p('s_mul_i32 s69, s66, 43'); p('s_lshr_b32 s69, s69, 4')
    p(f's_mul_i32 s70, s67, {ROT2}'); p('s_add_u32 s69, s69, s70'); p(f's_and_b32 s69, s69, {14 if HALF else 15}')
    p(f's_mul_i32 s65, s4, {GST}')
    p('s_lshl_b32 s12, s66, 13'); p('s_add_u32 s65, s65, s12'); p(f's_add_u32 s65, s65, {O_OFF}')
    p('s_mul_i32 s70, s69, 81920')
    p('s_mul_i32 s71, s69, 98304')
    p('s_add_u32 s71, s71, s65')
    p(f's_add_u32 s63, s65, {16*98304}')
    cnt = [0]
    endo = {}; endw = {}
    def wo_issue(k):
        fl = WOFL if k < 3 else WOFL2
        for m in range(4):
            p(f's_add_u32 m0, s13, {WO_L + ((k + 1) % NWS)*16384 + m*4096}')
            p(f's_add_u32 s14, s70, {m*20480}')
            p(f'buffer_load_dwordx4 v12, s[36:39], s14 offen {fl} lds')
        if HALF:
            p(f's_add_u32 s70, s70, {2*81920}')
            p(f's_cmp_ge_u32 s70, {16*81920}')
            p(f's_cselect_b32 s12, {16*81920}, 0'); p('s_sub_u32 s70, s70, s12')
            if k == 7: p('s_add_u32 s70, s70, 81920')
        else:
            p('s_add_u32 s70, s70, 81920')
            p(f's_cmp_eq_u32 s70, {16*81920}')
            p('s_cselect_b32 s70, 0, s70')
        cnt[0] += 4; endw[k] = cnt[0]
    def o_issue(k):
        if HALF and k == 8:
            p(f's_waitcnt vmcnt({cnt[0] - endo["f"]})')
            p('s_mov_b64 exec, s[20:21]')
            p('v_cmp_gt_u64 vcc, s[96:97], v[16:17]')
            p('v_cmp_lt_u64 s[100:101], s[98:99], v[16:17]')
            p('s_mov_b64 exec, -1')
            p('s_or_b64 vcc, vcc, s[100:101]')
            p('s_cbranch_scc0 L_fb_ok')
            p(f's_add_u32 s15, s15, {FBO}')
            poll_flags(p, 'L_pf1b', 14, 16, 's15', 's[20:21]')
            p('L_fb_ok:')
        for m in range(4):
            p(f's_add_u32 m0, s13, {O_L + (k % NOS)*16384 + m*4096}')
            p(f's_add_u32 s14, s71, {(0, 4096, 49152, 53248)[m]}')
            p(f'buffer_load_dwordx4 v11, s[52:55], s14 offen {ORFL} lds')
        if HALF:
            p(f's_add_u32 s71, s71, {2*98304}')
            p('s_cmp_ge_u32 s71, s63')
            p(f's_cselect_b32 s12, {16*98304}, 0'); p('s_sub_u32 s71, s71, s12')
            if k == 7: p('s_add_u32 s71, s71, 98304')
        else:
            p('s_add_u32 s71, s71, 98304')
            p('s_cmp_eq_u32 s71, s63')
            p('s_cselect_b32 s71, s65, s71')
        cnt[0] += 4; endo[k] = cnt[0]
        if HALF and k == 5:
            p('s_mov_b64 exec, s[20:21]')
            p(f'buffer_load_dwordx2 v[16:17], v14, s[52:55], s15 offen offset:{FBO} sc1')
            p('s_mov_b64 exec, -1')
            cnt[0] += 1; endo['f'] = cnt[0]
    if WGF:
        p('s_mul_i32 s12, s66, 43'); p('s_lshr_b32 s12, s12, 6'); p(f's_lshl_b32 s12, s12, {FS1+3}')
    else:
        p('s_mul_i32 s12, s66, 171'); p('s_lshr_b32 s12, s12, 6'); p(f's_lshl_b32 s12, s12, {FS1+3}')
    p(f's_mul_i32 s14, s4, {GST}'); p('s_add_u32 s12, s12, s14'); p(f's_add_u32 s15, s12, {F1_OFF}')
    if WGF:
        p('s_movk_i32 s21, 0xff')
        p('s_cmp_eq_u32 s66, 1'); p('s_cselect_b32 s20, 0xffff, s21')
        p('s_cmp_eq_u32 s66, 4'); p('s_cselect_b32 s20, 0xffff, s20'); p('s_mov_b32 s21, 0')
    else:
        p('s_cmp_eq_u32 s66, 1'); p('s_cselect_b32 s20, -1, 0xffffff')
        p('s_cmp_eq_u32 s66, 4'); p('s_cselect_b32 s20, -1, s20'); p('s_mov_b32 s21, 0')
    p(f'v_lshlrev_b32 v14, {FS1}, v2')
    if SENT == 3:
        p('s_memrealtime s[24:25]')
        p('s_lshl_b32 s9, s11, 7'); p('s_add_u32 s9, s9, s61'); p('s_lshl_b32 s14, s10, 3'); p('s_add_u32 s9, s9, s14'); p(f's_add_u32 s9, s9, {F2_OFF}')
        p('v_mov_b32 v30, 0')
        p('s_waitcnt vmcnt(0) lgkmcnt(0)')
        p('v_mov_b32 v28, s24'); p('v_mov_b32 v29, s25')
        p('s_mov_b64 exec, 1')
        p('buffer_store_dwordx2 v[28:29], v30, s[52:55], s9 offen sc1')
        p('s_mov_b64 exec, -1')
    nw = 0
    assert UNR and NE <= NWS - 1 and WO_L + 16384 >= VB0 + 24576
    for _ in range(NE): wo_issue(nw); nw += 1
    if WGF:
        p('s_barrier')
        wgflag(0, 'L_wfa')
    if RPF and DEFER:
        p('s_getpc_b64 s[26:27]')
        p('L_pc5:')
        p('s_lshl_b32 s9, s5, 2'); p('s_add_u32 s9, s9, s11'); p('s_and_b32 s9, s9, 7'); p('s_lshl_b32 s9, s9, 6')
        p('s_add_u32 s9, s9, L_act-L_pc5')
        p('s_add_u32 s26, s26, s9'); p('s_addc_u32 s27, s27, 0')
        for j in range(RPF): p(f's_load_dword s24, s[26:27], {j*512}')
    p('s_barrier')
    for _ in range(N1 - NE): wo_issue(nw); nw += 1
    if not HALF or B11: p('s_barrier')
    for _ in range(N2): wo_issue(nw); nw += 1
    p('s_cmp_lg_u32 s3, 4')
    p('s_cbranch_scc1 L_nopoll')
    poll_flags(p, 'L_pf1', 14, 16, 's15', 's[20:21]')
    p('L_nopoll:')
    p('s_barrier      ; B_12')
    dstamp(p, 6)
    no = 0
    for c in range(-1, 15):
        def allowed():
            cand = []
            if no < 16 and (no < NOS or no - NOS <= c - 1): cand.append(('o', no))
            if nw < 16 and (nw < NWS or nw - NWS <= c - 1): cand.append(('w', nw))
            cand.sort(key=lambda x: (x[1], x[0] == 'o'))
            return cand
        while True:
            done = (c + 1) in endo and (c + 1) in endw
            if done and cnt[0] - max(endo[c+1], endw[c+1]) >= LAG2: break
            cand = allowed()
            if not cand:
                assert done; break
            if cand[0][0] == 'o': o_issue(no); no += 1
            else: wo_issue(nw); nw += 1
        p(f's_waitcnt vmcnt({cnt[0] - max(endo[c+1], endw[c+1])})')
        p(f's_barrier      ; C_{c}')
        if c == -1: dstamp(p, 7)
        if c == -1 and WGF: wgflag(FBO, 'L_wfb')
        if RPF and DEFER and c + RPF < 16: p(f's_load_dword s24, s[26:27], {(c+RPF+1)*512}')
        if c == CPF3:
            p('s_getpc_b64 s[22:23]')
            p('L_pc3:')
            p('s_lshl_b32 s9, s5, 2'); p('s_add_u32 s9, s9, s11'); p('s_and_b32 s9, s9, 63'); p('s_lshl_b32 s9, s9, 6')
            p('s_min_u32 s9, s9, L_end-L_tail2')
            p('s_add_u32 s9, s9, L_tail2-L_pc3')
            p('s_add_u32 s22, s22, s9'); p('s_addc_u32 s23, s23, 0')
            p('s_load_dword s24, s[22:23], 0x0')
    assert no == 16 and nw == 16
    dstamp(p, 8)
    flush_stamps(p, 9, 16, 4, 'L_fsL')
    p('s_endpgm')
    p('L_ld_idle:')
    if WGF:
        p('s_barrier      ; FA')
        wgflag(0, 'L_wfa2')
    p('s_barrier      ; B_11a')
    if WGF:
        p('s_barrier')
        wgflag(FBO, 'L_wfb2')
    p('s_endpgm')

    p('L_compute:')
    G = lambda g: 16 + 4*g
    ACC = lambda t, qt: G(t*3+qt)
    AF = lambda st, t: G(24 + st*8 + t)
    BF = lambda st, qt: G(40 + st*3 + qt)
    AADR = 240; BADR = 248
    p('v_bfe_u32 v5, v2, 2, 2')
    p('v_and_b32 v6, 3, v2')
    p('v_and_b32 v7, 1, v3')
    p('v_lshl_add_u32 v7, v7, 2, v5')
    p('v_lshlrev_b32 v7, 1, v7')
    p('v_lshrrev_b32 v8, 1, v6')
    p('v_xor_b32 v7, v7, v8')
    p('v_lshlrev_b32 v7, 4, v7')
    p('v_and_b32 v8, 1, v6')
    p('v_lshl_add_u32 v7, v8, 3, v7')
    p('v_lshl_add_u32 v8, v3, 3, v5')
    p('v_lshl_add_u32 v8, v8, 8, v7')
    p(f'v_add_u32 v8, {WS_ + 16384}, v8')
    for t in range(8):
        p(f'v_xor_b32 v{AADR+t}, {t<<5}, v8')
    p('v_lshrrev_b32 v8, 1, v4')
    p('v_xor_b32 v8, v8, v3')
    p('v_lshlrev_b32 v8, 4, v8')
    p('v_lshl_add_u32 v8, v4, 7, v8')
    p('s_mul_i32 s13, s3, 6144')
    p(f's_add_u32 s13, s13, {XS + 24576}')
    p(f'v_add_u32 v{BADR}, s13, v8')
    p(f'v_xor_b32 v{BADR+1}, 64, v{BADR}')
    p('s_cmp_lt_u32 s3, 2')
    p(f's_mov_b32 s13, {KB1}'); p(f's_mov_b32 s14, {VB1}')
    p(f's_cselect_b32 s13, {KB0}, s13'); p(f's_cselect_b32 s14, {VB0}, s14')
    p('v_lshrrev_b32 v8, 1, v3')
    p('v_xor_b32 v8, v8, v4')
    p('v_lshlrev_b32 v8, 4, v8')
    p('v_lshl_add_u32 v8, v4, 8, v8')
    p('v_and_b32 v9, 1, v3')
    p('v_lshl_add_u32 v8, v9, 3, v8')
    p('v_add_u32 v10, s13, v8')
    p('v_lshl_add_u32 v8, v3, 2, v5')
    p('v_lshl_add_u32 v6, v8, 8, v7')
    p('v_add_u32 v11, s14, v6')
    p('v_lshlrev_b32 v9, 4, v2')
    for i in range(4): p(f'v_mov_b32 v{12+i}, 0x3f803f80')
    for i in range(96): p(f'v_mov_b32 v{16+i}, 0')
    p('s_mul_i32 s62, s66, 192'); p('s_mul_i32 s14, s8, 12'); p('s_add_u32 s62, s62, s14')
    p('s_mul_i32 s14, s3, 3'); p('s_add_u32 s62, s62, s14'); p('s_lshl_b32 s62, s62, 10')
    p(f's_mul_i32 s68, s4, {GST}'); p('s_add_u32 s62, s62, s68'); p(f's_add_u32 s62, s62, {O_OFF}')
    p(f's_mov_b32 s63, {f32bits(LOG2E_SCALE):#x}')
    p('s_mov_b32 s50, s63'); p('s_mov_b32 s51, s63')
    p('s_lshl_b32 s69, s8, 2'); p('s_add_u32 s69, s69, s3')
    p('s_lshl_b32 s69, s69, 3'); p('s_add_u32 s69, s69, s66'); p(f's_lshl_b32 s69, s69, {FS1}'); p('s_add_u32 s69, s69, s68'); p(f's_add_u32 s69, s69, {F1_OFF}')
    p('s_waitcnt lgkmcnt(0)')
    srd(p, 52, 34, 35, WS_SIZE)
    p('s_mov_b32 s98, s96'); p('s_add_u32 s99, s97, 1')
    stamp_setup(p, 34, 35)
    p('s_mov_b64 s[34:35], s[32:33]')
    p('s_load_dwordx2 s[20:21], s[0:1], 80')
    if CPF:
        p('s_cmp_lg_u32 s3, 1')
        p('s_cbranch_scc1 L_nocpf')
        p('s_getpc_b64 s[70:71]')
        p('L_pc:')
        p(f's_sub_u32 s70, s70, L_pc-{K1}')
        p('s_subb_u32 s71, s71, 0')
        p('s_mul_i32 s9, s5, 256')
        p(f's_min_u32 s9, s9, L_end-{K1}-640')
        p('s_add_u32 s70, s70, s9')
        p('s_addc_u32 s71, s71, 0')
        for i in range(4): p(f's_load_dword s{24+i}, s[70:71], {i*64}')
        p('L_nocpf:')
    p('s_waitcnt lgkmcnt(0)')
    srd(p, 44, 20, 21, 8*96*1280*2)
    if PUB == 2:
        p('s_cmp_lg_u32 s3, 3')
        p('s_cbranch_scc1 L_nopubc')
        srd(p, 24, 34, 35, 256)
        p('s_not_b64 s[70:71], s[96:97]')
        p('s_lshl_b32 s9, s6, 7')
        p('v_mov_b32 v250, s70'); p('v_mov_b32 v251, s71'); p('v_mov_b32 v252, 0')
        p('s_mov_b64 exec, 1')
        p('buffer_atomic_umax_x2 v[250:251], v252, s[24:27], s9 offen sc1')
        p('s_mov_b64 exec, -1')
        p('L_nopubc:')
    if TOUCH:
        p('s_cmp_lg_u32 s3, 2')
        p('s_cbranch_scc1 L_notouch')
        p('v_and_b32 v250, 1, v2')
        p(f'v_mul_u32_u24 v251, {GT_OFF}, v250')
        p(f'v_mul_u32_u24 v252, {RT_OFF}, v250')
        p(f'v_mul_u32_u24 v253, {8*96*1280*2 - 128}, v250')
        p('s_mul_i32 s9, s6, 32'); p('s_add_u32 s9, s9, s5'); p(f's_mul_i32 s9, s9, {RST}'); p(f's_add_u32 s9, s9, {INBOX}')
        p('s_mov_b64 exec, 3')
        p('buffer_load_dword v254, v251, s[52:55], s68 offen nt')
        p('buffer_load_dword v254, v252, s[52:55], s9 offen nt')
        p('buffer_load_dword v254, v253, s[44:47], 0 offen nt')
        p('s_mov_b64 exec, -1')
        p('L_notouch:')
    p2_ids(p)
    p('s_and_b32 s12, s3, 1'); p('s_lshl_b32 s12, s12, 2'); p('s_add_u32 s12, s12, s10')
    p('s_mul_i32 s61, s6, 32'); p('s_add_u32 s61, s61, s5'); p(f's_mul_i32 s61, s61, {RST}'); p(f's_add_u32 s61, s61, {INBOX}')
    for i in (1, 2, 3, 0):
        d = 35 + i if i else 39
        p(f's_xor_b32 s{d}, s10, {i}'); p(f's_lshl_b32 s{d}, s{d}, 2'); p(f's_add_u32 s{d}, s{d}, s3'); p(f's_mul_i32 s{d}, s{d}, {3*SZ}')
        p(f's_add_u32 s{d}, s{d}, s61'); p(f's_add_u32 s{d}, s{d}, {I_OFF + (i-1 if i else 0)*SZ}')
    p(f's_lshl_b32 s40, s3, {max(7, FS2+2)}'); p('s_add_u32 s40, s40, s61'); p(f's_add_u32 s40, s40, {F2_OFF}')
    p('s_lshl_b32 s41, s66, 3'); p('s_add_u32 s41, s41, s12'); p('s_mul_i32 s41, s41, 40960')
    p('s_mul_i32 s13, s6, 1280'); p('s_add_u32 s41, s41, s13'); p('s_lshl_b32 s13, s67, 8'); p('s_add_u32 s41, s41, s13')
    p('s_lshr_b32 s13, s3, 1'); p('s_lshl_b32 s13, s13, 7'); p('s_add_u32 s41, s41, s13')
    p(f's_lshl_b32 s42, s10, {FS2}'); p('s_add_u32 s42, s42, s40')
    for v in range(4): p(f's_add_u32 s{16+v}, s62, {v*48*1024}')
    p('s_add_u32 s43, s39, 4096')
    p('s_add_u32 s48, s39, 8192')
    if WGF:
        p(f's_lshl_b32 s69, s5, {FS1}'); p('s_add_u32 s69, s69, s68'); p(f's_add_u32 s69, s69, {F1_OFF}')
    if FWARM:
        p('v_mov_b32 v250, 0')
        p('s_mov_b64 exec, 1')
        if FWARM & 1:
            p('buffer_load_dword v251, v250, s[52:55], s69 offen sc1')
            p(f'buffer_load_dword v251, v250, s[52:55], s69 offen offset:{FBO} sc1')
        if FWARM & 2: p('buffer_load_dword v251, v250, s[52:55], s42 offen sc1')
        p('s_mov_b64 exec, -1')
    if SENT == 1:
        p('s_cmp_ge_u32 s5, 30')
        p('s_cbranch_scc1 L_noclr')
        for i in range(4): p(f'v_mov_b32 v{200+i}, -1')
        for k in range(3 * SZ // 1024):
            p(f'buffer_store_dwordx4 v[200:203], v9, s[52:55], s{(39, 43, 48)[k//4]} offen offset:{(k%4)*1024} sc1')
        p('L_noclr:')
    def reads(st, ks):
        L = [f'ds_read_b128 {vr(BF(st,qt))}, v{BADR+ks} offset:{qt*2048}' for qt in range(3)]
        for t in range(8):
            L.append(f'ds_read_b64_tr_b16 {vr(AF(st,t),2)}, v{AADR+t} offset:{ks*8192}')
            L.append(f'ds_read_b64_tr_b16 {vr(AF(st,t)+2,2)}, v{AADR+t} offset:{ks*8192+1024}')
        return L
    def mfmas(st):
        return [f'{MF} {vr(ACC(t,qt))}, {vr(AF(st,t))}, {vr(BF(st,qt))}, {vr(ACC(t,qt))}' for t in range(8) for qt in (range(3) if not (SNAKE and t & 1) else (2, 1, 0))]
    p('s_mov_b32 s14, 1')
    p('s_mov_b32 s15, 0')
    p('s_barrier')
    dstamp(p, 1)
    pro = reads(0, 0)
    for x in pro: p(x)
    _, pend0 = auto_lgkm(pro)
    scal = ['s_add_u32 s14, s14, 1', 's_cmp_eq_u32 s14, 3', 's_cselect_b32 s61, -2, 1', 's_cselect_b32 s14, 0, s14',
            's_mul_i32 s64, s61, 16384', 's_mul_i32 s65, s61, 24576', 's_add_u32 s15, s15, 1', 's_cmp_eq_u32 s15, 10']
    m0_ = mfmas(0); m1 = mfmas(1)
    H1 = spread(m0_[:19], reads(1, 1), per=PER1) + spread(m0_[19:], scal, per=2)
    upd = [f'v_add_u32 v{BADR+i}, s65, v{BADR+i}' for i in range(2)] + [f'v_add_u32 v{AADR+t}, s64, v{AADR+t}' for t in range(8)]
    H2a = interleave(m1[:NA], upd, per=2) + ['s_waitcnt lgkmcnt(0)', 's_barrier']
    H2b = spread(m1[NA:], reads(0, 0), per=PER1)
    if LOWD:
        H1 = reads(1, 1) + (scal + m0_ if LOWD == 2 else spread(m0_, scal))
        H2a = (m1 + upd if LOWD == 2 else interleave(m1, upd, per=1)) + ['s_barrier']
        H2b = reads(0, 0)
        if LOWD == 3:
            H1 = scal + ['s_waitcnt lgkmcnt(0)'] + m0_ + reads(1, 1) + ['s_waitcnt lgkmcnt(0)']
            if EARLY:
                H1 = scal[:-1] + ['s_cmp_lg_u32 s15, 1', 's_waitcnt lgkmcnt(0)'] + m0_ + ['s_cbranch_scc1 L_nb1', 's_barrier', 'L_nb1:'] + reads(1, 1) + [scal[-1], 's_waitcnt lgkmcnt(0)']
            H2a = m1 + upd + ['s_barrier']
    if BURST:
        r1 = reads(1, 1); r0 = reads(0, 0)
        H1 = r1[:BURST] + spread(m0_[:19], r1[BURST:]) + spread(m0_[19:], scal, per=2)
        H2b = r0[:BURST] + spread(m1[NA:], r0[BURST:])
    if XNOP:
        def addn(L):
            o_ = []; c = 0
            for x in L:
                o_.append(x)
                if x.startswith('v_mfma'):
                    c += 1
                    if c % XNOP == 0: o_.append('s_nop 3')
            return o_
        H1 = addn(H1); H2b = addn(H2b)
    h1, pend = auto_lgkm(H1, pend0)
    h2a, pend_a = auto_lgkm(H2a, pend)
    h2b, _ = auto_lgkm(H2b, pend_a)
    if PEEL:
        assert LOWD in (1, 2) and NE == 0 and PUB != 2
        h1a, pend = auto_lgkm(reads(1, 1) + scal, pend0)
        rest_, _ = auto_lgkm(m0_ + H2a + H2b, pend)
        h1 = h1a; h2a = rest_; h2b = []
    p('L_loop:')
    for x in h1: p(x)
    p('s_cbranch_scc1 L_tail')
    for x in h2a + h2b: p(x)
    p('s_branch L_loop')
    p('L_tail:')
    KFg = list(range(24, 32)) + [40, 41, 42] + list(range(46, 56)) + [32, 33, 34]
    KF = lambda kt, u: G(KFg[kt*4+u])
    QB = lambda u, qt: ACC(2*u, qt)
    Smap = {}
    free_early = [35, 36, 37, 38, 39, 43, 44, 45]
    for kt in range(6): Smap[(kt, 0)] = free_early[kt]
    oddq = lambda qt: [(2*u+1)*3+qt for u in range(4)]
    l1 = oddq(0) + oddq(1)[:2]
    l2 = oddq(1)[2:] + oddq(2)
    for kt in range(6): Smap[(kt, 1)] = l1[kt]; Smap[(kt, 2)] = l2[kt]
    S = lambda kt, qt: G(Smap[(kt, qt)])
    kaddr = [f'v_xor_b32 v{AADR+m}, {m<<5}, v10' for m in range(8)]
    def kread(kt, u):
        return [f'ds_read_b64 {vr(KF(kt,u),2)}, v{AADR+2*u} offset:{kt*4096}', f'ds_read_b64 {vr(KF(kt,u)+2,2)}, v{AADR+2*u+1} offset:{kt*4096}']
    kr = [x for kt in range(6) for u in range(4) for x in kread(kt, u)]
    qcvt = lambda qt: [x for u in range(4) for x in cvt4(QB(u, qt), ACC(2*u, qt), ACC(2*u+1, qt))]
    T = ['s_memrealtime s[70:71]'] + interleave(m1[:NAT], kaddr, per=2) + ['s_waitcnt vmcnt(0) lgkmcnt(0)', 's_barrier']
    T += ['v_mov_b32 v254, s70', 'v_mov_b32 v255, s71', 'v_mov_b32 v253, 0']
    if SENT == 1:
        T += ['s_waitcnt vmcnt(0)', 's_mov_b64 exec, 1', 'buffer_store_dwordx2 v[254:255], v253, s[52:55], s42 offen sc1', 's_mov_b64 exec, -1']
    if STAMPS: T.append(f'{"s_memtime" if CLK else "s_memrealtime"} s[76:77]')
    o, rest = merge(m1[NAT:], kr[:42])
    T += o + rest + kr[42:]
    movs = []
    if PEEL:
        T = ['s_memrealtime s[70:71]'] + interleave(m0_[:4], kaddr, per=2) + spread(m0_[4:], kr[22:42]) + spread(m1[:6], kr[16:22]) + ['s_barrier']
        if STAMPS: T.append(f'{"s_memtime" if CLK else "s_memrealtime"} s[76:77]')
        T += spread(m1[6:], kr[:16] + kr[42:])
        movs = ['s_waitcnt lgkmcnt(0)', 'v_mov_b32 v254, s70', 'v_mov_b32 v255, s71', 'v_mov_b32 v253, 0']
    def smf(qt):
        return [f'{MF} {vr(S(kt,qt))}, {vr(KF(kt,u))}, {vr(QB(u,qt))}, {"0" if u == 0 else vr(S(kt,qt))}' for u in range(4) for kt in range(6)]
    def softmax(qt):
        regs = [S(kt, qt) + r for kt in range(6) for r in range(4)]
        M = 250; Tm = 251; M2 = 249
        L = [f'v_max3_f32 v{M}, v{regs[0]}, v{regs[1]}, v{regs[2]}', f'v_max3_f32 v{M2}, v{regs[3]}, v{regs[4]}, v{regs[5]}']
        for i in range(6, 22, 4):
            L.append(f'v_max3_f32 v{M}, v{M}, v{regs[i]}, v{regs[i+1]}')
            L.append(f'v_max3_f32 v{M2}, v{M2}, v{regs[i+2]}, v{regs[i+3]}')
        L.append(f'v_max3_f32 v{M}, v{M}, v{regs[22]}, v{regs[23]}')
        L.append(f'v_max_f32 v{M}, v{M}, v{M2}')
        L += [f'v_mov_b32 v{Tm}, v{M}', f'v_permlane16_swap_b32 v{M}, v{Tm}', f'v_max_f32 v{M}, v{M}, v{Tm}',
              f'v_mov_b32 v{Tm}, v{M}', f'v_permlane32_swap_b32 v{M}, v{Tm}', f'v_max_f32 v{M}, v{M}, v{Tm}',
              f'v_mul_f32 v{M}, s63, v{M}']
        for u in range(3):
            rr = regs[8*u:8*u+8]
            if PK & 1: L += [f'v_pk_fma_f32 v[{r}:{r+1}], v[{r}:{r+1}], s[50:51], v[{M}:{M+1}] op_sel_hi:[1,0,0] neg_lo:[0,0,1] neg_hi:[0,0,1]' for r in rr[::2]]
            else: L += [f'v_fma_f32 v{r}, v{r}, s63, -v{M}' for r in rr]
            L += [f'v_exp_f32 v{r}, v{r}' for r in rr]
            L += cvt4(S(2*u, qt), S(2*u, qt), S(2*u+1, qt))
        return L
    PB = lambda u, qt: S(2*u, qt)
    VF = lambda t, u: G(KFg[t*3+u])
    T += qcvt(0) + movs[:1]
    o, rest = merge(smf(0), qcvt(1) + qcvt(2) + movs[1:])
    T += o + rest
    sm0 = softmax(0)
    m12 = smf(1) + (smf(2) if not ORH else [])
    o, rest0 = merge(m12[4:], sm0)
    T += m12[:4] + o + rest0
    T += [f'v_xor_b32 v{AADR+t}, {t<<5}, v11' for t in range(8)]
    t2, _ = auto_lgkm(T, pend)
    for x in t2: p(x)
    dstamp(p, 3)
    p('s_barrier')
    dstamp(p, 4)
    U = []
    for t in range(8):
        for u in range(3):
            U.append(f'ds_read_b64_tr_b16 {vr(VF(t,u),2)}, v{AADR+t} offset:{u*8192}')
            U.append(f'ds_read_b64_tr_b16 {vr(VF(t,u)+2,2)}, v{AADR+t} offset:{u*8192+4096}')
    qbg = [(2*u)*3+qt for u in range(4) for qt in range(3)]
    Og = {0: qbg[:9], 1: qbg[9:] + [44, 45] + [Smap[(1,0)], Smap[(3,0)], Smap[(5,0)]] + [Smap[(1,1)]]}
    Og[2] = [Smap[(0,0)], Smap[(2,0)], Smap[(4,0)], Smap[(3,1)], Smap[(5,1)], Smap[(1,2)], Smap[(3,2)], Smap[(5,2)], Smap[(0,1)]]
    OA = lambda t, qt: G(Og[qt][t])
    def pv(qt):
        L = []
        for u in range(3):
            L.append(f'{MF} {vr(OA(8,qt))}, v[12:15], {vr(PB(u,qt))}, {"0" if u == 0 else vr(OA(8,qt))}')
        for t2_ in range(0, 8, 2):
            for u in range(3):
                for t in (t2_, t2_+1):
                    L.append(f'{MF} {vr(OA(t,qt))}, {vr(VF(t,u))}, {vr(PB(u,qt))}, {"0" if u == 0 else vr(OA(t,qt))}')
        return L
    def onorm(qt):
        l = OA(8, qt)
        L = [f'v_rcp_f32 v{l}, v{l}']
        for v in range(4):
            a0 = OA(2*v, qt); a1 = OA(2*v+1, qt)
            L += [f'v_mul_f32 v{a+r}, v{a+r}, v{l}' for a in (a0, a1) for r in range(4)]
            L += cvt4(a0, a0, a1)
            L.append(f's_add_u32 s14, s62, {v*48*1024}')
            L.append(f'buffer_store_dwordx4 {vr(a0)}, v9, s[52:55], s14 offen offset:{qt*1024} {OFL}')
        return L
    sm1 = softmax(1); sm2 = softmax(2)
    if HALF:
        Lg = [44, 45, Smap[(1,0)]]
        Bg = [Smap[(3,0)], Smap[(5,0)], Smap[(1,1)], Smap[(3,1)], Smap[(5,1)], Smap[(1,2)], Smap[(3,2)], Smap[(5,2)]] + KFg[:4]
        OH = lambda t, qt: G(qbg[qt*4+t]) if t < 4 else G(Bg[qt*4+t-4])
        def pvh(h, qt):
            L = []
            if h == 0:
                l = G(Lg[qt])
                L += [f'{MF} {vr(l)}, v[12:15], {vr(PB(u,qt))}, {"0" if u == 0 else vr(l)}' for u in range(3)]
            for t2_ in (4*h, 4*h+2):
                for u in range(3):
                    for t in (t2_, t2_+1):
                        L.append(f'{MF} {vr(OH(t,qt))}, {vr(VF(t,u))}, {vr(PB(u,qt))}, {"0" if u == 0 else vr(OH(t,qt))}')
            return L
        def nrm(h, qt):
            l = G(Lg[qt])
            L = [f'v_rcp_f32 v{l}, v{l}'] if h == 0 else []
            for v in (2*h, 2*h+1):
                a0 = OH(2*v, qt); a1 = OH(2*v+1, qt)
                if PK & 2: L += [f'v_pk_mul_f32 v[{a+r}:{a+r+1}], v[{a+r}:{a+r+1}], v[{l}:{l+1}] op_sel_hi:[1,0]' for a in (a0, a1) for r in (0, 2)]
                else: L += [f'v_mul_f32 v{a+r}, v{a+r}, v{l}' for a in (a0, a1) for r in range(4)]
                L += cvt4(a0, a0, a1)
                if not SOFFS: L.append(f's_add_u32 s14, s62, {v*48*1024}')
                L.append(f'buffer_store_dwordx4 {vr(a0)}, v9, s[52:55], s{16+v if SOFFS else 14} offen offset:{qt*1024} {OFL}')
            return L
        flagA = lambda k: [f's_waitcnt vmcnt({k})', 's_mov_b64 exec, 1', f'buffer_store_dwordx2 v[254:255], v253, s[52:55], s69 offen {FLAGF}', 's_mov_b64 exec, -1']
        if WGF: flagA = lambda k: [f's_waitcnt vmcnt({k})', 's_barrier']
        vrdB = U[24:]; U = U[:24]
        if ORH:
            st_ = lambda h: [x for x in nrm(h, 2) if x.startswith(('buffer', 's_add'))]
            o, rest = merge(pvh(0, 0), sm1); U += o + rest
            o, rest = merge(pvh(0, 1), nrm(0, 0)); U += o + vrdB + rest + st_(0)
            o, rest = merge(pvh(1, 0), nrm(0, 1)); U += o + rest
            o, rest = merge(pvh(1, 1), nrm(1, 0)); U += o + rest + flagA(2) + st_(1) + nrm(1, 1)
            U_done = list(U)
        o, rest = merge(pvh(0, 0), sm1); U += o + rest
        o, rest = merge(pvh(0, 1), sm2); U += o + rest
        o, rest = merge(pvh(0, 2), nrm(0, 0) + nrm(0, 1)); U += o + vrdB + rest
        o, rest = merge(pvh(1, 0), nrm(0, 2)); U += o + rest
        o, rest = merge(pvh(1, 1), nrm(1, 0)); U += o + rest
        if FAPOS == 1: U += flagA(2)
        o, rest = merge(pvh(1, 2), nrm(1, 1)); U += o + rest
        if FAPOS == 2: U += flagA(4)
        U += nrm(1, 2)
        if FAPOS == 3: U += flagA(6)
    if ORH: U = U_done
    if not HALF:
        o, rest = merge(pv(0), sm1)
        U += o + rest
    if HALF: pass
    elif OEARLY:
        o, rest = merge(pv(1), onorm(0) + sm2)
        U += o + rest
        o, rest = merge(pv(2), onorm(1))
        U += o + rest
    else:
        o, rest = merge(pv(1), sm2)
        U += o + rest
        o, rest = merge(pv(2), onorm(0) + onorm(1))
        U += o + rest
    if not HALF: U += onorm(2)
    u2, _ = auto_lgkm(U, [])
    for x in u2: p(x)
    dstamp(p, 5)
    p('s_barrier')
    A2 = lambda i, t: 16 + (i*4+t)*4
    FA = lambda st, t: 80 + st*32 + t*4
    FBq = lambda st, i: 96 + st*32 + i*4
    p('s_lshr_b32 s13, s3, 1'); p('s_lshl_b32 s13, s13, 7')
    p(f'v_add_u32 v8, {WO_L}, v6')
    p('v_xor_b32 v8, s13, v8')
    for t in range(4): p(f'v_xor_b32 v{AADR+t}, {t<<5}, v8')
    if UNR:
        for t in range(4): p(f'v_add_u32 v{232+t}, 0x10000, v{AADR+t}')
    p('s_lshl_b32 s13, s12, 10')
    p(f'v_add_u32 v8, s13, v9')
    for i in range(4): p(f'v_xor_b32 v{AADR+4+i}, {i<<10}, v8')
    p(f'v_lshlrev_b32 v248, {FS2}, v2')
    p('v_mul_u32_u24 v7, 2560, v4')
    if WIDE:
        p('v_and_b32 v8, 1, v3'); p('v_lshl_add_u32 v7, v8, 5, v7')
        p('v_lshrrev_b32 v8, 1, v3'); p('v_lshl_add_u32 v7, v8, 4, v7')
    else: p('v_lshl_add_u32 v7, v3, 3, v7')
    def lastflag():
        p('s_waitcnt vmcnt(0)')
        if WGF:
            dstamp(p, 6); return
        p('s_mov_b64 exec, 1')
        p(f'buffer_store_dwordx2 v[254:255], v253, s[52:55], s69 offen offset:{FBO if HALF else 0} {FLAGF}')
        p('s_mov_b64 exec, -1')
        dstamp(p, 6)
    if not HALF:
        lastflag()
        p('s_cmp_ge_u32 s5, 30')
        p('s_cbranch_scc1 L_cdone')
        p('s_barrier')
    else:
        p('s_cmp_lt_u32 s5, 30')
        p('s_cbranch_scc1 L_act')
        lastflag()
        if WGF: p('s_barrier')
        p('s_branch L_cdone')
        p('L_act:')
    if SENT == 2:
        for i in range(4): p(f'v_mov_b32 v{200+i}, -1')
        for k in range(3 * SZ // 1024):
            p(f'buffer_store_dwordx4 v[200:203], v9, s[52:55], s{(39, 43, 48)[k//4]} offen offset:{(k%4)*1024} sc1')
    if HALF and B11:
        lastflag()
        p('s_barrier')
    p('s_barrier')
    if HALF and not B11: lastflag()
    if SENT in (1, 3):
        p('s_mov_b64 exec, 15')
        p('buffer_load_dwordx2 v[250:251], v248, s[52:55], s40 offen sc1')
        p('s_mov_b64 exec, -1')
    SR = 144
    if TAGS:
        p('s_mov_b32 s13, 0x01010101')
        p('v_mul_lo_u32 v236, v2, s13')
        p('v_add_u32 v237, s96, v236')
        p('v_add_u32 v236, s70, v236')
        for k in range(9): p(f'v_mov_b32 v{SR+4*k+3}, v236')
        for i in range(3): p(f'v_mov_b32 v{SR+12*i+10}, 0')
    for i in range(64): p(f'v_mov_b32 v{16+i}, 0')
    def reads2(st, kk, stage=0):
        oo = (stage % NOS) * 16384 + kk*8192
        wo_ = ((stage + 1) % NWS) * 16384 + kk*8192
        ab = AADR if wo_ < 65536 else 232
        wo_ &= 0xffff
        L = [f'ds_read_b128 {vr(FBq(st,0))}, v{AADR+4} offset:{oo}']
        for t in range(4):
            L.append(f'ds_read_b64_tr_b16 {vr(FA(st,t),2)}, v{ab+t} offset:{wo_}')
            L.append(f'ds_read_b64_tr_b16 {vr(FA(st,t)+2,2)}, v{ab+t} offset:{wo_+4096}')
        L += [f'ds_read_b128 {vr(FBq(st,i))}, v{AADR+4+i} offset:{oo}' for i in range(1, 4)]
        if DIAG: L = [L[k] for k in (9, 1, 2, 3, 4, 10, 5, 6, 11, 7, 8, 0)]
        return L
    DORD = [(0,0),(0,1),(1,1),(1,0),(0,2),(1,2),(2,2),(2,1),(2,0),(0,3),(1,3),(2,3),(3,3),(3,2),(3,1),(3,0)]
    DORD = [((i + 1) % 4, t) for i, t in DORD]
    def mfd(st): return [f'{MF} {vr(A2(i,t))}, {vr(FA(st,t))}, {vr(FBq(st,i))}, {vr(A2(i,t))}' for i, t in DORD]
    def mf2(st):
        return [f'{MF} {vr(A2(i,t))}, {vr(FA(st,t))}, {vr(FBq(st,i))}, {vr(A2(i,t))}' for i in range(4) for t in (range(4) if not (SNAKE and i & 1) else (3, 2, 1, 0))]
    p('s_mov_b32 s14, 0')
    p('s_mov_b32 s15, 0')
    p('s_barrier')
    dstamp(p, 7)
    pro = reads2(0, 0)
    for x in pro: p(x)
    _, pend0 = auto_lgkm(pro)
    p('s_mov_b32 s13, 0')
    scal = ['s_add_u32 s14, s14, 1', f's_cmp_eq_u32 s14, {NWS}', f's_cselect_b32 s61, {1-NWS}, 1', 's_cselect_b32 s14, 0, s14', 's_lshl_b32 s64, s61, 14',
            's_add_u32 s13, s13, 1', f's_cmp_eq_u32 s13, {NOS}', f's_cselect_b32 s61, {1-NOS}, 1', 's_cselect_b32 s13, 0, s13', 's_lshl_b32 s65, s61, 14',
            's_add_u32 s15, s15, 1', 's_cmp_eq_u32 s15, 16']
    if ORC: scal = scal[-2:]
    n0 = mf2(0); n1 = mf2(1)
    H1 = spread(n0[:12], reads2(1, 1)) + spread(n0[12:], scal, per=3)
    upd = [f'v_add_u32 v{AADR+4+i}, s65, v{AADR+4+i}' for i in range(4)] + [f'v_add_u32 v{AADR+t}, s64, v{AADR+t}' for t in range(4)]
    if ORC: upd = upd[:ORC-1]
    H2a = interleave(n1[:4], upd, per=2) + ['s_waitcnt lgkmcnt(0)', 's_barrier']
    H2b = spread(n1[4:], reads2(0, 0))
    h1, pend = auto_lgkm(H1, pend0)
    h2a, pend_a = auto_lgkm(H2a, pend)
    h2b, _ = auto_lgkm(H2b, pend_a)
    if DEFER:
        assert DIAG and UNR and DEFER <= NOS
        pend = pend0
        for j in range(16):
            p(f'L_s{j}:')
            df = j >= 16 - DEFER; dfn = j + 1 >= 16 - DEFER
            d0 = mfd(0); d1 = mfd(1); r_ = reads2(1, 1, j); rn = reads2(0, 0, j + 1)
            if df: d0 = d0[:12]; d1 = d1[:12]; r_ = r_[:11]
            if dfn: rn = rn[:11]
            o_ = 1 if df else 0
            seq_ = [f's_waitcnt lgkmcnt({6-o_})'] + spread(d0[:4], r_[:4]) + [f's_waitcnt lgkmcnt({7-o_})'] + spread(d0[4:9], r_[4:9]) + ['s_waitcnt lgkmcnt(9)'] + spread(d0[9:], r_[9:])
            hh1, pend = auto_lgkm(seq_, pend)
            for x in hh1: p(x)
            if j == 15: break
            nb_ = NB2 if not df else 3
            hh2, pend = auto_lgkm([f's_waitcnt lgkmcnt({6-o_})'] + d1[:nb_] + ['s_waitcnt lgkmcnt(0)', 's_barrier'] + interleave(d1[nb_:], rn), pend)
            for x in hh2: p(x)
    elif UNR:
        import math
        per_ = min(NWS * NOS // math.gcd(NWS, NOS), 16)
        exit_at = 15 % per_
        npass = 15 // per_
        p('L_loop2:')
        for j in range(per_):
            sc = []
            if j == exit_at and per_ < 16: sc = [f's_cmp_eq_u32 s15, {npass}']
            if DIAG:
                d0 = mfd(0); r_ = reads2(1, 1, j)
                seq_ = ['s_waitcnt lgkmcnt(6)'] + spread(d0[:4], r_[:4]) + ['s_waitcnt lgkmcnt(7)'] + spread(d0[4:9], r_[4:9]) + ['s_waitcnt lgkmcnt(9)'] + spread(d0[9:12], r_[9:]) + spread(d0[12:], sc)
            else: seq_ = spread(n0[:12], reads2(1, 1, j)) + spread(n0[12:], sc)
            hh1, pend = auto_lgkm(seq_, pend0)
            for x in hh1: p(x)
            if j == exit_at:
                if per_ < 16: p('s_cbranch_scc1 L_tail2')
                else: break
            sc = ['s_add_u32 s15, s15, 1'] if j == per_ - 1 else []
            d1 = mfd(1) if DIAG else n1
            hh2, _ = auto_lgkm((['s_waitcnt lgkmcnt(6)'] if DIAG else []) + spread(d1[:NB2], sc) + ['s_waitcnt lgkmcnt(0)', 's_barrier'] + spread(d1[NB2:], reads2(0, 0, j + 1)), pend)
            for x in hh2: p(x)
        if per_ < 16: p('s_branch L_loop2')
    else:
        p('L_loop2:')
        for x in h1: p(x)
        p('s_cbranch_scc1 L_tail2')
        for x in h2a + h2b: p(x)
        if SENT == 2:
            p('s_and_b32 s61, s15, 7')
            p('s_cmp_lg_u32 s61, 3')
            p('s_cbranch_scc1 L_loop2')
            p('s_cmp_eq_u32 s15, 3')
            p('s_cbranch_scc0 L_ev11')
            p('s_waitcnt vmcnt(0)')
            p('s_mov_b64 exec, 1')
            p('buffer_store_dwordx2 v[254:255], v253, s[52:55], s42 offen sc1')
            p('s_mov_b64 exec, -1')
            p('s_branch L_loop2')
            p('L_ev11:')
            p('s_mov_b64 exec, 15')
            p('buffer_load_dwordx2 v[250:251], v248, s[52:55], s40 offen sc1')
            p('s_mov_b64 exec, -1')
        p('s_branch L_loop2')
    p('L_tail2:')
    last = [f'{MF} {vr(A2(i,t))}, {vr(FA(1,t))}, {vr(FBq(1,i))}, {vr(A2(i,t))}' for i in (1, 2, 3, 0) for t in range(4)]
    chk = []
    if SENT:
        chk = ['s_waitcnt vmcnt(0)', 's_mov_b64 exec, 15', 'v_cmp_gt_u64 vcc, s[96:97], v[250:251]', 'v_cmp_lt_u64 s[100:101], s[98:99], v[250:251]',
               's_mov_b64 exec, -1', 's_or_b64 vcc, vcc, s[100:101]']
        for x in chk: p(x)
        p('s_cbranch_scc0 L_rdy')
        poll_flags(p, 'L_pf2', 248, 250, 's40', '15')
        p('L_rdy:')
    def send(i):
        L = []
        if PF32:
            L += [f'buffer_store_dwordx4 {vr(A2(i,t))}, v9, s[52:55], s{35+i} offen offset:{t*1024} {PFL}' for t in range(4)]
        elif TAGS:
            b0 = SR + 12*(i-1)
            for k in range(8):
                a = A2(i, k >> 1) + 2*(k & 1)
                L.append(f'v_cvt_pk_bf16_f32 v{b0 + 4*(k//3) + k%3}, v{a}, v{a+1}')
                if k in (2, 5, 7):
                    L.append(f'buffer_store_dwordx4 {vr(b0 + 4*(k//3))}, v9, s[52:55], s{35+i} offen offset:{(k//3)*1024} {PFL}')
        else:
            for hf in range(2):
                L += cvt4(A2(i, 2*hf), A2(i, 2*hf), A2(i, 2*hf+1))
                L.append(f'buffer_store_dwordx4 {vr(A2(i,2*hf))}, v9, s[52:55], s{35+i} offen offset:{hf*1024} {PFL}')
        return L
    seq = last[:8] + spread(last[8:12], send(1), per=3) + spread(last[12:], send(2), per=3) + send(3)
    if DEFER:
        steps = [(j, kk) for j in range(16 - DEFER, 16) for kk in range(2)]
        def ownr(n):
            j, kk = steps[n]; r_ = reads2(n & 1, kk, j)
            return [r_[11]] + [r_[k] for k in (1, 2, 3, 4, 6, 7, 9, 10)]
        seq = last[:8] + spread(last[8:12], send(1), per=3) + send(2) + send(3) + ownr(0)
        if STAMPS: seq.append(f'{"s_memtime" if CLK else "s_memrealtime"} s[88:89]')
        for n in range(len(steps)):
            om = [f'{MF} {vr(A2(0,t))}, {vr(FA(n&1,t))}, {vr(FBq(n&1,0))}, {vr(A2(0,t))}' for t in range(4)]
            nx = ownr(n + 1) if n + 1 < len(steps) else []
            if n == FSPLIT:
                seq += ['s_waitcnt vmcnt(0)', 's_mov_b64 exec, 1', f'buffer_store_dwordx2 v[254:255], v253, s[52:55], s42 offen {FLAGF}', 's_mov_b64 exec, -1']
            seq += nx[:3] + interleave(om, nx[3:])
    tl, _ = auto_lgkm(seq, pend)
    for x in tl: p(x)
    if not DEFER: dstamp(p, 8)
    R = 80
    nld = 3 * SZ // 1024
    def loads():
        for k in range(nld):
            p(f'buffer_load_dwordx4 {vr(R+4*k)}, v9, s[52:55], s{(39, 43, 48)[k//4]} offen offset:{(k%4)*1024} sc1')
    if TAGS:
        p(f's_mov_b32 s9, {SPIN_MAX}')
        p('s_mov_b32 s13, 0x100000')
        if TAGS == 2:
            p('v_mul_u32_u24 v238, 3072, v2')
            p('s_mov_b64 exec, 7')
            p('L_lp:')
            p('buffer_load_dword v250, v238, s[52:55], s39 offen offset:2060 sc1')
            p('s_waitcnt vmcnt(0)')
            p('v_subrev_u32 v250, s96, v250')
            p('v_cmp_le_u32 vcc, s13, v250')
            p('s_cbranch_vccz L_lp_ok')
            p(f's_sleep {PSLEEP}')
            p('s_sub_u32 s9, s9, 1')
            p('s_cmp_gt_u32 s9, 1')
            p('s_cbranch_scc1 L_lp')
            p('L_lp_ok:')
            p('s_mov_b64 exec, -1')
        p('L_rx:')
        loads()
        for i in range(3):
            p(f's_waitcnt vmcnt({6 - 3*i})')
            t0 = R + 12*i + 3
            p(f'v_xor_b32 v250, v{t0}, v{t0+4}')
            p(f'v_xor_b32 v251, v{t0}, v{t0+8}')
            if i == 0:
                p('v_or_b32 v252, v250, v251'); p(f'v_sub_u32 v249, v{t0}, v237')
            else:
                p('v_or3_b32 v252, v252, v250, v251'); p(f'v_sub_u32 v250, v{t0}, v237'); p('v_max_u32 v249, v249, v250')
        p('v_cmp_ne_u32 vcc, 0, v252')
        p('v_cmp_le_u32 s[100:101], s13, v249')
        p('s_or_b64 vcc, vcc, s[100:101]')
        p('s_cbranch_scc0 L_rx_ok')
        if SSLEEP: p(f's_sleep {SSLEEP}')
        p('s_sub_u32 s9, s9, 1')
        p('s_cmp_lg_u32 s9, 0')
        p('s_cbranch_scc1 L_rx')
        p('L_rx_ok:')
        dstamp(p, 9); dstamp(p, 10)
    elif SENT:
        p(f's_mov_b32 s9, {SPIN_MAX}')
        p('L_rx:')
        loads()
        n = nld * 4
        for k in range(nld):
            p(f's_waitcnt vmcnt({nld-1-k})')
            b_ = R + 4*k
            if k == 0:
                p(f'v_max3_u32 v252, v{b_}, v{b_+1}, v{b_+2}'); p(f'v_max_u32 v252, v252, v{b_+3}')
            else:
                p(f'v_max3_u32 v252, v252, v{b_}, v{b_+1}'); p(f'v_max3_u32 v252, v252, v{b_+2}, v{b_+3}')
        p('v_cmp_eq_u32 vcc, -1, v252')
        p('s_cbranch_vccz L_rx_ok')
        if SSLEEP: p(f's_sleep {SSLEEP}')
        p('s_sub_u32 s9, s9, 1')
        p('s_cmp_lg_u32 s9, 0')
        p('s_cbranch_scc1 L_rx')
        p('L_rx_ok:')
        dstamp(p, 9); dstamp(p, 10)
    else:
        if not (DEFER and FSPLIT < 2*DEFER):
            p('s_waitcnt vmcnt(0)')
            p('s_mov_b64 exec, 1')
            p(f'buffer_store_dwordx2 v[254:255], v253, s[52:55], s42 offen {FLAGF}')
        dstamp(p, 9)
        p('s_lshl_b32 s14, 1, s10'); p('s_xor_b32 s14, s14, 15'); p('s_mov_b32 s15, 0')
        if PSRC and not PF32:
            p('s_mov_b64 exec, s[14:15]')
            p(f'buffer_load_dwordx2 v[250:251], v248, s[52:55], s40 offen {POLLF}')
            p('s_waitcnt vmcnt(0)')
            p('v_cmp_gt_u64 vcc, s[96:97], v[250:251]')
            p('v_cmp_lt_u64 s[100:101], s[98:99], v[250:251]')
            p('s_mov_b64 exec, -1')
            p('s_or_b64 s[14:15], vcc, s[100:101]')
            def part(i, lbl, want):
                p(f's_xor_b32 s13, s10, {i}')
                p('s_bitcmp1_b32 s14, s13')
                p(f's_cbranch_scc{0 if want else 1} {lbl}')
                for k in (2*(i-1), 2*(i-1)+1):
                    p(f'buffer_load_dwordx4 {vr(R+4*k)}, v9, s[52:55], s{(39, 43, 48)[k//4]} offen offset:{(k%4)*1024} sc1')
                p(f'{lbl}:')
            for i in (1, 2, 3): part(i, f'L_e{i}', 0)
            p('s_cmp_eq_u32 s14, 0')
            p('s_cbranch_scc1 L_allin')
            poll_flags(p, 'L_pf2', 248, 250, 's40', 's[14:15]')
            for i in (1, 2, 3): part(i, f'L_l{i}', 1)
            p('L_allin:')
            dstamp(p, 10)
            p('s_waitcnt vmcnt(0)')
        else:
            poll_flags(p, 'L_pf2', 248, 250, 's40', 's[14:15]')
            dstamp(p, 10)
            loads()
    for i in range(3):
        if PF32:
            if not SENT: p(f's_waitcnt vmcnt({nld - 4*(i+1)})')
            for t in range(4):
                for r in range(4):
                    p(f'v_add_f32 v{A2(0,t)+r}, v{A2(0,t)+r}, v{R+16*i+4*t+r}')
        else:
            if not SENT and not TAGS: p(f's_waitcnt vmcnt({nld - 2*(i+1)})')
            for t in range(4):
                for r2 in range(2):
                    src = R + 8*i + 2*t + r2
                    if TAGS:
                        k = 2*t + r2; src = R + 12*i + 4*(k//3) + k%3
                    p(f'v_lshlrev_b32 v250, 16, v{src}')
                    p(f'v_and_b32 v251, 0xffff0000, v{src}')
                    p(f'v_add_f32 v{A2(0,t)+2*r2}, v{A2(0,t)+2*r2}, v250')
                    p(f'v_add_f32 v{A2(0,t)+2*r2+1}, v{A2(0,t)+2*r2+1}, v251')
    if WIDE:
        for v in range(2):
            a = A2(0, 2*v)
            for x in cvt4(a, a, A2(0, 2*v+1)): p(x)
            p(f'v_permlane16_swap_b32 v{a}, v{a+2}')
            p(f'v_permlane16_swap_b32 v{a+1}, v{a+3}')
            p(f'buffer_store_dwordx4 {vr(a)}, v7, s[44:47], s41 offen offset:{v*64} {OUTF}')
    else:
        for t in range(4):
            a = A2(0, t)
            p(f'v_cvt_pk_bf16_f32 v{a}, v{a}, v{a+1}')
            p(f'v_cvt_pk_bf16_f32 v{a+1}, v{a+2}, v{a+3}')
            p(f'buffer_store_dwordx2 {vr(a,2)}, v7, s[44:47], s41 offen offset:{t*32} {OUTF}')
    if STAMPS:
        p('s_waitcnt vmcnt(0)')
        dstamp(p, 11)
    p('L_cdone:')
    flush_stamps(p, 12, 0, 0, 'L_fsC')
    p('L_end:')
    p('s_endpgm')
    return p.finalize()


DOC = """; ---------------------------------------------------------------------------------------------
; ---------------------------------------------------------------------------------------------
"""

if __name__ == '__main__':
    out = HDR
    out += '; @launch grid=(256,1,1) block=(512,1,1) lds=163840\n'
    out += DOC
    out += '.amdgcn_target "amdgcn-amd-amdhsa--gfx950"\n.text\n'
    out += gen() + '\n'
    out += '.section .rodata,"a"\n' + kd(NAME + '_kernel', 256, 102)
    print(out)
```

```python
from common import *
from asmlib import auto_lgkm as _al
CAP = opt('cap', 8)
def auto_lgkm(l, pnd=None): return _al(l, pnd, CAP)
XFL = opt('xfl', 'none').replace('none', '')
WFL2 = opt('wfl2', 'none').replace('none', '')
OFL = opt('ofl', 'sc1').replace('none', '').replace('_', ' ')
ORFL = opt('orfl', 'sc1').replace('none', '').replace('_', ' ')
LAG = opt('lag', 7)
PATA = opt('pata', 's0 s1 s2 s3 K1 s4 s5 Kb ka s6 s7 v0 s8 s9 v1 Wa Wb').replace('_', ' ')
PATB = opt('patb', 's0 s1 s2 s3 K1 s4 s5 Kb ka s6 s7 v0 s8 s9 v1 Wa Wb').replace('_', ' ')
PATSEL = opt('patsel', 6)
if opt('sent', 0) == 3 and 'Z' not in PATA: PATA += ' Z'; PATB += ' Z'
NA = opt('na', 5)
PF32 = opt('pf32', 0)
LPRIO = opt('lprio', 0)
LAG8 = opt('lag8', 10)
LAG7 = opt('lag7', 10)
NOB9 = opt('nob9', 1)
AEARLY = opt('aearly', 2)
NEB = opt('neb', 0)
SWAPR = opt('swapr', 0)
CPRIO = opt('cprio', 0)
B11 = opt('b11', 0)
PSRC = opt('psrc', 0)
VW = opt('vw', 0)
ORH = opt('orh', 0)
WGF = opt('wgf', 0)
OUTF = opt('outf', 'none').replace('none', '').replace('_', ' ')
WIDE = opt('wide', 0)
FWARM = opt('fwarm', 3)
DEFER = opt('defer', 4)
FSPLIT = opt('fsplit', 8)
POLLF = opt('pollf', 'sc1').replace('_', ' ')
FLAGF = opt('flagf', 'sc1').replace('_', ' ')
PUB = opt('pub', 1)
assert opt('half', 1) or not opt('wgf', 0)
assert not (opt('early', 0) and opt('lowd', 2) != 3)
WLAG = opt('wlag', 10)
ORC = opt('orc', 0)
PK = opt('pk', 0)
LOWD = opt('lowd', 2)
EARLY = opt('early', 0)
LAG0 = opt('lag0', 7)
LAGE = opt('lage', 5)
SNAKE = opt('snake', 1)
NAT = opt('nat', 5)
BURST = opt('burst', 0)
PER1 = opt('per1', 1)
XNOP = opt('xnop', 0)
HALF = opt('half', 1)
FAPOS = opt('fapos', 2)
SENT = opt('sent', 0)
SSLEEP = opt('ssleep', 1)
PFS = opt('pfs', 0)
PF0 = opt('pf0', 0)
PFN = opt('pfn', 10)
FAKEWO = opt('fakewo', 0)
NOPOLL = opt('nopoll', 0)
FASTP = opt('fastp', 0)
WOFL = opt('wofl', 'none').replace('none', '')
WOFL2 = opt('wofl2', 'none').replace('none', '')
PFL = opt('pfl', 'sc1').replace('_', ' ')
CPF2 = opt('cpf2', 6)
CPF4 = opt('cpf4', -9)
RPF = opt('rpf', 0)
PEEL = opt('peel', 0)
SOFFS = opt('soffs', 1)
WOA = opt('woa', 0)
WOB = opt('wob', 0)
ROT2 = opt('rot2', 0)
CPF = opt('cpf', 0)
ROT = opt('rot', 1)
RB = opt('rb', '0358')
RH = opt('rh', '03603603')
RK = opt('rk', '0120')
OEARLY = opt('oearly', 1)
KVFL = opt('kvfl', 'nt').replace('none', '')
TICKET = opt('ticket', 0)
CFL = opt('cfl', 'none').replace('none', '')
PSLEEP = opt('psleep', 2)
XS, WS_, SP = 0, 73728, 122880
KB0 = SP - 8192; KB1 = KB0 + 24576
VB0 = XS + 2*24576; VB1 = XS
NWS = opt('nws', 6); NOS = opt('nos', 4)
CPF3 = opt('cpf3', 8)
UNR = opt('unr', 1)
DIAG = opt('diag', 1)
NB2 = opt('nb2', 4)
O_L = 0; WO_L = NOS * 16384
NE = opt('ne', 0); N1 = opt('n1', 6); N2 = opt('n2', 0); LAG2 = opt('lag2', 16)
FS1 = opt('fs1', 3); FS2 = opt('fs2', 7)
FBO = 1024 if FS1 == 3 else 8
GST = 1572864 + 28672
O_OFF = 4096; F1_OFF = O_OFF + 1572864; GT_OFF = F1_OFF + 20480
INBOX = 16 << 20
TAGS = opt('tags', 0)
SZ = 4096 if PF32 else (3072 if TAGS else 2048)
assert not (TAGS and (PF32 or opt('sent', 0)))
RST = 48 * SZ + 4096
I_OFF = 1024; F2_OFF = I_OFF + 48 * SZ; RT_OFF = F2_OFF + 2048
WS_SIZE = 48 << 20
TOUCH = opt('touch', 0)
MF = 'v_mfma_f32_16x16x32_bf16'
SPIN_MAX = 1 << 24

def dstamp(p, k):
    if STAMPS: p(f'{"s_memtime" if CLK else "s_memrealtime"} s[{72+2*k}:{73+2*k}]')
def flush_stamps(p, n, base_idx, wave, lbl):
    if not STAMPS: return
    p(f's_cmp_lg_u32 s3, {wave}'); p(f's_cbranch_scc1 {lbl}')
    p('s_waitcnt lgkmcnt(0) vmcnt(0)')
    p('v_mov_b32 v1, 0')
    p('s_mov_b64 exec, 1')
    for k in range(n):
        p(f'v_mov_b32 v{4+2*k}, s{72+2*k}'); p(f'v_mov_b32 v{5+2*k}, s{73+2*k}')
        p(f'buffer_store_dwordx2 v[{4+2*k}:{5+2*k}], v1, s[56:59], s60 offen offset:{(base_idx+k)*8}')
    p('s_waitcnt vmcnt(0)')
    p(f'{lbl}:')
def poll_flags(p, lbl, vaddr, vtmp, soff, maskreg):
    p(f's_mov_b32 s9, {SPIN_MAX}')
    p(f's_mov_b64 exec, {maskreg}')
    p(f'{lbl}:')
    p(f'buffer_load_dwordx2 v[{vtmp}:{vtmp+1}], v{vaddr}, s[52:55], {soff} offen {POLLF}')
    p('s_waitcnt vmcnt(0)')
    p(f'v_cmp_gt_u64 vcc, s[96:97], v[{vtmp}:{vtmp+1}]')
    p(f'v_cmp_lt_u64 s[100:101], s[98:99], v[{vtmp}:{vtmp+1}]')
    p('s_or_b64 vcc, vcc, s[100:101]')
    p(f's_cbranch_scc0 {lbl}_ok')
    p(f's_sleep {PSLEEP}')
    p('s_sub_u32 s9, s9, 1')
    p('s_and_b32 s100, s9, 127')
    p(f's_cbranch_scc1 {lbl}')
    p('s_lshl_b32 s100, s6, 7')
    p('s_load_dwordx2 s[100:101], s[34:35], s100 glc')
    p('s_waitcnt lgkmcnt(0)')
    p('s_cmp_eq_u64 s[100:101], 0')
    p(f's_cbranch_scc1 {lbl}_nz')
    p('s_not_b64 s[96:97], s[100:101]')
    p(f'{lbl}_nz:')
    p('s_cmp_lg_u32 s9, 0')
    p(f's_cbranch_scc1 {lbl}')
    p(f'{lbl}_ok:')
    p('s_mov_b64 exec, -1')

def cvt4(d, a0, a1):
    return [f'v_cvt_pk_bf16_f32 v{d}, v{a0}, v{a0+1}', f'v_cvt_pk_bf16_f32 v{d+1}, v{a0+2}, v{a0+3}',
            f'v_cvt_pk_bf16_f32 v{d+2}, v{a1}, v{a1+1}', f'v_cvt_pk_bf16_f32 v{d+3}, v{a1+2}, v{a1+3}']
def spread(main, fill, extra=(), per=1):
    out = []; fi = 0; ei = 0
    for m in main:
        out.append(m)
        for _ in range(per):
            if fi < len(fill): out.append(fill[fi]); fi += 1
        if ei < len(extra): out.append(extra[ei]); ei += 1
    return out + list(fill[fi:]) + list(extra[ei:])

def p2_ids(p):
    p('s_mul_i32 s66, s5, 52'); p('s_lshr_b32 s66, s66, 8')
    p('s_mul_i32 s67, s66, 5'); p('s_sub_u32 s67, s5, s67')
    p('s_and_b32 s10, s4, 3')

def gen():
    p = Prog()
    K1 = NAME + '_kernel'
    p(f'.globl {K1}\n.p2align 8\n.type {K1},@function\n{K1}:')
    p('s_cmp_ge_u32 s2, 256')
    p('s_cbranch_scc1 L_end')
    p('s_load_dwordx8 s[16:23], s[0:1], 0')
    p('s_memrealtime s[96:97]')
    p('s_load_dwordx8 s[24:31], s[0:1], 40')
    p('s_load_dwordx4 s[32:35], s[0:1], 88')
    dstamp(p, 0)
    p('v_lshrrev_b32 v1, 6, v0')
    p('v_and_b32 v2, 63, v0')
    p('v_readfirstlane_b32 s3, v1')
    if TICKET:
        p('v_mov_b32 v5, 0')
        p('s_cmp_lg_u32 s3, 0')
        p('s_cbranch_scc1 L_tk_wait')
        p('s_getreg_b32 s4, hwreg(HW_REG_XCC_ID)')
        p('s_and_b32 s4, s4, 7')
        p('s_waitcnt lgkmcnt(0)')
        p('L_tk_try:')
        p('s_lshl_b32 s5, s4, 5')
        p('s_add_u32 s5, s5, 16')
        p('s_mov_b32 s6, 1')
        p('s_atomic_add s6, s[32:33], s5 glc')
        p('s_waitcnt lgkmcnt(0)')
        p('s_cmp_lt_u32 s6, 32')
        p('s_cbranch_scc1 L_tk_ok')
        p('s_add_u32 s4, s4, 1')
        p('s_and_b32 s4, s4, 7')
        p('s_branch L_tk_try')
        p('L_tk_ok:')
        p('s_lshl_b32 s6, s6, 3')
        p('s_add_u32 s6, s6, s4')
        p('v_mov_b32 v6, s6')
        p('ds_write_b32 v5, v6')
        p('s_waitcnt lgkmcnt(0)')
        p('L_tk_wait:')
        p('s_barrier')
        p('ds_read_b32 v6, v5')
        p('s_waitcnt lgkmcnt(0)')
        p('v_readfirstlane_b32 s2, v6')
        p('s_barrier')
        p('s_and_b32 s2, s2, 255')
    if SWAPR: p('s_xor_b32 s3, s3, 4')
    p('s_and_b32 s4, s2, 7')
    p('s_lshr_b32 s5, s2, 3')
    p('s_lshr_b32 s6, s4, 2')
    p('s_and_b32 s7, s4, 3')
    p('s_lshl_b32 s7, s7, 3')
    p('s_and_b32 s66, s5, 7')
    p('s_add_u32 s7, s7, s66')
    p('s_lshr_b32 s8, s5, 3')
    p('v_lshrrev_b32 v3, 4, v2')
    p('v_and_b32 v4, 15, v2')
    p('s_cmp_lt_u32 s3, 4')
    p('s_cbranch_scc1 L_compute')
    if LPRIO: p(f's_setprio {LPRIO}')
    p('s_and_b32 s11, s3, 3')
    p('v_lshrrev_b32 v5, 3, v2')
    p('s_lshl_b32 s12, s11, 3')
    p('v_add_u32 v5, s12, v5')
    p('v_mul_u32_u24 v5, 1280, v5')
    p('s_and_b32 s12, s11, 1')
    p('s_lshl_b32 s12, s12, 2')
    p('v_add_u32 v6, s12, v3')
    p('v_and_b32 v7, 7, v2')
    p('v_xor_b32 v7, v7, v6')
    p('v_lshl_add_u32 v11, v7, 4, v5')
    p('v_lshlrev_b32 v6, 1, v6')
    p('v_xor_b32 v8, v6, v4')
    p('s_lshl_b32 s12, s11, 2')
    p('v_add_u32 v5, s12, v3')
    p('s_lshr_b32 s12, s11, 1')
    p('s_lshl_b32 s12, s12, 2')
    p('v_add_u32 v6, s12, v3')
    p('v_lshlrev_b32 v6, 1, v6')
    p('v_xor_b32 v6, v6, v4')
    p('v_lshlrev_b32 v7, 13, v5')
    p('v_lshl_add_u32 v12, v6, 4, v7')
    p('s_lshl_b32 s13, s11, 10')
    tb = sum(int(c) << (4*i) for i, c in enumerate(RB)); th = sum(int(c) << (4*i) for i, c in enumerate(RH))
    p('s_lshl_b32 s69, s8, 2'); p(f's_lshr_b32 s69, {tb:#x}, s69'); p('s_and_b32 s69, s69, 15')
    p('s_lshl_b32 s70, s66, 2'); p(f's_lshr_b32 s70, {th:#x}, s70'); p('s_and_b32 s70, s70, 15')
    p('s_add_u32 s69, s69, s70')
    p('s_cmp_ge_u32 s69, 10'); p('s_cselect_b32 s71, 10, 0'); p('s_sub_u32 s69, s69, s71')
    if RK != '0000':
        tk = sum(int(c) << (4*i) for i, c in enumerate(RK))
        p('s_and_b32 s70, s4, 3'); p('s_lshl_b32 s70, s70, 2'); p(f's_lshr_b32 s70, {tk:#x}, s70'); p('s_and_b32 s70, s70, 15')
        p('s_add_u32 s69, s69, s70')
        p('s_cmp_ge_u32 s69, 10'); p('s_cselect_b32 s71, 10, 0'); p('s_sub_u32 s69, s69, s71')
    p('s_mul_i32 s9, s8, 245760')
    p('s_lshl_b32 s10, s7, 8')
    p('s_waitcnt lgkmcnt(0)')
    p('s_cmp_eq_u32 s6, 0')
    for i in range(4):
        p(f's_cselect_b64 s[{16+2*i}:{17+2*i}], s[{16+2*i}:{17+2*i}], s[{24+2*i}:{25+2*i}]')
    p('s_add_u32 s36, s16, s9'); p('s_addc_u32 s37, s17, 0')
    p('s_mov_b32 s38, 245760'); p('s_mov_b32 s39, 0x20000')
    p('s_add_u32 s40, s22, s10'); p('s_addc_u32 s41, s23, 0')
    p('s_sub_u32 s42, 5242880, s10'); p('s_mov_b32 s43, 0x20000')
    def late_setup(p):
        p('v_lshlrev_b32 v7, 8, v5')
        p('v_lshl_add_u32 v13, v8, 4, v7')
        p('v_xor_b32 v6, v4, v5')
        p('v_lshl_add_u32 v10, v6, 4, v7')
        p('s_lshl_b32 s12, s8, 6'); p('s_add_u32 s12, s12, s7'); p('s_mul_i32 s12, s12, 24576')
        p('s_add_u32 s44, s18, s12'); p('s_addc_u32 s45, s19, 0')
        p(f's_mov_b32 s46, {786432+24576}'); p('s_mov_b32 s47, 0x20000')
        p('s_add_u32 s48, s20, s12'); p('s_addc_u32 s49, s21, 0')
        p(f's_mov_b32 s50, {786432+24576}'); p('s_mov_b32 s51, 0x20000')
        p(f's_load_dwordx2 s[16:17], s[0:1], {0 if FAKEWO else 32}')
        p(f's_load_dwordx2 s[18:19], s[0:1], {40 if FAKEWO else 72}')
        srd(p, 52, 34, 35, WS_SIZE)
        p('s_mov_b32 s98, s96'); p('s_add_u32 s99, s97, 1')
        stamp_setup(p, 34, 35)
        p('s_mov_b64 s[34:35], s[32:33]')
        if CPF2 >= 0:
            p('s_getpc_b64 s[22:23]')
            p('L_pc2:')
            p('s_lshl_b32 s9, s5, 2'); p('s_add_u32 s9, s9, s11'); p('s_lshl_b32 s9, s9, 8')
            p(f's_min_u32 s9, s9, L_end-L_ld2-192')
            p(f's_add_u32 s9, s9, L_ld2-L_pc2')
            p('s_add_u32 s22, s22, s9'); p('s_addc_u32 s23, s23, 0')
        p('s_not_b64 s[20:21], s[96:97]')
        p('s_lshl_b32 s67, s6, 7')
        p('s_lshl_b32 s68, s11, 3')
        if PUB == 1: p('s_add_u32 s68, s68, s66')

    afterV = []
    def loader(pat, tag):
        p = Prog()
        stream = []
        for w in pat.split():
            if w[0] == 's': stream += [('x' + w[1:], m) for m in range(6)] + [('w' + w[1:], m) for m in range(4)]
            elif w[0] in 'xw': stream += [(w, m) for m in range(6 if w[0] == 'x' else 4)]
            elif w == 'ka': stream += [('k0', m) for m in range(2)]
            elif w == 'Z': stream += [('Z0', m) for m in range(3 * SZ // 1024)]
            elif w[0] == 'W' and w[1:].isdigit():
                k0_ = sum(1 for it, m in stream if it == 'W0')
                stream += [('W0', m) for m in range(k0_, k0_ + int(w[1:]))]
            elif w == 'Wa': stream += [('W0', m) for m in range(5)]
            elif w == 'Wb': stream += [('W0', m) for m in range(5, 10)]
            elif w == 'Ka': stream += [('K0', m) for m in range(2)]
            elif w == 'Kb': stream += [('K0', m) for m in range(2, 6)]
            else: stream += [(w, m) for m in range(6)]
        n = len(stream)
        end = {}
        for i, (it, m) in enumerate(stream):
            if it[0] in 'xw': end[int(it[1:])] = i + 1
        staged = [(i, it, m) for i, (it, m) in enumerate(stream) if it[0] in 'kv']
        end[10] = max(max(i for i, (it, m) in enumerate(stream) if it[0] in 'Kk') + 1, end[9])
        endst = max([x[0] + 1 for x in staged] + [end[9]])
        end[11] = max(max(i for i, (it, m) in enumerate(stream) if it[0] in 'Vv') + 1, end[10])
        lastV = end[11]
        def need(it, m):
            if it[0] in 'xw': return int(it[1:]) - 3
            if it == 'K0': return 7 if m < 2 else -9
            if it in ('K1', 'W0', 'Z0', 'k0', 'v0', 'v1'): return -9
            return 7 if it == 'V0' else 8
        bpos = {}; prev = 0
        for s in range(-1, 11):
            pos = min(end[s+1] + (LAG0 if s == -1 else (LAG7 if s == 7 and LAG7 else LAG)), n)
            if s == 9: pos = max(pos, min(lastV, n))
            if staged and s in (8, 9):
                fd = min([i for i, (it, m) in enumerate(stream) if i >= endst and it[0] in 'xwKV'] + [n])
                pos = min(min(end[9] + (LAG8 or LAG), n), fd) if s == 8 else min(endst + WLAG, n, fd)
            if staged and s == 10 and all(it[0] not in 'V' for it, m in stream): pos = n
            first_needing = min([i for i, (it, m) in enumerate(stream) if need(it, m) >= s and need(it, m) >= 0] + [n])
            pos = min(pos, first_needing)
            assert pos >= end[s+1], (s, pos, end[s+1])
            pos = max(pos, prev); bpos[s] = pos; prev = pos
        passed = [-2]
        def pf(s):
            if not PFS or s < PF0 or s >= PF0 + PFN: return
            tot = 10240 // PFS
            k = s - PF0
            for i in range(k * tot // PFN, (k + 1) * tot // PFN):
                p(f's_load_dword s28, s[26:27], {i*PFS}')
        def barrier(s, issued):
            if PFS and s == -1:
                p('s_waitcnt lgkmcnt(0)')
                p('s_cmp_eq_u32 s6, 0')
                p('s_cselect_b64 s[26:27], s[16:17], s[18:19]')
                p('s_and_b32 s9, s4, 3'); p('s_lshl_b32 s9, s9, 5'); p('s_add_u32 s9, s9, s5'); p('s_lshl_b32 s9, s9, 2'); p('s_add_u32 s9, s9, s11')
                p('s_mul_i32 s9, s9, 10240')
                p('s_add_u32 s26, s26, s9'); p('s_addc_u32 s27, s27, 0')
            pf(s)
            p(f's_waitcnt vmcnt({issued - end[s+1]})')
            def wr_(kinds):
                for k_, (i_, it_, m_) in enumerate(staged):
                    if it_ not in kinds: continue
                    ad = {'k0': KB0, 'v0': VB0, 'v1': VB1}[it_] + m_*4096
                    p(f'ds_write_b128 v{15 + (ad >> 16)}, {vr(32+4*k_)} offset:{ad & 0xffff}')
            if NOB9 and s == 8:
                assert staged and max(i_ for i_, it_, m_ in staged if it_ != 'v1') < end[9]
                p('v_lshl_add_u32 v15, v2, 4, s13')
                p('v_add_u32 v16, 0x10000, v15')
                wr_(('k0', 'v0') if NOB9 == 2 else ('k0',))
                p('s_waitcnt lgkmcnt(0)')
            if NOB9 and s == 9:
                passed[0] = s
                p(f's_waitcnt vmcnt({issued - endst})')
                wr_(('v1',) if NOB9 == 2 else ('v0', 'v1'))
                return
            if s == 9 and staged:
                p('v_lshl_add_u32 v15, v2, 4, s13')
                p('v_add_u32 v16, 0x10000, v15')
                if VW != 2: wr_(('k0', 'v0') if VW == 1 else ('k0',))
                p('s_waitcnt lgkmcnt(0)')
            if (s == 10 and staged) or (s == 9 and not staged): p('s_waitcnt lgkmcnt(0)')
            if s == 10: dstamp(p, 5)
            p(f's_barrier      ; B_{s}')
            passed[0] = s
            if (PUB == 0 and s == 1) or (PUB == 1 and -1 <= s <= 6):
                p(f's_cmp_lg_u32 s68, {s+1 if PUB == 1 else 0}')
                p(f's_cbranch_scc1 L_nopub{tag}{s+1}')
                p('s_atomic_umax_x2 s[20:21], s[34:35], s67 glc')
                p(f'L_nopub{tag}{s+1}:')
            if s == 8 and staged and VW == 2:
                p('v_lshl_add_u32 v15, v2, 4, s13')
                p('v_add_u32 v16, 0x10000, v15')
                wr_(('k0', 'v0'))
            if s == 9 and staged:
                assert issued >= endst
                p(f's_waitcnt vmcnt({issued - endst})')
                wr_(('v1',) if VW else ('v0', 'v1'))
            if s == CPF2 or s == CPF4:
                p('s_load_dword s24, s[22:23], 0x0'); p('s_load_dword s25, s[22:23], 0x40'); p('s_load_dword s24, s[22:23], 0x80'); p('s_load_dword s25, s[22:23], 0xc0')
            if s in (-1, 2, 5, 8): dstamp(p, 1 + (s+1)//3)
        last_item = None
        for i, (it, m) in enumerate(stream):
            if i == 10: late_setup(p)
            if EARLY and i == 8 + LAGE:
                assert stream[7] == ('w0', 1) and i <= bpos[-1]
                p(f's_waitcnt vmcnt({LAGE})')
                p('s_barrier      ; B_-2')
            for s in range(-1, 11):
                if bpos[s] == i and passed[0] < s: barrier(s, i)
            assert need(it, m) <= passed[0] or need(it, m) < 0
            if it[0] in 'xw':
                t = int(it[1:]); slot = (t + 1) % 3
                if it != last_item:
                    p(f's_add_u32 s70, s69, {t}')
                    p('s_cmp_ge_u32 s70, 10'); p('s_cselect_b32 s71, 10, 0'); p('s_sub_u32 s70, s70, s71')
                    p(f's_lshl_b32 s64, s70, {7 if it[0]=="x" else 19}')
                if it[0] == 'x':
                    p(f's_add_u32 m0, s13, {XS + slot*24576 + m*4096}')
                    p(f's_add_u32 s14, s64, {m*40960}')
                    p(f'buffer_load_dwordx4 v11, s[36:39], s14 offen {XFL} lds')
                else:
                    p(f's_add_u32 m0, s13, {WS_ + slot*16384 + m*4096}')
                    p(f's_add_u32 s14, s64, {m*131072}')
                    p(f'buffer_load_dwordx4 v12, s[40:43], s14 offen {CFL if t < 3 else WFL2} lds')
            elif it[0] in 'kv':
                b = int(it[1]); k_ = [x[0] for x in staged].index(i)
                vo, sr = (10, 44) if it[0] == 'k' else (13, 48)
                p(f's_mov_b32 s14, {b*786432 + m*4096}')
                p(f'buffer_load_dwordx4 {vr(32+4*k_)}, v{vo}, s[{sr}:{sr+3}], s14 offen {KVFL}')
            elif it == 'Z0':
                if m == 0:
                    p('s_and_b32 s10, s4, 3')
                    p('s_lshl_b32 s61, s6, 5'); p('s_add_u32 s61, s61, s5'); p(f's_mul_i32 s61, s61, {RST}'); p(f's_add_u32 s61, s61, {INBOX}')
                    p('s_lshl_b32 s9, s10, 2'); p('s_add_u32 s9, s9, s11'); p(f's_mul_i32 s9, s9, {3*SZ}'); p('s_add_u32 s9, s9, s61')
                    p('v_lshlrev_b32 v15, 4, v2')
                    for i_ in range(4): p(f'v_mov_b32 v{24+i_}, -1')
                p(f's_add_u32 s14, s9, {I_OFF + m*1024}')
                p('buffer_store_dwordx4 v[24:27], v15, s[52:55], s14 offen sc1')
            elif it == 'W0':
                if m == 0:
                    p('s_waitcnt lgkmcnt(0)')
                    p('s_cmp_eq_u32 s6, 0')
                    p('s_cselect_b64 s[28:29], s[16:17], s[18:19]')
                    p('s_mov_b32 s30, 5242880'); p('s_mov_b32 s31, 0x20000')
                    p('s_and_b32 s10, s4, 3'); p('s_lshl_b32 s10, s10, 5'); p('s_add_u32 s10, s10, s5'); p('s_mul_i32 s10, s10, 40960')
                    p('v_lshl_add_u32 v15, v2, 4, s13')
                p(f's_add_u32 s14, s10, {m*4096}')
                p('buffer_load_dwordx4 v[20:23], v15, s[28:31], s14 offen')
            else:
                b = int(it[1])
                addr = {'K0': KB0, 'K1': KB1, 'V0': VB0, 'V1': VB1}[it] + m*4096
                vo, sr = (10, 44) if it[0] == 'K' else (13, 48)
                p(f's_add_u32 m0, s13, {addr}')
                p(f's_mov_b32 s14, {b*786432 + m*4096}')
                p(f'buffer_load_dwordx4 v{vo}, s[{sr}:{sr+3}], s14 offen {KVFL} lds')
            last_item = it
        for s in range(-1, 11):
            if passed[0] < s: barrier(s, n)
        return p.lines
    la = loader(PATA, 'A'); lb = loader(PATB, 'B')
    k = 0
    while k < min(len(la), len(lb)) and la[k].replace('nopubA', 'nopub') == lb[k].replace('nopubB', 'nopub'): k += 1
    while k < len(la) and not la[k-1].startswith('buffer_load'): k -= 1
    for x in la[:k]: p(x)
    if k < len(la) or k < len(lb):
        p(f's_bitcmp1_b32 s2, {PATSEL}')
        p('s_cbranch_scc1 L_patB')
        for x in la[k:]: p(x)
        p('s_branch L_ld2')
        p('L_patB:')
        for x in lb[k:]: p(x)
    p('L_ld2:')
    def wgflag(off, lbl):
        p('s_cmp_lg_u32 s3, 5')
        p(f's_cbranch_scc1 {lbl}')
        p('s_mov_b64 exec, 1')
        p(f'buffer_store_dwordx2 v[28:29], v30, s[52:55], s68 offen offset:{off} {FLAGF}')
        p('s_mov_b64 exec, -1')
        p(f'{lbl}:')
    if WGF:
        p('s_memrealtime s[24:25]')
        p(f's_lshl_b32 s68, s5, {FS1}'); p(f's_mul_i32 s9, s4, {GST}'); p('s_add_u32 s68, s68, s9'); p(f's_add_u32 s68, s68, {F1_OFF}')
        p('v_mov_b32 v30, 0')
        p('s_waitcnt lgkmcnt(0)')
        p('v_mov_b32 v28, s24'); p('v_mov_b32 v29, s25')
    p('s_cmp_ge_u32 s5, 30')
    p('s_cbranch_scc1 L_ld_idle')
    p2_ids(p)
    p('s_waitcnt lgkmcnt(0)')
    p('s_cmp_eq_u32 s6, 0')
    p('s_cselect_b64 s[16:17], s[16:17], s[18:19]')
    p(f's_mul_i32 s9, s10, {0 if FAKEWO else 1310720}')
    p('s_lshl_b32 s12, s67, 8')
    p('s_add_u32 s9, s9, s12')
    p('s_add_u32 s36, s16, s9'); p('s_addc_u32 s37, s17, 0')
    p(f's_sub_u32 s38, {983040 if FAKEWO else 1310720}, s12'); p('s_mov_b32 s39, 0x20000')
    p('v_mul_u32_u24 v7, 1280, v5')
    p('v_lshl_add_u32 v12, v8, 4, v7')
    p('v_lshl_add_u32 v11, v2, 4, s13')
    p('s_mul_i32 s69, s66, 43'); p('s_lshr_b32 s69, s69, 4')
    p(f's_mul_i32 s70, s67, {ROT2}'); p('s_add_u32 s69, s69, s70'); p(f's_and_b32 s69, s69, {14 if HALF else 15}')
    p(f's_mul_i32 s65, s4, {GST}')
    p('s_lshl_b32 s12, s66, 13'); p('s_add_u32 s65, s65, s12'); p(f's_add_u32 s65, s65, {O_OFF}')
    p('s_mul_i32 s70, s69, 81920')
    p('s_mul_i32 s71, s69, 98304')
    p('s_add_u32 s71, s71, s65')
    p(f's_add_u32 s63, s65, {16*98304}')
    cnt = [0]
    endo = {}; endw = {}
    def wo_issue(k):
        fl = WOFL if k < 3 else WOFL2
        for m in range(4):
            p(f's_add_u32 m0, s13, {WO_L + ((k + 1) % NWS)*16384 + m*4096}')
            p(f's_add_u32 s14, s70, {m*20480}')
            p(f'buffer_load_dwordx4 v12, s[36:39], s14 offen {fl} lds')
        if HALF:
            p(f's_add_u32 s70, s70, {2*81920}')
            p(f's_cmp_ge_u32 s70, {16*81920}')
            p(f's_cselect_b32 s12, {16*81920}, 0'); p('s_sub_u32 s70, s70, s12')
            if k == 7: p('s_add_u32 s70, s70, 81920')
        else:
            p('s_add_u32 s70, s70, 81920')
            p(f's_cmp_eq_u32 s70, {16*81920}')
            p('s_cselect_b32 s70, 0, s70')
        cnt[0] += 4; endw[k] = cnt[0]
    def o_issue(k):
        if HALF and k == 8:
            p(f's_waitcnt vmcnt({cnt[0] - endo["f"]})')
            p('s_mov_b64 exec, s[20:21]')
            p('v_cmp_gt_u64 vcc, s[96:97], v[16:17]')
            p('v_cmp_lt_u64 s[100:101], s[98:99], v[16:17]')
            p('s_mov_b64 exec, -1')
            p('s_or_b64 vcc, vcc, s[100:101]')
            p('s_cbranch_scc0 L_fb_ok')
            p(f's_add_u32 s15, s15, {FBO}')
            poll_flags(p, 'L_pf1b', 14, 16, 's15', 's[20:21]')
            p('L_fb_ok:')
        for m in range(4):
            p(f's_add_u32 m0, s13, {O_L + (k % NOS)*16384 + m*4096}')
            p(f's_add_u32 s14, s71, {(0, 4096, 49152, 53248)[m]}')
            p(f'buffer_load_dwordx4 v11, s[52:55], s14 offen {ORFL} lds')
        if HALF:
            p(f's_add_u32 s71, s71, {2*98304}')
            p('s_cmp_ge_u32 s71, s63')
            p(f's_cselect_b32 s12, {16*98304}, 0'); p('s_sub_u32 s71, s71, s12')
            if k == 7: p('s_add_u32 s71, s71, 98304')
        else:
            p('s_add_u32 s71, s71, 98304')
            p('s_cmp_eq_u32 s71, s63')
            p('s_cselect_b32 s71, s65, s71')
        cnt[0] += 4; endo[k] = cnt[0]
        if HALF and k == 5:
            p('s_mov_b64 exec, s[20:21]')
            p(f'buffer_load_dwordx2 v[16:17], v14, s[52:55], s15 offen offset:{FBO} sc1')
            p('s_mov_b64 exec, -1')
            cnt[0] += 1; endo['f'] = cnt[0]
    if WGF:
        p('s_mul_i32 s12, s66, 43'); p('s_lshr_b32 s12, s12, 6'); p(f's_lshl_b32 s12, s12, {FS1+3}')
    else:
        p('s_mul_i32 s12, s66, 171'); p('s_lshr_b32 s12, s12, 6'); p(f's_lshl_b32 s12, s12, {FS1+3}')
    p(f's_mul_i32 s14, s4, {GST}'); p('s_add_u32 s12, s12, s14'); p(f's_add_u32 s15, s12, {F1_OFF}')
    if WGF:
        p('s_movk_i32 s21, 0xff')
        p('s_cmp_eq_u32 s66, 1'); p('s_cselect_b32 s20, 0xffff, s21')
        p('s_cmp_eq_u32 s66, 4'); p('s_cselect_b32 s20, 0xffff, s20'); p('s_mov_b32 s21, 0')
    else:
        p('s_cmp_eq_u32 s66, 1'); p('s_cselect_b32 s20, -1, 0xffffff')
        p('s_cmp_eq_u32 s66, 4'); p('s_cselect_b32 s20, -1, s20'); p('s_mov_b32 s21, 0')
    p(f'v_lshlrev_b32 v14, {FS1}, v2')
    if SENT == 3:
        p('s_memrealtime s[24:25]')
        p('s_lshl_b32 s9, s11, 7'); p('s_add_u32 s9, s9, s61'); p('s_lshl_b32 s14, s10, 3'); p('s_add_u32 s9, s9, s14'); p(f's_add_u32 s9, s9, {F2_OFF}')
        p('v_mov_b32 v30, 0')
        p('s_waitcnt vmcnt(0) lgkmcnt(0)')
        p('v_mov_b32 v28, s24'); p('v_mov_b32 v29, s25')
        p('s_mov_b64 exec, 1')
        p('buffer_store_dwordx2 v[28:29], v30, s[52:55], s9 offen sc1')
        p('s_mov_b64 exec, -1')
    nw = 0
    assert UNR and NE <= NWS - 1 and WO_L + 16384 >= VB0 + 24576
    if NEB: p('s_barrier')
    for _ in range(NE): wo_issue(nw); nw += 1
    if WGF:
        p('s_barrier')
        wgflag(0, 'L_wfa')
    if RPF and DEFER:
        p('s_getpc_b64 s[26:27]')
        p('L_pc5:')
        p('s_lshl_b32 s9, s5, 2'); p('s_add_u32 s9, s9, s11'); p('s_and_b32 s9, s9, 7'); p('s_lshl_b32 s9, s9, 6')
        p('s_add_u32 s9, s9, L_act-L_pc5')
        p('s_add_u32 s26, s26, s9'); p('s_addc_u32 s27, s27, 0')
        for j in range(RPF): p(f's_load_dword s24, s[26:27], {j*512}')
    p('s_barrier')
    for _ in range(N1 - NE): wo_issue(nw); nw += 1
    if not HALF or B11: p('s_barrier')
    for _ in range(N2): wo_issue(nw); nw += 1
    p('s_cmp_lg_u32 s3, 4')
    p('s_cbranch_scc1 L_nopoll')
    poll_flags(p, 'L_pf1', 14, 16, 's15', 's[20:21]')
    p('L_nopoll:')
    p('s_barrier      ; B_12')
    dstamp(p, 6)
    no = 0
    for c in range(-1, 15):
        def allowed():
            cand = []
            if no < 16 and (no < NOS or no - NOS <= c - 1): cand.append(('o', no))
            if nw < 16 and (nw < NWS or nw - NWS <= c - 1): cand.append(('w', nw))
            cand.sort(key=lambda x: (x[1], x[0] == 'o'))
            return cand
        while True:
            done = (c + 1) in endo and (c + 1) in endw
            if done and cnt[0] - max(endo[c+1], endw[c+1]) >= LAG2: break
            cand = allowed()
            if not cand:
                assert done; break
            if cand[0][0] == 'o': o_issue(no); no += 1
            else: wo_issue(nw); nw += 1
        p(f's_waitcnt vmcnt({cnt[0] - max(endo[c+1], endw[c+1])})')
        p(f's_barrier      ; C_{c}')
        if c == -1: dstamp(p, 7)
        if c == -1 and WGF: wgflag(FBO, 'L_wfb')
        if RPF and DEFER and c + RPF < 16: p(f's_load_dword s24, s[26:27], {(c+RPF+1)*512}')
        if c == CPF3:
            p('s_getpc_b64 s[22:23]')
            p('L_pc3:')
            p('s_lshl_b32 s9, s5, 2'); p('s_add_u32 s9, s9, s11'); p('s_and_b32 s9, s9, 63'); p('s_lshl_b32 s9, s9, 6')
            p('s_min_u32 s9, s9, L_end-L_tail2')
            p('s_add_u32 s9, s9, L_tail2-L_pc3')
            p('s_add_u32 s22, s22, s9'); p('s_addc_u32 s23, s23, 0')
            p('s_load_dword s24, s[22:23], 0x0')
    assert no == 16 and nw == 16
    dstamp(p, 8)
    flush_stamps(p, 9, 16, 4, 'L_fsL')
    p('s_endpgm')
    p('L_ld_idle:')
    if NEB: p('s_barrier')
    if WGF:
        p('s_barrier      ; FA')
        wgflag(0, 'L_wfa2')
    p('s_barrier      ; B_11a')
    if WGF:
        p('s_barrier')
        wgflag(FBO, 'L_wfb2')
    p('s_endpgm')

    p('L_compute:')
    if CPRIO: p(f's_setprio {CPRIO}')
    G = lambda g: 16 + 4*g
    ACC = lambda t, qt: G(t*3+qt)
    AF = lambda st, t: G(24 + st*8 + t)
    BF = lambda st, qt: G(40 + st*3 + qt)
    AADR = 240; BADR = 248
    p('v_bfe_u32 v5, v2, 2, 2')
    p('v_and_b32 v6, 3, v2')
    p('v_and_b32 v7, 1, v3')
    p('v_lshl_add_u32 v7, v7, 2, v5')
    p('v_lshlrev_b32 v7, 1, v7')
    p('v_lshrrev_b32 v8, 1, v6')
    p('v_xor_b32 v7, v7, v8')
    p('v_lshlrev_b32 v7, 4, v7')
    p('v_and_b32 v8, 1, v6')
    p('v_lshl_add_u32 v7, v8, 3, v7')
    p('v_lshl_add_u32 v8, v3, 3, v5')
    p('v_lshl_add_u32 v8, v8, 8, v7')
    p(f'v_add_u32 v8, {WS_ + 16384}, v8')
    for t in range(8):
        p(f'v_xor_b32 v{AADR+t}, {t<<5}, v8')
    p('v_lshrrev_b32 v8, 1, v4')
    p('v_xor_b32 v8, v8, v3')
    p('v_lshlrev_b32 v8, 4, v8')
    p('v_lshl_add_u32 v8, v4, 7, v8')
    p('s_mul_i32 s13, s3, 6144')
    p(f's_add_u32 s13, s13, {XS + 24576}')
    p(f'v_add_u32 v{BADR}, s13, v8')
    p(f'v_xor_b32 v{BADR+1}, 64, v{BADR}')
    p('s_cmp_lt_u32 s3, 2')
    p(f's_mov_b32 s13, {KB1}'); p(f's_mov_b32 s14, {VB1}')
    p(f's_cselect_b32 s13, {KB0}, s13'); p(f's_cselect_b32 s14, {VB0}, s14')
    p('v_lshrrev_b32 v8, 1, v3')
    p('v_xor_b32 v8, v8, v4')
    p('v_lshlrev_b32 v8, 4, v8')
    p('v_lshl_add_u32 v8, v4, 8, v8')
    p('v_and_b32 v9, 1, v3')
    p('v_lshl_add_u32 v8, v9, 3, v8')
    p('v_add_u32 v10, s13, v8')
    p('v_lshl_add_u32 v8, v3, 2, v5')
    p('v_lshl_add_u32 v6, v8, 8, v7')
    p('v_add_u32 v11, s14, v6')
    p('v_lshlrev_b32 v9, 4, v2')
    for i in range(4): p(f'v_mov_b32 v{12+i}, 0x3f803f80')
    for i in range(96): p(f'v_mov_b32 v{16+i}, 0')
    p('s_mul_i32 s62, s66, 192'); p('s_mul_i32 s14, s8, 12'); p('s_add_u32 s62, s62, s14')
    p('s_mul_i32 s14, s3, 3'); p('s_add_u32 s62, s62, s14'); p('s_lshl_b32 s62, s62, 10')
    p(f's_mul_i32 s68, s4, {GST}'); p('s_add_u32 s62, s62, s68'); p(f's_add_u32 s62, s62, {O_OFF}')
    p(f's_mov_b32 s63, {f32bits(LOG2E_SCALE):#x}')
    p('s_mov_b32 s50, s63'); p('s_mov_b32 s51, s63')
    p('s_lshl_b32 s69, s8, 2'); p('s_add_u32 s69, s69, s3')
    p('s_lshl_b32 s69, s69, 3'); p('s_add_u32 s69, s69, s66'); p(f's_lshl_b32 s69, s69, {FS1}'); p('s_add_u32 s69, s69, s68'); p(f's_add_u32 s69, s69, {F1_OFF}')
    p('s_waitcnt lgkmcnt(0)')
    srd(p, 52, 34, 35, WS_SIZE)
    p('s_mov_b32 s98, s96'); p('s_add_u32 s99, s97, 1')
    stamp_setup(p, 34, 35)
    p('s_mov_b64 s[34:35], s[32:33]')
    p('s_load_dwordx2 s[20:21], s[0:1], 80')
    if CPF:
        p('s_cmp_lg_u32 s3, 1')
        p('s_cbranch_scc1 L_nocpf')
        p('s_getpc_b64 s[70:71]')
        p('L_pc:')
        p(f's_sub_u32 s70, s70, L_pc-{K1}')
        p('s_subb_u32 s71, s71, 0')
        p('s_mul_i32 s9, s5, 256')
        p(f's_min_u32 s9, s9, L_end-{K1}-640')
        p('s_add_u32 s70, s70, s9')
        p('s_addc_u32 s71, s71, 0')
        for i in range(4): p(f's_load_dword s{24+i}, s[70:71], {i*64}')
        p('L_nocpf:')
    p('s_waitcnt lgkmcnt(0)')
    srd(p, 44, 20, 21, 8*96*1280*2)
    if PUB == 2:
        p('s_cmp_lg_u32 s3, 3')
        p('s_cbranch_scc1 L_nopubc')
        srd(p, 24, 34, 35, 256)
        p('s_not_b64 s[70:71], s[96:97]')
        p('s_lshl_b32 s9, s6, 7')
        p('v_mov_b32 v250, s70'); p('v_mov_b32 v251, s71'); p('v_mov_b32 v252, 0')
        p('s_mov_b64 exec, 1')
        p('buffer_atomic_umax_x2 v[250:251], v252, s[24:27], s9 offen sc1')
        p('s_mov_b64 exec, -1')
        p('L_nopubc:')
    if TOUCH:
        p('s_cmp_lg_u32 s3, 2')
        p('s_cbranch_scc1 L_notouch')
        p('v_and_b32 v250, 1, v2')
        p(f'v_mul_u32_u24 v251, {GT_OFF}, v250')
        p(f'v_mul_u32_u24 v252, {RT_OFF}, v250')
        p(f'v_mul_u32_u24 v253, {8*96*1280*2 - 128}, v250')
        p('s_mul_i32 s9, s6, 32'); p('s_add_u32 s9, s9, s5'); p(f's_mul_i32 s9, s9, {RST}'); p(f's_add_u32 s9, s9, {INBOX}')
        p('s_mov_b64 exec, 3')
        p('buffer_load_dword v254, v251, s[52:55], s68 offen nt')
        p('buffer_load_dword v254, v252, s[52:55], s9 offen nt')
        p('buffer_load_dword v254, v253, s[44:47], 0 offen nt')
        p('s_mov_b64 exec, -1')
        p('L_notouch:')
    p2_ids(p)
    p('s_and_b32 s12, s3, 1'); p('s_lshl_b32 s12, s12, 2'); p('s_add_u32 s12, s12, s10')
    p('s_mul_i32 s61, s6, 32'); p('s_add_u32 s61, s61, s5'); p(f's_mul_i32 s61, s61, {RST}'); p(f's_add_u32 s61, s61, {INBOX}')
    for i in (1, 2, 3, 0):
        d = 35 + i if i else 39
        p(f's_xor_b32 s{d}, s10, {i}'); p(f's_lshl_b32 s{d}, s{d}, 2'); p(f's_add_u32 s{d}, s{d}, s3'); p(f's_mul_i32 s{d}, s{d}, {3*SZ}')
        p(f's_add_u32 s{d}, s{d}, s61'); p(f's_add_u32 s{d}, s{d}, {I_OFF + (i-1 if i else 0)*SZ}')
    p(f's_lshl_b32 s40, s3, {max(7, FS2+2)}'); p('s_add_u32 s40, s40, s61'); p(f's_add_u32 s40, s40, {F2_OFF}')
    p('s_lshl_b32 s41, s66, 3'); p('s_add_u32 s41, s41, s12'); p('s_mul_i32 s41, s41, 40960')
    p('s_mul_i32 s13, s6, 1280'); p('s_add_u32 s41, s41, s13'); p('s_lshl_b32 s13, s67, 8'); p('s_add_u32 s41, s41, s13')
    p('s_lshr_b32 s13, s3, 1'); p('s_lshl_b32 s13, s13, 7'); p('s_add_u32 s41, s41, s13')
    p(f's_lshl_b32 s42, s10, {FS2}'); p('s_add_u32 s42, s42, s40')
    for v in range(4): p(f's_add_u32 s{16+v}, s62, {v*48*1024}')
    p('s_add_u32 s43, s39, 4096')
    p('s_add_u32 s48, s39, 8192')
    if WGF:
        p(f's_lshl_b32 s69, s5, {FS1}'); p('s_add_u32 s69, s69, s68'); p(f's_add_u32 s69, s69, {F1_OFF}')
    if FWARM:
        p('v_mov_b32 v250, 0')
        p('s_mov_b64 exec, 1')
        if FWARM & 1:
            p('buffer_load_dword v251, v250, s[52:55], s69 offen sc1')
            p(f'buffer_load_dword v251, v250, s[52:55], s69 offen offset:{FBO} sc1')
        if FWARM & 2: p('buffer_load_dword v251, v250, s[52:55], s42 offen sc1')
        p('s_mov_b64 exec, -1')
    if SENT == 1:
        p('s_cmp_ge_u32 s5, 30')
        p('s_cbranch_scc1 L_noclr')
        for i in range(4): p(f'v_mov_b32 v{200+i}, -1')
        for k in range(3 * SZ // 1024):
            p(f'buffer_store_dwordx4 v[200:203], v9, s[52:55], s{(39, 43, 48)[k//4]} offen offset:{(k%4)*1024} sc1')
        p('L_noclr:')
    def reads(st, ks):
        L = [f'ds_read_b128 {vr(BF(st,qt))}, v{BADR+ks} offset:{qt*2048}' for qt in range(3)]
        for t in range(8):
            L.append(f'ds_read_b64_tr_b16 {vr(AF(st,t),2)}, v{AADR+t} offset:{ks*8192}')
            L.append(f'ds_read_b64_tr_b16 {vr(AF(st,t)+2,2)}, v{AADR+t} offset:{ks*8192+1024}')
        return L
    def mfmas(st):
        return [f'{MF} {vr(ACC(t,qt))}, {vr(AF(st,t))}, {vr(BF(st,qt))}, {vr(ACC(t,qt))}' for t in range(8) for qt in (range(3) if not (SNAKE and t & 1) else (2, 1, 0))]
    p('s_mov_b32 s14, 1')
    p('s_mov_b32 s15, 0')
    p('s_barrier')
    dstamp(p, 1)
    pro = reads(0, 0)
    for x in pro: p(x)
    _, pend0 = auto_lgkm(pro)
    scal = ['s_add_u32 s14, s14, 1', 's_cmp_eq_u32 s14, 3', 's_cselect_b32 s61, -2, 1', 's_cselect_b32 s14, 0, s14',
            's_mul_i32 s64, s61, 16384', 's_mul_i32 s65, s61, 24576', 's_add_u32 s15, s15, 1', 's_cmp_eq_u32 s15, 10']
    m0_ = mfmas(0); m1 = mfmas(1)
    H1 = spread(m0_[:19], reads(1, 1), per=PER1) + spread(m0_[19:], scal, per=2)
    upd = [f'v_add_u32 v{BADR+i}, s65, v{BADR+i}' for i in range(2)] + [f'v_add_u32 v{AADR+t}, s64, v{AADR+t}' for t in range(8)]
    H2a = interleave(m1[:NA], upd, per=2) + ['s_waitcnt lgkmcnt(0)', 's_barrier']
    H2b = spread(m1[NA:], reads(0, 0), per=PER1)
    if LOWD:
        H1 = reads(1, 1) + (scal + m0_ if LOWD == 2 else spread(m0_, scal))
        H2a = (m1 + upd if LOWD == 2 else interleave(m1, upd, per=1)) + ['s_barrier']
        H2b = reads(0, 0)
        if LOWD == 3:
            H1 = scal + ['s_waitcnt lgkmcnt(0)'] + m0_ + reads(1, 1) + ['s_waitcnt lgkmcnt(0)']
            if EARLY:
                H1 = scal[:-1] + ['s_cmp_lg_u32 s15, 1', 's_waitcnt lgkmcnt(0)'] + m0_ + ['s_cbranch_scc1 L_nb1', 's_barrier', 'L_nb1:'] + reads(1, 1) + [scal[-1], 's_waitcnt lgkmcnt(0)']
            H2a = m1 + upd + ['s_barrier']
    if BURST:
        r1 = reads(1, 1); r0 = reads(0, 0)
        H1 = r1[:BURST] + spread(m0_[:19], r1[BURST:]) + spread(m0_[19:], scal, per=2)
        H2b = r0[:BURST] + spread(m1[NA:], r0[BURST:])
    if XNOP:
        def addn(L):
            o_ = []; c = 0
            for x in L:
                o_.append(x)
                if x.startswith('v_mfma'):
                    c += 1
                    if c % XNOP == 0: o_.append('s_nop 3')
            return o_
        H1 = addn(H1); H2b = addn(H2b)
    h1, pend = auto_lgkm(H1, pend0)
    h2a, pend_a = auto_lgkm(H2a, pend)
    h2b, _ = auto_lgkm(H2b, pend_a)
    if PEEL:
        assert LOWD in (1, 2) and NE == 0 and PUB != 2 and not NOB9
        h1a, pend = auto_lgkm(reads(1, 1) + scal, pend0)
        rest_, _ = auto_lgkm(m0_ + H2a + H2b, pend)
        h1 = h1a; h2a = rest_; h2b = []
    p('L_loop:')
    for x in h1: p(x)
    p('s_cbranch_scc1 L_tail')
    for x in h2a + h2b: p(x)
    p('s_branch L_loop')
    p('L_tail:')
    KFg = list(range(24, 32)) + [40, 41, 42] + list(range(46, 56)) + [32, 33, 34]
    KF = lambda kt, u: G(KFg[kt*4+u])
    QB = lambda u, qt: ACC(2*u, qt)
    Smap = {}
    free_early = [35, 36, 37, 38, 39, 43, 44, 45]
    for kt in range(6): Smap[(kt, 0)] = free_early[kt]
    oddq = lambda qt: [(2*u+1)*3+qt for u in range(4)]
    l1 = oddq(0) + oddq(1)[:2]
    l2 = oddq(1)[2:] + oddq(2)
    for kt in range(6): Smap[(kt, 1)] = l1[kt]; Smap[(kt, 2)] = l2[kt]
    S = lambda kt, qt: G(Smap[(kt, qt)])
    kaddr = [f'v_xor_b32 v{AADR+m}, {m<<5}, v10' for m in range(8)]
    def kread(kt, u):
        return [f'ds_read_b64 {vr(KF(kt,u),2)}, v{AADR+2*u} offset:{kt*4096}', f'ds_read_b64 {vr(KF(kt,u)+2,2)}, v{AADR+2*u+1} offset:{kt*4096}']
    kr = [x for kt in range(6) for u in range(4) for x in kread(kt, u)]
    qcvt = lambda qt: [x for u in range(4) for x in cvt4(QB(u, qt), ACC(2*u, qt), ACC(2*u+1, qt))]
    T = ['s_memrealtime s[70:71]'] + interleave(m1[:NAT], kaddr, per=2) + (['s_waitcnt vmcnt(0) lgkmcnt(0)', 's_barrier'] if not NOB9 else ['s_waitcnt lgkmcnt(0)'])
    T += ['v_mov_b32 v254, s70', 'v_mov_b32 v255, s71', 'v_mov_b32 v253, 0']
    if SENT == 1:
        T += ['s_waitcnt vmcnt(0)', 's_mov_b64 exec, 1', 'buffer_store_dwordx2 v[254:255], v253, s[52:55], s42 offen sc1', 's_mov_b64 exec, -1']
    if STAMPS: T.append(f'{"s_memtime" if CLK else "s_memrealtime"} s[76:77]')
    o, rest = merge(m1[NAT:], kr[:42])
    T += o + rest + kr[42:]
    movs = []
    if PEEL:
        T = ['s_memrealtime s[70:71]'] + interleave(m0_[:4], kaddr, per=2) + spread(m0_[4:], kr[22:42]) + spread(m1[:6], kr[16:22]) + ['s_barrier']
        if STAMPS: T.append(f'{"s_memtime" if CLK else "s_memrealtime"} s[76:77]')
        T += spread(m1[6:], kr[:16] + kr[42:])
        movs = ['s_waitcnt lgkmcnt(0)', 'v_mov_b32 v254, s70', 'v_mov_b32 v255, s71', 'v_mov_b32 v253, 0']
    def smf(qt):
        return [f'{MF} {vr(S(kt,qt))}, {vr(KF(kt,u))}, {vr(QB(u,qt))}, {"0" if u == 0 else vr(S(kt,qt))}' for u in range(4) for kt in range(6)]
    def softmax(qt):
        regs = [S(kt, qt) + r for kt in range(6) for r in range(4)]
        M = 250; Tm = 251; M2 = 249
        L = [f'v_max3_f32 v{M}, v{regs[0]}, v{regs[1]}, v{regs[2]}', f'v_max3_f32 v{M2}, v{regs[3]}, v{regs[4]}, v{regs[5]}']
        for i in range(6, 22, 4):
            L.append(f'v_max3_f32 v{M}, v{M}, v{regs[i]}, v{regs[i+1]}')
            L.append(f'v_max3_f32 v{M2}, v{M2}, v{regs[i+2]}, v{regs[i+3]}')
        L.append(f'v_max3_f32 v{M}, v{M}, v{regs[22]}, v{regs[23]}')
        L.append(f'v_max_f32 v{M}, v{M}, v{M2}')
        L += [f'v_mov_b32 v{Tm}, v{M}', f'v_permlane16_swap_b32 v{M}, v{Tm}', f'v_max_f32 v{M}, v{M}, v{Tm}',
              f'v_mov_b32 v{Tm}, v{M}', f'v_permlane32_swap_b32 v{M}, v{Tm}', f'v_max_f32 v{M}, v{M}, v{Tm}',
              f'v_mul_f32 v{M}, s63, v{M}']
        for u in range(3):
            rr = regs[8*u:8*u+8]
            if PK & 1: L += [f'v_pk_fma_f32 v[{r}:{r+1}], v[{r}:{r+1}], s[50:51], v[{M}:{M+1}] op_sel_hi:[1,0,0] neg_lo:[0,0,1] neg_hi:[0,0,1]' for r in rr[::2]]
            else: L += [f'v_fma_f32 v{r}, v{r}, s63, -v{M}' for r in rr]
            L += [f'v_exp_f32 v{r}, v{r}' for r in rr]
            L += cvt4(S(2*u, qt), S(2*u, qt), S(2*u+1, qt))
        return L
    PB = lambda u, qt: S(2*u, qt)
    VF = lambda t, u: G(KFg[t*3+u])
    T += qcvt(0) + movs[:1]
    o, rest = merge(smf(0), qcvt(1) + qcvt(2) + movs[1:])
    T += o + rest
    sm0 = softmax(0)
    m12 = smf(1) + (smf(2) if not ORH else [])
    o, rest0 = merge(m12[4:], sm0)
    T += m12[:4] + o + rest0
    T += [f'v_xor_b32 v{AADR+t}, {t<<5}, v11' for t in range(8)]
    t2, _ = auto_lgkm(T, pend)
    for x in t2: p(x)
    dstamp(p, 3)
    p('s_barrier')
    dstamp(p, 4)
    U = []
    for t in range(8):
        for u in range(3):
            U.append(f'ds_read_b64_tr_b16 {vr(VF(t,u),2)}, v{AADR+t} offset:{u*8192}')
            U.append(f'ds_read_b64_tr_b16 {vr(VF(t,u)+2,2)}, v{AADR+t} offset:{u*8192+4096}')
    qbg = [(2*u)*3+qt for u in range(4) for qt in range(3)]
    Og = {0: qbg[:9], 1: qbg[9:] + [44, 45] + [Smap[(1,0)], Smap[(3,0)], Smap[(5,0)]] + [Smap[(1,1)]]}
    Og[2] = [Smap[(0,0)], Smap[(2,0)], Smap[(4,0)], Smap[(3,1)], Smap[(5,1)], Smap[(1,2)], Smap[(3,2)], Smap[(5,2)], Smap[(0,1)]]
    OA = lambda t, qt: G(Og[qt][t])
    def pv(qt):
        L = []
        for u in range(3):
            L.append(f'{MF} {vr(OA(8,qt))}, v[12:15], {vr(PB(u,qt))}, {"0" if u == 0 else vr(OA(8,qt))}')
        for t2_ in range(0, 8, 2):
            for u in range(3):
                for t in (t2_, t2_+1):
                    L.append(f'{MF} {vr(OA(t,qt))}, {vr(VF(t,u))}, {vr(PB(u,qt))}, {"0" if u == 0 else vr(OA(t,qt))}')
        return L
    def onorm(qt):
        l = OA(8, qt)
        L = [f'v_rcp_f32 v{l}, v{l}']
        for v in range(4):
            a0 = OA(2*v, qt); a1 = OA(2*v+1, qt)
            L += [f'v_mul_f32 v{a+r}, v{a+r}, v{l}' for a in (a0, a1) for r in range(4)]
            L += cvt4(a0, a0, a1)
            L.append(f's_add_u32 s14, s62, {v*48*1024}')
            L.append(f'buffer_store_dwordx4 {vr(a0)}, v9, s[52:55], s14 offen offset:{qt*1024} {OFL}')
        return L
    sm1 = softmax(1); sm2 = softmax(2)
    if HALF:
        Lg = [44, 45, Smap[(1,0)]]
        Bg = [Smap[(3,0)], Smap[(5,0)], Smap[(1,1)], Smap[(3,1)], Smap[(5,1)], Smap[(1,2)], Smap[(3,2)], Smap[(5,2)]] + KFg[:4]
        OH = lambda t, qt: G(qbg[qt*4+t]) if t < 4 else G(Bg[qt*4+t-4])
        def pvh(h, qt):
            L = []
            if h == 0:
                l = G(Lg[qt])
                L += [f'{MF} {vr(l)}, v[12:15], {vr(PB(u,qt))}, {"0" if u == 0 else vr(l)}' for u in range(3)]
            for t2_ in (4*h, 4*h+2):
                for u in range(3):
                    for t in (t2_, t2_+1):
                        L.append(f'{MF} {vr(OH(t,qt))}, {vr(VF(t,u))}, {vr(PB(u,qt))}, {"0" if u == 0 else vr(OH(t,qt))}')
            return L
        def nrm(h, qt):
            l = G(Lg[qt])
            L = [f'v_rcp_f32 v{l}, v{l}'] if h == 0 else []
            for v in (2*h, 2*h+1):
                a0 = OH(2*v, qt); a1 = OH(2*v+1, qt)
                if PK & 2: L += [f'v_pk_mul_f32 v[{a+r}:{a+r+1}], v[{a+r}:{a+r+1}], v[{l}:{l+1}] op_sel_hi:[1,0]' for a in (a0, a1) for r in (0, 2)]
                else: L += [f'v_mul_f32 v{a+r}, v{a+r}, v{l}' for a in (a0, a1) for r in range(4)]
                L += cvt4(a0, a0, a1)
                if not SOFFS: L.append(f's_add_u32 s14, s62, {v*48*1024}')
                L.append(f'buffer_store_dwordx4 {vr(a0)}, v9, s[52:55], s{16+v if SOFFS else 14} offen offset:{qt*1024} {OFL}')
            return L
        flagA = lambda k: [f's_waitcnt vmcnt({k})', 's_mov_b64 exec, 1', f'buffer_store_dwordx2 v[254:255], v253, s[52:55], s69 offen {FLAGF}', 's_mov_b64 exec, -1']
        if WGF: flagA = lambda k: [f's_waitcnt vmcnt({k})', 's_barrier']
        vrdB = U[24:]; U = U[:24]
        if ORH:
            st_ = lambda h: [x for x in nrm(h, 2) if x.startswith(('buffer', 's_add'))]
            o, rest = merge(pvh(0, 0), sm1); U += o + rest
            o, rest = merge(pvh(0, 1), nrm(0, 0)); U += o + vrdB + rest + st_(0)
            o, rest = merge(pvh(1, 0), nrm(0, 1)); U += o + rest
            o, rest = merge(pvh(1, 1), nrm(1, 0)); U += o + rest + flagA(2) + st_(1) + nrm(1, 1)
            U_done = list(U)
        o, rest = merge(pvh(0, 0), sm1); U += o + rest
        if AEARLY == 1:
            o, rest = merge(pvh(0, 1), nrm(0, 0) + sm2); U += o + rest
            o, rest = merge(pvh(0, 2), nrm(0, 1)); U += o + vrdB + rest
            o, rest = merge(pvh(1, 0), nrm(0, 2)); U += o + rest
        elif AEARLY == 2:
            o, rest = merge(pvh(0, 1), nrm(0, 0) + sm2[:40]); U += o + rest + nrm(0, 1) + sm2[40:]
            o, rest = merge(pvh(0, 2), vrdB, slots=1); U += o + rest + nrm(0, 2)
            U += pvh(1, 0)
        else:
            o, rest = merge(pvh(0, 1), sm2); U += o + rest
            o, rest = merge(pvh(0, 2), nrm(0, 0) + nrm(0, 1)); U += o + vrdB + rest
            o, rest = merge(pvh(1, 0), nrm(0, 2)); U += o + rest
        if NEB == 1: U += ['s_barrier']
        if FAPOS == 0: U += flagA(0)
        o, rest = merge(pvh(1, 1), nrm(1, 0)); U += o + rest
        if NEB == 2: U += ['s_barrier']
        if FAPOS == 1: U += flagA(2)
        o, rest = merge(pvh(1, 2), nrm(1, 1)); U += o + rest
        if FAPOS == 2: U += flagA(4)
        U += nrm(1, 2)
        if FAPOS == 3: U += flagA(6)
    if ORH: U = U_done
    if not HALF:
        o, rest = merge(pv(0), sm1)
        U += o + rest
    if HALF: pass
    elif OEARLY:
        o, rest = merge(pv(1), onorm(0) + sm2)
        U += o + rest
        o, rest = merge(pv(2), onorm(1))
        U += o + rest
    else:
        o, rest = merge(pv(1), sm2)
        U += o + rest
        o, rest = merge(pv(2), onorm(0) + onorm(1))
        U += o + rest
    if not HALF: U += onorm(2)
    u2, _ = auto_lgkm(U, [])
    for x in u2: p(x)
    dstamp(p, 5)
    p('s_barrier')
    A2 = lambda i, t: 16 + (i*4+t)*4
    FA = lambda st, t: 80 + st*32 + t*4
    FBq = lambda st, i: 96 + st*32 + i*4
    p('s_lshr_b32 s13, s3, 1'); p('s_lshl_b32 s13, s13, 7')
    p(f'v_add_u32 v8, {WO_L}, v6')
    p('v_xor_b32 v8, s13, v8')
    for t in range(4): p(f'v_xor_b32 v{AADR+t}, {t<<5}, v8')
    if UNR:
        for t in range(4): p(f'v_add_u32 v{232+t}, 0x10000, v{AADR+t}')
    p('s_lshl_b32 s13, s12, 10')
    p(f'v_add_u32 v8, s13, v9')
    for i in range(4): p(f'v_xor_b32 v{AADR+4+i}, {i<<10}, v8')
    p(f'v_lshlrev_b32 v248, {FS2}, v2')
    p('v_mul_u32_u24 v7, 2560, v4')
    if WIDE:
        p('v_and_b32 v8, 1, v3'); p('v_lshl_add_u32 v7, v8, 5, v7')
        p('v_lshrrev_b32 v8, 1, v3'); p('v_lshl_add_u32 v7, v8, 4, v7')
    else: p('v_lshl_add_u32 v7, v3, 3, v7')
    def lastflag():
        p('s_waitcnt vmcnt(0)')
        if WGF:
            dstamp(p, 6); return
        p('s_mov_b64 exec, 1')
        p(f'buffer_store_dwordx2 v[254:255], v253, s[52:55], s69 offen offset:{FBO if HALF else 0} {FLAGF}')
        p('s_mov_b64 exec, -1')
        dstamp(p, 6)
    if not HALF:
        lastflag()
        p('s_cmp_ge_u32 s5, 30')
        p('s_cbranch_scc1 L_cdone')
        p('s_barrier')
    else:
        p('s_cmp_lt_u32 s5, 30')
        p('s_cbranch_scc1 L_act')
        lastflag()
        if WGF: p('s_barrier')
        p('s_branch L_cdone')
        p('L_act:')
    if SENT == 2:
        for i in range(4): p(f'v_mov_b32 v{200+i}, -1')
        for k in range(3 * SZ // 1024):
            p(f'buffer_store_dwordx4 v[200:203], v9, s[52:55], s{(39, 43, 48)[k//4]} offen offset:{(k%4)*1024} sc1')
    if HALF and B11:
        lastflag()
        p('s_barrier')
    p('s_barrier')
    if HALF and not B11: lastflag()
    if SENT in (1, 3):
        p('s_mov_b64 exec, 15')
        p('buffer_load_dwordx2 v[250:251], v248, s[52:55], s40 offen sc1')
        p('s_mov_b64 exec, -1')
    SR = 144
    if TAGS:
        p('s_mov_b32 s13, 0x01010101')
        p('v_mul_lo_u32 v236, v2, s13')
        p('v_add_u32 v237, s96, v236')
        p('v_add_u32 v236, s70, v236')
        for k in range(9): p(f'v_mov_b32 v{SR+4*k+3}, v236')
        for i in range(3): p(f'v_mov_b32 v{SR+12*i+10}, 0')
    for i in range(64): p(f'v_mov_b32 v{16+i}, 0')
    def reads2(st, kk, stage=0):
        oo = (stage % NOS) * 16384 + kk*8192
        wo_ = ((stage + 1) % NWS) * 16384 + kk*8192
        ab = AADR if wo_ < 65536 else 232
        wo_ &= 0xffff
        L = [f'ds_read_b128 {vr(FBq(st,0))}, v{AADR+4} offset:{oo}']
        for t in range(4):
            L.append(f'ds_read_b64_tr_b16 {vr(FA(st,t),2)}, v{ab+t} offset:{wo_}')
            L.append(f'ds_read_b64_tr_b16 {vr(FA(st,t)+2,2)}, v{ab+t} offset:{wo_+4096}')
        L += [f'ds_read_b128 {vr(FBq(st,i))}, v{AADR+4+i} offset:{oo}' for i in range(1, 4)]
        if DIAG: L = [L[k] for k in (9, 1, 2, 3, 4, 10, 5, 6, 11, 7, 8, 0)]
        return L
    DORD = [(0,0),(0,1),(1,1),(1,0),(0,2),(1,2),(2,2),(2,1),(2,0),(0,3),(1,3),(2,3),(3,3),(3,2),(3,1),(3,0)]
    DORD = [((i + 1) % 4, t) for i, t in DORD]
    def mfd(st): return [f'{MF} {vr(A2(i,t))}, {vr(FA(st,t))}, {vr(FBq(st,i))}, {vr(A2(i,t))}' for i, t in DORD]
    def mf2(st):
        return [f'{MF} {vr(A2(i,t))}, {vr(FA(st,t))}, {vr(FBq(st,i))}, {vr(A2(i,t))}' for i in range(4) for t in (range(4) if not (SNAKE and i & 1) else (3, 2, 1, 0))]
    p('s_mov_b32 s14, 0')
    p('s_mov_b32 s15, 0')
    p('s_barrier')
    dstamp(p, 7)
    pro = reads2(0, 0)
    for x in pro: p(x)
    _, pend0 = auto_lgkm(pro)
    p('s_mov_b32 s13, 0')
    scal = ['s_add_u32 s14, s14, 1', f's_cmp_eq_u32 s14, {NWS}', f's_cselect_b32 s61, {1-NWS}, 1', 's_cselect_b32 s14, 0, s14', 's_lshl_b32 s64, s61, 14',
            's_add_u32 s13, s13, 1', f's_cmp_eq_u32 s13, {NOS}', f's_cselect_b32 s61, {1-NOS}, 1', 's_cselect_b32 s13, 0, s13', 's_lshl_b32 s65, s61, 14',
            's_add_u32 s15, s15, 1', 's_cmp_eq_u32 s15, 16']
    if ORC: scal = scal[-2:]
    n0 = mf2(0); n1 = mf2(1)
    H1 = spread(n0[:12], reads2(1, 1)) + spread(n0[12:], scal, per=3)
    upd = [f'v_add_u32 v{AADR+4+i}, s65, v{AADR+4+i}' for i in range(4)] + [f'v_add_u32 v{AADR+t}, s64, v{AADR+t}' for t in range(4)]
    if ORC: upd = upd[:ORC-1]
    H2a = interleave(n1[:4], upd, per=2) + ['s_waitcnt lgkmcnt(0)', 's_barrier']
    H2b = spread(n1[4:], reads2(0, 0))
    h1, pend = auto_lgkm(H1, pend0)
    h2a, pend_a = auto_lgkm(H2a, pend)
    h2b, _ = auto_lgkm(H2b, pend_a)
    if DEFER:
        assert DIAG and UNR and DEFER <= NOS
        pend = pend0
        for j in range(16):
            p(f'L_s{j}:')
            df = j >= 16 - DEFER; dfn = j + 1 >= 16 - DEFER
            d0 = mfd(0); d1 = mfd(1); r_ = reads2(1, 1, j); rn = reads2(0, 0, j + 1)
            if df: d0 = d0[:12]; d1 = d1[:12]; r_ = r_[:11]
            if dfn: rn = rn[:11]
            o_ = 1 if df else 0
            seq_ = [f's_waitcnt lgkmcnt({6-o_})'] + spread(d0[:4], r_[:4]) + [f's_waitcnt lgkmcnt({7-o_})'] + spread(d0[4:9], r_[4:9]) + ['s_waitcnt lgkmcnt(9)'] + spread(d0[9:], r_[9:])
            hh1, pend = auto_lgkm(seq_, pend)
            for x in hh1: p(x)
            if j == 15: break
            nb_ = NB2 if not df else 3
            hh2, pend = auto_lgkm([f's_waitcnt lgkmcnt({6-o_})'] + d1[:nb_] + ['s_waitcnt lgkmcnt(0)', 's_barrier'] + interleave(d1[nb_:], rn), pend)
            for x in hh2: p(x)
    elif UNR:
        import math
        per_ = min(NWS * NOS // math.gcd(NWS, NOS), 16)
        exit_at = 15 % per_
        npass = 15 // per_
        p('L_loop2:')
        for j in range(per_):
            sc = []
            if j == exit_at and per_ < 16: sc = [f's_cmp_eq_u32 s15, {npass}']
            if DIAG:
                d0 = mfd(0); r_ = reads2(1, 1, j)
                seq_ = ['s_waitcnt lgkmcnt(6)'] + spread(d0[:4], r_[:4]) + ['s_waitcnt lgkmcnt(7)'] + spread(d0[4:9], r_[4:9]) + ['s_waitcnt lgkmcnt(9)'] + spread(d0[9:12], r_[9:]) + spread(d0[12:], sc)
            else: seq_ = spread(n0[:12], reads2(1, 1, j)) + spread(n0[12:], sc)
            hh1, pend = auto_lgkm(seq_, pend0)
            for x in hh1: p(x)
            if j == exit_at:
                if per_ < 16: p('s_cbranch_scc1 L_tail2')
                else: break
            sc = ['s_add_u32 s15, s15, 1'] if j == per_ - 1 else []
            d1 = mfd(1) if DIAG else n1
            hh2, _ = auto_lgkm((['s_waitcnt lgkmcnt(6)'] if DIAG else []) + spread(d1[:NB2], sc) + ['s_waitcnt lgkmcnt(0)', 's_barrier'] + spread(d1[NB2:], reads2(0, 0, j + 1)), pend)
            for x in hh2: p(x)
        if per_ < 16: p('s_branch L_loop2')
    else:
        p('L_loop2:')
        for x in h1: p(x)
        p('s_cbranch_scc1 L_tail2')
        for x in h2a + h2b: p(x)
        if SENT == 2:
            p('s_and_b32 s61, s15, 7')
            p('s_cmp_lg_u32 s61, 3')
            p('s_cbranch_scc1 L_loop2')
            p('s_cmp_eq_u32 s15, 3')
            p('s_cbranch_scc0 L_ev11')
            p('s_waitcnt vmcnt(0)')
            p('s_mov_b64 exec, 1')
            p('buffer_store_dwordx2 v[254:255], v253, s[52:55], s42 offen sc1')
            p('s_mov_b64 exec, -1')
            p('s_branch L_loop2')
            p('L_ev11:')
            p('s_mov_b64 exec, 15')
            p('buffer_load_dwordx2 v[250:251], v248, s[52:55], s40 offen sc1')
            p('s_mov_b64 exec, -1')
        p('s_branch L_loop2')
    p('L_tail2:')
    last = [f'{MF} {vr(A2(i,t))}, {vr(FA(1,t))}, {vr(FBq(1,i))}, {vr(A2(i,t))}' for i in (1, 2, 3, 0) for t in range(4)]
    chk = []
    if SENT:
        chk = ['s_waitcnt vmcnt(0)', 's_mov_b64 exec, 15', 'v_cmp_gt_u64 vcc, s[96:97], v[250:251]', 'v_cmp_lt_u64 s[100:101], s[98:99], v[250:251]',
               's_mov_b64 exec, -1', 's_or_b64 vcc, vcc, s[100:101]']
        for x in chk: p(x)
        p('s_cbranch_scc0 L_rdy')
        poll_flags(p, 'L_pf2', 248, 250, 's40', '15')
        p('L_rdy:')
    def send(i):
        L = []
        if PF32:
            L += [f'buffer_store_dwordx4 {vr(A2(i,t))}, v9, s[52:55], s{35+i} offen offset:{t*1024} {PFL}' for t in range(4)]
        elif TAGS:
            b0 = SR + 12*(i-1)
            for k in range(8):
                a = A2(i, k >> 1) + 2*(k & 1)
                L.append(f'v_cvt_pk_bf16_f32 v{b0 + 4*(k//3) + k%3}, v{a}, v{a+1}')
                if k in (2, 5, 7):
                    L.append(f'buffer_store_dwordx4 {vr(b0 + 4*(k//3))}, v9, s[52:55], s{35+i} offen offset:{(k//3)*1024} {PFL}')
        else:
            for hf in range(2):
                L += cvt4(A2(i, 2*hf), A2(i, 2*hf), A2(i, 2*hf+1))
                L.append(f'buffer_store_dwordx4 {vr(A2(i,2*hf))}, v9, s[52:55], s{35+i} offen offset:{hf*1024} {PFL}')
        return L
    seq = last[:8] + spread(last[8:12], send(1), per=3) + spread(last[12:], send(2), per=3) + send(3)
    if DEFER:
        steps = [(j, kk) for j in range(16 - DEFER, 16) for kk in range(2)]
        def ownr(n):
            j, kk = steps[n]; r_ = reads2(n & 1, kk, j)
            return [r_[11]] + [r_[k] for k in (1, 2, 3, 4, 6, 7, 9, 10)]
        seq = last[:8] + spread(last[8:12], send(1), per=3) + send(2) + send(3) + ownr(0)
        if STAMPS: seq.append(f'{"s_memtime" if CLK else "s_memrealtime"} s[88:89]')
        for n in range(len(steps)):
            om = [f'{MF} {vr(A2(0,t))}, {vr(FA(n&1,t))}, {vr(FBq(n&1,0))}, {vr(A2(0,t))}' for t in range(4)]
            nx = ownr(n + 1) if n + 1 < len(steps) else []
            if n == FSPLIT:
                seq += ['s_waitcnt vmcnt(0)', 's_mov_b64 exec, 1', f'buffer_store_dwordx2 v[254:255], v253, s[52:55], s42 offen {FLAGF}', 's_mov_b64 exec, -1']
            seq += nx[:3] + interleave(om, nx[3:])
    tl, _ = auto_lgkm(seq, pend)
    for x in tl: p(x)
    if not DEFER: dstamp(p, 8)
    R = 80
    nld = 3 * SZ // 1024
    def loads():
        for k in range(nld):
            p(f'buffer_load_dwordx4 {vr(R+4*k)}, v9, s[52:55], s{(39, 43, 48)[k//4]} offen offset:{(k%4)*1024} sc1')
    if TAGS:
        p(f's_mov_b32 s9, {SPIN_MAX}')
        p('s_mov_b32 s13, 0x100000')
        if TAGS == 2:
            p('v_mul_u32_u24 v238, 3072, v2')
            p('s_mov_b64 exec, 7')
            p('L_lp:')
            p('buffer_load_dword v250, v238, s[52:55], s39 offen offset:2060 sc1')
            p('s_waitcnt vmcnt(0)')
            p('v_subrev_u32 v250, s96, v250')
            p('v_cmp_le_u32 vcc, s13, v250')
            p('s_cbranch_vccz L_lp_ok')
            p(f's_sleep {PSLEEP}')
            p('s_sub_u32 s9, s9, 1')
            p('s_cmp_gt_u32 s9, 1')
            p('s_cbranch_scc1 L_lp')
            p('L_lp_ok:')
            p('s_mov_b64 exec, -1')
        p('L_rx:')
        loads()
        for i in range(3):
            p(f's_waitcnt vmcnt({6 - 3*i})')
            t0 = R + 12*i + 3
            p(f'v_xor_b32 v250, v{t0}, v{t0+4}')
            p(f'v_xor_b32 v251, v{t0}, v{t0+8}')
            if i == 0:
                p('v_or_b32 v252, v250, v251'); p(f'v_sub_u32 v249, v{t0}, v237')
            else:
                p('v_or3_b32 v252, v252, v250, v251'); p(f'v_sub_u32 v250, v{t0}, v237'); p('v_max_u32 v249, v249, v250')
        p('v_cmp_ne_u32 vcc, 0, v252')
        p('v_cmp_le_u32 s[100:101], s13, v249')
        p('s_or_b64 vcc, vcc, s[100:101]')
        p('s_cbranch_scc0 L_rx_ok')
        if SSLEEP: p(f's_sleep {SSLEEP}')
        p('s_sub_u32 s9, s9, 1')
        p('s_cmp_lg_u32 s9, 0')
        p('s_cbranch_scc1 L_rx')
        p('L_rx_ok:')
        dstamp(p, 9); dstamp(p, 10)
    elif SENT:
        p(f's_mov_b32 s9, {SPIN_MAX}')
        p('L_rx:')
        loads()
        n = nld * 4
        for k in range(nld):
            p(f's_waitcnt vmcnt({nld-1-k})')
            b_ = R + 4*k
            if k == 0:
                p(f'v_max3_u32 v252, v{b_}, v{b_+1}, v{b_+2}'); p(f'v_max_u32 v252, v252, v{b_+3}')
            else:
                p(f'v_max3_u32 v252, v252, v{b_}, v{b_+1}'); p(f'v_max3_u32 v252, v252, v{b_+2}, v{b_+3}')
        p('v_cmp_eq_u32 vcc, -1, v252')
        p('s_cbranch_vccz L_rx_ok')
        if SSLEEP: p(f's_sleep {SSLEEP}')
        p('s_sub_u32 s9, s9, 1')
        p('s_cmp_lg_u32 s9, 0')
        p('s_cbranch_scc1 L_rx')
        p('L_rx_ok:')
        dstamp(p, 9); dstamp(p, 10)
    else:
        if not (DEFER and FSPLIT < 2*DEFER):
            p('s_waitcnt vmcnt(0)')
            p('s_mov_b64 exec, 1')
            p(f'buffer_store_dwordx2 v[254:255], v253, s[52:55], s42 offen {FLAGF}')
        dstamp(p, 9)
        p('s_lshl_b32 s14, 1, s10'); p('s_xor_b32 s14, s14, 15'); p('s_mov_b32 s15, 0')
        if PSRC and not PF32:
            p('s_mov_b64 exec, s[14:15]')
            p(f'buffer_load_dwordx2 v[250:251], v248, s[52:55], s40 offen {POLLF}')
            p('s_waitcnt vmcnt(0)')
            p('v_cmp_gt_u64 vcc, s[96:97], v[250:251]')
            p('v_cmp_lt_u64 s[100:101], s[98:99], v[250:251]')
            p('s_mov_b64 exec, -1')
            p('s_or_b64 s[14:15], vcc, s[100:101]')
            def part(i, lbl, want):
                p(f's_xor_b32 s13, s10, {i}')
                p('s_bitcmp1_b32 s14, s13')
                p(f's_cbranch_scc{0 if want else 1} {lbl}')
                for k in (2*(i-1), 2*(i-1)+1):
                    p(f'buffer_load_dwordx4 {vr(R+4*k)}, v9, s[52:55], s{(39, 43, 48)[k//4]} offen offset:{(k%4)*1024} sc1')
                p(f'{lbl}:')
            for i in (1, 2, 3): part(i, f'L_e{i}', 0)
            p('s_cmp_eq_u32 s14, 0')
            p('s_cbranch_scc1 L_allin')
            poll_flags(p, 'L_pf2', 248, 250, 's40', 's[14:15]')
            for i in (1, 2, 3): part(i, f'L_l{i}', 1)
            p('L_allin:')
            dstamp(p, 10)
            p('s_waitcnt vmcnt(0)')
        else:
            poll_flags(p, 'L_pf2', 248, 250, 's40', 's[14:15]')
            dstamp(p, 10)
            loads()
    for i in range(3):
        if PF32:
            if not SENT: p(f's_waitcnt vmcnt({nld - 4*(i+1)})')
            for t in range(4):
                for r in range(4):
                    p(f'v_add_f32 v{A2(0,t)+r}, v{A2(0,t)+r}, v{R+16*i+4*t+r}')
        else:
            if not SENT and not TAGS: p(f's_waitcnt vmcnt({nld - 2*(i+1)})')
            for t in range(4):
                for r2 in range(2):
                    src = R + 8*i + 2*t + r2
                    if TAGS:
                        k = 2*t + r2; src = R + 12*i + 4*(k//3) + k%3
                    p(f'v_lshlrev_b32 v250, 16, v{src}')
                    p(f'v_and_b32 v251, 0xffff0000, v{src}')
                    p(f'v_add_f32 v{A2(0,t)+2*r2}, v{A2(0,t)+2*r2}, v250')
                    p(f'v_add_f32 v{A2(0,t)+2*r2+1}, v{A2(0,t)+2*r2+1}, v251')
    if WIDE:
        for v in range(2):
            a = A2(0, 2*v)
            for x in cvt4(a, a, A2(0, 2*v+1)): p(x)
            p(f'v_permlane16_swap_b32 v{a}, v{a+2}')
            p(f'v_permlane16_swap_b32 v{a+1}, v{a+3}')
            p(f'buffer_store_dwordx4 {vr(a)}, v7, s[44:47], s41 offen offset:{v*64} {OUTF}')
    else:
        for t in range(4):
            a = A2(0, t)
            p(f'v_cvt_pk_bf16_f32 v{a}, v{a}, v{a+1}')
            p(f'v_cvt_pk_bf16_f32 v{a+1}, v{a+2}, v{a+3}')
            p(f'buffer_store_dwordx2 {vr(a,2)}, v7, s[44:47], s41 offen offset:{t*32} {OUTF}')
    if STAMPS:
        p('s_waitcnt vmcnt(0)')
        dstamp(p, 11)
    p('L_cdone:')
    flush_stamps(p, 12, 0, 0, 'L_fsC')
    p('L_end:')
    p('s_endpgm')
    return p.finalize()


DOC = """; ---------------------------------------------------------------------------------------------
; ---------------------------------------------------------------------------------------------
"""

if __name__ == '__main__':
    out = HDR
    out += '; @launch grid=(256,1,1) block=(512,1,1) lds=163840\n'
    out += DOC
    out += '.amdgcn_target "amdgcn-amd-amdhsa--gfx950"\n.text\n'
    out += gen() + '\n'
    out += '.section .rodata,"a"\n' + kd(NAME + '_kernel', 256, 102)
    print(out)
```

```python
from common import *
from asmlib import auto_lgkm as _al
CAP = opt('cap', 8)
def auto_lgkm(l, pnd=None): return _al(l, pnd, CAP)
XFL = opt('xfl', 'none').replace('none', '')
WFL2 = opt('wfl2', 'none').replace('none', '')
OFL = opt('ofl', 'sc1').replace('none', '').replace('_', ' ')
ORFL = opt('orfl', 'sc1').replace('none', '').replace('_', ' ')
LAG = opt('lag', 7)
PATA = opt('pata', 's0 s1 s2 s3 K1 s4 s5 Kb ka s6 s7 v0 s8 s9 v1 Wa Wb').replace('_', ' ')
PATB = opt('patb', 's0 s1 s2 s3 K1 s4 s5 Kb ka s6 s7 v0 s8 s9 v1 Wa Wb').replace('_', ' ')
PATSEL = opt('patsel', 6)
if opt('sent', 0) == 3 and 'Z' not in PATA: PATA += ' Z'; PATB += ' Z'
NA = opt('na', 5)
PF32 = opt('pf32', 0)
LPRIO = opt('lprio', 0)
WBP = opt('wbp', -9)
LAG8 = opt('lag8', 10)
LAG7 = opt('lag7', 10)
NOB9 = opt('nob9', 1)
AEARLY = opt('aearly', 2)
NEB = opt('neb', 0)
SWAPR = opt('swapr', 0)
CPRIO = opt('cprio', 0)
B11 = opt('b11', 0)
PSRC = opt('psrc', 0)
VW = opt('vw', 0)
ORH = opt('orh', 0)
WGF = opt('wgf', 0)
OUTF = opt('outf', 'none').replace('none', '').replace('_', ' ')
WIDE = opt('wide', 0)
FWARM = opt('fwarm', 3)
DEFER = opt('defer', 4)
FSPLIT = opt('fsplit', 8)
POLLF = opt('pollf', 'sc1').replace('_', ' ')
FLAGF = opt('flagf', 'sc1').replace('_', ' ')
PUB = opt('pub', 1)
assert opt('half', 1) or not opt('wgf', 0)
assert not (opt('early', 0) and opt('lowd', 2) != 3)
WLAG = opt('wlag', 10)
ORC = opt('orc', 0)
PK = opt('pk', 0)
LOWD = opt('lowd', 2)
EARLY = opt('early', 0)
LAG0 = opt('lag0', 7)
LAGE = opt('lage', 5)
SNAKE = opt('snake', 1)
NAT = opt('nat', 5)
BURST = opt('burst', 0)
PER1 = opt('per1', 1)
XNOP = opt('xnop', 0)
HALF = opt('half', 1)
FAPOS = opt('fapos', 2)
SENT = opt('sent', 0)
SSLEEP = opt('ssleep', 1)
PFS = opt('pfs', 0)
PF0 = opt('pf0', 0)
PFN = opt('pfn', 10)
FAKEWO = opt('fakewo', 0)
NOPOLL = opt('nopoll', 0)
FASTP = opt('fastp', 0)
WOFL = opt('wofl', 'none').replace('none', '')
WOFL2 = opt('wofl2', 'none').replace('none', '')
PFL = opt('pfl', 'sc1').replace('_', ' ')
CPF2 = opt('cpf2', 6)
CPF4 = opt('cpf4', -9)
RPF = opt('rpf', 0)
PEEL = opt('peel', 0)
SOFFS = opt('soffs', 1)
WOA = opt('woa', 0)
WOB = opt('wob', 0)
ROT2 = opt('rot2', 0)
CPF = opt('cpf', 0)
ROT = opt('rot', 1)
RB = opt('rb', '0358')
RH = opt('rh', '03603603')
RK = opt('rk', '0120')
OEARLY = opt('oearly', 1)
KVFL = opt('kvfl', 'nt').replace('none', '')
TICKET = opt('ticket', 0)
CFL = opt('cfl', 'none').replace('none', '')
PSLEEP = opt('psleep', 2)
XS, WS_, SP = 0, 73728, 122880
KB0 = SP - 8192; KB1 = KB0 + 24576
VB0 = XS + 2*24576; VB1 = XS
NWS = opt('nws', 6); NOS = opt('nos', 4)
CPF3 = opt('cpf3', 8)
UNR = opt('unr', 1)
DIAG = opt('diag', 1)
NB2 = opt('nb2', 4)
O_L = 0; WO_L = NOS * 16384
NE = opt('ne', 0); N1 = opt('n1', 6); N2 = opt('n2', 0); LAG2 = opt('lag2', 16)
FS1 = opt('fs1', 3); FS2 = opt('fs2', 7)
FBO = 1024 if FS1 == 3 else 8
GST = 1572864 + 28672
O_OFF = 4096; F1_OFF = O_OFF + 1572864; GT_OFF = F1_OFF + 20480
INBOX = 16 << 20
TAGS = opt('tags', 0)
SZ = 4096 if PF32 else (3072 if TAGS else 2048)
assert not (TAGS and (PF32 or opt('sent', 0)))
RST = 48 * SZ + 4096
I_OFF = 1024; F2_OFF = I_OFF + 48 * SZ; RT_OFF = F2_OFF + 2048
WS_SIZE = 48 << 20
TOUCH = opt('touch', 0)
MF = 'v_mfma_f32_16x16x32_bf16'
SPIN_MAX = 1 << 24

def dstamp(p, k):
    if STAMPS: p(f'{"s_memtime" if CLK else "s_memrealtime"} s[{72+2*k}:{73+2*k}]')
def flush_stamps(p, n, base_idx, wave, lbl):
    if not STAMPS: return
    p(f's_cmp_lg_u32 s3, {wave}'); p(f's_cbranch_scc1 {lbl}')
    p('s_waitcnt lgkmcnt(0) vmcnt(0)')
    p('v_mov_b32 v1, 0')
    p('s_mov_b64 exec, 1')
    for k in range(n):
        p(f'v_mov_b32 v{4+2*k}, s{72+2*k}'); p(f'v_mov_b32 v{5+2*k}, s{73+2*k}')
        p(f'buffer_store_dwordx2 v[{4+2*k}:{5+2*k}], v1, s[56:59], s60 offen offset:{(base_idx+k)*8}')
    p('s_waitcnt vmcnt(0)')
    p(f'{lbl}:')
def poll_flags(p, lbl, vaddr, vtmp, soff, maskreg):
    p(f's_mov_b32 s9, {SPIN_MAX}')
    p(f's_mov_b64 exec, {maskreg}')
    p(f'{lbl}:')
    p(f'buffer_load_dwordx2 v[{vtmp}:{vtmp+1}], v{vaddr}, s[52:55], {soff} offen {POLLF}')
    p('s_waitcnt vmcnt(0)')
    p(f'v_cmp_gt_u64 vcc, s[96:97], v[{vtmp}:{vtmp+1}]')
    p(f'v_cmp_lt_u64 s[100:101], s[98:99], v[{vtmp}:{vtmp+1}]')
    p('s_or_b64 vcc, vcc, s[100:101]')
    p(f's_cbranch_scc0 {lbl}_ok')
    p(f's_sleep {PSLEEP}')
    p('s_sub_u32 s9, s9, 1')
    p('s_and_b32 s100, s9, 127')
    p(f's_cbranch_scc1 {lbl}')
    p('s_lshl_b32 s100, s6, 7')
    p('s_load_dwordx2 s[100:101], s[34:35], s100 glc')
    p('s_waitcnt lgkmcnt(0)')
    p('s_cmp_eq_u64 s[100:101], 0')
    p(f's_cbranch_scc1 {lbl}_nz')
    p('s_not_b64 s[96:97], s[100:101]')
    p(f'{lbl}_nz:')
    p('s_cmp_lg_u32 s9, 0')
    p(f's_cbranch_scc1 {lbl}')
    p(f'{lbl}_ok:')
    p('s_mov_b64 exec, -1')

def cvt4(d, a0, a1):
    return [f'v_cvt_pk_bf16_f32 v{d}, v{a0}, v{a0+1}', f'v_cvt_pk_bf16_f32 v{d+1}, v{a0+2}, v{a0+3}',
            f'v_cvt_pk_bf16_f32 v{d+2}, v{a1}, v{a1+1}', f'v_cvt_pk_bf16_f32 v{d+3}, v{a1+2}, v{a1+3}']
def spread(main, fill, extra=(), per=1):
    out = []; fi = 0; ei = 0
    for m in main:
        out.append(m)
        for _ in range(per):
            if fi < len(fill): out.append(fill[fi]); fi += 1
        if ei < len(extra): out.append(extra[ei]); ei += 1
    return out + list(fill[fi:]) + list(extra[ei:])

def p2_ids(p):
    p('s_mul_i32 s66, s5, 52'); p('s_lshr_b32 s66, s66, 8')
    p('s_mul_i32 s67, s66, 5'); p('s_sub_u32 s67, s5, s67')
    p('s_and_b32 s10, s4, 3')

def gen():
    p = Prog()
    K1 = NAME + '_kernel'
    p(f'.globl {K1}\n.p2align 8\n.type {K1},@function\n{K1}:')
    p('s_cmp_ge_u32 s2, 256')
    p('s_cbranch_scc1 L_end')
    p('s_load_dwordx8 s[16:23], s[0:1], 0')
    p('s_memrealtime s[96:97]')
    p('s_load_dwordx8 s[24:31], s[0:1], 40')
    p('s_load_dwordx4 s[32:35], s[0:1], 88')
    dstamp(p, 0)
    p('v_lshrrev_b32 v1, 6, v0')
    p('v_and_b32 v2, 63, v0')
    p('v_readfirstlane_b32 s3, v1')
    if TICKET:
        p('v_mov_b32 v5, 0')
        p('s_cmp_lg_u32 s3, 0')
        p('s_cbranch_scc1 L_tk_wait')
        p('s_getreg_b32 s4, hwreg(HW_REG_XCC_ID)')
        p('s_and_b32 s4, s4, 7')
        p('s_waitcnt lgkmcnt(0)')
        p('L_tk_try:')
        p('s_lshl_b32 s5, s4, 5')
        p('s_add_u32 s5, s5, 16')
        p('s_mov_b32 s6, 1')
        p('s_atomic_add s6, s[32:33], s5 glc')
        p('s_waitcnt lgkmcnt(0)')
        p('s_cmp_lt_u32 s6, 32')
        p('s_cbranch_scc1 L_tk_ok')
        p('s_add_u32 s4, s4, 1')
        p('s_and_b32 s4, s4, 7')
        p('s_branch L_tk_try')
        p('L_tk_ok:')
        p('s_lshl_b32 s6, s6, 3')
        p('s_add_u32 s6, s6, s4')
        p('v_mov_b32 v6, s6')
        p('ds_write_b32 v5, v6')
        p('s_waitcnt lgkmcnt(0)')
        p('L_tk_wait:')
        p('s_barrier')
        p('ds_read_b32 v6, v5')
        p('s_waitcnt lgkmcnt(0)')
        p('v_readfirstlane_b32 s2, v6')
        p('s_barrier')
        p('s_and_b32 s2, s2, 255')
    if SWAPR: p('s_xor_b32 s3, s3, 4')
    p('s_and_b32 s4, s2, 7')
    p('s_lshr_b32 s5, s2, 3')
    p('s_lshr_b32 s6, s4, 2')
    p('s_and_b32 s7, s4, 3')
    p('s_lshl_b32 s7, s7, 3')
    p('s_and_b32 s66, s5, 7')
    p('s_add_u32 s7, s7, s66')
    p('s_lshr_b32 s8, s5, 3')
    p('v_lshrrev_b32 v3, 4, v2')
    p('v_and_b32 v4, 15, v2')
    p('s_cmp_lt_u32 s3, 4')
    p('s_cbranch_scc1 L_compute')
    if LPRIO: p(f's_setprio {LPRIO}')
    p('s_and_b32 s11, s3, 3')
    p('v_lshrrev_b32 v5, 3, v2')
    p('s_lshl_b32 s12, s11, 3')
    p('v_add_u32 v5, s12, v5')
    p('v_mul_u32_u24 v5, 1280, v5')
    p('s_and_b32 s12, s11, 1')
    p('s_lshl_b32 s12, s12, 2')
    p('v_add_u32 v6, s12, v3')
    p('v_and_b32 v7, 7, v2')
    p('v_xor_b32 v7, v7, v6')
    p('v_lshl_add_u32 v11, v7, 4, v5')
    p('v_lshlrev_b32 v6, 1, v6')
    p('v_xor_b32 v8, v6, v4')
    p('s_lshl_b32 s12, s11, 2')
    p('v_add_u32 v5, s12, v3')
    p('s_lshr_b32 s12, s11, 1')
    p('s_lshl_b32 s12, s12, 2')
    p('v_add_u32 v6, s12, v3')
    p('v_lshlrev_b32 v6, 1, v6')
    p('v_xor_b32 v6, v6, v4')
    p('v_lshlrev_b32 v7, 13, v5')
    p('v_lshl_add_u32 v12, v6, 4, v7')
    p('s_lshl_b32 s13, s11, 10')
    tb = sum(int(c) << (4*i) for i, c in enumerate(RB)); th = sum(int(c) << (4*i) for i, c in enumerate(RH))
    p('s_lshl_b32 s69, s8, 2'); p(f's_lshr_b32 s69, {tb:#x}, s69'); p('s_and_b32 s69, s69, 15')
    p('s_lshl_b32 s70, s66, 2'); p(f's_lshr_b32 s70, {th:#x}, s70'); p('s_and_b32 s70, s70, 15')
    p('s_add_u32 s69, s69, s70')
    p('s_cmp_ge_u32 s69, 10'); p('s_cselect_b32 s71, 10, 0'); p('s_sub_u32 s69, s69, s71')
    if RK != '0000':
        tk = sum(int(c) << (4*i) for i, c in enumerate(RK))
        p('s_and_b32 s70, s4, 3'); p('s_lshl_b32 s70, s70, 2'); p(f's_lshr_b32 s70, {tk:#x}, s70'); p('s_and_b32 s70, s70, 15')
        p('s_add_u32 s69, s69, s70')
        p('s_cmp_ge_u32 s69, 10'); p('s_cselect_b32 s71, 10, 0'); p('s_sub_u32 s69, s69, s71')
    p('s_mul_i32 s9, s8, 245760')
    p('s_lshl_b32 s10, s7, 8')
    p('s_waitcnt lgkmcnt(0)')
    p('s_cmp_eq_u32 s6, 0')
    for i in range(4):
        p(f's_cselect_b64 s[{16+2*i}:{17+2*i}], s[{16+2*i}:{17+2*i}], s[{24+2*i}:{25+2*i}]')
    p('s_add_u32 s36, s16, s9'); p('s_addc_u32 s37, s17, 0')
    p('s_mov_b32 s38, 245760'); p('s_mov_b32 s39, 0x20000')
    p('s_add_u32 s40, s22, s10'); p('s_addc_u32 s41, s23, 0')
    p('s_sub_u32 s42, 5242880, s10'); p('s_mov_b32 s43, 0x20000')
    def late_setup(p):
        p('v_lshlrev_b32 v7, 8, v5')
        p('v_lshl_add_u32 v13, v8, 4, v7')
        p('v_xor_b32 v6, v4, v5')
        p('v_lshl_add_u32 v10, v6, 4, v7')
        p('s_lshl_b32 s12, s8, 6'); p('s_add_u32 s12, s12, s7'); p('s_mul_i32 s12, s12, 24576')
        p('s_add_u32 s44, s18, s12'); p('s_addc_u32 s45, s19, 0')
        p(f's_mov_b32 s46, {786432+24576}'); p('s_mov_b32 s47, 0x20000')
        p('s_add_u32 s48, s20, s12'); p('s_addc_u32 s49, s21, 0')
        p(f's_mov_b32 s50, {786432+24576}'); p('s_mov_b32 s51, 0x20000')
        p(f's_load_dwordx2 s[16:17], s[0:1], {0 if FAKEWO else 32}')
        p(f's_load_dwordx2 s[18:19], s[0:1], {40 if FAKEWO else 72}')
        srd(p, 52, 34, 35, WS_SIZE)
        p('s_mov_b32 s98, s96'); p('s_add_u32 s99, s97, 1')
        stamp_setup(p, 34, 35)
        p('s_mov_b64 s[34:35], s[32:33]')
        if CPF2 >= 0:
            p('s_getpc_b64 s[22:23]')
            p('L_pc2:')
            p('s_lshl_b32 s9, s5, 2'); p('s_add_u32 s9, s9, s11'); p('s_lshl_b32 s9, s9, 8')
            p(f's_min_u32 s9, s9, L_end-L_ld2-192')
            p(f's_add_u32 s9, s9, L_ld2-L_pc2')
            p('s_add_u32 s22, s22, s9'); p('s_addc_u32 s23, s23, 0')
        p('s_not_b64 s[20:21], s[96:97]')
        p('s_lshl_b32 s67, s6, 7')
        p('s_lshl_b32 s68, s11, 3')
        if PUB == 1: p('s_add_u32 s68, s68, s66')

    afterV = []
    def loader(pat, tag):
        p = Prog()
        stream = []
        for w in pat.split():
            if w[0] == 's': stream += [('x' + w[1:], m) for m in range(6)] + [('w' + w[1:], m) for m in range(4)]
            elif w[0] in 'xw': stream += [(w, m) for m in range(6 if w[0] == 'x' else 4)]
            elif w == 'ka': stream += [('k0', m) for m in range(2)]
            elif w == 'Z': stream += [('Z0', m) for m in range(3 * SZ // 1024)]
            elif w[0] == 'W' and w[1:].isdigit():
                k0_ = sum(1 for it, m in stream if it == 'W0')
                stream += [('W0', m) for m in range(k0_, k0_ + int(w[1:]))]
            elif w == 'Wa': stream += [('W0', m) for m in range(5)]
            elif w == 'Wb': stream += [('W0', m) for m in range(5, 10)]
            elif w == 'Ka': stream += [('K0', m) for m in range(2)]
            elif w == 'Kb': stream += [('K0', m) for m in range(2, 6)]
            else: stream += [(w, m) for m in range(6)]
        n = len(stream)
        end = {}
        for i, (it, m) in enumerate(stream):
            if it[0] in 'xw': end[int(it[1:])] = i + 1
        staged = [(i, it, m) for i, (it, m) in enumerate(stream) if it[0] in 'kv']
        end[10] = max(max(i for i, (it, m) in enumerate(stream) if it[0] in 'Kk') + 1, end[9])
        endst = max([x[0] + 1 for x in staged] + [end[9]])
        end[11] = max(max(i for i, (it, m) in enumerate(stream) if it[0] in 'Vv') + 1, end[10])
        lastV = end[11]
        def need(it, m):
            if it[0] in 'xw': return int(it[1:]) - 3
            if it == 'K0': return 7 if m < 2 else -9
            if it in ('K1', 'W0', 'Z0', 'k0', 'v0', 'v1'): return -9
            return 7 if it == 'V0' else 8
        bpos = {}; prev = 0
        for s in range(-1, 11):
            pos = min(end[s+1] + (LAG0 if s == -1 else (LAG7 if s == 7 and LAG7 else LAG)), n)
            if s == 9: pos = max(pos, min(lastV, n))
            if staged and s in (8, 9):
                fd = min([i for i, (it, m) in enumerate(stream) if i >= endst and it[0] in 'xwKV'] + [n])
                pos = min(min(end[9] + (LAG8 or LAG), n), fd) if s == 8 else min(endst + WLAG, n, fd)
            if staged and s == 10 and all(it[0] not in 'V' for it, m in stream): pos = n
            first_needing = min([i for i, (it, m) in enumerate(stream) if need(it, m) >= s and need(it, m) >= 0] + [n])
            pos = min(pos, first_needing)
            assert pos >= end[s+1], (s, pos, end[s+1])
            pos = max(pos, prev); bpos[s] = pos; prev = pos
        passed = [-2]
        def pf(s):
            if not PFS or s < PF0 or s >= PF0 + PFN: return
            tot = 10240 // PFS
            k = s - PF0
            for i in range(k * tot // PFN, (k + 1) * tot // PFN):
                p(f's_load_dword s28, s[26:27], {i*PFS}')
        def barrier(s, issued):
            if PFS and s == -1:
                p('s_waitcnt lgkmcnt(0)')
                p('s_cmp_eq_u32 s6, 0')
                p('s_cselect_b64 s[26:27], s[16:17], s[18:19]')
                p('s_and_b32 s9, s4, 3'); p('s_lshl_b32 s9, s9, 5'); p('s_add_u32 s9, s9, s5'); p('s_lshl_b32 s9, s9, 2'); p('s_add_u32 s9, s9, s11')
                p('s_mul_i32 s9, s9, 10240')
                p('s_add_u32 s26, s26, s9'); p('s_addc_u32 s27, s27, 0')
            pf(s)
            p(f's_waitcnt vmcnt({issued - end[s+1]})')
            def wr_(kinds):
                for k_, (i_, it_, m_) in enumerate(staged):
                    if it_ not in kinds: continue
                    ad = {'k0': KB0, 'v0': VB0, 'v1': VB1}[it_] + m_*4096
                    p(f'ds_write_b128 v{15 + (ad >> 16)}, {vr(32+4*k_)} offset:{ad & 0xffff}')
            if NOB9 and s == 8:
                assert staged and max(i_ for i_, it_, m_ in staged if it_ != 'v1') < end[9]
                p('v_lshl_add_u32 v15, v2, 4, s13')
                p('v_add_u32 v16, 0x10000, v15')
                wr_(('k0', 'v0') if NOB9 == 2 else ('k0',))
                p('s_waitcnt lgkmcnt(0)')
            if NOB9 and s == 9:
                passed[0] = s
                p(f's_waitcnt vmcnt({issued - endst})')
                wr_(('v1',) if NOB9 == 2 else ('v0', 'v1'))
                return
            if s == 9 and staged:
                p('v_lshl_add_u32 v15, v2, 4, s13')
                p('v_add_u32 v16, 0x10000, v15')
                if VW != 2: wr_(('k0', 'v0') if VW == 1 else ('k0',))
                p('s_waitcnt lgkmcnt(0)')
            if (s == 10 and staged) or (s == 9 and not staged): p('s_waitcnt lgkmcnt(0)')
            if s == 10: dstamp(p, 5)
            p(f's_barrier      ; B_{s}')
            passed[0] = s
            if (PUB == 0 and s == 1) or (PUB == 1 and -1 <= s <= 6):
                p(f's_cmp_lg_u32 s68, {s+1 if PUB == 1 else 0}')
                p(f's_cbranch_scc1 L_nopub{tag}{s+1}')
                p('s_atomic_umax_x2 s[20:21], s[34:35], s67 glc')
                p(f'L_nopub{tag}{s+1}:')
            if s == 8 and staged and VW == 2:
                p('v_lshl_add_u32 v15, v2, 4, s13')
                p('v_add_u32 v16, 0x10000, v15')
                wr_(('k0', 'v0'))
            if s == 9 and staged:
                assert issued >= endst
                p(f's_waitcnt vmcnt({issued - endst})')
                wr_(('v1',) if VW else ('v0', 'v1'))
            if s == CPF2 or s == CPF4:
                p('s_load_dword s24, s[22:23], 0x0'); p('s_load_dword s25, s[22:23], 0x40'); p('s_load_dword s24, s[22:23], 0x80'); p('s_load_dword s25, s[22:23], 0xc0')
            if s in (-1, 2, 5, 8): dstamp(p, 1 + (s+1)//3)
        last_item = None
        for i, (it, m) in enumerate(stream):
            if i == 10: late_setup(p)
            if EARLY and i == 8 + LAGE:
                assert stream[7] == ('w0', 1) and i <= bpos[-1]
                p(f's_waitcnt vmcnt({LAGE})')
                p('s_barrier      ; B_-2')
            for s in range(-1, 11):
                if bpos[s] == i and passed[0] < s: barrier(s, i)
            assert need(it, m) <= passed[0] or need(it, m) < 0
            if it[0] in 'xw':
                t = int(it[1:]); slot = (t + 1) % 3
                if it != last_item:
                    p(f's_add_u32 s70, s69, {t}')
                    p('s_cmp_ge_u32 s70, 10'); p('s_cselect_b32 s71, 10, 0'); p('s_sub_u32 s70, s70, s71')
                    p(f's_lshl_b32 s64, s70, {7 if it[0]=="x" else 19}')
                if it[0] == 'x':
                    p(f's_add_u32 m0, s13, {XS + slot*24576 + m*4096}')
                    p(f's_add_u32 s14, s64, {m*40960}')
                    p(f'buffer_load_dwordx4 v11, s[36:39], s14 offen {XFL} lds')
                else:
                    p(f's_add_u32 m0, s13, {WS_ + slot*16384 + m*4096}')
                    p(f's_add_u32 s14, s64, {m*131072}')
                    p(f'buffer_load_dwordx4 v12, s[40:43], s14 offen {CFL if t < 3 else WFL2} lds')
            elif it[0] in 'kv':
                b = int(it[1]); k_ = [x[0] for x in staged].index(i)
                vo, sr = (10, 44) if it[0] == 'k' else (13, 48)
                p(f's_mov_b32 s14, {b*786432 + m*4096}')
                p(f'buffer_load_dwordx4 {vr(32+4*k_)}, v{vo}, s[{sr}:{sr+3}], s14 offen {KVFL}')
            elif it == 'Z0':
                if m == 0:
                    p('s_and_b32 s10, s4, 3')
                    p('s_lshl_b32 s61, s6, 5'); p('s_add_u32 s61, s61, s5'); p(f's_mul_i32 s61, s61, {RST}'); p(f's_add_u32 s61, s61, {INBOX}')
                    p('s_lshl_b32 s9, s10, 2'); p('s_add_u32 s9, s9, s11'); p(f's_mul_i32 s9, s9, {3*SZ}'); p('s_add_u32 s9, s9, s61')
                    p('v_lshlrev_b32 v15, 4, v2')
                    for i_ in range(4): p(f'v_mov_b32 v{24+i_}, -1')
                p(f's_add_u32 s14, s9, {I_OFF + m*1024}')
                p('buffer_store_dwordx4 v[24:27], v15, s[52:55], s14 offen sc1')
            elif it == 'W0':
                if m == 0:
                    p('s_waitcnt lgkmcnt(0)')
                    p('s_cmp_eq_u32 s6, 0')
                    p('s_cselect_b64 s[28:29], s[16:17], s[18:19]')
                    p('s_mov_b32 s30, 5242880'); p('s_mov_b32 s31, 0x20000')
                    p('s_and_b32 s62, s4, 3'); p('s_lshl_b32 s62, s62, 3'); p('s_lshr_b32 s9, s5, 2'); p('s_add_u32 s62, s62, s9'); p('s_lshl_b32 s62, s62, 3')
                    p('s_and_b32 s9, s5, 3'); p('s_add_u32 s62, s62, s9'); p('s_mul_i32 s62, s62, 20480')
                    p('v_lshl_add_u32 v15, v2, 4, s13')
                p(f's_add_u32 s14, s62, {m*4096 if m < 5 else 81920 + (m-5)*4096}')
                p('buffer_load_dwordx4 v[20:23], v15, s[28:31], s14 offen')
            else:
                b = int(it[1])
                addr = {'K0': KB0, 'K1': KB1, 'V0': VB0, 'V1': VB1}[it] + m*4096
                vo, sr = (10, 44) if it[0] == 'K' else (13, 48)
                p(f's_add_u32 m0, s13, {addr}')
                p(f's_mov_b32 s14, {b*786432 + m*4096}')
                p(f'buffer_load_dwordx4 v{vo}, s[{sr}:{sr+3}], s14 offen {KVFL} lds')
            last_item = it
        for s in range(-1, 11):
            if passed[0] < s: barrier(s, n)
        return p.lines
    la = loader(PATA, 'A'); lb = loader(PATB, 'B')
    k = 0
    while k < min(len(la), len(lb)) and la[k].replace('nopubA', 'nopub') == lb[k].replace('nopubB', 'nopub'): k += 1
    while k < len(la) and not la[k-1].startswith('buffer_load'): k -= 1
    for x in la[:k]: p(x)
    if k < len(la) or k < len(lb):
        p(f's_bitcmp1_b32 s2, {PATSEL}')
        p('s_cbranch_scc1 L_patB')
        for x in la[k:]: p(x)
        p('s_branch L_ld2')
        p('L_patB:')
        for x in lb[k:]: p(x)
    p('L_ld2:')
    def wgflag(off, lbl):
        p('s_cmp_lg_u32 s3, 5')
        p(f's_cbranch_scc1 {lbl}')
        p('s_mov_b64 exec, 1')
        p(f'buffer_store_dwordx2 v[28:29], v30, s[52:55], s68 offen offset:{off} {FLAGF}')
        p('s_mov_b64 exec, -1')
        p(f'{lbl}:')
    if WGF:
        p('s_memrealtime s[24:25]')
        p(f's_lshl_b32 s68, s5, {FS1}'); p(f's_mul_i32 s9, s4, {GST}'); p('s_add_u32 s68, s68, s9'); p(f's_add_u32 s68, s68, {F1_OFF}')
        p('v_mov_b32 v30, 0')
        p('s_waitcnt lgkmcnt(0)')
        p('v_mov_b32 v28, s24'); p('v_mov_b32 v29, s25')
    p('s_cmp_ge_u32 s5, 30')
    p('s_cbranch_scc1 L_ld_idle')
    p2_ids(p)
    p('s_waitcnt lgkmcnt(0)')
    p('s_cmp_eq_u32 s6, 0')
    p('s_cselect_b64 s[16:17], s[16:17], s[18:19]')
    p(f's_mul_i32 s9, s10, {0 if FAKEWO else 1310720}')
    p('s_lshl_b32 s12, s67, 8')
    p('s_add_u32 s9, s9, s12')
    p('s_add_u32 s36, s16, s9'); p('s_addc_u32 s37, s17, 0')
    p(f's_sub_u32 s38, {983040 if FAKEWO else 1310720}, s12'); p('s_mov_b32 s39, 0x20000')
    p('v_mul_u32_u24 v7, 1280, v5')
    p('v_lshl_add_u32 v12, v8, 4, v7')
    p('v_lshl_add_u32 v11, v2, 4, s13')
    p('s_mul_i32 s69, s66, 43'); p('s_lshr_b32 s69, s69, 4')
    p(f's_mul_i32 s70, s67, {ROT2}'); p('s_add_u32 s69, s69, s70'); p(f's_and_b32 s69, s69, {14 if HALF else 15}')
    p(f's_mul_i32 s65, s4, {GST}')
    p('s_lshl_b32 s12, s66, 13'); p('s_add_u32 s65, s65, s12'); p(f's_add_u32 s65, s65, {O_OFF}')
    p('s_mul_i32 s70, s69, 81920')
    p('s_mul_i32 s71, s69, 98304')
    p('s_add_u32 s71, s71, s65')
    p(f's_add_u32 s63, s65, {16*98304}')
    cnt = [0]
    endo = {}; endw = {}
    def wb():
        for m in range(5):
            p(f's_add_u32 s14, s62, {81920 + m*4096}')
            p('buffer_load_dwordx4 v[20:23], v15, s[28:31], s14 offen')
        cnt[0] += 5
    def wo_issue(k):
        fl = WOFL if k < 3 else WOFL2
        for m in range(4):
            p(f's_add_u32 m0, s13, {WO_L + ((k + 1) % NWS)*16384 + m*4096}')
            p(f's_add_u32 s14, s70, {m*20480}')
            p(f'buffer_load_dwordx4 v12, s[36:39], s14 offen {fl} lds')
        if HALF:
            p(f's_add_u32 s70, s70, {2*81920}')
            p(f's_cmp_ge_u32 s70, {16*81920}')
            p(f's_cselect_b32 s12, {16*81920}, 0'); p('s_sub_u32 s70, s70, s12')
            if k == 7: p('s_add_u32 s70, s70, 81920')
        else:
            p('s_add_u32 s70, s70, 81920')
            p(f's_cmp_eq_u32 s70, {16*81920}')
            p('s_cselect_b32 s70, 0, s70')
        cnt[0] += 4; endw[k] = cnt[0]
    def o_issue(k):
        if HALF and k == 8:
            p(f's_waitcnt vmcnt({cnt[0] - endo["f"]})')
            p('s_mov_b64 exec, s[20:21]')
            p('v_cmp_gt_u64 vcc, s[96:97], v[16:17]')
            p('v_cmp_lt_u64 s[100:101], s[98:99], v[16:17]')
            p('s_mov_b64 exec, -1')
            p('s_or_b64 vcc, vcc, s[100:101]')
            p('s_cbranch_scc0 L_fb_ok')
            p(f's_add_u32 s15, s15, {FBO}')
            poll_flags(p, 'L_pf1b', 14, 16, 's15', 's[20:21]')
            p('L_fb_ok:')
        for m in range(4):
            p(f's_add_u32 m0, s13, {O_L + (k % NOS)*16384 + m*4096}')
            p(f's_add_u32 s14, s71, {(0, 4096, 49152, 53248)[m]}')
            p(f'buffer_load_dwordx4 v11, s[52:55], s14 offen {ORFL} lds')
        if HALF:
            p(f's_add_u32 s71, s71, {2*98304}')
            p('s_cmp_ge_u32 s71, s63')
            p(f's_cselect_b32 s12, {16*98304}, 0'); p('s_sub_u32 s71, s71, s12')
            if k == 7: p('s_add_u32 s71, s71, 98304')
        else:
            p('s_add_u32 s71, s71, 98304')
            p('s_cmp_eq_u32 s71, s63')
            p('s_cselect_b32 s71, s65, s71')
        cnt[0] += 4; endo[k] = cnt[0]
        if k == WBP: wb()
        if HALF and k == 5:
            p('s_mov_b64 exec, s[20:21]')
            p(f'buffer_load_dwordx2 v[16:17], v14, s[52:55], s15 offen offset:{FBO} sc1')
            p('s_mov_b64 exec, -1')
            cnt[0] += 1; endo['f'] = cnt[0]
    if WGF:
        p('s_mul_i32 s12, s66, 43'); p('s_lshr_b32 s12, s12, 6'); p(f's_lshl_b32 s12, s12, {FS1+3}')
    else:
        p('s_mul_i32 s12, s66, 171'); p('s_lshr_b32 s12, s12, 6'); p(f's_lshl_b32 s12, s12, {FS1+3}')
    p(f's_mul_i32 s14, s4, {GST}'); p('s_add_u32 s12, s12, s14'); p(f's_add_u32 s15, s12, {F1_OFF}')
    if WGF:
        p('s_movk_i32 s21, 0xff')
        p('s_cmp_eq_u32 s66, 1'); p('s_cselect_b32 s20, 0xffff, s21')
        p('s_cmp_eq_u32 s66, 4'); p('s_cselect_b32 s20, 0xffff, s20'); p('s_mov_b32 s21, 0')
    else:
        p('s_cmp_eq_u32 s66, 1'); p('s_cselect_b32 s20, -1, 0xffffff')
        p('s_cmp_eq_u32 s66, 4'); p('s_cselect_b32 s20, -1, s20'); p('s_mov_b32 s21, 0')
    p(f'v_lshlrev_b32 v14, {FS1}, v2')
    if SENT == 3:
        p('s_memrealtime s[24:25]')
        p('s_lshl_b32 s9, s11, 7'); p('s_add_u32 s9, s9, s61'); p('s_lshl_b32 s14, s10, 3'); p('s_add_u32 s9, s9, s14'); p(f's_add_u32 s9, s9, {F2_OFF}')
        p('v_mov_b32 v30, 0')
        p('s_waitcnt vmcnt(0) lgkmcnt(0)')
        p('v_mov_b32 v28, s24'); p('v_mov_b32 v29, s25')
        p('s_mov_b64 exec, 1')
        p('buffer_store_dwordx2 v[28:29], v30, s[52:55], s9 offen sc1')
        p('s_mov_b64 exec, -1')
    nw = 0
    assert UNR and NE <= NWS - 1 and WO_L + 16384 >= VB0 + 24576
    if NEB: p('s_barrier')
    for _ in range(NE): wo_issue(nw); nw += 1
    if WGF:
        p('s_barrier')
        wgflag(0, 'L_wfa')
    if RPF and DEFER:
        p('s_getpc_b64 s[26:27]')
        p('L_pc5:')
        p('s_lshl_b32 s9, s5, 2'); p('s_add_u32 s9, s9, s11'); p('s_and_b32 s9, s9, 7'); p('s_lshl_b32 s9, s9, 6')
        p('s_add_u32 s9, s9, L_act-L_pc5')
        p('s_add_u32 s26, s26, s9'); p('s_addc_u32 s27, s27, 0')
        for j in range(RPF): p(f's_load_dword s24, s[26:27], {j*512}')
    p('s_barrier')
    for _ in range(N1 - NE): wo_issue(nw); nw += 1
    if not HALF or B11: p('s_barrier')
    for _ in range(N2): wo_issue(nw); nw += 1
    if WBP == -1: wb()
    p('s_cmp_lg_u32 s3, 4')
    p('s_cbranch_scc1 L_nopoll')
    poll_flags(p, 'L_pf1', 14, 16, 's15', 's[20:21]')
    p('L_nopoll:')
    p('s_barrier      ; B_12')
    dstamp(p, 6)
    no = 0
    for c in range(-1, 15):
        def allowed():
            cand = []
            if no < 16 and (no < NOS or no - NOS <= c - 1): cand.append(('o', no))
            if nw < 16 and (nw < NWS or nw - NWS <= c - 1): cand.append(('w', nw))
            cand.sort(key=lambda x: (x[1], x[0] == 'o'))
            return cand
        while True:
            done = (c + 1) in endo and (c + 1) in endw
            if done and cnt[0] - max(endo[c+1], endw[c+1]) >= LAG2: break
            cand = allowed()
            if not cand:
                assert done; break
            if cand[0][0] == 'o': o_issue(no); no += 1
            else: wo_issue(nw); nw += 1
        p(f's_waitcnt vmcnt({cnt[0] - max(endo[c+1], endw[c+1])})')
        p(f's_barrier      ; C_{c}')
        if c == -1: dstamp(p, 7)
        if c == -1 and WGF: wgflag(FBO, 'L_wfb')
        if RPF and DEFER and c + RPF < 16: p(f's_load_dword s24, s[26:27], {(c+RPF+1)*512}')
        if c == CPF3:
            p('s_getpc_b64 s[22:23]')
            p('L_pc3:')
            p('s_lshl_b32 s9, s5, 2'); p('s_add_u32 s9, s9, s11'); p('s_and_b32 s9, s9, 63'); p('s_lshl_b32 s9, s9, 6')
            p('s_min_u32 s9, s9, L_end-L_tail2')
            p('s_add_u32 s9, s9, L_tail2-L_pc3')
            p('s_add_u32 s22, s22, s9'); p('s_addc_u32 s23, s23, 0')
            p('s_load_dword s24, s[22:23], 0x0')
    assert no == 16 and nw == 16
    dstamp(p, 8)
    flush_stamps(p, 9, 16, 4, 'L_fsL')
    p('s_endpgm')
    p('L_ld_idle:')
    if NEB: p('s_barrier')
    if WGF:
        p('s_barrier      ; FA')
        wgflag(0, 'L_wfa2')
    p('s_barrier      ; B_11a')
    if WBP >= -1: wb()
    if WGF:
        p('s_barrier')
        wgflag(FBO, 'L_wfb2')
    p('s_endpgm')

    p('L_compute:')
    if CPRIO: p(f's_setprio {CPRIO}')
    G = lambda g: 16 + 4*g
    ACC = lambda t, qt: G(t*3+qt)
    AF = lambda st, t: G(24 + st*8 + t)
    BF = lambda st, qt: G(40 + st*3 + qt)
    AADR = 240; BADR = 248
    p('v_bfe_u32 v5, v2, 2, 2')
    p('v_and_b32 v6, 3, v2')
    p('v_and_b32 v7, 1, v3')
    p('v_lshl_add_u32 v7, v7, 2, v5')
    p('v_lshlrev_b32 v7, 1, v7')
    p('v_lshrrev_b32 v8, 1, v6')
    p('v_xor_b32 v7, v7, v8')
    p('v_lshlrev_b32 v7, 4, v7')
    p('v_and_b32 v8, 1, v6')
    p('v_lshl_add_u32 v7, v8, 3, v7')
    p('v_lshl_add_u32 v8, v3, 3, v5')
    p('v_lshl_add_u32 v8, v8, 8, v7')
    p(f'v_add_u32 v8, {WS_ + 16384}, v8')
    for t in range(8):
        p(f'v_xor_b32 v{AADR+t}, {t<<5}, v8')
    p('v_lshrrev_b32 v8, 1, v4')
    p('v_xor_b32 v8, v8, v3')
    p('v_lshlrev_b32 v8, 4, v8')
    p('v_lshl_add_u32 v8, v4, 7, v8')
    p('s_mul_i32 s13, s3, 6144')
    p(f's_add_u32 s13, s13, {XS + 24576}')
    p(f'v_add_u32 v{BADR}, s13, v8')
    p(f'v_xor_b32 v{BADR+1}, 64, v{BADR}')
    p('s_cmp_lt_u32 s3, 2')
    p(f's_mov_b32 s13, {KB1}'); p(f's_mov_b32 s14, {VB1}')
    p(f's_cselect_b32 s13, {KB0}, s13'); p(f's_cselect_b32 s14, {VB0}, s14')
    p('v_lshrrev_b32 v8, 1, v3')
    p('v_xor_b32 v8, v8, v4')
    p('v_lshlrev_b32 v8, 4, v8')
    p('v_lshl_add_u32 v8, v4, 8, v8')
    p('v_and_b32 v9, 1, v3')
    p('v_lshl_add_u32 v8, v9, 3, v8')
    p('v_add_u32 v10, s13, v8')
    p('v_lshl_add_u32 v8, v3, 2, v5')
    p('v_lshl_add_u32 v6, v8, 8, v7')
    p('v_add_u32 v11, s14, v6')
    p('v_lshlrev_b32 v9, 4, v2')
    for i in range(4): p(f'v_mov_b32 v{12+i}, 0x3f803f80')
    for i in range(96): p(f'v_mov_b32 v{16+i}, 0')
    p('s_mul_i32 s62, s66, 192'); p('s_mul_i32 s14, s8, 12'); p('s_add_u32 s62, s62, s14')
    p('s_mul_i32 s14, s3, 3'); p('s_add_u32 s62, s62, s14'); p('s_lshl_b32 s62, s62, 10')
    p(f's_mul_i32 s68, s4, {GST}'); p('s_add_u32 s62, s62, s68'); p(f's_add_u32 s62, s62, {O_OFF}')
    p(f's_mov_b32 s63, {f32bits(LOG2E_SCALE):#x}')
    p('s_mov_b32 s50, s63'); p('s_mov_b32 s51, s63')
    p('s_lshl_b32 s69, s8, 2'); p('s_add_u32 s69, s69, s3')
    p('s_lshl_b32 s69, s69, 3'); p('s_add_u32 s69, s69, s66'); p(f's_lshl_b32 s69, s69, {FS1}'); p('s_add_u32 s69, s69, s68'); p(f's_add_u32 s69, s69, {F1_OFF}')
    p('s_waitcnt lgkmcnt(0)')
    srd(p, 52, 34, 35, WS_SIZE)
    p('s_mov_b32 s98, s96'); p('s_add_u32 s99, s97, 1')
    stamp_setup(p, 34, 35)
    p('s_mov_b64 s[34:35], s[32:33]')
    p('s_load_dwordx2 s[20:21], s[0:1], 80')
    if CPF:
        p('s_cmp_lg_u32 s3, 1')
        p('s_cbranch_scc1 L_nocpf')
        p('s_getpc_b64 s[70:71]')
        p('L_pc:')
        p(f's_sub_u32 s70, s70, L_pc-{K1}')
        p('s_subb_u32 s71, s71, 0')
        p('s_mul_i32 s9, s5, 256')
        p(f's_min_u32 s9, s9, L_end-{K1}-640')
        p('s_add_u32 s70, s70, s9')
        p('s_addc_u32 s71, s71, 0')
        for i in range(4): p(f's_load_dword s{24+i}, s[70:71], {i*64}')
        p('L_nocpf:')
    p('s_waitcnt lgkmcnt(0)')
    srd(p, 44, 20, 21, 8*96*1280*2)
    if PUB == 2:
        p('s_cmp_lg_u32 s3, 3')
        p('s_cbranch_scc1 L_nopubc')
        srd(p, 24, 34, 35, 256)
        p('s_not_b64 s[70:71], s[96:97]')
        p('s_lshl_b32 s9, s6, 7')
        p('v_mov_b32 v250, s70'); p('v_mov_b32 v251, s71'); p('v_mov_b32 v252, 0')
        p('s_mov_b64 exec, 1')
        p('buffer_atomic_umax_x2 v[250:251], v252, s[24:27], s9 offen sc1')
        p('s_mov_b64 exec, -1')
        p('L_nopubc:')
    if TOUCH:
        p('s_cmp_lg_u32 s3, 2')
        p('s_cbranch_scc1 L_notouch')
        p('v_and_b32 v250, 1, v2')
        p(f'v_mul_u32_u24 v251, {GT_OFF}, v250')
        p(f'v_mul_u32_u24 v252, {RT_OFF}, v250')
        p(f'v_mul_u32_u24 v253, {8*96*1280*2 - 128}, v250')
        p('s_mul_i32 s9, s6, 32'); p('s_add_u32 s9, s9, s5'); p(f's_mul_i32 s9, s9, {RST}'); p(f's_add_u32 s9, s9, {INBOX}')
        p('s_mov_b64 exec, 3')
        p('buffer_load_dword v254, v251, s[52:55], s68 offen nt')
        p('buffer_load_dword v254, v252, s[52:55], s9 offen nt')
        p('buffer_load_dword v254, v253, s[44:47], 0 offen nt')
        p('s_mov_b64 exec, -1')
        p('L_notouch:')
    p2_ids(p)
    p('s_and_b32 s12, s3, 1'); p('s_lshl_b32 s12, s12, 2'); p('s_add_u32 s12, s12, s10')
    p('s_mul_i32 s61, s6, 32'); p('s_add_u32 s61, s61, s5'); p(f's_mul_i32 s61, s61, {RST}'); p(f's_add_u32 s61, s61, {INBOX}')
    for i in (1, 2, 3, 0):
        d = 35 + i if i else 39
        p(f's_xor_b32 s{d}, s10, {i}'); p(f's_lshl_b32 s{d}, s{d}, 2'); p(f's_add_u32 s{d}, s{d}, s3'); p(f's_mul_i32 s{d}, s{d}, {3*SZ}')
        p(f's_add_u32 s{d}, s{d}, s61'); p(f's_add_u32 s{d}, s{d}, {I_OFF + (i-1 if i else 0)*SZ}')
    p(f's_lshl_b32 s40, s3, {max(7, FS2+2)}'); p('s_add_u32 s40, s40, s61'); p(f's_add_u32 s40, s40, {F2_OFF}')
    p('s_lshl_b32 s41, s66, 3'); p('s_add_u32 s41, s41, s12'); p('s_mul_i32 s41, s41, 40960')
    p('s_mul_i32 s13, s6, 1280'); p('s_add_u32 s41, s41, s13'); p('s_lshl_b32 s13, s67, 8'); p('s_add_u32 s41, s41, s13')
    p('s_lshr_b32 s13, s3, 1'); p('s_lshl_b32 s13, s13, 7'); p('s_add_u32 s41, s41, s13')
    p(f's_lshl_b32 s42, s10, {FS2}'); p('s_add_u32 s42, s42, s40')
    for v in range(4): p(f's_add_u32 s{16+v}, s62, {v*48*1024}')
    p('s_add_u32 s43, s39, 4096')
    p('s_add_u32 s48, s39, 8192')
    if WGF:
        p(f's_lshl_b32 s69, s5, {FS1}'); p('s_add_u32 s69, s69, s68'); p(f's_add_u32 s69, s69, {F1_OFF}')
    if FWARM:
        p('v_mov_b32 v250, 0')
        p('s_mov_b64 exec, 1')
        if FWARM & 1:
            p('buffer_load_dword v251, v250, s[52:55], s69 offen sc1')
            p(f'buffer_load_dword v251, v250, s[52:55], s69 offen offset:{FBO} sc1')
        if FWARM & 2: p('buffer_load_dword v251, v250, s[52:55], s42 offen sc1')
        p('s_mov_b64 exec, -1')
    if SENT == 1:
        p('s_cmp_ge_u32 s5, 30')
        p('s_cbranch_scc1 L_noclr')
        for i in range(4): p(f'v_mov_b32 v{200+i}, -1')
        for k in range(3 * SZ // 1024):
            p(f'buffer_store_dwordx4 v[200:203], v9, s[52:55], s{(39, 43, 48)[k//4]} offen offset:{(k%4)*1024} sc1')
        p('L_noclr:')
    def reads(st, ks):
        L = [f'ds_read_b128 {vr(BF(st,qt))}, v{BADR+ks} offset:{qt*2048}' for qt in range(3)]
        for t in range(8):
            L.append(f'ds_read_b64_tr_b16 {vr(AF(st,t),2)}, v{AADR+t} offset:{ks*8192}')
            L.append(f'ds_read_b64_tr_b16 {vr(AF(st,t)+2,2)}, v{AADR+t} offset:{ks*8192+1024}')
        return L
    def mfmas(st):
        return [f'{MF} {vr(ACC(t,qt))}, {vr(AF(st,t))}, {vr(BF(st,qt))}, {vr(ACC(t,qt))}' for t in range(8) for qt in (range(3) if not (SNAKE and t & 1) else (2, 1, 0))]
    p('s_mov_b32 s14, 1')
    p('s_mov_b32 s15, 0')
    p('s_barrier')
    dstamp(p, 1)
    pro = reads(0, 0)
    for x in pro: p(x)
    _, pend0 = auto_lgkm(pro)
    scal = ['s_add_u32 s14, s14, 1', 's_cmp_eq_u32 s14, 3', 's_cselect_b32 s61, -2, 1', 's_cselect_b32 s14, 0, s14',
            's_mul_i32 s64, s61, 16384', 's_mul_i32 s65, s61, 24576', 's_add_u32 s15, s15, 1', 's_cmp_eq_u32 s15, 10']
    m0_ = mfmas(0); m1 = mfmas(1)
    H1 = spread(m0_[:19], reads(1, 1), per=PER1) + spread(m0_[19:], scal, per=2)
    upd = [f'v_add_u32 v{BADR+i}, s65, v{BADR+i}' for i in range(2)] + [f'v_add_u32 v{AADR+t}, s64, v{AADR+t}' for t in range(8)]
    H2a = interleave(m1[:NA], upd, per=2) + ['s_waitcnt lgkmcnt(0)', 's_barrier']
    H2b = spread(m1[NA:], reads(0, 0), per=PER1)
    if LOWD:
        H1 = reads(1, 1) + (scal + m0_ if LOWD == 2 else spread(m0_, scal))
        H2a = (m1 + upd if LOWD == 2 else interleave(m1, upd, per=1)) + ['s_barrier']
        H2b = reads(0, 0)
        if LOWD == 3:
            H1 = scal + ['s_waitcnt lgkmcnt(0)'] + m0_ + reads(1, 1) + ['s_waitcnt lgkmcnt(0)']
            if EARLY:
                H1 = scal[:-1] + ['s_cmp_lg_u32 s15, 1', 's_waitcnt lgkmcnt(0)'] + m0_ + ['s_cbranch_scc1 L_nb1', 's_barrier', 'L_nb1:'] + reads(1, 1) + [scal[-1], 's_waitcnt lgkmcnt(0)']
            H2a = m1 + upd + ['s_barrier']
    if BURST:
        r1 = reads(1, 1); r0 = reads(0, 0)
        H1 = r1[:BURST] + spread(m0_[:19], r1[BURST:]) + spread(m0_[19:], scal, per=2)
        H2b = r0[:BURST] + spread(m1[NA:], r0[BURST:])
    if XNOP:
        def addn(L):
            o_ = []; c = 0
            for x in L:
                o_.append(x)
                if x.startswith('v_mfma'):
                    c += 1
                    if c % XNOP == 0: o_.append('s_nop 3')
            return o_
        H1 = addn(H1); H2b = addn(H2b)
    h1, pend = auto_lgkm(H1, pend0)
    h2a, pend_a = auto_lgkm(H2a, pend)
    h2b, _ = auto_lgkm(H2b, pend_a)
    if PEEL:
        assert LOWD in (1, 2) and NE == 0 and PUB != 2 and not NOB9
        h1a, pend = auto_lgkm(reads(1, 1) + scal, pend0)
        rest_, _ = auto_lgkm(m0_ + H2a + H2b, pend)
        h1 = h1a; h2a = rest_; h2b = []
    p('L_loop:')
    for x in h1: p(x)
    p('s_cbranch_scc1 L_tail')
    for x in h2a + h2b: p(x)
    p('s_branch L_loop')
    p('L_tail:')
    KFg = list(range(24, 32)) + [40, 41, 42] + list(range(46, 56)) + [32, 33, 34]
    KF = lambda kt, u: G(KFg[kt*4+u])
    QB = lambda u, qt: ACC(2*u, qt)
    Smap = {}
    free_early = [35, 36, 37, 38, 39, 43, 44, 45]
    for kt in range(6): Smap[(kt, 0)] = free_early[kt]
    oddq = lambda qt: [(2*u+1)*3+qt for u in range(4)]
    l1 = oddq(0) + oddq(1)[:2]
    l2 = oddq(1)[2:] + oddq(2)
    for kt in range(6): Smap[(kt, 1)] = l1[kt]; Smap[(kt, 2)] = l2[kt]
    S = lambda kt, qt: G(Smap[(kt, qt)])
    kaddr = [f'v_xor_b32 v{AADR+m}, {m<<5}, v10' for m in range(8)]
    def kread(kt, u):
        return [f'ds_read_b64 {vr(KF(kt,u),2)}, v{AADR+2*u} offset:{kt*4096}', f'ds_read_b64 {vr(KF(kt,u)+2,2)}, v{AADR+2*u+1} offset:{kt*4096}']
    kr = [x for kt in range(6) for u in range(4) for x in kread(kt, u)]
    qcvt = lambda qt: [x for u in range(4) for x in cvt4(QB(u, qt), ACC(2*u, qt), ACC(2*u+1, qt))]
    T = ['s_memrealtime s[70:71]'] + interleave(m1[:NAT], kaddr, per=2) + (['s_waitcnt vmcnt(0) lgkmcnt(0)', 's_barrier'] if not NOB9 else ['s_waitcnt lgkmcnt(0)'])
    T += ['v_mov_b32 v254, s70', 'v_mov_b32 v255, s71', 'v_mov_b32 v253, 0']
    if SENT == 1:
        T += ['s_waitcnt vmcnt(0)', 's_mov_b64 exec, 1', 'buffer_store_dwordx2 v[254:255], v253, s[52:55], s42 offen sc1', 's_mov_b64 exec, -1']
    if STAMPS: T.append(f'{"s_memtime" if CLK else "s_memrealtime"} s[76:77]')
    o, rest = merge(m1[NAT:], kr[:42])
    T += o + rest + kr[42:]
    movs = []
    if PEEL:
        T = ['s_memrealtime s[70:71]'] + interleave(m0_[:4], kaddr, per=2) + spread(m0_[4:], kr[22:42]) + spread(m1[:6], kr[16:22]) + ['s_barrier']
        if STAMPS: T.append(f'{"s_memtime" if CLK else "s_memrealtime"} s[76:77]')
        T += spread(m1[6:], kr[:16] + kr[42:])
        movs = ['s_waitcnt lgkmcnt(0)', 'v_mov_b32 v254, s70', 'v_mov_b32 v255, s71', 'v_mov_b32 v253, 0']
    def smf(qt):
        return [f'{MF} {vr(S(kt,qt))}, {vr(KF(kt,u))}, {vr(QB(u,qt))}, {"0" if u == 0 else vr(S(kt,qt))}' for u in range(4) for kt in range(6)]
    def softmax(qt):
        regs = [S(kt, qt) + r for kt in range(6) for r in range(4)]
        M = 250; Tm = 251; M2 = 249
        L = [f'v_max3_f32 v{M}, v{regs[0]}, v{regs[1]}, v{regs[2]}', f'v_max3_f32 v{M2}, v{regs[3]}, v{regs[4]}, v{regs[5]}']
        for i in range(6, 22, 4):
            L.append(f'v_max3_f32 v{M}, v{M}, v{regs[i]}, v{regs[i+1]}')
            L.append(f'v_max3_f32 v{M2}, v{M2}, v{regs[i+2]}, v{regs[i+3]}')
        L.append(f'v_max3_f32 v{M}, v{M}, v{regs[22]}, v{regs[23]}')
        L.append(f'v_max_f32 v{M}, v{M}, v{M2}')
        L += [f'v_mov_b32 v{Tm}, v{M}', f'v_permlane16_swap_b32 v{M}, v{Tm}', f'v_max_f32 v{M}, v{M}, v{Tm}',
              f'v_mov_b32 v{Tm}, v{M}', f'v_permlane32_swap_b32 v{M}, v{Tm}', f'v_max_f32 v{M}, v{M}, v{Tm}',
              f'v_mul_f32 v{M}, s63, v{M}']
        for u in range(3):
            rr = regs[8*u:8*u+8]
            if PK & 1: L += [f'v_pk_fma_f32 v[{r}:{r+1}], v[{r}:{r+1}], s[50:51], v[{M}:{M+1}] op_sel_hi:[1,0,0] neg_lo:[0,0,1] neg_hi:[0,0,1]' for r in rr[::2]]
            else: L += [f'v_fma_f32 v{r}, v{r}, s63, -v{M}' for r in rr]
            L += [f'v_exp_f32 v{r}, v{r}' for r in rr]
            L += cvt4(S(2*u, qt), S(2*u, qt), S(2*u+1, qt))
        return L
    PB = lambda u, qt: S(2*u, qt)
    VF = lambda t, u: G(KFg[t*3+u])
    T += qcvt(0) + movs[:1]
    o, rest = merge(smf(0), qcvt(1) + qcvt(2) + movs[1:])
    T += o + rest
    sm0 = softmax(0)
    m12 = smf(1) + (smf(2) if not ORH else [])
    o, rest0 = merge(m12[4:], sm0)
    T += m12[:4] + o + rest0
    T += [f'v_xor_b32 v{AADR+t}, {t<<5}, v11' for t in range(8)]
    t2, _ = auto_lgkm(T, pend)
    for x in t2: p(x)
    dstamp(p, 3)
    p('s_barrier')
    dstamp(p, 4)
    U = []
    for t in range(8):
        for u in range(3):
            U.append(f'ds_read_b64_tr_b16 {vr(VF(t,u),2)}, v{AADR+t} offset:{u*8192}')
            U.append(f'ds_read_b64_tr_b16 {vr(VF(t,u)+2,2)}, v{AADR+t} offset:{u*8192+4096}')
    qbg = [(2*u)*3+qt for u in range(4) for qt in range(3)]
    Og = {0: qbg[:9], 1: qbg[9:] + [44, 45] + [Smap[(1,0)], Smap[(3,0)], Smap[(5,0)]] + [Smap[(1,1)]]}
    Og[2] = [Smap[(0,0)], Smap[(2,0)], Smap[(4,0)], Smap[(3,1)], Smap[(5,1)], Smap[(1,2)], Smap[(3,2)], Smap[(5,2)], Smap[(0,1)]]
    OA = lambda t, qt: G(Og[qt][t])
    def pv(qt):
        L = []
        for u in range(3):
            L.append(f'{MF} {vr(OA(8,qt))}, v[12:15], {vr(PB(u,qt))}, {"0" if u == 0 else vr(OA(8,qt))}')
        for t2_ in range(0, 8, 2):
            for u in range(3):
                for t in (t2_, t2_+1):
                    L.append(f'{MF} {vr(OA(t,qt))}, {vr(VF(t,u))}, {vr(PB(u,qt))}, {"0" if u == 0 else vr(OA(t,qt))}')
        return L
    def onorm(qt):
        l = OA(8, qt)
        L = [f'v_rcp_f32 v{l}, v{l}']
        for v in range(4):
            a0 = OA(2*v, qt); a1 = OA(2*v+1, qt)
            L += [f'v_mul_f32 v{a+r}, v{a+r}, v{l}' for a in (a0, a1) for r in range(4)]
            L += cvt4(a0, a0, a1)
            L.append(f's_add_u32 s14, s62, {v*48*1024}')
            L.append(f'buffer_store_dwordx4 {vr(a0)}, v9, s[52:55], s14 offen offset:{qt*1024} {OFL}')
        return L
    sm1 = softmax(1); sm2 = softmax(2)
    if HALF:
        Lg = [44, 45, Smap[(1,0)]]
        Bg = [Smap[(3,0)], Smap[(5,0)], Smap[(1,1)], Smap[(3,1)], Smap[(5,1)], Smap[(1,2)], Smap[(3,2)], Smap[(5,2)]] + KFg[:4]
        OH = lambda t, qt: G(qbg[qt*4+t]) if t < 4 else G(Bg[qt*4+t-4])
        def pvh(h, qt):
            L = []
            if h == 0:
                l = G(Lg[qt])
                L += [f'{MF} {vr(l)}, v[12:15], {vr(PB(u,qt))}, {"0" if u == 0 else vr(l)}' for u in range(3)]
            for t2_ in (4*h, 4*h+2):
                for u in range(3):
                    for t in (t2_, t2_+1):
                        L.append(f'{MF} {vr(OH(t,qt))}, {vr(VF(t,u))}, {vr(PB(u,qt))}, {"0" if u == 0 else vr(OH(t,qt))}')
            return L
        def nrm(h, qt):
            l = G(Lg[qt])
            L = [f'v_rcp_f32 v{l}, v{l}'] if h == 0 else []
            for v in (2*h, 2*h+1):
                a0 = OH(2*v, qt); a1 = OH(2*v+1, qt)
                if PK & 2: L += [f'v_pk_mul_f32 v[{a+r}:{a+r+1}], v[{a+r}:{a+r+1}], v[{l}:{l+1}] op_sel_hi:[1,0]' for a in (a0, a1) for r in (0, 2)]
                else: L += [f'v_mul_f32 v{a+r}, v{a+r}, v{l}' for a in (a0, a1) for r in range(4)]
                L += cvt4(a0, a0, a1)
                if not SOFFS: L.append(f's_add_u32 s14, s62, {v*48*1024}')
                L.append(f'buffer_store_dwordx4 {vr(a0)}, v9, s[52:55], s{16+v if SOFFS else 14} offen offset:{qt*1024} {OFL}')
            return L
        flagA = lambda k: [f's_waitcnt vmcnt({k})', 's_mov_b64 exec, 1', f'buffer_store_dwordx2 v[254:255], v253, s[52:55], s69 offen {FLAGF}', 's_mov_b64 exec, -1']
        if WGF: flagA = lambda k: [f's_waitcnt vmcnt({k})', 's_barrier']
        vrdB = U[24:]; U = U[:24]
        if ORH:
            st_ = lambda h: [x for x in nrm(h, 2) if x.startswith(('buffer', 's_add'))]
            o, rest = merge(pvh(0, 0), sm1); U += o + rest
            o, rest = merge(pvh(0, 1), nrm(0, 0)); U += o + vrdB + rest + st_(0)
            o, rest = merge(pvh(1, 0), nrm(0, 1)); U += o + rest
            o, rest = merge(pvh(1, 1), nrm(1, 0)); U += o + rest + flagA(2) + st_(1) + nrm(1, 1)
            U_done = list(U)
        o, rest = merge(pvh(0, 0), sm1); U += o + rest
        if AEARLY == 1:
            o, rest = merge(pvh(0, 1), nrm(0, 0) + sm2); U += o + rest
            o, rest = merge(pvh(0, 2), nrm(0, 1)); U += o + vrdB + rest
            o, rest = merge(pvh(1, 0), nrm(0, 2)); U += o + rest
        elif AEARLY == 2:
            o, rest = merge(pvh(0, 1), nrm(0, 0) + sm2[:40]); U += o + rest + nrm(0, 1) + sm2[40:]
            o, rest = merge(pvh(0, 2), vrdB, slots=1); U += o + rest + nrm(0, 2)
            U += pvh(1, 0)
        else:
            o, rest = merge(pvh(0, 1), sm2); U += o + rest
            o, rest = merge(pvh(0, 2), nrm(0, 0) + nrm(0, 1)); U += o + vrdB + rest
            o, rest = merge(pvh(1, 0), nrm(0, 2)); U += o + rest
        if NEB == 1: U += ['s_barrier']
        if FAPOS == 0: U += flagA(0)
        o, rest = merge(pvh(1, 1), nrm(1, 0)); U += o + rest
        if NEB == 2: U += ['s_barrier']
        if FAPOS == 1: U += flagA(2)
        o, rest = merge(pvh(1, 2), nrm(1, 1)); U += o + rest
        if FAPOS == 2: U += flagA(4)
        U += nrm(1, 2)
        if FAPOS == 3: U += flagA(6)
    if ORH: U = U_done
    if not HALF:
        o, rest = merge(pv(0), sm1)
        U += o + rest
    if HALF: pass
    elif OEARLY:
        o, rest = merge(pv(1), onorm(0) + sm2)
        U += o + rest
        o, rest = merge(pv(2), onorm(1))
        U += o + rest
    else:
        o, rest = merge(pv(1), sm2)
        U += o + rest
        o, rest = merge(pv(2), onorm(0) + onorm(1))
        U += o + rest
    if not HALF: U += onorm(2)
    u2, _ = auto_lgkm(U, [])
    for x in u2: p(x)
    dstamp(p, 5)
    p('s_barrier')
    A2 = lambda i, t: 16 + (i*4+t)*4
    FA = lambda st, t: 80 + st*32 + t*4
    FBq = lambda st, i: 96 + st*32 + i*4
    p('s_lshr_b32 s13, s3, 1'); p('s_lshl_b32 s13, s13, 7')
    p(f'v_add_u32 v8, {WO_L}, v6')
    p('v_xor_b32 v8, s13, v8')
    for t in range(4): p(f'v_xor_b32 v{AADR+t}, {t<<5}, v8')
    if UNR:
        for t in range(4): p(f'v_add_u32 v{232+t}, 0x10000, v{AADR+t}')
    p('s_lshl_b32 s13, s12, 10')
    p(f'v_add_u32 v8, s13, v9')
    for i in range(4): p(f'v_xor_b32 v{AADR+4+i}, {i<<10}, v8')
    p(f'v_lshlrev_b32 v248, {FS2}, v2')
    p('v_mul_u32_u24 v7, 2560, v4')
    if WIDE:
        p('v_and_b32 v8, 1, v3'); p('v_lshl_add_u32 v7, v8, 5, v7')
        p('v_lshrrev_b32 v8, 1, v3'); p('v_lshl_add_u32 v7, v8, 4, v7')
    else: p('v_lshl_add_u32 v7, v3, 3, v7')
    def lastflag():
        p('s_waitcnt vmcnt(0)')
        if WGF:
            dstamp(p, 6); return
        p('s_mov_b64 exec, 1')
        p(f'buffer_store_dwordx2 v[254:255], v253, s[52:55], s69 offen offset:{FBO if HALF else 0} {FLAGF}')
        p('s_mov_b64 exec, -1')
        dstamp(p, 6)
    if not HALF:
        lastflag()
        p('s_cmp_ge_u32 s5, 30')
        p('s_cbranch_scc1 L_cdone')
        p('s_barrier')
    else:
        p('s_cmp_lt_u32 s5, 30')
        p('s_cbranch_scc1 L_act')
        lastflag()
        if WGF: p('s_barrier')
        p('s_branch L_cdone')
        p('L_act:')
    if SENT == 2:
        for i in range(4): p(f'v_mov_b32 v{200+i}, -1')
        for k in range(3 * SZ // 1024):
            p(f'buffer_store_dwordx4 v[200:203], v9, s[52:55], s{(39, 43, 48)[k//4]} offen offset:{(k%4)*1024} sc1')
    if HALF and B11:
        lastflag()
        p('s_barrier')
    p('s_barrier')
    if HALF and not B11: lastflag()
    if SENT in (1, 3):
        p('s_mov_b64 exec, 15')
        p('buffer_load_dwordx2 v[250:251], v248, s[52:55], s40 offen sc1')
        p('s_mov_b64 exec, -1')
    SR = 144
    if TAGS:
        p('s_mov_b32 s13, 0x01010101')
        p('v_mul_lo_u32 v236, v2, s13')
        p('v_add_u32 v237, s96, v236')
        p('v_add_u32 v236, s70, v236')
        for k in range(9): p(f'v_mov_b32 v{SR+4*k+3}, v236')
        for i in range(3): p(f'v_mov_b32 v{SR+12*i+10}, 0')
    for i in range(64): p(f'v_mov_b32 v{16+i}, 0')
    def reads2(st, kk, stage=0):
        oo = (stage % NOS) * 16384 + kk*8192
        wo_ = ((stage + 1) % NWS) * 16384 + kk*8192
        ab = AADR if wo_ < 65536 else 232
        wo_ &= 0xffff
        L = [f'ds_read_b128 {vr(FBq(st,0))}, v{AADR+4} offset:{oo}']
        for t in range(4):
            L.append(f'ds_read_b64_tr_b16 {vr(FA(st,t),2)}, v{ab+t} offset:{wo_}')
            L.append(f'ds_read_b64_tr_b16 {vr(FA(st,t)+2,2)}, v{ab+t} offset:{wo_+4096}')
        L += [f'ds_read_b128 {vr(FBq(st,i))}, v{AADR+4+i} offset:{oo}' for i in range(1, 4)]
        if DIAG: L = [L[k] for k in (9, 1, 2, 3, 4, 10, 5, 6, 11, 7, 8, 0)]
        return L
    DORD = [(0,0),(0,1),(1,1),(1,0),(0,2),(1,2),(2,2),(2,1),(2,0),(0,3),(1,3),(2,3),(3,3),(3,2),(3,1),(3,0)]
    DORD = [((i + 1) % 4, t) for i, t in DORD]
    def mfd(st): return [f'{MF} {vr(A2(i,t))}, {vr(FA(st,t))}, {vr(FBq(st,i))}, {vr(A2(i,t))}' for i, t in DORD]
    def mf2(st):
        return [f'{MF} {vr(A2(i,t))}, {vr(FA(st,t))}, {vr(FBq(st,i))}, {vr(A2(i,t))}' for i in range(4) for t in (range(4) if not (SNAKE and i & 1) else (3, 2, 1, 0))]
    p('s_mov_b32 s14, 0')
    p('s_mov_b32 s15, 0')
    p('s_barrier')
    dstamp(p, 7)
    pro = reads2(0, 0)
    for x in pro: p(x)
    _, pend0 = auto_lgkm(pro)
    p('s_mov_b32 s13, 0')
    scal = ['s_add_u32 s14, s14, 1', f's_cmp_eq_u32 s14, {NWS}', f's_cselect_b32 s61, {1-NWS}, 1', 's_cselect_b32 s14, 0, s14', 's_lshl_b32 s64, s61, 14',
            's_add_u32 s13, s13, 1', f's_cmp_eq_u32 s13, {NOS}', f's_cselect_b32 s61, {1-NOS}, 1', 's_cselect_b32 s13, 0, s13', 's_lshl_b32 s65, s61, 14',
            's_add_u32 s15, s15, 1', 's_cmp_eq_u32 s15, 16']
    if ORC: scal = scal[-2:]
    n0 = mf2(0); n1 = mf2(1)
    H1 = spread(n0[:12], reads2(1, 1)) + spread(n0[12:], scal, per=3)
    upd = [f'v_add_u32 v{AADR+4+i}, s65, v{AADR+4+i}' for i in range(4)] + [f'v_add_u32 v{AADR+t}, s64, v{AADR+t}' for t in range(4)]
    if ORC: upd = upd[:ORC-1]
    H2a = interleave(n1[:4], upd, per=2) + ['s_waitcnt lgkmcnt(0)', 's_barrier']
    H2b = spread(n1[4:], reads2(0, 0))
    h1, pend = auto_lgkm(H1, pend0)
    h2a, pend_a = auto_lgkm(H2a, pend)
    h2b, _ = auto_lgkm(H2b, pend_a)
    if DEFER:
        assert DIAG and UNR and DEFER <= NOS
        pend = pend0
        for j in range(16):
            p(f'L_s{j}:')
            df = j >= 16 - DEFER; dfn = j + 1 >= 16 - DEFER
            d0 = mfd(0); d1 = mfd(1); r_ = reads2(1, 1, j); rn = reads2(0, 0, j + 1)
            if df: d0 = d0[:12]; d1 = d1[:12]; r_ = r_[:11]
            if dfn: rn = rn[:11]
            o_ = 1 if df else 0
            seq_ = [f's_waitcnt lgkmcnt({6-o_})'] + spread(d0[:4], r_[:4]) + [f's_waitcnt lgkmcnt({7-o_})'] + spread(d0[4:9], r_[4:9]) + ['s_waitcnt lgkmcnt(9)'] + spread(d0[9:], r_[9:])
            hh1, pend = auto_lgkm(seq_, pend)
            for x in hh1: p(x)
            if j == 15: break
            nb_ = NB2 if not df else 3
            hh2, pend = auto_lgkm([f's_waitcnt lgkmcnt({6-o_})'] + d1[:nb_] + ['s_waitcnt lgkmcnt(0)', 's_barrier'] + interleave(d1[nb_:], rn), pend)
            for x in hh2: p(x)
    elif UNR:
        import math
        per_ = min(NWS * NOS // math.gcd(NWS, NOS), 16)
        exit_at = 15 % per_
        npass = 15 // per_
        p('L_loop2:')
        for j in range(per_):
            sc = []
            if j == exit_at and per_ < 16: sc = [f's_cmp_eq_u32 s15, {npass}']
            if DIAG:
                d0 = mfd(0); r_ = reads2(1, 1, j)
                seq_ = ['s_waitcnt lgkmcnt(6)'] + spread(d0[:4], r_[:4]) + ['s_waitcnt lgkmcnt(7)'] + spread(d0[4:9], r_[4:9]) + ['s_waitcnt lgkmcnt(9)'] + spread(d0[9:12], r_[9:]) + spread(d0[12:], sc)
            else: seq_ = spread(n0[:12], reads2(1, 1, j)) + spread(n0[12:], sc)
            hh1, pend = auto_lgkm(seq_, pend0)
            for x in hh1: p(x)
            if j == exit_at:
                if per_ < 16: p('s_cbranch_scc1 L_tail2')
                else: break
            sc = ['s_add_u32 s15, s15, 1'] if j == per_ - 1 else []
            d1 = mfd(1) if DIAG else n1
            hh2, _ = auto_lgkm((['s_waitcnt lgkmcnt(6)'] if DIAG else []) + spread(d1[:NB2], sc) + ['s_waitcnt lgkmcnt(0)', 's_barrier'] + spread(d1[NB2:], reads2(0, 0, j + 1)), pend)
            for x in hh2: p(x)
        if per_ < 16: p('s_branch L_loop2')
    else:
        p('L_loop2:')
        for x in h1: p(x)
        p('s_cbranch_scc1 L_tail2')
        for x in h2a + h2b: p(x)
        if SENT == 2:
            p('s_and_b32 s61, s15, 7')
            p('s_cmp_lg_u32 s61, 3')
            p('s_cbranch_scc1 L_loop2')
            p('s_cmp_eq_u32 s15, 3')
            p('s_cbranch_scc0 L_ev11')
            p('s_waitcnt vmcnt(0)')
            p('s_mov_b64 exec, 1')
            p('buffer_store_dwordx2 v[254:255], v253, s[52:55], s42 offen sc1')
            p('s_mov_b64 exec, -1')
            p('s_branch L_loop2')
            p('L_ev11:')
            p('s_mov_b64 exec, 15')
            p('buffer_load_dwordx2 v[250:251], v248, s[52:55], s40 offen sc1')
            p('s_mov_b64 exec, -1')
        p('s_branch L_loop2')
    p('L_tail2:')
    last = [f'{MF} {vr(A2(i,t))}, {vr(FA(1,t))}, {vr(FBq(1,i))}, {vr(A2(i,t))}' for i in (1, 2, 3, 0) for t in range(4)]
    chk = []
    if SENT:
        chk = ['s_waitcnt vmcnt(0)', 's_mov_b64 exec, 15', 'v_cmp_gt_u64 vcc, s[96:97], v[250:251]', 'v_cmp_lt_u64 s[100:101], s[98:99], v[250:251]',
               's_mov_b64 exec, -1', 's_or_b64 vcc, vcc, s[100:101]']
        for x in chk: p(x)
        p('s_cbranch_scc0 L_rdy')
        poll_flags(p, 'L_pf2', 248, 250, 's40', '15')
        p('L_rdy:')
    def send(i):
        L = []
        if PF32:
            L += [f'buffer_store_dwordx4 {vr(A2(i,t))}, v9, s[52:55], s{35+i} offen offset:{t*1024} {PFL}' for t in range(4)]
        elif TAGS:
            b0 = SR + 12*(i-1)
            for k in range(8):
                a = A2(i, k >> 1) + 2*(k & 1)
                L.append(f'v_cvt_pk_bf16_f32 v{b0 + 4*(k//3) + k%3}, v{a}, v{a+1}')
                if k in (2, 5, 7):
                    L.append(f'buffer_store_dwordx4 {vr(b0 + 4*(k//3))}, v9, s[52:55], s{35+i} offen offset:{(k//3)*1024} {PFL}')
        else:
            for hf in range(2):
                L += cvt4(A2(i, 2*hf), A2(i, 2*hf), A2(i, 2*hf+1))
                L.append(f'buffer_store_dwordx4 {vr(A2(i,2*hf))}, v9, s[52:55], s{35+i} offen offset:{hf*1024} {PFL}')
        return L
    seq = last[:8] + spread(last[8:12], send(1), per=3) + spread(last[12:], send(2), per=3) + send(3)
    if DEFER:
        steps = [(j, kk) for j in range(16 - DEFER, 16) for kk in range(2)]
        def ownr(n):
            j, kk = steps[n]; r_ = reads2(n & 1, kk, j)
            return [r_[11]] + [r_[k] for k in (1, 2, 3, 4, 6, 7, 9, 10)]
        seq = last[:8] + spread(last[8:12], send(1), per=3) + send(2) + send(3) + ownr(0)
        if STAMPS: seq.append(f'{"s_memtime" if CLK else "s_memrealtime"} s[88:89]')
        for n in range(len(steps)):
            om = [f'{MF} {vr(A2(0,t))}, {vr(FA(n&1,t))}, {vr(FBq(n&1,0))}, {vr(A2(0,t))}' for t in range(4)]
            nx = ownr(n + 1) if n + 1 < len(steps) else []
            if n == FSPLIT:
                seq += ['s_waitcnt vmcnt(0)', 's_mov_b64 exec, 1', f'buffer_store_dwordx2 v[254:255], v253, s[52:55], s42 offen {FLAGF}', 's_mov_b64 exec, -1']
            seq += nx[:3] + interleave(om, nx[3:])
    tl, _ = auto_lgkm(seq, pend)
    for x in tl: p(x)
    if not DEFER: dstamp(p, 8)
    R = 80
    nld = 3 * SZ // 1024
    def loads():
        for k in range(nld):
            p(f'buffer_load_dwordx4 {vr(R+4*k)}, v9, s[52:55], s{(39, 43, 48)[k//4]} offen offset:{(k%4)*1024} sc1')
    if TAGS:
        p(f's_mov_b32 s9, {SPIN_MAX}')
        p('s_mov_b32 s13, 0x100000')
        if TAGS == 2:
            p('v_mul_u32_u24 v238, 3072, v2')
            p('s_mov_b64 exec, 7')
            p('L_lp:')
            p('buffer_load_dword v250, v238, s[52:55], s39 offen offset:2060 sc1')
            p('s_waitcnt vmcnt(0)')
            p('v_subrev_u32 v250, s96, v250')
            p('v_cmp_le_u32 vcc, s13, v250')
            p('s_cbranch_vccz L_lp_ok')
            p(f's_sleep {PSLEEP}')
            p('s_sub_u32 s9, s9, 1')
            p('s_cmp_gt_u32 s9, 1')
            p('s_cbranch_scc1 L_lp')
            p('L_lp_ok:')
            p('s_mov_b64 exec, -1')
        p('L_rx:')
        loads()
        for i in range(3):
            p(f's_waitcnt vmcnt({6 - 3*i})')
            t0 = R + 12*i + 3
            p(f'v_xor_b32 v250, v{t0}, v{t0+4}')
            p(f'v_xor_b32 v251, v{t0}, v{t0+8}')
            if i == 0:
                p('v_or_b32 v252, v250, v251'); p(f'v_sub_u32 v249, v{t0}, v237')
            else:
                p('v_or3_b32 v252, v252, v250, v251'); p(f'v_sub_u32 v250, v{t0}, v237'); p('v_max_u32 v249, v249, v250')
        p('v_cmp_ne_u32 vcc, 0, v252')
        p('v_cmp_le_u32 s[100:101], s13, v249')
        p('s_or_b64 vcc, vcc, s[100:101]')
        p('s_cbranch_scc0 L_rx_ok')
        if SSLEEP: p(f's_sleep {SSLEEP}')
        p('s_sub_u32 s9, s9, 1')
        p('s_cmp_lg_u32 s9, 0')
        p('s_cbranch_scc1 L_rx')
        p('L_rx_ok:')
        dstamp(p, 9); dstamp(p, 10)
    elif SENT:
        p(f's_mov_b32 s9, {SPIN_MAX}')
        p('L_rx:')
        loads()
        n = nld * 4
        for k in range(nld):
            p(f's_waitcnt vmcnt({nld-1-k})')
            b_ = R + 4*k
            if k == 0:
                p(f'v_max3_u32 v252, v{b_}, v{b_+1}, v{b_+2}'); p(f'v_max_u32 v252, v252, v{b_+3}')
            else:
                p(f'v_max3_u32 v252, v252, v{b_}, v{b_+1}'); p(f'v_max3_u32 v252, v252, v{b_+2}, v{b_+3}')
        p('v_cmp_eq_u32 vcc, -1, v252')
        p('s_cbranch_vccz L_rx_ok')
        if SSLEEP: p(f's_sleep {SSLEEP}')
        p('s_sub_u32 s9, s9, 1')
        p('s_cmp_lg_u32 s9, 0')
        p('s_cbranch_scc1 L_rx')
        p('L_rx_ok:')
        dstamp(p, 9); dstamp(p, 10)
    else:
        if not (DEFER and FSPLIT < 2*DEFER):
            p('s_waitcnt vmcnt(0)')
            p('s_mov_b64 exec, 1')
            p(f'buffer_store_dwordx2 v[254:255], v253, s[52:55], s42 offen {FLAGF}')
        dstamp(p, 9)
        p('s_lshl_b32 s14, 1, s10'); p('s_xor_b32 s14, s14, 15'); p('s_mov_b32 s15, 0')
        if PSRC and not PF32:
            p('s_mov_b64 exec, s[14:15]')
            p(f'buffer_load_dwordx2 v[250:251], v248, s[52:55], s40 offen {POLLF}')
            p('s_waitcnt vmcnt(0)')
            p('v_cmp_gt_u64 vcc, s[96:97], v[250:251]')
            p('v_cmp_lt_u64 s[100:101], s[98:99], v[250:251]')
            p('s_mov_b64 exec, -1')
            p('s_or_b64 s[14:15], vcc, s[100:101]')
            def part(i, lbl, want):
                p(f's_xor_b32 s13, s10, {i}')
                p('s_bitcmp1_b32 s14, s13')
                p(f's_cbranch_scc{0 if want else 1} {lbl}')
                for k in (2*(i-1), 2*(i-1)+1):
                    p(f'buffer_load_dwordx4 {vr(R+4*k)}, v9, s[52:55], s{(39, 43, 48)[k//4]} offen offset:{(k%4)*1024} sc1')
                p(f'{lbl}:')
            for i in (1, 2, 3): part(i, f'L_e{i}', 0)
            p('s_cmp_eq_u32 s14, 0')
            p('s_cbranch_scc1 L_allin')
            poll_flags(p, 'L_pf2', 248, 250, 's40', 's[14:15]')
            for i in (1, 2, 3): part(i, f'L_l{i}', 1)
            p('L_allin:')
            dstamp(p, 10)
            p('s_waitcnt vmcnt(0)')
        else:
            poll_flags(p, 'L_pf2', 248, 250, 's40', 's[14:15]')
            dstamp(p, 10)
            loads()
    for i in range(3):
        if PF32:
            if not SENT: p(f's_waitcnt vmcnt({nld - 4*(i+1)})')
            for t in range(4):
                for r in range(4):
                    p(f'v_add_f32 v{A2(0,t)+r}, v{A2(0,t)+r}, v{R+16*i+4*t+r}')
        else:
            if not SENT and not TAGS: p(f's_waitcnt vmcnt({nld - 2*(i+1)})')
            for t in range(4):
                for r2 in range(2):
                    src = R + 8*i + 2*t + r2
                    if TAGS:
                        k = 2*t + r2; src = R + 12*i + 4*(k//3) + k%3
                    p(f'v_lshlrev_b32 v250, 16, v{src}')
                    p(f'v_and_b32 v251, 0xffff0000, v{src}')
                    p(f'v_add_f32 v{A2(0,t)+2*r2}, v{A2(0,t)+2*r2}, v250')
                    p(f'v_add_f32 v{A2(0,t)+2*r2+1}, v{A2(0,t)+2*r2+1}, v251')
    if WIDE:
        for v in range(2):
            a = A2(0, 2*v)
            for x in cvt4(a, a, A2(0, 2*v+1)): p(x)
            p(f'v_permlane16_swap_b32 v{a}, v{a+2}')
            p(f'v_permlane16_swap_b32 v{a+1}, v{a+3}')
            p(f'buffer_store_dwordx4 {vr(a)}, v7, s[44:47], s41 offen offset:{v*64} {OUTF}')
    else:
        for t in range(4):
            a = A2(0, t)
            p(f'v_cvt_pk_bf16_f32 v{a}, v{a}, v{a+1}')
            p(f'v_cvt_pk_bf16_f32 v{a+1}, v{a+2}, v{a+3}')
            p(f'buffer_store_dwordx2 {vr(a,2)}, v7, s[44:47], s41 offen offset:{t*32} {OUTF}')
    if STAMPS:
        p('s_waitcnt vmcnt(0)')
        dstamp(p, 11)
    p('L_cdone:')
    flush_stamps(p, 12, 0, 0, 'L_fsC')
    p('L_end:')
    p('s_endpgm')
    return p.finalize()


DOC = """; ---------------------------------------------------------------------------------------------
; ---------------------------------------------------------------------------------------------
"""

if __name__ == '__main__':
    out = HDR
    out += '; @launch grid=(256,1,1) block=(512,1,1) lds=163840\n'
    out += DOC
    out += '.amdgcn_target "amdgcn-amd-amdhsa--gfx950"\n.text\n'
    out += gen() + '\n'
    out += '.section .rodata,"a"\n' + kd(NAME + '_kernel', 256, 102)
    print(out)
```
